```python
import torch

def _softmax(x, axis=-1):
    return torch.softmax(x, dim=axis)
def _gelu(x):
    return torch.nn.functional.gelu(x, approximate="tanh")
def _silu(x):
    return torch.nn.functional.silu(x)
def _sigmoid(x):
    return torch.sigmoid(x)
def _layernorm(x, axis=-1, eps=1e-5):
    m = x.mean(dim=axis, keepdim=True)
    v = x.var(dim=axis, keepdim=True, unbiased=False)
    return (x - m) / torch.sqrt(v + eps)
def _scatter_add(tgt, idx, src, axis=0):
    return tgt.clone().index_add_(axis, idx, src)
def _segment_sum(src, seg, n):
    out = torch.zeros((n,) + src.shape[1:], dtype=src.dtype)
    return out.index_add_(0, seg, src)
def _pad(x, pw):
    flat = tuple(v for pair in reversed(pw) for v in pair)
    return torch.nn.functional.pad(x, flat)

kernel_name = 'sequential_preLN__ssm_conv_s4__mixer_token_mlp__prompt'

def setup_inputs():

    _w = (lambda a: (lambda t: t.to(torch.bfloat16) if t.is_floating_point() else t)(torch.as_tensor(a)))
    def _A_setup():
        B, L, D, N = 1, 2048, 512, 128
        A_re = -(lambda _x: torch.exp(torch.as_tensor(_x)))((lambda *s: torch.randn(*s, dtype=torch.bfloat16) * 6.4)(D, N))
        A_im = torch.pi * (lambda *s: torch.randn(*s, dtype=torch.bfloat16) * 0.05)(D, N)
        B_re = (lambda *s: torch.randn(*s, dtype=torch.bfloat16) * 0.1)(D, N)
        B_im = (lambda *s: torch.randn(*s, dtype=torch.bfloat16) * 0.1)(D, N)
        C_re = (lambda *s: torch.randn(*s, dtype=torch.bfloat16) * 0.1)(D, N)
        C_im = (lambda *s: torch.randn(*s, dtype=torch.bfloat16) * 0.1)(D, N)
        log_dt = (lambda *s: torch.randn(*s, dtype=torch.bfloat16) * 0.05)(D) * 0.5 - 4.0
        Dskip = (lambda *s: torch.randn(*s, dtype=torch.bfloat16) * 0.05)(D)
        return {
            "u": _w((lambda *s: torch.randn(*s, dtype=torch.bfloat16) * 0.05)(B, L, D)),
            "A_re": _w(A_re),
            "A_im": _w(A_im),
            "B_re": _w(B_re),
            "B_im": _w(B_im),
            "C_re": _w(C_re),
            "C_im": _w(C_im),
            "log_dt": _w(log_dt),
            "Dskip": _w(Dskip),
        }
    _A_in = _A_setup()

    def _B_setup():
        B, S, D, F = 1, 2048, 512, 1792
        return {
            "x": _w((lambda *s: torch.randn(*s, dtype=torch.bfloat16) * 0.05)(B, S, D)),
            "w1": _w((lambda *s: torch.randn(*s, dtype=torch.bfloat16) * 0.4)(S, F) * (S ** -0.5)),
            "b1": _w((lambda *s: torch.randn(*s, dtype=torch.bfloat16) * 0.1)(F) * 0.02),
            "w2": _w((lambda *s: torch.randn(*s, dtype=torch.bfloat16) * 0.1)(F, S) * (F ** -0.5)),
            "b2": _w((lambda *s: torch.randn(*s, dtype=torch.bfloat16) * 0.1)(S) * 0.02),
        }
    _B_in = _B_setup()

    return {
        "A_u": _A_in["u"],
        "A_A_re": _A_in["A_re"],
        "A_A_im": _A_in["A_im"],
        "A_B_re": _A_in["B_re"],
        "A_B_im": _A_in["B_im"],
        "A_C_re": _A_in["C_re"],
        "A_C_im": _A_in["C_im"],
        "A_log_dt": _A_in["log_dt"],
        "A_Dskip": _A_in["Dskip"],
        "B_x": _B_in["x"],
        "B_w1": _B_in["w1"],
        "B_b1": _B_in["b1"],
        "B_w2": _B_in["w2"],
        "B_b2": _B_in["b2"],
    }

def reference(A_u, A_A_re, A_A_im, A_B_re, A_B_im, A_C_re, A_C_im, A_log_dt, A_Dskip, B_x, B_w1, B_b1, B_w2, B_b2):
    def _A_ref(u, A_re, A_im, B_re, B_im, C_re, C_im, log_dt, Dskip):
        Bsz, L, D = u.shape
        dt = torch.exp(log_dt)[:, None]
        A = A_re + 1j * A_im
        Bc = B_re + 1j * B_im
        Cc = C_re + 1j * C_im
        logdA = dt * A
        dB = dt * Bc
        l = (lambda x, dt: x.to(dt))(torch.arange(L), A_re.dtype)
        P = torch.exp(logdA[:, :, None] * l[None, None, :])
        K = torch.einsum("dn,dnl,dn->dl", Cc, P, dB).real
        L2 = 2 * L
        Kp = _pad(K, ((0, 0), (0, L)))
        up = (lambda x, *d: x.permute(*d))(u, 0, 2, 1)
        up = _pad(up, ((0, 0), (0, 0), (0, L)))
        Kf = (lambda x, axes=(-2,-1): torch.fft.rfft2(x.float(), dim=axes))(Kp[:, None, :], axes=(-2, -1))
        Uf = (lambda x, axes=(-2,-1): torch.fft.rfft2(x.float(), dim=axes))(up[:, :, None, :], axes=(-2, -1))
        Yf = Uf * Kf[None, :, :, :]
        y = (lambda x, s, axes=(-2,-1): torch.fft.irfft2(x, s=s, dim=axes).to(torch.bfloat16))(Yf, (1, L2), axes=(-2, -1))[:, :, 0, :L]
        y = (lambda x, *d: x.permute(*d))(y, 0, 2, 1) + u * Dskip[None, None, :]
        return y

    def _B_ref(x, w1, b1, w2, b2):
        B, S, D = x.shape
        h = _layernorm(x, axis=-1)
        u = torch.einsum("bsd,sf->bdf", h, w1) + b1
        u = _gelu(u)
        y = torch.einsum("bdf,fs->bds", u, w2) + b2
        return (lambda x, *d: x.permute(*d))(y, 0, 2, 1)

    x = A_u
    h = x + _A_ref(_layernorm(x, axis=-1), A_A_re, A_A_im, A_B_re, A_B_im, A_C_re, A_C_im, A_log_dt, A_Dskip)
    h2 = h + _B_ref(_layernorm(h, axis=-1), B_w1, B_b1, B_w2, B_b2)
    return h2
```

```python
import re

REG_RE = re.compile(r'^(-|abs\()?\s*([vas])(\d+|\[(\d+):(\d+)\])\)?$')

def parse_reg(tok):
    tok = tok.strip()
    if tok.startswith('-'): tok = tok[1:]
    if tok.startswith('abs(') and tok.endswith(')'): tok = tok[4:-1]
    if tok.startswith('|') and tok.endswith('|'): tok = tok[1:-1]
    if tok == 'vcc': return [('s', 106), ('s', 107)]
    if tok == 'vcc_lo': return [('s', 106)]
    if tok == 'vcc_hi': return [('s', 107)]
    if tok == 'exec': return [('s', 126), ('s', 127)]
    if tok == 'exec_lo': return [('s', 126)]
    if tok == 'exec_hi': return [('s', 127)]
    if tok == 'm0': return [('s', 124)]
    m = re.match(r'^([vas])(\d+)$', tok)
    if m: return [(m.group(1), int(m.group(2)))]
    m = re.match(r'^([vas])\[(\d+):(\d+)\]$', tok)
    if m: return [(m.group(1), i) for i in range(int(m.group(2)), int(m.group(3)) + 1)]
    return []

TRANS = ('v_exp_f32', 'v_log_f32', 'v_rcp_f32', 'v_rsq_f32', 'v_sqrt_f32', 'v_sin_f32', 'v_cos_f32', 'v_rcp_iflag_f32')

class Ins:
    def __init__(self, text):
        self.text = text
        t = text.split(';')[0].strip()
        self.is_label = t.endswith(':')
        self.is_dir = t.startswith('.') and not self.is_label
        self.empty = (t == '')
        self.op = ''
        self.ops = []
        self.mods = ''
        if self.is_label or self.is_dir or self.empty:
            self.label = t[:-1] if self.is_label else None
            return
        parts = t.split(None, 1)
        self.op = parts[0]
        rest = parts[1] if len(parts) > 1 else ''
        toks, depth, cur = [], 0, ''
        for ch in rest:
            if ch in '[(': depth += 1
            if ch in '])': depth -= 1
            if ch == ',' and depth == 0:
                toks.append(cur.strip()); cur = ''
            else: cur += ch
        if cur.strip(): toks.append(cur.strip())
        if toks:
            last = toks[-1].split(None, 1)
            toks[-1] = last[0]
            self.mods = last[1] if len(last) > 1 else ''
        self.ops = toks
        self.classify()

    def classify(self):
        op, ops = self.op, self.ops
        R = lambda i: parse_reg(ops[i]) if i < len(ops) else []
        allr = lambda a: [r for i in a for r in R(i)]
        n = len(ops)
        self.kind = 'other'
        self.wr, self.rd = [], []
        self.srcC = []; self.srcAB = []
        self.dpp = ('row_' in self.mods or 'quad_perm' in self.mods or 'wave_' in self.mods or op.endswith('_dpp'))
        base = re.sub(r'_(e32|e64|dpp|sdwa)$', '', op)
        self.base = base
        if op.startswith('v_mfma'):
            self.kind = 'mfma'
            self.wr = R(0); self.srcAB = R(1) + R(2); self.srcC = R(3); self.rd = self.srcAB + self.srcC
            self.passes = 8 if '32x32' in op else 4
        elif op.startswith('v_'):
            self.kind = 'valu'
            if base.startswith('v_cmpx'):
                self.wr = R(0) + [('s', 126), ('s', 127)]; self.rd = allr(range(1, n))
            elif base.startswith('v_cmp'):
                self.wr = R(0); self.rd = allr(range(1, n))
            elif base in ('v_readlane_b32', 'v_readfirstlane_b32'):
                self.wr = R(0); self.rd = allr(range(1, n))
            elif base in ('v_permlane32_swap_b32', 'v_permlane16_swap_b32', 'v_swap_b32'):
                self.wr = R(0) + R(1); self.rd = R(0) + R(1)
            elif base in ('v_add_co_u32', 'v_sub_co_u32', 'v_subrev_co_u32'):
                self.wr = R(0) + R(1); self.rd = allr(range(2, n))
            elif base in ('v_addc_co_u32', 'v_subb_co_u32'):
                self.wr = R(0) + R(1); self.rd = allr(range(2, n))
            elif base in ('v_fmac_f32', 'v_dot2c_f32_bf16', 'v_pk_fmac_f16', 'v_writelane_b32', 'v_fmac_f16'):
                self.wr = R(0); self.rd = allr(range(0, n))
            elif base == 'v_cndmask_b32':
                self.wr = R(0); self.rd = allr(range(1, n))
                if n == 3: self.rd += parse_reg('vcc')
            elif base == 'v_nop':
                pass
            else:
                self.wr = R(0); self.rd = allr(range(1, n))
                if 'dst_unused:UNUSED_PRESERVE' in self.mods or self.dpp: self.rd += R(0)
            self.trans = base in TRANS
        elif op.startswith('ds_'):
            self.kind = 'ds'
            if op.startswith('ds_read') or op.startswith('ds_bpermute') or op.startswith('ds_permute') or op.startswith('ds_swizzle'):
                self.wr = R(0); self.rd = allr(range(1, n))
                if 'd16' in op: self.rd += R(0)
            else:
                self.rd = allr(range(0, n))
        elif op.startswith('buffer_') or op.startswith('global_'):
            self.kind = 'vmem'
            lds = (' lds' in (' ' + self.mods)) or ('_lds_' in op)
            self.lds = lds
            self.store = ('store' in op) or ('atomic' in op)
            if op in ('buffer_inv', 'buffer_wbl2'):
                pass
            elif op.startswith('buffer_'):
                if lds: self.rd = allr(range(0, n)) + [('s', 124)]
                elif 'load' in op:
                    self.wr = R(0); self.rd = allr(range(1, n))
                    if 'd16' in op: self.rd += R(0)
                else:
                    self.rd = allr(range(0, n)); self.data = R(0)
                    if 'atomic' in op and 'sc0' in self.mods: self.wr = R(0)
            else:
                if lds: self.rd = allr(range(0, n)) + [('s', 124)]
                elif 'load' in op:
                    self.wr = R(0); self.rd = allr(range(1, n))
                    if 'd16' in op: self.rd += R(0)
                elif 'atomic' in op and 'sc0' in self.mods:
                    self.wr = R(0); self.rd = allr(range(1, n)); self.data = R(2)
                else:
                    self.rd = allr(range(0, n)); self.data = R(1)
            self.wide_store = self.store and ('x4' in op or 'x3' in op)
        elif op.startswith('s_'):
            self.kind = 'salu'
            if op in ('s_nop', 's_waitcnt', 's_barrier', 's_endpgm', 's_branch', 's_sleep', 's_setprio') or op.startswith('s_cbranch'):
                if op == 's_cbranch_vccz' or op == 's_cbranch_vccnz': self.rd = parse_reg('vcc')
                if op == 's_cbranch_execz' or op == 's_cbranch_execnz': self.rd = parse_reg('exec')
            elif op.startswith('s_cmp') or op.startswith('s_bitcmp'):
                self.rd = allr(range(0, n))
            elif op.startswith('s_load') or op.startswith('s_buffer_load') or op in ('s_memtime', 's_memrealtime'):
                self.kind = 'smem'; self.wr = R(0); self.rd = allr(range(1, n))
            elif 'saveexec' in op:
                self.wr = R(0) + parse_reg('exec'); self.rd = allr(range(1, n)) + parse_reg('exec')
            else:
                self.wr = R(0); self.rd = allr(range(1, n))
                if op in ('s_addk_i32', 's_mulk_i32'): self.rd += R(0)

    def states(self):
        if self.is_label or self.is_dir or self.empty: return 0
        if self.op == 's_nop': return int(self.ops[0], 0) + 1
        return 1

def need(prod, cons):
    n = 0
    pw = set(prod.wr); cr = set(cons.rd); cw = set(cons.wr)
    isv = lambda r: r[0] in 'va'
    if prod.kind == 'valu':
        vw = {r for r in pw if isv(r)}
        sw = {r for r in pw if r[0] == 's'}
        if cons.kind == 'mfma' and vw & cr: n = max(n, 2)
        if cons.kind == 'valu':
            if cons.base.startswith('v_permlane') and vw & cr: n = max(n, 2)
            if cons.dpp and vw & cr: n = max(n, 2)
            if cons.base in ('v_readlane_b32', 'v_readfirstlane_b32') and vw & cr: n = max(n, 1)
            if prod.trans and not cons.trans and vw & cr: n = max(n, 1)
            if prod.trans and cons.trans and vw & cr: n = max(n, 1)
            if sw & cr:
                if cons.base in ('v_readlane_b32', 'v_writelane_b32'): n = max(n, 4)
                else: n = max(n, 2)
            if 'sdwa' in prod.op or 'op_sel' in prod.mods and not prod.op.startswith('v_pk'):
                if vw & (cr | cw): n = max(n, 1)
            if ('s', 126) in sw:
                if cons.dpp: n = max(n, 5)
                if cons.base in ('v_readlane_b32', 'v_readfirstlane_b32', 'v_writelane_b32') or cons.base.startswith('v_permlane'): n = max(n, 4)
        if cons.kind == 'mfma' and ('s', 126) in sw: n = max(n, 4)
        if cons.kind == 'vmem' and sw & cr: n = max(n, 5)
        if cons.kind == 'salu' and sw & cr:
            if cons.op in ('s_cbranch_vccz', 's_cbranch_vccnz', 's_cbranch_execz', 's_cbranch_execnz'): n = max(n, 5)
            else: n = max(n, 3)
        if cons.kind == 'smem' and sw & cr: n = max(n, 5)
    if prod.kind == 'mfma':
        p = prod.passes
        d = pw
        if cons.kind == 'mfma':
            if d & set(cons.srcAB): n = max(n, 8 if p == 4 else 12)
            c = set(cons.srcC)
            if d & c:
                if c == d and cons.passes == p: pass
                else: n = max(n, 6 if p == 4 else 10)
            if (d & cw) and not (cw == d and set(cons.srcC) == d):
                n = max(n, 6 if p == 4 else 10)
        elif cons.kind in ('valu', 'vmem', 'ds'):
            if d & (cr | cw): n = max(n, 8 if p == 4 else 12)
        if cons.kind == 'valu' and set(prod.srcC) & cw: n = max(n, 3 if p == 4 else 7)
    if prod.kind == 'vmem' and getattr(prod, 'wide_store', False):
        dd = set(prod.data)
        if dd & cw: n = max(n, 2 if cons.kind == 'valu' else 1)
    if prod.kind == 'salu':
        if ('s', 124) in pw and cons.kind == 'vmem' and getattr(cons, 'lds', False): n = max(n, 1)
        if ('s', 126) in pw or ('s', 127) in pw:
            if cons.kind == 'valu' and (cons.dpp or cons.base.startswith('v_permlane')): n = max(n, 2)
            if cons.kind == 'mfma': n = max(n, 2)
    return n

WINDOW = 20

class Asm:
    def __init__(self):
        self.lines = []
    def __call__(self, s):
        for l in s.split('\n'):
            l = l.strip()
            if l: self.lines.append(l)
    def label(self, name): self.lines.append(name + ':')
    def comment(self, s): self.lines.append('; ' + s)

    def finalize(self):
        ins = [Ins(l) for l in self.lines]
        out = []
        def dist_need(hist, c):
            extra = 0; d = 0
            for p in reversed(hist):
                if p.is_label or p.is_dir or p.empty: continue
                r = need(p, c)
                if r > d: extra = max(extra, r - d)
                d += p.states()
                if d > WINDOW: break
            return extra
        for c in ins:
            if not (c.is_label or c.is_dir or c.empty):
                e = dist_need(out[-60:], c)
                while e > 0:
                    k = min(e, 16)
                    out.append(Ins('s_nop %d' % (k - 1))); e -= k
            out.append(c)
        labels = {c.label: i for i, c in enumerate(out) if c.is_label}
        errs = []
        for i, c in enumerate(out):
            if c.op.startswith('s_cbranch') or c.op == 's_branch':
                tgt = c.ops[0]
                if tgt not in labels: continue
                j = labels[tgt]
                hist = [x for x in out[max(0, i - 60):i + 1]]
                k = j
                cnt = 0
                while k < len(out) and cnt < WINDOW:
                    x = out[k]
                    if not (x.is_label or x.is_dir or x.empty):
                        e = dist_need(hist, x)
                        if e > 0: errs.append('hazard across branch %s -> %s at "%s": needs %d more' % (c.text, tgt, x.text, e))
                        cnt += x.states()
                        if x.op in ('s_endpgm', 's_branch'): break
                    hist.append(x); k += 1
        if errs: raise RuntimeError('\n'.join(errs))
        return '\n'.join(('' if (x.is_label or x.is_dir) else '    ') + x.text for x in out) + '\n'
```

```python
from asmlib import Asm
NAME = "sequential_preLN__ssm_conv_s4__mixer_token_mlp__prompt"
KA = dict(x=0, A_re=8, A_im=16, B_re=24, B_im=32, C_re=40, C_im=48, log_dt=56, Dskip=64, Bx=72, w1=80, b1=88, w2=96, b2=104, out=112, dbg=120, ws=128)
U2_OFF = 0x000000; U2_SZ = 0x200000
KT_STRIDE = 4160
KT_OFF = 0x200000; KT_SZ = 512 * KT_STRIDE
KS_OFF = 0x410000; KS_SZ = 2048
YA_OFF = 0x420000; YA_SZ = 0x200000
H_OFF = 0x620000; H_SZ = 0x200000
HN_OFF = 0x820000; HN_SZ = 0x200000
G2_OFF = 0xA20000; G2_SZ = 112 * 2 * 512 * 16
SYNC_OFF = 0xC00000
W2R_OFF = 0x1000000; W2R_TILE = 1792 * 128; W2R_SZ = 32 * W2R_TILE

LOG2E = 0x3fb8aa3b
LOG2E_LO = 0x32a57060
LN2 = 0x3f317218
INV2PI = 0x3e22f983
EPS = 0x3727c5ac
INV512 = 0x3b000000

def srd(a, s, base_lo, base_hi, off, size):
    if off:
        a(f"s_add_u32 s{s}, s{base_lo}, {off}")
        a(f"s_addc_u32 s{s+1}, s{base_hi}, 0")
    else:
        a(f"s_mov_b32 s{s}, s{base_lo}")
        a(f"s_mov_b32 s{s+1}, s{base_hi}")
    a(f"s_mov_b32 s{s+2}, {size}")
    a(f"s_mov_b32 s{s+3}, 0x20000")

def kernel_header(a, name):
    a.lines.append(".text")
    a.lines.append(f".globl {name}")
    a.lines.append(".p2align 8")
    a.lines.append(f".type {name},@function")
    a.label(name)

def kernel_desc(name, vgpr, sgpr, accum=None):
    import common
    if common.STAMP: sgpr = 102
    if accum is None: accum = (vgpr + 3) // 4 * 4
    return f""".section .rodata,"a"
.p2align 6
.amdhsa_kernel {name}
  .amdhsa_next_free_vgpr {vgpr}
  .amdhsa_next_free_sgpr {sgpr}
  .amdhsa_accum_offset {accum}
  .amdhsa_group_segment_fixed_size 0
  .amdhsa_kernarg_size 136
  .amdhsa_user_sgpr_count 2
  .amdhsa_user_sgpr_kernarg_segment_ptr 1
  .amdhsa_system_sgpr_workgroup_id_x 1
  .amdhsa_float_denorm_mode_32 3
.end_amdhsa_kernel
"""

def bf16_round(a, d, s, tmp=None):
    a(f"v_cvt_pk_bf16_f32 v{d}, v{s}, v{s}")
    a(f"v_lshlrev_b32 v{d}, 16, v{d}")

def reduce4(a, S0, S1, Q0, Q1):
    a(f"v_permlane32_swap_b32 v{S0}, v{S1}")
    a(f"v_permlane32_swap_b32 v{Q0}, v{Q1}")
    a(f"v_add_f32 v{S0}, v{S0}, v{S1}")
    a(f"v_add_f32 v{Q0}, v{Q0}, v{Q1}")
    a(f"v_permlane16_swap_b32 v{S0}, v{Q0}")
    a(f"v_add_f32 v{S0}, v{S0}, v{Q0}")
    for r in (8, 4, 2, 1):
        a(f"v_add_f32_dpp v{S0}, v{S0}, v{S0} row_ror:{r} row_mask:0xf bank_mask:0xf")
    a(f"v_mov_b32 v{S1}, v{S0}")
    a(f"v_permlane16_swap_b32 v{S0}, v{S1}")

def ln_stats(a, S, Q, t0, t1, sm, sr):
    a(f"v_mul_f32 v{S}, s90, v{S}")
    a(f"v_mul_f32 v{Q}, s90, v{Q}")
    a(f"v_fma_f32 v{Q}, -v{S}, v{S}, v{Q}")
    a(f"v_max_f32 v{Q}, 0, v{Q}")
    a(f"v_cvt_pk_bf16_f32 v{t0}, v{S}, v{Q}")
    a(f"v_lshlrev_b32 v{S}, 16, v{t0}")
    a(f"v_and_b32 v{Q}, 0xffff0000, v{t0}")
    a(f"v_add_f32 v{Q}, s91, v{Q}")
    bf16_round(a, Q, Q)
    a(f"v_sqrt_f32 v{Q}, v{Q}")
    bf16_round(a, Q, Q)
    a(f"v_rcp_f32 v{Q}, v{Q}")
    a(f"v_readlane_b32 s{sm}, v{S}, 0")
    a(f"v_readlane_b32 s{sm+1}, v{S}, 32")
    a(f"v_readlane_b32 s{sr}, v{Q}, 0")
    a(f"v_readlane_b32 s{sr+1}, v{Q}, 32")

def pair_sums(a, P, n, S, Q, T):
    a(f"v_pk_add_f32 v[{S}:{S+1}], v[{P}:{P+1}], v[{P+2}:{P+3}]")
    a(f"v_pk_mul_f32 v[{Q}:{Q+1}], v[{P}:{P+1}], v[{P}:{P+1}]")
    a(f"v_pk_add_f32 v[{T}:{T+1}], v[{P+4}:{P+5}], v[{P+6}:{P+7}]")
    a(f"v_pk_mul_f32 v[{T+2}:{T+3}], v[{P+2}:{P+3}], v[{P+2}:{P+3}]")
    for c in range(2, n):
        dst = Q if c % 2 == 0 else T + 2
        a(f"v_pk_fma_f32 v[{dst}:{dst+1}], v[{P+2*c}:{P+2*c+1}], v[{P+2*c}:{P+2*c+1}], v[{dst}:{dst+1}]")
        if c >= 4:
            dst = S if c % 2 == 0 else T
            a(f"v_pk_add_f32 v[{dst}:{dst+1}], v[{dst}:{dst+1}], v[{P+2*c}:{P+2*c+1}]")
    a(f"v_pk_add_f32 v[{S}:{S+1}], v[{S}:{S+1}], v[{T}:{T+1}]")
    a(f"v_pk_add_f32 v[{Q}:{Q+1}], v[{Q}:{Q+1}], v[{T+2}:{T+3}]")

def unpack_pairs(a, P, A, B):
    for i in range(4):
        a(f"v_lshlrev_b32 v{P+4*i}, 16, v{A+i}")
        a(f"v_lshlrev_b32 v{P+4*i+1}, 16, v{B+i}")
        a(f"v_and_b32 v{P+4*i+2}, 0xffff0000, v{A+i}")
        a(f"v_and_b32 v{P+4*i+3}, 0xffff0000, v{B+i}")

def ln_apply(a, P, n, sm, sr, D):
    for c in range(n):
        a(f"v_pk_add_f32 v[{P+2*c}:{P+2*c+1}], v[{P+2*c}:{P+2*c+1}], s[{sm}:{sm+1}] neg_lo:[0,1] neg_hi:[0,1]")
    for c in range(n):
        a(f"v_cvt_pk_bf16_f32 v{D+c}, v{P+2*c}, v{P+2*c+1}")
    for c in range(n):
        a(f"v_lshlrev_b32 v{P+2*c}, 16, v{D+c}")
        a(f"v_and_b32 v{P+2*c+1}, 0xffff0000, v{D+c}")
    for c in range(n):
        a(f"v_pk_mul_f32 v[{P+2*c}:{P+2*c+1}], v[{P+2*c}:{P+2*c+1}], s[{sr}:{sr+1}]")
    for c in range(n):
        a(f"v_cvt_pk_bf16_f32 v{D+c}, v{P+2*c}, v{P+2*c+1}")

def unpack_packed(a, P, n, D):
    for c in range(n):
        a(f"v_lshlrev_b32 v{P+2*c}, 16, v{D+c}")
        a(f"v_and_b32 v{P+2*c+1}, 0xffff0000, v{D+c}")

TS_OFF = 0xE00000
STAMP = False
def stamp_begin(a):
    import common
    if not common.STAMP: return
    a("s_memrealtime s[98:99]")
def stamp(a, kidx, slot, wsreg, vt, first=False):
    import common
    if not common.STAMP: return
    if not first: a("s_memrealtime s[96:97]")
    a("s_waitcnt lgkmcnt(0)")
    a(f"s_lshl_b32 s94, s2, 8")
    a(f"s_add_u32 s94, s94, {TS_OFF + kidx*1024*256 + slot*4}")
    a(f"v_mov_b32 v{vt}, s94")
    a(f"v_mov_b32 v{vt+1}, s{98 if first else 96}")
    a(f"global_store_dword v{vt}, v{vt+1}, s[{wsreg}:{wsreg+1}]")

def STAMPON():
    import common
    return common.STAMP

def touch_weights(a, which, sid, swave, vlane, vt, ptr, dst):
    lpr = 7 if which == 1 else 8
    row = 3584 if which == 1 else 4096
    a(f"s_and_b32 s84, s{sid}, 7")
    a(f"s_lshr_b32 s84, s84, 1")
    a(f"s_mul_i32 s84, s84, {lpr*128}")
    a(f"s_lshr_b32 s85, s{sid}, 3")
    a(f"s_lshl_b32 s85, s85, 2")
    a(f"s_add_u32 s85, s85, s{swave}")
    a(f"s_mul_i32 s85, s85, 112")
    for k in range(2):
        a(f"v_add_u32 v{vt}, s85, v{vlane}")
        if k == 1:
            a(f"v_add_u32 v{vt}, 64, v{vt}")
            a(f"s_add_u32 s86, s85, 111")
            a(f"v_min_u32 v{vt}, s86, v{vt}")
        if which == 1:
            a(f"s_mov_b32 s87, 0x24924925")
            a(f"v_mul_hi_u32 v{vt+1}, v{vt}, s87")
            a(f"v_mul_u32_u24 v{vt+2}, 7, v{vt+1}")
            a(f"v_sub_u32 v{vt+2}, v{vt}, v{vt+2}")
        else:
            a(f"v_lshrrev_b32 v{vt+1}, 3, v{vt}")
            a(f"v_and_b32 v{vt+2}, 7, v{vt}")
        a(f"v_mul_u32_u24 v{vt+1}, {row}, v{vt+1}")
        a(f"v_lshl_add_u32 v{vt+1}, v{vt+2}, 7, v{vt+1}")
        a(f"v_add_u32 v{vt+1}, s84, v{vt+1}")
        a(f"buffer_load_dword v{dst+k}, v{vt+1}, s[{ptr}:{ptr+3}], 0 offen")

def stamp_clk(a, kidx, slot, wsreg, vt):
    import common
    if not common.STAMP: return
    a("s_memtime s[96:97]")
    a("s_waitcnt lgkmcnt(0)")
    a(f"s_lshl_b32 s94, s2, 8")
    a(f"s_add_u32 s94, s94, {TS_OFF + kidx*1024*256 + slot*4}")
    a(f"v_mov_b32 v{vt}, s94")
    a(f"v_mov_b32 v{vt+1}, s96")
    a(f"global_store_dword v{vt}, v{vt+1}, s[{wsreg}:{wsreg+1}]")

def stamp_xcc(a, kidx, slot, wsreg, vt):
    import common
    if not common.STAMP: return
    a("s_getreg_b32 s96, hwreg(HW_REG_XCC_ID)")
    a("s_add_u32 s96, s96, 100")
    a(f"s_lshl_b32 s94, s2, 8")
    a(f"s_add_u32 s94, s94, {TS_OFF + kidx*1024*256 + slot*4}")
    a(f"v_mov_b32 v{vt}, s94")
    a(f"v_mov_b32 v{vt+1}, s96")
    a(f"global_store_dword v{vt}, v{vt+1}, s[{wsreg}:{wsreg+1}]")
```

```python
from common import *
PREFETCH = True

G_ROW = 528
H_BASE = 21 * G_ROW
FT_BASE = H_BASE + 32 * G_ROW
K1_LDS = FT_BASE + 5120
FT_DUMMY = 2304

def cmul(a, D, P, W):
    a(f"v_pk_mul_f32 v[{D}:{D+1}], v[{P}:{P+1}], v[{W}:{W+1}] op_sel:[0,0] op_sel_hi:[0,1]")
    a(f"v_pk_fma_f32 v[{D}:{D+1}], v[{P}:{P+1}], v[{W}:{W+1}], v[{D}:{D+1}] op_sel:[1,1,0] op_sel_hi:[1,0,1] neg_lo:[1,0,0]")

def evalE(a, D, v, zr, zi, t, conj=False):
    import struct
    bits = struct.unpack('<I', struct.pack('<f', float(v)))[0]
    a(f"s_mov_b32 s80, {hex(bits)}")
    a(f"v_mul_f32 v{t}, s80, v{zr}")
    a(f"v_mul_f32 v{t+1}, s80, v{zi}")
    a(f"v_exp_f32 v{t}, v{t}")
    a(f"v_rndne_f32 v{t+2}, v{t+1}")
    a(f"v_sub_f32 v{t+1}, v{t+1}, v{t+2}")
    a(f"v_cos_f32 v{D}, v{t+1}")
    a(f"v_sin_f32 v{D+1}, v{t+1}")
    a(f"v_mul_f32 v{D}, v{D}, v{t}")
    if conj: a(f"v_mul_f32 v{D+1}, -v{D+1}, v{t}")
    else: a(f"v_mul_f32 v{D+1}, v{D+1}, v{t}")

def wave_max(a, X, T):
    for r in (8, 4, 2, 1):
        a(f"v_max_f32_dpp v{X}, v{X}, v{X} row_ror:{r} row_mask:0xf bank_mask:0xf")
    a(f"v_mov_b32 v{T}, v{X}")
    a(f"v_permlane16_swap_b32 v{X}, v{T}")
    a(f"v_max_f32 v{X}, v{X}, v{T}")
    a(f"v_mov_b32 v{T}, v{X}")
    a(f"v_permlane32_swap_b32 v{X}, v{T}")
    a(f"v_max_f32 v{X}, v{X}, v{T}")

def gen_ln1(a):
    srd(a, 8, 4, 5, 0, 0x200000)
    srd(a, 12, 6, 7, U2_OFF, U2_SZ)
    a("v_lshrrev_b32 v1, 6, v0")
    a("v_and_b32 v2, 63, v0")
    a("v_readfirstlane_b32 s21, v1")
    a("s_lshl_b32 s22, s20, 13")
    a("s_lshl_b32 s23, s21, 11")
    a("s_add_u32 s23, s23, s22")
    a("v_lshlrev_b32 v3, 4, v2")
    a("buffer_load_dwordx4 v[4:7], v3, s[8:11], s23 offen")
    a("buffer_load_dwordx4 v[8:11], v3, s[8:11], s23 offen offset:1024")
    a("v_lshrrev_b32 v12, 3, v2")
    a("v_lshlrev_b32 v12, 10, v12")
    a("v_and_b32 v13, 7, v2")
    a("v_lshl_add_u32 v12, v13, 4, v12")
    a("s_lshl_b32 s24, s21, 2")
    a("s_add_u32 s24, s24, s22")
    a("s_or_b32 s25, s20, s21")
    a("s_cmp_lg_u32 s25, 0")
    a("s_cbranch_scc1 L_ln1_nozero")
    a("v_lshlrev_b32 v14, 7, v2")
    a(f"v_add_u32 v14, {SYNC_OFF}, v14")
    a("v_mov_b32 v15, 0")
    a("global_store_dword v14, v15, s[6:7]")
    a.label("L_ln1_nozero")
    a(f"s_mov_b32 s90, {INV512}")
    a(f"s_mov_b32 s91, {EPS}")
    a("s_waitcnt vmcnt(0)")
    unpack_pairs(a, 16, 4, 8)
    pair_sums(a, 16, 8, 32, 34, 36)
    reduce4(a, 32, 33, 34, 35)
    ln_stats(a, 32, 33, 36, 37, 26, 28)
    ln_apply(a, 16, 8, 26, 28, 40)
    unpack_packed(a, 16, 8, 40)
    for c in range(8):
        a(f"v_cvt_pk_f16_f32 v{40+c}, v{16+2*c}, v{17+2*c}")
    for c in range(8):
        a(f"buffer_store_dword v{40+c}, v12, s[12:15], s24 offen offset:{c*128}")
    if PREFETCH:
        a("s_load_dwordx2 s[30:31], s[0:1], 80")
        a("s_waitcnt lgkmcnt(0)")
        srd(a, 32, 30, 31, 0, 2048*3584)
        touch_weights(a, 1, 20, 21, 2, 50, 32, 60)
    a("s_waitcnt vmcnt(0)") if STAMPON() else None
    stamp(a, 0, 1, 6, 100)
    a("s_endpgm")

def gen_kgen(a):
    a("s_load_dwordx4 s[24:27], s[0:1], 8")
    a("s_load_dwordx4 s[28:31], s[0:1], 24")
    a("s_load_dwordx4 s[32:35], s[0:1], 40")
    a("s_load_dwordx2 s[36:37], s[0:1], 56")
    a("s_and_b32 s21, s20, 0x1c0")
    a("s_and_b32 s22, s20, 7")
    a("s_lshl_b32 s22, s22, 3")
    a("s_or_b32 s21, s21, s22")
    a("s_lshr_b32 s22, s20, 3")
    a("s_and_b32 s22, s22, 7")
    a("s_or_b32 s21, s21, s22")
    a("v_lshrrev_b32 v1, 6, v0")
    a("v_and_b32 v2, 63, v0")
    a("v_readfirstlane_b32 s23, v1")
    a("v_and_b32 v3, 127, v0")
    a("s_lshl_b32 s38, s21, 8")
    a("v_lshl_add_u32 v4, v3, 1, s38")
    a("v_xor_b32 v5, 128, v4")
    a("s_waitcnt lgkmcnt(0)")
    a("s_lshl_b32 s39, s21, 1")
    a("s_and_b32 s39, s39, 0xfffffffc")
    a("s_load_dword s40, s[36:37], s39")
    a("global_load_ushort v10, v4, s[24:25]")
    a("global_load_ushort v11, v4, s[26:27]")
    a("s_cmp_ge_u32 s23, 2")
    a("s_cbranch_scc1 L_kg_noCB")
    a("global_load_ushort v12, v4, s[28:29]")
    a("global_load_ushort v13, v4, s[30:31]")
    a("global_load_ushort v14, v4, s[32:33]")
    a("global_load_ushort v15, v4, s[34:35]")
    a("global_load_ushort v16, v5, s[28:29]")
    a("global_load_ushort v17, v5, s[30:31]")
    a("global_load_ushort v18, v5, s[32:33]")
    a("global_load_ushort v19, v5, s[34:35]")
    a.label("L_kg_noCB")
    a("v_lshlrev_b32 v6, 2, v3")
    a("s_waitcnt lgkmcnt(0)")
    a("s_bitcmp1_b32 s21, 0")
    a("s_cselect_b32 s41, 0, 16")
    a("s_lshl_b32 s40, s40, s41")
    a("s_and_b32 s40, s40, 0xffff0000")
    a(f"s_mov_b32 s42, {LOG2E}")
    a(f"s_mov_b32 s43, {LOG2E_LO}")
    a(f"s_mov_b32 s44, {LN2}")
    a("v_mov_b32 v20, s40")
    a("v_mul_f32 v21, s42, v20")
    a("v_fma_f32 v22, v20, s42, -v21")
    a("v_fmac_f32 v22, s43, v20")
    a("v_exp_f32 v21, v21")
    a("v_mul_f32 v22, s44, v22")
    a("v_fmac_f32 v21, v21, v22")
    bf16_round(a, 21, 21)
    a("s_waitcnt vmcnt(0)")
    a("v_lshlrev_b32 v10, 16, v10")
    a("v_lshlrev_b32 v11, 16, v11")
    a("v_mul_f32 v10, v21, v10")
    a("v_mul_f32 v11, v21, v11")
    a(f"s_mov_b32 s45, {INV2PI}")
    a("v_mul_f32 v10, s42, v10")
    a("v_mul_f32 v11, s45, v11")
    a("s_cmp_ge_u32 s23, 2")
    a("s_cbranch_scc1 L_kg_H")
    for r in range(12, 20): a(f"v_lshlrev_b32 v{r}, 16, v{r}")
    for (b, c0, out) in ((12, 14, 24), (16, 18, 26)):
        a(f"v_mul_f32 v{b}, v21, v{b}")
        a(f"v_mul_f32 v{b+1}, v21, v{b+1}")
        a(f"v_mul_f32 v{out}, v{c0}, v{b}")
        a(f"v_mul_f32 v{out+1}, v{c0}, v{b+1}")
        a(f"v_fma_f32 v{out}, -v{c0+1}, v{b+1}, v{out}")
        a(f"v_fmac_f32 v{out+1}, v{c0+1}, v{b}")
    a("v_max3_f32 v28, abs(v24), abs(v25), abs(v26)")
    a("v_max_f32 v28, v28, abs(v27)")
    wave_max(a, 28, 29)
    a("v_frexp_exp_i32_f32 v29, v28")
    a("v_sub_u32 v30, 0, v29")
    a("v_ldexp_f32 v24, v24, v30")
    a("v_ldexp_f32 v25, v25, v30")
    a("v_mov_b32 v31, 1.0")
    a("v_ldexp_f32 v31, v31, v29")
    a("s_cmp_lg_u32 s23, 0")
    a("s_cbranch_scc1 L_kg_noscale")
    a("s_lshl_b32 s46, s20, 2")
    a(f"s_add_u32 s46, s46, {KS_OFF}")
    a("v_mov_b32 v32, s46")
    a("v_cmp_eq_u32 vcc, 0, v2")
    a("s_and_saveexec_b64 s[48:49], vcc")
    a("global_store_dword v32, v31, s[6:7]")
    a("s_mov_b64 exec, s[48:49]")
    a.label("L_kg_noscale")
    W1, W256, W512, W1024 = 32, 34, 36, 38
    evalE(a, W1, 1, 10, 11, 40)
    evalE(a, W256, 256, 10, 11, 44)
    cmul(a, W512, W256, W256)
    cmul(a, W1024, W512, W512)
    g = lambda i: 48 + 2 * i
    a(f"v_mov_b32 v{g(0)}, v24")
    a(f"v_mov_b32 v{g(0)+1}, v25")
    rows = {}
    def emit_row(r, reg):
        t = 96 + (r % 8)
        a(f"v_cvt_pk_f16_f32 v{t}, v{reg}, v{reg+1}")
        a(f"ds_write_b32 v6, v{t} offset:{r*G_ROW}")
    emit_row(0, g(0))
    cmul(a, 64, g(0), W1024)
    cmul(a, 66, g(0), W512)
    cmul(a, g(1), g(0), W1)
    emit_row(16, 64); emit_row(12, 66)
    cmul(a, 68, 64, W256)
    cmul(a, 70, 66, W256)
    cmul(a, g(2), g(1), W1)
    cmul(a, 72, g(0), W256)
    emit_row(1, g(1)); emit_row(17, 68); emit_row(14, 70)
    cmul(a, 64, 68, W256)
    cmul(a, g(3), g(2), W1)
    cmul(a, 74, g(2), W256)
    emit_row(2, g(2)); emit_row(8, 72)
    cmul(a, 68, 64, W256)
    cmul(a, g(4), g(3), W1)
    emit_row(18, 64); emit_row(3, g(3)); emit_row(9, 74)
    cmul(a, 64, 68, W256)
    cmul(a, g(5), g(4), W1)
    cmul(a, 66, g(4), W512)
    cmul(a, 72, g(4), W256)
    emit_row(19, 68); emit_row(4, g(4))
    cmul(a, g(6), g(5), W1)
    cmul(a, 70, 66, W256)
    emit_row(20, 64); emit_row(5, g(5)); emit_row(13, 66); emit_row(10, 72)
    cmul(a, g(7), g(6), W1)
    cmul(a, 74, g(6), W256)
    emit_row(6, g(6)); emit_row(15, 70)
    emit_row(7, g(7)); emit_row(11, 74)
    a("s_branch L_kg_mm")
    a.label("L_kg_H")
    evalE(a, 32, 8, 10, 11, 40, conj=True)
    evalE(a, 50, 128, 10, 11, 44, conj=True)
    a("v_mov_b32 v48, 1.0")
    a("v_mov_b32 v49, 0")
    def emit_h(r, reg):
        t = 96 + (r % 8)
        a(f"v_cvt_pk_f16_f32 v{t}, v{reg}, v{reg+1}")
        a(f"ds_write_b32 v6, v{t} offset:{H_BASE + r*G_ROW}")
    A = [48, 52]; B = [50, 54]
    for i in range(16):
        ca, na = A[i % 2], A[(i + 1) % 2]
        cb, nb = B[i % 2], B[(i + 1) % 2]
        if i < 15:
            cmul(a, na, ca, 32)
            cmul(a, nb, cb, 32)
        emit_h(i, ca); emit_h(16 + i, cb)
    a.label("L_kg_mm")
    a("v_and_b32 v7, 15, v2")
    a("v_lshrrev_b32 v8, 4, v2")
    a(f"v_mul_u32_u24 v9, {G_ROW}, v7")
    a("v_lshl_add_u32 v9, v8, 4, v9")
    a("s_lshr_b32 s46, s23, 1")
    a("s_and_b32 s47, s23, 1")
    a(f"s_mul_i32 s48, s46, {16*G_ROW}")
    a(f"s_mul_i32 s49, s47, {16*G_ROW}")
    a(f"s_add_u32 s49, s49, {H_BASE}")
    a("v_add_u32 v10, s48, v9")
    a("v_add_u32 v11, s49, v9")
    a("s_lshl_b32 s50, s47, 4")
    a("v_add_u32 v16, s50, v7")
    a("v_lshlrev_b32 v16, 4, v16")
    a(f"v_add_u32 v16, {FT_BASE}, v16")
    a("v_lshlrev_b32 v17, 2, v8")
    for r in range(4):
        m0_q2 = 256 + 2 * r
        m0_q3 = 512 + 4 * (r & 1) + 256 * (r >> 1)
        m1_q0 = 1024 + 256 * r
        m1_q1 = 2048 if r == 0 else FT_DUMMY
        a(f"s_movk_i32 s55, {FT_DUMMY}")
        a("s_cmp_eq_u32 s46, 0")
        a(f"s_cselect_b32 s51, {m0_q2}, s55")
        a(f"s_cselect_b32 s52, {m0_q3}, s55")
        a(f"s_cselect_b32 s53, {r}, {m1_q0}")
        a(f"s_cselect_b32 s54, {4+r}, {m1_q1}")
        a(f"v_mov_b32 v{12+r}, s53")
        a("v_mov_b32 v18, s54")
        a("v_cmp_eq_u32 vcc, 1, v8")
        a(f"v_cndmask_b32 v{12+r}, v{12+r}, v18, vcc")
        a("v_mov_b32 v18, s51")
        a("v_cmp_eq_u32 vcc, 2, v8")
        a(f"v_cndmask_b32 v{12+r}, v{12+r}, v18, vcc")
        a("v_mov_b32 v18, s52")
        a("v_cmp_eq_u32 vcc, 3, v8")
        a(f"v_cndmask_b32 v{12+r}, v{12+r}, v18, vcc")
        a(f"v_lshl_add_u32 v{12+r}, v{12+r}, 1, v16")
    for r in range(4): a(f"v_mov_b32 v{20+r}, 0")
    a("s_waitcnt lgkmcnt(0)")
    a("s_barrier")
    for ks in range(8):
        a(f"ds_read_b128 v[{32+8*ks}:{35+8*ks}], v10 offset:{ks*64}")
        a(f"ds_read_b128 v[{36+8*ks}:{39+8*ks}], v11 offset:{ks*64}")
    for ks in range(8):
        a(f"s_waitcnt lgkmcnt({14-2*ks})")
        a(f"v_mfma_f32_16x16x32_f16 v[20:23], v[{32+8*ks}:{35+8*ks}], v[{36+8*ks}:{39+8*ks}], v[20:23]")
    a("v_cvt_pk_f16_f32 v24, v20, v21")
    a("v_cvt_pk_f16_f32 v25, v22, v23")
    a("ds_write_b16 v12, v24")
    a("ds_write_b16_d16_hi v13, v24")
    a("ds_write_b16 v14, v25")
    a("ds_write_b16_d16_hi v15, v25")
    a("v_lshlrev_b32 v26, 4, v0")
    a("v_sub_u32 v26, 4094, v26")
    for e in range(8):
        a(f"v_subrev_u32 v{28+e}, {2*e}, v26")
        a(f"v_cvt_f32_u32 v{28+e}, v{28+e}")
    for e in range(0, 8, 2):
        a(f"v_cvt_pk_bf16_f32 v{36+e//2}, v{28+e}, v{28+e+1}")
    for e in range(0, 8, 2):
        a(f"v_lshlrev_b32 v{28+e}, 16, v{36+e//2}")
        a(f"v_and_b32 v{28+e+1}, 0xffff0000, v{36+e//2}")
    for e in range(8):
        a(f"v_cvt_u32_f32 v{28+e}, v{28+e}")
    a("s_waitcnt lgkmcnt(0)")
    a("s_barrier")
    for e in range(8):
        a(f"ds_read_u16 v{52+e}, v{28+e} offset:{FT_BASE}")
    a(f"s_mul_i32 s46, s20, {KT_STRIDE}")
    a(f"s_add_u32 s46, s46, {KT_OFF}")
    a("v_lshlrev_b32 v44, 4, v0")
    a("v_add_u32 v44, s46, v44")
    a("s_waitcnt lgkmcnt(0)")
    for i in range(4):
        a(f"v_lshl_or_b32 v{40+i}, v{53+2*i}, 16, v{52+2*i}")
    a("global_store_dwordx4 v44, v[40:43], s[6:7]")
    a("v_mov_b32 v48, 0"); a("v_mov_b32 v49, 0"); a("v_mov_b32 v50, 0"); a("v_mov_b32 v51, 0")
    a("v_cmp_gt_u32 vcc, 4, v0")
    a("s_and_saveexec_b64 s[48:49], vcc")
    a("s_cbranch_execz L_kg_end")
    a("v_add_u32 v45, 4096, v44")
    a("global_store_dwordx4 v45, v[48:51], s[6:7]")
    a.label("L_kg_end")
    a("s_mov_b64 exec, -1")
    a("s_waitcnt vmcnt(0)") if STAMPON() else None
    stamp(a, 0, 1, 6, 100)
    a("s_endpgm")

def gen_k1(a, name):
    kernel_header(a, name)
    stamp_begin(a)
    a("s_cmp_ge_u32 s2, 768")
    a("s_cbranch_scc1 L_k1_exit")
    a("s_load_dwordx2 s[4:5], s[0:1], 0")
    a("s_load_dwordx2 s[6:7], s[0:1], 128")
    stamp(a, 0, 0, 6, 100, first=True)
    stamp_xcc(a, 0, 13, 6, 100)
    a("s_cmp_lt_u32 s2, 512")
    a("s_cbranch_scc1 L_k1_kgen")
    a("s_sub_u32 s20, s2, 512")
    a("s_waitcnt lgkmcnt(0)")
    gen_ln1(a)
    a.label("L_k1_kgen")
    a("s_mov_b32 s20, s2")
    gen_kgen(a)
    a.label("L_k1_exit")
    a("s_endpgm")
    return kernel_desc(name, 104, 96)
```

```python
from common import *
from k1 import cmul, wave_max, G_ROW, H_BASE, FT_BASE, FT_DUMMY
import struct

KNAME = NAME + "_kernel"
KG_CH = 27984 + 5888
KC_BASE = 2 * KG_CH
KC_STRIDE = 4160
KCH = 4 * KC_STRIDE
U_BASE = KC_BASE + 2 * KCH
U_CH = 95 * 80
LDS_TOTAL = 163840
FT_ZERO = 2060
RED_BYTES = 65536
D_RING = 8
S_WAVE, S_Q0 = 10, 11
SRD_X, SRD_U2, SRD_YA, SRD_H, SRD_HN, SRD_G2, SRD_W1, SRD_W2, SRD_OUT = 12, 16, 20, 24, 28, 32, 36, 40, 44
S_B1, S_B2 = 48, 50
S_SCALE, S_DSK = 52, 53
S_T1, S_FJ, S_T2, S_SJ = 54, 55, 56, 57
S_WOFF, S_RING = 58, 59
SM, SR = 84, 86
C_B2, C_B3, C_B4 = 0, 8, 16
KIDX = 0
S_TB = 5
VX = 224
V_KROW, V_KA, V_KB, V_KSC, V_KDST = 232, 233, 234, 235, 239
V_CA, V_CB = 248, 249
V_PW, V_PR, V_US = 252, 253, 254
PL = 131072
PL1 = PL2 = 0
YB = 16384

ST_NAMES = {}
_st = [2]
def st(a, name, vt=60, final=False):
    slot = 1 if final else _st[0]
    if not final: _st[0] += 1
    ST_NAMES[slot] = name
    stamp(a, KIDX, slot, 6, vt)

def evalE(a, D, v, zr, zi, t, conj=False):
    bits = struct.unpack('<I', struct.pack('<f', float(v)))[0]
    a(f"s_mov_b32 s80, {hex(bits)}")
    a(f"v_mul_f32 v{t}, s80, v{zr}")
    a(f"v_mul_f32 v{t+1}, s80, v{zi}")
    a(f"v_exp_f32 v{t}, v{t}")
    a(f"v_rndne_f32 v{t+2}, v{t+1}")
    a(f"v_sub_f32 v{t+1}, v{t+1}, v{t+2}")
    a(f"v_cos_f32 v{D}, v{t+1}")
    a(f"v_sin_f32 v{D+1}, v{t+1}")
    a(f"v_mul_f32 v{D}, v{D}, v{t}")
    if conj: a(f"v_mul_f32 v{D+1}, -v{D+1}, v{t}")
    else: a(f"v_mul_f32 v{D+1}, v{D+1}, v{t}")

def pos2chan(a, sd, sq, t):
    a(f"s_and_b32 s{sd}, s{sq}, 0x1c0")
    a(f"s_and_b32 s{t}, s{sq}, 7")
    a(f"s_lshl_b32 s{t}, s{t}, 3")
    a(f"s_or_b32 s{sd}, s{sd}, s{t}")
    a(f"s_lshr_b32 s{t}, s{sq}, 3")
    a(f"s_and_b32 s{t}, s{t}, 7")
    a(f"s_or_b32 s{sd}, s{sd}, s{t}")

_lbl = [0]
def newlbl(p):
    _lbl[0] += 1
    return f"L_{p}{_lbl[0]}"

def arrive(a, base_sgpr_pair, off_sgpr):
    a("s_waitcnt vmcnt(0)")
    a("s_barrier")
    l = newlbl("arr")
    a(f"s_cmp_lg_u32 s{S_WAVE}, 0")
    a(f"s_cbranch_scc1 {l}")
    a(f"v_mov_b32 v13, s{off_sgpr}")
    a("v_mov_b32 v14, 1")
    a("s_mov_b64 s[62:63], exec")
    a("s_mov_b64 exec, 1")
    a(f"global_atomic_add v13, v14, s[{base_sgpr_pair}:{base_sgpr_pair+1}] sc1")
    a("s_mov_b64 exec, s[62:63]")
    a.label(l)

def poll(a, base_sgpr_pair, off_sgpr, n, stride_log2, target):
    l = newlbl("poll")
    a(f"v_and_b32 v13, {n-1}, v2")
    a(f"v_lshlrev_b32 v13, {stride_log2}, v13")
    a(f"v_add_u32 v13, s{off_sgpr}, v13")
    a("s_mov_b32 s61, 0")
    a.label(l)
    a(f"global_load_dword v14, v13, s[{base_sgpr_pair}:{base_sgpr_pair+1}] sc1")
    a("s_waitcnt vmcnt(0)")
    a(f"v_cmp_gt_u32 vcc, {target}, v14")
    a("s_add_u32 s61, s61, 1")
    a(f"s_cbranch_vccz {l}_done")
    a("s_cmp_lt_u32 s61, 0x40000")
    a(f"s_cbranch_scc1 {l}")
    a.label(l + "_done")

def poll_wg(a, base_sgpr_pair, off_sgpr, n, stride_log2, target):
    l = newlbl("pw")
    a(f"s_cmp_lg_u32 s{S_WAVE}, 0")
    a(f"s_cbranch_scc1 {l}")
    poll(a, base_sgpr_pair, off_sgpr, n, stride_log2, target)
    a.label(l)
    a("s_barrier")

def prologue(a):
    a("s_load_dwordx16 s[64:79], s[0:1], 0")
    a("s_load_dwordx2 s[88:89], s[0:1], 64")
    a("s_load_dwordx4 s[80:83], s[0:1], 80")
    a("s_load_dwordx4 s[84:87], s[0:1], 96")
    a("s_load_dwordx4 s[60:63], s[0:1], 112")
    a("s_load_dwordx2 s[6:7], s[0:1], 128")
    a("v_lshrrev_b32 v1, 6, v0")
    a("v_and_b32 v2, 63, v0")
    a(f"v_readfirstlane_b32 s{S_WAVE}, v1")
    a("s_and_b32 s54, s2, 7")
    a("s_lshl_b32 s54, s54, 5")
    a("s_lshr_b32 s55, s2, 3")
    a(f"s_add_u32 s{S_TB}, s54, s55")
    a(f"s_lshl_b32 s{S_Q0}, s{S_TB}, 1")
    a(f"s_lshr_b32 s55, s{S_WAVE}, 1")
    a(f"s_add_u32 s56, s{S_Q0}, s55")
    pos2chan(a, 57, 56, 58)
    a("v_lshlrev_b32 v3, 4, v2")
    a(f"s_lshl_b32 s58, s{S_TB}, 13")
    a(f"s_lshl_b32 s59, s{S_WAVE}, 11")
    a("s_add_u32 s59, s59, s58")
    a(f"s_and_b32 s54, s{S_WAVE}, 1")
    a("s_lshl_b32 s54, s54, 7")
    a("s_lshl_b32 s55, s57, 8")
    a("s_add_u32 s54, s54, s55")
    a("v_lshl_add_u32 v12, v2, 1, s54")
    a("v_xor_b32 v13, 128, v12")
    a("s_waitcnt lgkmcnt(0)")
    stamp(a, KIDX, 0, 6, 250, first=True)
    srd(a, SRD_X, 64, 65, 0, 0x200000)
    a(f"buffer_load_dwordx4 v[{VX}:{VX+3}], v3, s[{SRD_X}:{SRD_X+3}], s59 offen")
    a(f"buffer_load_dwordx4 v[{VX+4}:{VX+7}], v3, s[{SRD_X}:{SRD_X+3}], s59 offen offset:1024")
    a("global_load_ushort v200, v12, s[66:67]")
    a("global_load_ushort v201, v12, s[68:69]")
    a("global_load_ushort v202, v12, s[70:71]")
    a("global_load_ushort v203, v12, s[72:73]")
    a("global_load_ushort v204, v12, s[74:75]")
    a("global_load_ushort v205, v12, s[76:77]")
    a("global_load_ushort v206, v13, s[70:71]")
    a("global_load_ushort v207, v13, s[72:73]")
    a("global_load_ushort v208, v13, s[74:75]")
    a("global_load_ushort v209, v13, s[76:77]")
    a("s_lshl_b32 s54, s57, 1")
    a("s_and_b32 s54, s54, 0xfffffffc")
    a("s_load_dword s52, s[78:79], s54")
    a("s_load_dword s53, s[88:89], s54")
    a("s_and_b32 s91, s57, 1")
    a(f"s_mov_b32 s8, s62"); a("s_mov_b32 s9, s63")
    srd(a, SRD_OUT, 60, 61, 0, 0x200000)
    srd(a, SRD_U2, 6, 7, U2_OFF, U2_SZ)
    srd(a, SRD_YA, 6, 7, YA_OFF, YA_SZ)
    srd(a, SRD_H, 6, 7, H_OFF, H_SZ)
    srd(a, SRD_HN, 6, 7, HN_OFF, HN_SZ)
    srd(a, SRD_G2, 6, 7, G2_OFF, G2_SZ)
    srd(a, SRD_W1, 80, 81, 0, 2048 * 3584)
    srd(a, SRD_W2, 84, 85, 0, 2048 * 3584)
    a(f"s_mov_b32 s{S_B1}, s82"); a(f"s_mov_b32 s{S_B1+1}, s83")
    a(f"s_mov_b32 s{S_B2}, s86"); a(f"s_mov_b32 s{S_B2+1}, s87")
    l = newlbl("z")
    a(f"s_or_b32 s54, s2, s{S_WAVE}")
    a("s_cmp_lg_u32 s54, 0")
    a(f"s_cbranch_scc1 {l}")
    a("v_lshlrev_b32 v14, 7, v2")
    a(f"v_add_u32 v14, {SYNC_OFF}, v14")
    a("v_mov_b32 v15, 0")
    a("global_store_dword v14, v15, s[6:7] sc1")
    a.label(l)
    precompute(a)
    a("s_cmp_eq_u32 s91, 1")
    a("s_cselect_b32 s60, 0, 16")
    a("s_waitcnt lgkmcnt(0)")
    a("s_lshl_b32 s52, s52, s60"); a("s_and_b32 s52, s52, 0xffff0000")
    a("s_lshl_b32 s53, s53, s60"); a("s_and_b32 s53, s53, 0xffff0000")

def precompute(a):
    a("v_lshrrev_b32 v4, 3, v2")
    a("v_mul_u32_u24 v4, 72, v4")
    a("v_and_b32 v5, 7, v2")
    a("v_add_u32 v4, v4, v5")
    a(f"s_mul_i32 s54, s{S_WAVE}, 576")
    a("v_add_u32 v4, s54, v4")
    a(f"v_lshlrev_b32 v{V_PW}, 2, v4")
    a(f"v_add_u32 v{V_PW}, {PL}, v{V_PW}")
    a(f"s_mul_i32 s54, s{S_WAVE}, 72")
    a("v_add_u32 v4, s54, v2")
    a(f"v_lshlrev_b32 v{V_PR}, 2, v4")
    a(f"v_add_u32 v{V_PR}, {PL}, v{V_PR}")
    a(f"v_lshlrev_b32 v{V_US}, 4, v0")
    a(f"s_lshr_b32 s60, s{S_WAVE}, 1")
    a(f"s_mul_i32 s60, s60, {KG_CH}")
    a(f"s_and_b32 s62, s{S_WAVE}, 1")
    a("s_lshl_b32 s61, s62, 8")
    a("s_add_u32 s61, s61, s60")
    a(f"v_lshl_add_u32 v{V_KROW}, v2, 2, s61")
    a("v_and_b32 v7, 15, v2")
    a("v_lshrrev_b32 v8, 4, v2")
    a(f"v_mul_u32_u24 v9, {G_ROW}, v7")
    a("v_lshl_add_u32 v9, v8, 4, v9")
    a(f"s_mul_i32 s63, s62, {16*G_ROW}")
    a("s_add_u32 s63, s63, s60")
    a(f"v_add_u32 v{V_KA}, s63, v9")
    a(f"s_add_u32 s63, s60, {H_BASE}")
    a(f"v_add_u32 v{V_KB}, s63, v9")
    a("v_lshlrev_b32 v16, 3, v7")
    a(f"s_add_u32 s63, s60, {FT_BASE}")
    a(f"s_movk_i32 s54, {FT_DUMMY}")
    a("v_cmp_eq_u32 s[56:57], 1, v8")
    a("v_cmp_eq_u32 s[58:59], 2, v8")
    a("v_cmp_eq_u32 vcc, 3, v8")
    for r in range(4):
        m0_q2 = 256 + 2 * r
        m0_q3 = 512 + 4 * (r & 1) + 256 * (r >> 1)
        m1_q0 = 1024 + 256 * r
        m1_q1 = 2048 if r == 0 else FT_DUMMY
        R = V_KSC + r
        a("s_cmp_eq_u32 s62, 0")
        a(f"s_cselect_b32 s55, {r}, {m1_q0}")
        a(f"v_mov_b32 v{R}, s55")
        a(f"s_cselect_b32 s55, {4+r}, {m1_q1}")
        a("v_mov_b32 v18, s55")
        a(f"v_cndmask_b32 v{R}, v{R}, v18, s[56:57]")
        a(f"s_cselect_b32 s55, {m0_q2}, s54")
        a("v_mov_b32 v18, s55")
        a(f"v_cndmask_b32 v{R}, v{R}, v18, s[58:59]")
        a(f"s_cselect_b32 s55, {m0_q3}, s54")
        a("v_mov_b32 v18, s55")
        a(f"v_cndmask_b32 v{R}, v{R}, v18, vcc")
        a(f"v_add_u32 v{R}, v{R}, v16")
        a(f"v_lshrrev_b32 v18, 4, v{R}")
        a(f"v_lshlrev_b32 v18, 2, v18")
        a(f"v_lshl_add_u32 v{R}, v{R}, 1, v18")
        a(f"v_add_u32 v{R}, s63, v{R}")
    a("s_lshl_b32 s55, s62, 6")
    a("v_add_u32 v19, s55, v2")
    a("v_lshlrev_b32 v100, 5, v19")
    a("v_sub_u32 v100, 4094, v100")
    NE = 19
    for e in range(NE):
        a(f"v_subrev_u32 v{104+e}, {2*e}, v100")
        a(f"v_cvt_f32_u32 v{104+e}, v{104+e}")
    for e in range(0, NE + 1, 2):
        e2 = min(e + 1, NE - 1)
        a(f"v_cvt_pk_bf16_f32 v{124+e//2}, v{104+e}, v{104+e2}")
    for e in range(NE):
        if e % 2 == 0: a(f"v_lshlrev_b32 v{104+e}, 16, v{124+e//2}")
        else: a(f"v_and_b32 v{104+e}, 0xffff0000, v{124+e//2}")
    for e in range(NE): a(f"v_cvt_u32_f32 v{104+e}, v{104+e}")
    for e in range(16, NE): a(f"v_min_u32 v{104+e}, {2*FT_ZERO}, v{104+e}")
    for e in range(NE):
        a(f"v_lshrrev_b32 v18, 5, v{104+e}")
        a(f"v_lshl_add_u32 v{104+e}, v18, 2, v{104+e}")
        a(f"v_add_u32 v{104+e}, s63, v{104+e}")
    a(f"s_lshr_b32 s55, s{S_WAVE}, 1")
    a(f"s_mul_i32 s55, s55, {KCH}")
    a(f"s_add_u32 s55, s55, {KC_BASE}")
    a("v_lshlrev_b32 v19, 5, v19")
    a(f"v_add_u32 v{V_KDST}, s55, v19")
    a(f"s_lshr_b32 s60, s{S_WAVE}, 1")
    a(f"s_and_b32 s61, s{S_WAVE}, 1")
    a("v_and_b32 v52, 31, v2")
    a("v_lshrrev_b32 v53, 5, v2")
    a("v_and_b32 v54, 3, v52")
    a("v_sub_u32 v54, 3, v54")
    a(f"v_mul_u32_u24 v54, {KC_STRIDE}, v54")
    a("v_lshrrev_b32 v55, 2, v52")
    a("v_lshlrev_b32 v55, 3, v55")
    a("v_sub_u32 v54, v54, v55")
    a("v_lshl_add_u32 v54, v53, 4, v54")
    a(f"s_mul_i32 s62, s60, {KCH}")
    a("s_lshl_b32 s63, s61, 6")
    a("s_sub_u32 s62, s62, s63")
    a(f"s_add_u32 s62, s62, {KC_BASE + 2*2044 - 2048 - 64*30}")
    a(f"v_add_u32 v{V_CA}, s62, v54")
    a("v_mul_u32_u24 v55, 80, v52")
    a("v_lshl_add_u32 v55, v53, 4, v55")
    a(f"s_mul_i32 s62, s60, {U_CH}")
    a("s_mul_i32 s63, s61, 80")
    a("s_sub_u32 s62, s62, s63")
    a(f"s_add_u32 s62, s62, {U_BASE + 80*(31-30)}")
    a(f"v_add_u32 v{V_CB}, s62, v55")
    tile_coords(a, 1, S_T1, S_FJ)
    tile_coords(a, 2, S_T2, S_SJ)
    dma_setup(a, 1)
    touch_setup(a)

def planes_out(a, D, plane_base, srd_dst, T):
    for c in range(8):
        a(f"ds_write_b32 v{V_PW}, v{D+c} offset:{plane_base + 32*c}")
    a(f"v_add_u32 v{T+8}, 1152, v{V_PR}")
    a("s_waitcnt lgkmcnt(0)")
    a("s_barrier")
    a(f"ds_read2st64_b32 v[{T}:{T+1}], v{V_PR} offset0:0 offset1:9")
    a(f"ds_read2st64_b32 v[{T+2}:{T+3}], v{V_PR} offset0:18 offset1:27")
    a(f"ds_read2st64_b32 v[{T+4}:{T+5}], v{T+8} offset0:0 offset1:9")
    a(f"ds_read2st64_b32 v[{T+6}:{T+7}], v{T+8} offset0:18 offset1:27")
    a(f"s_lshl_b32 s60, s{S_TB}, 13")
    a("s_add_u32 s61, s60, 4096")
    a("s_waitcnt lgkmcnt(2)")
    a(f"buffer_store_dwordx4 v[{T}:{T+3}], v{V_US}, s[{srd_dst}:{srd_dst+3}], s60 offen sc1")
    a("s_waitcnt lgkmcnt(0)")
    a(f"buffer_store_dwordx4 v[{T+4}:{T+7}], v{V_US}, s[{srd_dst}:{srd_dst+3}], s61 offen sc1")

def unit_addr(a, vd, vt):
    a(f"v_lshrrev_b32 v{vd}, 3, v2")
    a(f"v_lshlrev_b32 v{vd}, 10, v{vd}")
    a(f"v_and_b32 v{vt}, 7, v2")
    a(f"v_lshl_add_u32 v{vd}, v{vt}, 4, v{vd}")

def ln1(a):
    a(f"s_mov_b32 s90, {INV512}")
    a(f"s_mov_b32 s91, {EPS}")
    a("s_waitcnt vmcnt(10)")
    unpack_pairs(a, 16, VX, VX + 4)
    pair_sums(a, 16, 8, 32, 34, 36)
    reduce4(a, 32, 33, 34, 35)
    ln_stats(a, 32, 33, 36, 37, SM, SR)
    ln_apply(a, 16, 8, SM, SR, 40)
    unpack_packed(a, 16, 8, 40)
    for c in range(8):
        a(f"v_cvt_pk_f16_f32 v{40+c}, v{16+2*c}, v{17+2*c}")
    planes_out(a, 40, PL1, SRD_U2, 48)

def kgen(a):
    a(f"s_lshr_b32 s60, s{S_WAVE}, 1")
    a(f"s_mul_i32 s60, s60, {KG_CH}")
    a(f"s_mov_b32 s66, {LOG2E}")
    a(f"s_mov_b32 s67, {LOG2E_LO}")
    a(f"s_mov_b32 s68, {LN2}")
    a(f"s_mov_b32 s69, {INV2PI}")
    a("v_mov_b32 v20, s52")
    a("v_mul_f32 v21, s66, v20")
    a("v_fma_f32 v22, v20, s66, -v21")
    a("v_fmac_f32 v22, s67, v20")
    a("v_exp_f32 v21, v21")
    a("v_mul_f32 v22, s68, v22")
    a("v_fmac_f32 v21, v21, v22")
    bf16_round(a, 21, 21)
    for i in range(10): a(f"v_lshlrev_b32 v{10+i}, 16, v{200+i}")
    a("v_mul_f32 v10, v21, v10")
    a("v_mul_f32 v11, v21, v11")
    a("v_mul_f32 v10, s66, v10")
    a("v_mul_f32 v11, s69, v11")
    for (b, c0, out) in ((12, 14, 24), (16, 18, 26)):
        a(f"v_mul_f32 v{b}, v21, v{b}")
        a(f"v_mul_f32 v{b+1}, v21, v{b+1}")
        a(f"v_mul_f32 v{out}, v{c0}, v{b}")
        a(f"v_mul_f32 v{out+1}, v{c0}, v{b+1}")
        a(f"v_fma_f32 v{out}, -v{c0+1}, v{b+1}, v{out}")
        a(f"v_fmac_f32 v{out+1}, v{c0+1}, v{b}")
    a("v_max3_f32 v28, abs(v24), abs(v25), abs(v26)")
    a("v_max_f32 v28, v28, abs(v27)")
    W1, W256, W512, W1024, W8, W128 = 32, 34, 36, 38, 80, 50
    evalE(a, W1, 1, 10, 11, 40)
    wave_max(a, 28, 29)
    evalE(a, W256, 256, 10, 11, 44)
    a("v_frexp_exp_i32_f32 v29, v28")
    a("v_sub_u32 v30, 0, v29")
    a("v_ldexp_f32 v48, v24, v30")
    a("v_ldexp_f32 v49, v25, v30")
    a("v_mov_b32 v31, 1.0")
    a("v_ldexp_f32 v31, v31, v29")
    evalE(a, W8, 8, 10, 11, 40, conj=True)
    a(f"v_readfirstlane_b32 s{S_SCALE}, v31")
    evalE(a, 84, 128, 10, 11, 44, conj=True)
    cmul(a, W512, W256, W256)
    cmul(a, W1024, W512, W512)
    st(a, "kg: setup done", 250)
    touch_point(a, 1)
    g = lambda i: 48 + 2 * i
    cnt = [0]
    def emit(off, reg):
        t = 96 + (cnt[0] % 8); cnt[0] += 1
        a(f"v_cvt_pk_f16_f32 v{t}, v{reg}, v{reg+1}")
        a(f"ds_write_b32 v{V_KROW}, v{t} offset:{off}")
    grow = lambda r, reg: emit(r * G_ROW, reg)
    hrow = lambda r, reg: emit(H_BASE + r * G_ROW, reg)
    a("v_mov_b32 v82, 1.0"); a("v_mov_b32 v83, 0")
    HA, HB = [82, 86], [84, 88]
    hstate = [0]
    def hstep():
        i = hstate[0]
        if i >= 16: return
        ca, na = HA[i % 2], HA[(i + 1) % 2]
        cb, nb = HB[i % 2], HB[(i + 1) % 2]
        if i < 15:
            cmul(a, na, ca, W8); cmul(a, nb, cb, W8)
        hrow(i, ca); hrow(16 + i, cb)
        hstate[0] += 1
    grow(0, g(0))
    cmul(a, 64, g(0), W1024); cmul(a, 66, g(0), W512); cmul(a, g(1), g(0), W1)
    hstep()
    grow(16, 64); grow(12, 66)
    cmul(a, 68, 64, W256); cmul(a, 70, 66, W256); cmul(a, g(2), g(1), W1); cmul(a, 72, g(0), W256)
    hstep(); hstep()
    grow(1, g(1)); grow(17, 68); grow(14, 70)
    cmul(a, 64, 68, W256); cmul(a, g(3), g(2), W1); cmul(a, 74, g(2), W256)
    hstep(); hstep()
    grow(2, g(2)); grow(8, 72)
    cmul(a, 68, 64, W256); cmul(a, g(4), g(3), W1)
    hstep(); hstep()
    grow(18, 64); grow(3, g(3)); grow(9, 74)
    cmul(a, 64, 68, W256); cmul(a, g(5), g(4), W1); cmul(a, 66, g(4), W512); cmul(a, 72, g(4), W256)
    hstep(); hstep()
    grow(19, 68); grow(4, g(4))
    cmul(a, g(6), g(5), W1); cmul(a, 70, 66, W256)
    hstep(); hstep()
    grow(20, 64); grow(5, g(5)); grow(13, 66); grow(10, 72)
    cmul(a, g(7), g(6), W1); cmul(a, 74, g(6), W256)
    hstep(); hstep()
    grow(6, g(6)); grow(15, 70)
    hstep(); hstep()
    grow(7, g(7)); grow(11, 74)
    while hstate[0] < 16: hstep()
    NE = 19
    a(f"s_add_u32 s63, s60, {FT_BASE}")
    st(a, "kg: chains done", 250)
    touch_point(a, 2)
    a("v_mov_b32 v18, 0")
    a(f"v_mov_b32 v101, s63")
    a(f"ds_write_b16 v101, v18 offset:{2*FT_ZERO + 4*(FT_ZERO >> 4)}")
    a("s_waitcnt lgkmcnt(0)")
    a("s_barrier")
    for ks in range(8):
        a(f"ds_read_b128 v[{128+12*ks}:{131+12*ks}], v{V_KA} offset:{ks*64}")
        a(f"ds_read_b128 v[{132+12*ks}:{135+12*ks}], v{V_KB} offset:{ks*64}")
        a(f"ds_read_b128 v[{136+12*ks}:{139+12*ks}], v{V_KB} offset:{ks*64 + 16*G_ROW}")
        if ks >= 3:
            k = ks - 3
            a("s_waitcnt lgkmcnt(9)")
            cc0 = "0" if k == 0 else "v[20:23]"; cc1 = "0" if k == 0 else "v[24:27]"
            a(f"v_mfma_f32_16x16x32_f16 v[20:23], v[{128+12*k}:{131+12*k}], v[{132+12*k}:{135+12*k}], {cc0}")
            a(f"v_mfma_f32_16x16x32_f16 v[24:27], v[{128+12*k}:{131+12*k}], v[{136+12*k}:{139+12*k}], {cc1}")
    for k in range(5, 8):
        a(f"s_waitcnt lgkmcnt({3*(7-k)})")
        a(f"v_mfma_f32_16x16x32_f16 v[20:23], v[{128+12*k}:{131+12*k}], v[{132+12*k}:{135+12*k}], v[20:23]")
        a(f"v_mfma_f32_16x16x32_f16 v[24:27], v[{128+12*k}:{131+12*k}], v[{136+12*k}:{139+12*k}], v[24:27]")
    for nt in range(2):
        A = 20 + 4 * nt
        a(f"v_cvt_pk_f16_f32 v{28+2*nt}, v{A}, v{A+1}")
        a(f"v_cvt_pk_f16_f32 v{29+2*nt}, v{A+2}, v{A+3}")
        a(f"ds_write_b16 v{V_KSC}, v{28+2*nt} offset:{288*nt}")
        a(f"ds_write_b16_d16_hi v{V_KSC+1}, v{28+2*nt} offset:{288*nt}")
        a(f"ds_write_b16 v{V_KSC+2}, v{29+2*nt} offset:{288*nt}")
        a(f"ds_write_b16_d16_hi v{V_KSC+3}, v{29+2*nt} offset:{288*nt}")
    st(a, "kg: mfma done", 250)
    for r in range(40, 44): a(f"v_mov_b32 v{r}, 0")
    a("v_lshlrev_b32 v5, 4, v0")
    a("v_cmp_gt_u32 vcc, 155, v0")
    a("s_and_saveexec_b64 s[62:63], vcc")
    a(f"v_add_u32 v44, {U_BASE}, v5")
    a(f"ds_write_b128 v44, v[40:43]")
    a(f"ds_write_b128 v44, v[40:43] offset:{U_CH}")
    a("s_mov_b64 exec, s[62:63]")
    a("v_lshrrev_b32 v44, 2, v0")
    a(f"v_mul_u32_u24 v44, {KC_STRIDE}, v44")
    a("v_and_b32 v45, 3, v0")
    a("v_lshl_add_u32 v44, v45, 4, v44")
    a(f"v_add_u32 v44, {KC_BASE + 4096}, v44")
    a("v_cmp_gt_u32 vcc, 32, v0")
    a("s_and_saveexec_b64 s[62:63], vcc")
    a("ds_write_b128 v44, v[40:43]")
    a("s_mov_b64 exec, s[62:63]")
    a("s_waitcnt lgkmcnt(0)")
    a("s_barrier")
    st(a, "kg: scatter+barrier done", 250)
    touch_point(a, 3)
    for e in range(NE): a(f"ds_read_u16 v{128+e}, v{104+e}")
    a("s_waitcnt lgkmcnt(0)")
    for i in range(9):
        a(f"v_lshl_or_b32 v{161+i}, v{129+2*i}, 16, v{128+2*i}")
    for i in range(8):
        a(f"v_mov_b32 v{152+i}, v{161+i}")
    for i in range(9):
        a(f"v_lshl_or_b32 v{181+i}, v{130+2*i}, 16, v{129+2*i}")
    for i in range(8):
        a(f"v_mov_b32 v{172+i}, v{181+i}")
    for (sig, R) in ((0, 152), (1, 172), (2, 162), (3, 182)):
        a(f"ds_write_b128 v{V_KDST}, v[{R}:{R+3}] offset:{sig*KC_STRIDE}")
        a(f"ds_write_b128 v{V_KDST}, v[{R+4}:{R+7}] offset:{sig*KC_STRIDE+16}")

def conv_load_u(a):
    l = newlbl("cu")
    a(f"s_cmp_ge_u32 s{S_WAVE}, 2")
    a(f"s_cbranch_scc1 {l}")
    a(f"s_lshl_b32 s60, s{S_WAVE}, 7")
    a("v_add_u32 v3, s60, v2")
    a("v_lshlrev_b32 v4, 13, v3")
    a(f"s_lshl_b32 s61, s{S_Q0}, 4")
    a(f"s_add_u32 s62, s61, {64*8192}")
    a(f"buffer_load_dwordx4 v[8:11], v4, s[{SRD_U2}:{SRD_U2+3}], s61 offen sc1")
    a(f"buffer_load_dwordx4 v[12:15], v4, s[{SRD_U2}:{SRD_U2+3}], s61 offen offset:16 sc1")
    a(f"buffer_load_dwordx4 v[16:19], v4, s[{SRD_U2}:{SRD_U2+3}], s62 offen sc1")
    a(f"buffer_load_dwordx4 v[20:23], v4, s[{SRD_U2}:{SRD_U2+3}], s62 offen offset:16 sc1")
    a("v_lshrrev_b32 v5, 2, v3")
    a("v_mul_u32_u24 v5, 80, v5")
    a("v_and_b32 v6, 3, v3")
    a("v_lshl_add_u32 v5, v6, 4, v5")
    a(f"v_add_u32 v5, {U_BASE + 31*80}, v5")
    a("s_waitcnt vmcnt(2)")
    a(f"ds_write_b128 v5, v[8:11]")
    a(f"ds_write_b128 v5, v[12:15] offset:{U_CH}")
    a("s_waitcnt vmcnt(0)")
    a(f"ds_write_b128 v5, v[16:19] offset:{16*80}")
    a(f"ds_write_b128 v5, v[20:23] offset:{U_CH + 16*80}")
    a.label(l)

def conv_main(a):
    a(f"s_lshr_b32 s60, s{S_WAVE}, 1")
    a(f"s_and_b32 s61, s{S_WAVE}, 1")
    a("v_and_b32 v52, 31, v2")
    a("v_lshrrev_b32 v53, 5, v2")
    a(f"v_mov_b32 v54, v{V_CA}")
    a(f"v_mov_b32 v55, v{V_CB}")
    a("s_waitcnt lgkmcnt(0)")
    a("s_barrier")
    st(a, "conv start (U in LDS)")
    X, Y = 96, 128
    def load_list(step, R):
        kk = 30 - 2 * step
        oa = 64 * kk; ob = 80 * kk
        return [
            f"ds_read_b64 v[{R+0}:{R+1}], v54 offset:{oa+2048}",
            f"ds_read_b64 v[{R+2}:{R+3}], v54 offset:{oa+2048+8}",
            f"ds_read_b128 v[{R+16}:{R+19}], v55 offset:{ob}",
            f"ds_read_b128 v[{R+24}:{R+27}], v55 offset:{ob+2560}",
            f"ds_read_b64 v[{R+4}:{R+5}], v54 offset:{oa+2048+32}",
            f"ds_read_b64 v[{R+6}:{R+7}], v54 offset:{oa+2048+40}",
            f"ds_read_b128 v[{R+20}:{R+23}], v55 offset:{ob+32}",
            f"ds_read_b128 v[{R+28}:{R+31}], v55 offset:{ob+2560+32}",
            f"ds_read_b64 v[{R+8}:{R+9}], v54 offset:{oa}",
            f"ds_read_b64 v[{R+10}:{R+11}], v54 offset:{oa+8}",
            f"ds_read_b64 v[{R+12}:{R+13}], v54 offset:{oa+32}",
            f"ds_read_b64 v[{R+14}:{R+15}], v54 offset:{oa+40}"]
    def mfma_list(R, first):
        c0 = "0" if first else "v[64:79]"; c1 = "0" if first else "v[80:95]"
        return [
            f"v_mfma_f32_32x32x16_f16 v[64:79], v[{R+0}:{R+3}], v[{R+16}:{R+19}], {c0}",
            f"v_mfma_f32_32x32x16_f16 v[80:95], v[{R+0}:{R+3}], v[{R+24}:{R+27}], {c1}",
            f"v_mfma_f32_32x32x16_f16 v[64:79], v[{R+4}:{R+7}], v[{R+20}:{R+23}], v[64:79]",
            f"v_mfma_f32_32x32x16_f16 v[80:95], v[{R+4}:{R+7}], v[{R+28}:{R+31}], v[80:95]",
            f"v_mfma_f32_32x32x16_f16 v[80:95], v[{R+8}:{R+11}], v[{R+16}:{R+19}], v[80:95]",
            f"v_mfma_f32_32x32x16_f16 v[80:95], v[{R+12}:{R+15}], v[{R+20}:{R+23}], v[80:95]"]
    for l in load_list(0, X): a(l)
    for step in range(16):
        if step in (0, 4, 8, 12): touch_point(a, 4 + step // 4)
        R = X if step % 2 == 0 else Y
        N = Y if step % 2 == 0 else X
        M = mfma_list(R, step == 0)
        Ls = load_list(step + 1, N) if step < 15 else []
        need_upto = [3, 4, 7, 8, 10, 12]
        issued_next = 0
        for i in range(6):
            a(f"s_waitcnt lgkmcnt({min((12 - need_upto[i]) + issued_next, 15)})")
            a(M[i])
            for l in Ls[2*i:2*i+2]: a(l); issued_next += 1
    st(a, "conv main done")
    a("v_lshlrev_b32 v56, 4, v2")
    a(f"s_lshl_b32 s62, s{S_WAVE}, 12")
    a("v_add_u32 v57, s62, v56")
    a(f"s_xor_b32 s63, s{S_WAVE}, 1")
    a("s_lshl_b32 s63, s63, 12")
    a("v_add_u32 v58, s63, v56")
    l1, l2 = newlbl("cp"), newlbl("cr")
    a("s_cmp_eq_u32 s61, 0")
    a(f"s_cbranch_scc0 {l1}")
    a("s_nop 7"); a("s_nop 7")
    for g in range(4): a(f"ds_write_b128 v57, v[{80+4*g}:{83+4*g}] offset:{g*1024}")
    a(f"s_branch {l2}")
    a.label(l1)
    a("s_nop 7"); a("s_nop 7")
    for g in range(4): a(f"ds_write_b128 v57, v[{64+4*g}:{67+4*g}] offset:{g*1024}")
    for r in range(16): a(f"v_mov_b32 v{64+r}, v{80+r}")
    a.label(l2)
    a("s_lshl_b32 s62, s61, 5")
    a("v_add_u32 v59, s62, v52")
    a("v_mul_u32_u24 v60, 80, v59")
    a("v_lshl_add_u32 v60, v53, 3, v60")
    a(f"s_mul_i32 s62, s60, {U_CH}")
    a(f"s_add_u32 s62, s62, {U_BASE + 31*80}")
    a("v_add_u32 v60, s62, v60")
    for g in range(4): a(f"ds_read_b64 v[{112+2*g}:{113+2*g}], v60 offset:{g*16}")
    a("s_waitcnt lgkmcnt(0)")
    a("s_barrier")
    for g in range(4): a(f"ds_read_b128 v[{96+4*g}:{99+4*g}], v58 offset:{g*1024}")
    for g in range(4):
        a(f"v_cvt_f32_f16 v{120+4*g}, v{112+2*g}")
        a(f"v_cvt_f32_f16_sdwa v{121+4*g}, v{112+2*g} dst_sel:DWORD dst_unused:UNUSED_PAD src0_sel:WORD_1")
        a(f"v_cvt_f32_f16 v{122+4*g}, v{113+2*g}")
        a(f"v_cvt_f32_f16_sdwa v{123+4*g}, v{113+2*g} dst_sel:DWORD dst_unused:UNUSED_PAD src0_sel:WORD_1")
    for r in range(16): a(f"v_mul_f32 v{120+r}, s{S_DSK}, v{120+r}")
    for r in range(0, 16, 2): a(f"v_cvt_pk_bf16_f32 v{136+r//2}, v{120+r}, v{121+r}")
    for r in range(0, 16, 2):
        a(f"v_lshlrev_b32 v{120+r}, 16, v{136+r//2}")
        a(f"v_and_b32 v{121+r}, 0xffff0000, v{136+r//2}")
    a("s_waitcnt lgkmcnt(0)")
    for r in range(0, 16, 2): a(f"v_pk_add_f32 v[{64+r}:{65+r}], v[{64+r}:{65+r}], v[{96+r}:{97+r}]")
    for r in range(16): a(f"v_mul_f32 v{64+r}, s{S_SCALE}, v{64+r}")
    for r in range(0, 16, 2): a(f"v_cvt_pk_bf16_f32 v{136+r//2}, v{64+r}, v{65+r}")
    for r in range(0, 16, 2):
        a(f"v_lshlrev_b32 v{64+r}, 16, v{136+r//2}")
        a(f"v_and_b32 v{65+r}, 0xffff0000, v{136+r//2}")
    for r in range(0, 16, 2): a(f"v_pk_add_f32 v[{64+r}:{65+r}], v[{64+r}:{65+r}], v[{120+r}:{121+r}]")
    for r in range(0, 16, 2): a(f"v_cvt_pk_bf16_f32 v{136+r//2}, v{64+r}, v{65+r}")
    for g in (0, 2):
        A0, A1, B0, B1 = 136 + 2 * g, 137 + 2 * g, 138 + 2 * g, 139 + 2 * g
        a(f"v_permlane32_swap_b32 v{A0}, v{B0}")
        a(f"v_permlane32_swap_b32 v{A1}, v{B1}")
    a("v_mul_u32_u24 v61, 144, v59")
    a("v_lshl_add_u32 v61, v53, 5, v61")
    a("s_lshl_b32 s62, s60, 4")
    a(f"s_add_u32 s62, s62, {YB}")
    a("v_add_u32 v61, s62, v61")
    a("ds_write_b128 v61, v[136:139]")
    a("ds_write_b128 v61, v[140:143] offset:64")
    a("v_lshrrev_b32 v62, 3, v0")
    a("v_mul_u32_u24 v62, 144, v62")
    a("v_and_b32 v63, 7, v0")
    a("v_lshl_add_u32 v62, v63, 4, v62")
    a("s_waitcnt lgkmcnt(0)")
    a("s_barrier")
    a(f"ds_read_b128 v[96:99], v62 offset:{YB}")
    a(f"ds_read_b128 v[100:103], v62 offset:{YB + 32*144}")
    a(f"s_lshl_b32 s62, s{S_TB}, 13")
    a("s_add_u32 s63, s62, 4096")
    a("s_waitcnt lgkmcnt(1)")
    a(f"buffer_store_dwordx4 v[96:99], v{V_US}, s[{SRD_YA}:{SRD_YA+3}], s62 offen sc1")
    a("s_waitcnt lgkmcnt(0)")
    a(f"buffer_store_dwordx4 v[100:103], v{V_US}, s[{SRD_YA}:{SRD_YA+3}], s63 offen sc1")

def ln2_loads(a):
    a("v_lshrrev_b32 v4, 1, v0")
    a("v_lshlrev_b32 v4, 13, v4")
    a("v_and_b32 v5, 1, v0")
    a("v_lshl_add_u32 v4, v5, 4, v4")
    a(f"s_lshl_b32 s60, s{S_TB}, 5")
    a("s_add_u32 s61, s60, 0x100000")
    a(f"buffer_load_dwordx4 v[40:43], v4, s[{SRD_YA}:{SRD_YA+3}], s60 offen sc1")
    a(f"buffer_load_dwordx4 v[44:47], v4, s[{SRD_YA}:{SRD_YA+3}], s61 offen sc1")

def ln2_compute(a):
    a(f"s_mov_b32 s90, {INV512}")
    a(f"s_mov_b32 s91, {EPS}")
    a("s_mov_b32 s92, 0x05040100")
    a("s_mov_b32 s93, 0x07060302")
    a(f"v_mov_b32 v48, v{V_PR}")
    a(f"v_add_u32 v49, 1152, v{V_PR}")
    unpack_pairs(a, 16, VX, VX + 4)
    a("s_waitcnt vmcnt(1)")
    a("ds_write2st64_b32 v48, v40, v41 offset0:0 offset1:9")
    a("ds_write2st64_b32 v48, v42, v43 offset0:18 offset1:27")
    a("s_waitcnt vmcnt(0)")
    a("ds_write2st64_b32 v49, v44, v45 offset0:0 offset1:9")
    a("ds_write2st64_b32 v49, v46, v47 offset0:18 offset1:27")
    a("s_waitcnt lgkmcnt(0)")
    a("s_barrier")
    for c in range(8):
        a(f"ds_read_b32 v{40+c}, v{V_PW} offset:{PL2 + 32*c}")
    a("v_lshlrev_b32 v3, 4, v2")
    a(f"s_lshl_b32 s64, s{S_TB}, 13")
    a(f"s_lshl_b32 s65, s{S_WAVE}, 11")
    a("s_add_u32 s64, s64, s65")
    a("s_waitcnt lgkmcnt(0)")
    for c in range(8):
        a(f"v_lshlrev_b32 v{48+2*c}, 16, v{40+c}")
        a(f"v_and_b32 v{49+2*c}, 0xffff0000, v{40+c}")
    for c in range(8):
        a(f"v_pk_add_f32 v[{16+2*c}:{17+2*c}], v[{16+2*c}:{17+2*c}], v[{48+2*c}:{49+2*c}]")
    for c in range(8):
        a(f"v_cvt_pk_bf16_f32 v{40+c}, v{16+2*c}, v{17+2*c}")
    unpack_packed(a, 16, 8, 40)
    for i in range(4):
        a(f"v_perm_b32 v{4+i}, v{41+2*i}, v{40+2*i}, s92")
        a(f"v_perm_b32 v{8+i}, v{41+2*i}, v{40+2*i}, s93")
    a(f"buffer_store_dwordx4 v[4:7], v3, s[{SRD_H}:{SRD_H+3}], s64 offen sc1")
    a(f"buffer_store_dwordx4 v[8:11], v3, s[{SRD_H}:{SRD_H+3}], s64 offen offset:1024 sc1")
    pair_sums(a, 16, 8, 32, 34, 36)
    reduce4(a, 32, 33, 34, 35)
    ln_stats(a, 32, 33, 36, 37, SM, SR)
    ln_apply(a, 16, 8, SM, SR, 40)
    unpack_packed(a, 16, 8, 40)
    pair_sums(a, 16, 8, 32, 34, 36)
    reduce4(a, 32, 33, 34, 35)
    ln_stats(a, 32, 33, 36, 37, SM, SR)
    ln_apply(a, 16, 8, SM, SR, 40)
    a("s_barrier")
    planes_out(a, 40, PL2, SRD_HN, 48)

def tile_coords(a, which, sT, sC):
    a("s_and_b32 s60, s2, 7")
    a("s_lshr_b32 s61, s2, 3")
    a(f"s_and_b32 s{sT}, s60, 1")
    a(f"s_lshl_b32 s{sT}, s{sT}, 2")
    a("s_and_b32 s62, s61, 3")
    a(f"s_add_u32 s{sT}, s{sT}, s62")
    a(f"s_lshr_b32 s{sC}, s60, 1")
    a(f"s_mul_i32 s{sC}, s{sC}, {7 if which == 1 else 8}")
    a("s_lshr_b32 s62, s61, 2")
    a(f"s_add_u32 s{sC}, s{sC}, s62")

VD, VTA, VTB = 240, 241, 242
def dma_setup(a, which):
    WROW = 3584 if which == 1 else 4096
    a(f"v_lshrrev_b32 v{VD}, 3, v2")
    a(f"v_mul_u32_u24 v{VD}, {WROW}, v{VD}")
    a("v_and_b32 v243, 7, v2")
    a("v_lshrrev_b32 v244, 2, v2")
    a("v_and_b32 v244, 4, v244")
    a("v_xor_b32 v243, v243, v244")
    a(f"v_lshl_add_u32 v{VD}, v243, 4, v{VD}")
    a("v_bfe_u32 v243, v2, 2, 2")
    a("v_and_b32 v244, 3, v2")
    a(f"v_bfe_u32 v{VTA}, v2, 4, 1")
    a(f"v_lshlrev_b32 v{VTA}, 1, v{VTA}")
    a("v_lshrrev_b32 v245, 1, v244")
    a(f"v_add_u32 v{VTA}, v{VTA}, v245")
    a("v_lshrrev_b32 v245, 1, v243")
    a("v_lshlrev_b32 v245, 2, v245")
    a(f"v_xor_b32 v{VTA}, v{VTA}, v245")
    a(f"v_lshlrev_b32 v{VTA}, 4, v{VTA}")
    a("v_and_b32 v245, 1, v244")
    a(f"v_lshl_add_u32 v{VTA}, v245, 3, v{VTA}")
    a("v_lshrrev_b32 v245, 5, v2")
    a(f"v_lshlrev_b32 v245, {3 if which == 1 else 2}, v245")
    a("v_add_u32 v245, v245, v243")
    a(f"v_lshl_add_u32 v{VTA}, v245, 7, v{VTA}")
    a(f"v_xor_b32 v{VTB}, 64, v{VTA}")

def ring_base(a, per_wave, base):
    a(f"s_mul_i32 s{S_RING}, s{S_WAVE}, {per_wave}")
    if base: a(f"s_add_u32 s{S_RING}, s{S_RING}, {base}")
    a(f"s_lshr_b32 s60, s{S_WAVE}, 1")
    a("s_lshl_b32 s60, s60, 6")
    a(f"v_xor_b32 v246, s60, v{VTA}")
    a(f"v_xor_b32 v247, 64, v246")
    a(f"v_add_u32 v246, s{S_RING}, v246")
    a(f"v_add_u32 v247, s{S_RING}, v247")

def dma_issue(a, which, n, slot0):
    WROW = 3584 if which == 1 else 4096
    srdw = SRD_W1 if which == 1 else SRD_W2
    for i in range(n):
        a(f"s_add_u32 m0, s{S_RING}, {(slot0+i)*2048}")
        a(f"buffer_load_dwordx4 v{VD}, s[{srdw}:{srdw+3}], s{S_WOFF} offen lds")
        a(f"s_add_u32 s60, s{S_WOFF}, {8*WROW}")
        a(f"s_add_u32 m0, s{S_RING}, {(slot0+i)*2048+1024}")
        a(f"buffer_load_dwordx4 v{VD}, s[{srdw}:{srdw+3}], s60 offen lds")
        a(f"s_add_u32 s{S_WOFF}, s{S_WOFF}, {16*WROW}")

def tr_to_acc(a, which, steps, slot0):
    RHO = 512 if which == 1 else 1024
    for i, s in enumerate(steps):
        o = (slot0 + i) * 2048
        a(f"ds_read_b64_tr_b16 a[{8*s}:{8*s+1}], v246 offset:{o}")
        a(f"ds_read_b64_tr_b16 a[{8*s+2}:{8*s+3}], v246 offset:{o+RHO}")
        a(f"ds_read_b64_tr_b16 a[{8*s+4}:{8*s+5}], v247 offset:{o}")
        a(f"ds_read_b64_tr_b16 a[{8*s+6}:{8*s+7}], v247 offset:{o+RHO}")
        if i % 3 == 2: a("s_waitcnt lgkmcnt(4)")

def woff_init(a, which, sC):
    if which == 1: a(f"s_mul_i32 s{S_WOFF}, s{S_WAVE}, {32*16*3584}")
    else: a(f"s_mul_i32 s{S_WOFF}, s{S_WAVE}, {28*16*4096}")
    a(f"s_lshl_b32 s60, s{sC}, 7")
    a(f"s_add_u32 s{S_WOFF}, s{S_WOFF}, s60")

def gemm_lane_consts(a):
    a("v_lshrrev_b32 v6, 5, v2")
    a("v_and_b32 v7, 31, v2")
    a("v_lshlrev_b32 v10, 13, v6")
    a("v_lshl_add_u32 v10, v7, 4, v10")
    a(f"s_and_b32 s60, s{S_WAVE}, 1")
    a("s_lshl_b32 s60, s60, 9")
    a("v_xor_b32 v8, s60, v10")
    a("v_xor_b32 v9, 512, v8")

def main_loop(a, which, srda, soff, D0):
    NK = 32 if which == 1 else 28
    DR = 14
    ab = lambda s: 128 + 8 * (s % DR)
    issued = [0]
    def issue():
        s = issued[0]
        if s >= NK: return []
        R = ab(s); issued[0] += 1
        return [f"buffer_load_dwordx4 v[{R}:{R+3}], v8, s[{srda}:{srda+3}], s{soff} offen sc1",
                f"buffer_load_dwordx4 v[{R+4}:{R+7}], v9, s[{srda}:{srda+3}], s{soff} offen sc1\ns_add_u32 s{soff}, s{soff}, 16384"]
    for s in range(D0):
        for l in issue(): a(l)
    for s in range(NK):
        a(f"s_waitcnt vmcnt({2*(issued[0] - 1 - s)})")
        nxt = issue() if (issued[0] - s) < DR else []
        R = ab(s); k = 0
        for wt in range(2):
            for at in range(2):
                acc = 64 + 32 * wt + 16 * at
                wq = f"a[{8*s+4*wt}:{8*s+4*wt+3}]"; aq = f"v[{R+4*at}:{R+4*at+3}]"
                cc = "0" if s == 0 else f"v[{acc}:{acc+15}]"
                if which == 1: a(f"v_mfma_f32_32x32x16_bf16 v[{acc}:{acc+15}], {wq}, {aq}, {cc}")
                else: a(f"v_mfma_f32_32x32x16_bf16 v[{acc}:{acc+15}], {aq}, {wq}, {cc}")
                if k == 0 and nxt: a(nxt[0])
                if k == 2 and nxt: a(nxt[1])
                k += 1

def reduce_write(a):
    a("v_lshlrev_b32 v13, 4, v2")
    for j in (1, 2, 3):
        wt, at = j >> 1, j & 1
        acc = 64 + 32 * wt + 16 * at
        a(f"s_xor_b32 s60, s{S_WAVE}, {j}")
        a(f"s_mul_i32 s60, s60, {3*4096}")
        a(f"s_add_u32 s60, s60, {(j-1)*4096}")
        a(f"v_add_u32 v14, s60, v13")
        for g in range(4):
            a(f"ds_write_b128 v14, v[{acc+4*g}:{acc+4*g+3}] offset:{g*1024}")

def reduce_read(a):
    a(f"s_mul_i32 s60, s{S_WAVE}, {3*4096}")
    a("v_add_u32 v14, s60, v13")
    for j in range(3):
        for g in range(4):
            a(f"ds_read_b128 v[{128+16*j+4*g}:{131+16*j+4*g}], v14 offset:{j*4096+g*1024}")
    P = lambda b, r: f"v[{b+r}:{b+r+1}]"
    a("s_waitcnt lgkmcnt(8)")
    for r in range(0, 16, 2): a(f"v_pk_add_f32 {P(64,r)}, {P(64,r)}, {P(128,r)}")
    a("s_waitcnt lgkmcnt(0)")
    for r in range(0, 16, 2): a(f"v_pk_add_f32 {P(144,r)}, {P(144,r)}, {P(160,r)}")
    for r in range(0, 16, 2): a(f"v_pk_add_f32 {P(128,r)}, {P(64,r)}, {P(144,r)}")

def gelu16(a, X, T):
    a("s_mov_b32 s66, 0x3d372713")
    a("s_mov_b32 s67, 0x3d372713")
    kk = -2.0 * 1.4426950408889634 * 0.7978845608028654
    kb = hex(struct.unpack('<I', struct.pack('<f', kk))[0])
    a(f"s_mov_b32 s68, {kb}"); a(f"s_mov_b32 s69, {kb}")
    P = lambda b, r: f"v[{b+r}:{b+r+1}]"
    for r in range(0, 16, 2): a(f"v_pk_mul_f32 {P(T,r)}, {P(X,r)}, {P(X,r)}")
    for r in range(0, 16, 2): a(f"v_pk_mul_f32 {P(T,r)}, {P(T,r)}, s[66:67]")
    for r in range(0, 16, 2): a(f"v_pk_fma_f32 {P(T,r)}, {P(T,r)}, {P(X,r)}, {P(X,r)}")
    for r in range(0, 16, 2): a(f"v_pk_mul_f32 {P(T,r)}, {P(T,r)}, s[68:69]")
    for r in range(16): a(f"v_exp_f32 v{T+r}, v{T+r}")
    for r in range(16): a(f"v_add_f32 v{T+r}, 1.0, v{T+r}")
    for r in range(16): a(f"v_rcp_f32 v{T+r}, v{T+r}")
    for r in range(0, 16, 2): a(f"v_pk_mul_f32 {P(X,r)}, {P(X,r)}, {P(T,r)}")

def epi1_loads(a):
    a(f"s_lshr_b32 s61, s{S_WAVE}, 1")
    a(f"s_lshl_b32 s72, s{S_FJ}, 6")
    a("s_lshl_b32 s64, s61, 5")
    a("s_add_u32 s72, s72, s64")
    a("s_lshl_b32 s64, s72, 1")
    a("v_lshlrev_b32 v15, 3, v6")
    a("v_add_u32 v15, s64, v15")
    for g in range(4):
        a(f"global_load_dwordx2 v[{20+2*g}:{21+2*g}], v15, s[{S_B1}:{S_B1+1}] offset:{16*g}")

def epi1(a):
    P = lambda b, r: f"v[{b+r}:{b+r+1}]"
    reduce_read(a)
    for r in range(0, 16, 2): a(f"v_cvt_pk_bf16_f32 v{144+r//2}, v{128+r}, v{129+r}")
    for r in range(0, 16, 2):
        a(f"v_lshlrev_b32 v{128+r}, 16, v{144+r//2}")
        a(f"v_and_b32 v{129+r}, 0xffff0000, v{144+r//2}")
    for g in range(4):
        a(f"v_lshlrev_b32 v{160+4*g}, 16, v{20+2*g}")
        a(f"v_and_b32 v{161+4*g}, 0xffff0000, v{20+2*g}")
        a(f"v_lshlrev_b32 v{162+4*g}, 16, v{21+2*g}")
        a(f"v_and_b32 v{163+4*g}, 0xffff0000, v{21+2*g}")
    for r in range(0, 16, 2): a(f"v_pk_add_f32 {P(128,r)}, {P(128,r)}, {P(160,r)}")
    for r in range(0, 16, 2): a(f"v_cvt_pk_bf16_f32 v{144+r//2}, v{128+r}, v{129+r}")
    for r in range(0, 16, 2):
        a(f"v_lshlrev_b32 v{128+r}, 16, v{144+r//2}")
        a(f"v_and_b32 v{129+r}, 0xffff0000, v{144+r//2}")
    gelu16(a, 128, 160)
    for r in range(0, 16, 2): a(f"v_cvt_pk_bf16_f32 v{144+r//2}, v{128+r}, v{129+r}")
    a("s_lshr_b32 s64, s72, 4")
    a("s_lshl_b32 s64, s64, 14")
    a(f"s_lshl_b32 s65, s{S_T1}, 10")
    a("s_add_u32 s64, s64, s65")
    a(f"s_and_b32 s62, s{S_WAVE}, 1")
    a("s_lshl_b32 s65, s62, 9")
    a("s_add_u32 s64, s64, s65")
    a(f"buffer_store_dwordx4 v[144:147], v10, s[{SRD_G2}:{SRD_G2+3}], s64 offen sc1")
    a("s_add_u32 s64, s64, 16384")
    a(f"buffer_store_dwordx4 v[148:151], v10, s[{SRD_G2}:{SRD_G2+3}], s64 offen sc1")

def epi2_loads(a):
    a(f"s_lshr_b32 s61, s{S_WAVE}, 1")
    a(f"s_and_b32 s62, s{S_WAVE}, 1")
    a(f"s_lshl_b32 s63, s{S_SJ}, 6")
    a("s_lshl_b32 s64, s61, 5")
    a("s_add_u32 s63, s63, s64")
    a("v_add_u32 v15, s63, v7")
    a("v_lshlrev_b32 v16, 10, v15")
    a("v_lshl_add_u32 v16, v6, 6, v16")
    a(f"s_lshl_b32 s70, s{S_T2}, 7")
    a("s_lshl_b32 s64, s62, 3")
    a("s_add_u32 s70, s70, s64")
    for r in range(4):
        a(f"buffer_load_dwordx2 v[{20+2*r}:{21+2*r}], v16, s[{SRD_H}:{SRD_H+3}], s70 offen offset:{16*r} sc1")
    a("v_lshlrev_b32 v17, 1, v15")
    a(f"global_load_ushort v18, v17, s[{S_B2}:{S_B2+1}]")

def epi2(a):
    P = lambda b, r: f"v[{b+r}:{b+r+1}]"
    reduce_read(a)
    for r in range(4):
        a(f"v_cvt_pk_bf16_f32 v{144+2*r}, v{128+r}, v{132+r}")
        a(f"v_cvt_pk_bf16_f32 v{145+2*r}, v{136+r}, v{140+r}")
    a("v_lshlrev_b32 v18, 16, v18")
    a("v_mov_b32 v19, v18")
    for i in range(8):
        a(f"v_lshlrev_b32 v{160+2*i}, 16, v{144+i}")
        a(f"v_and_b32 v{161+2*i}, 0xffff0000, v{144+i}")
    for r in range(0, 16, 2): a(f"v_pk_add_f32 {P(160,r)}, {P(160,r)}, v[18:19]")
    for i in range(8): a(f"v_cvt_pk_bf16_f32 v{144+i}, v{160+2*i}, v{161+2*i}")
    for i in range(8):
        a(f"v_lshlrev_b32 v{160+2*i}, 16, v{144+i}")
        a(f"v_and_b32 v{161+2*i}, 0xffff0000, v{144+i}")
        a(f"v_lshlrev_b32 v{176+2*i}, 16, v{20+i}")
        a(f"v_and_b32 v{177+2*i}, 0xffff0000, v{20+i}")
    for r in range(0, 16, 2): a(f"v_pk_add_f32 {P(160,r)}, {P(160,r)}, {P(176,r)}")
    for i in range(8): a(f"v_cvt_pk_bf16_f32 v{144+i}, v{160+2*i}, v{161+2*i}")
    for r in range(4):
        a(f"buffer_store_dwordx2 v[{144+2*r}:{145+2*r}], v16, s[{SRD_OUT}:{SRD_OUT+3}], s70 offen offset:{16*r}")

D0_G1, D0_G2 = 8, 8
TOUCH = True
def gen_fused(a):
    kernel_header(a, KNAME)
    stamp_begin(a)
    a("s_cmp_ge_u32 s2, 256")
    a("s_cbranch_scc1 L_exit")
    prologue(a)
    ln1(a)
    st(a, "LN1 done (stores issued)", 250)
    a("s_and_b32 s60, s2, 3")
    a("s_lshl_b32 s60, s60, 6")
    arrive(a, 8, 60)
    st(a, "B1 arrived", 250)
    touch_point(a, 0)
    kgen(a)
    st(a, "Kgen done", 250)
    a("s_mov_b32 s60, 0")
    poll_wg(a, 8, 60, 4, 6, 64)
    st(a, "B1 passed", 250)
    conv_load_u(a)
    conv_main(a)
    st(a, "conv epilogue done (stores issued)")
    a("s_and_b32 s60, s2, 7")
    a("s_lshl_b32 s60, s60, 7")
    a(f"s_add_u32 s60, s60, {SYNC_OFF + C_B2*128}")
    arrive(a, 6, 60)
    st(a, "B2 arrived")
    ring_base(a, 32768, 0)
    woff_init(a, 1, S_FJ)
    lA = newlbl("sa")
    a("s_cmp_ge_u32 s2, 224")
    a(f"s_cbranch_scc1 {lA}")
    dma_issue(a, 1, 16, 0)
    a.label(lA)
    st(a, "w1 DMA A issued")
    a(f"s_mov_b32 s60, {SYNC_OFF + C_B2*128}")
    poll_wg(a, 6, 60, 8, 7, 32)
    st(a, "B2 passed")
    ln2_loads(a)
    lB = newlbl("sb")
    a("s_waitcnt vmcnt(2)")
    a("s_cmp_ge_u32 s2, 224")
    a(f"s_cbranch_scc1 {lB}")
    tr_to_acc(a, 1, range(16), 0)
    a.label(lB)
    ln2_compute(a)
    st(a, "LN2 done (stores issued)")
    a(f"s_lshr_b32 s60, s{S_TB}, 5")
    a("s_lshl_b32 s60, s60, 7")
    a(f"s_add_u32 s60, s60, {SYNC_OFF + C_B3*128}")
    arrive(a, 6, 60)
    st(a, "B3 arrived")
    gemm_lane_consts(a)
    a("s_cmp_ge_u32 s2, 224")
    a("s_cbranch_scc1 L_skipG1")
    a("s_waitcnt lgkmcnt(0)")
    dma_issue(a, 1, 16, 0)
    a("s_waitcnt vmcnt(16)")
    tr_to_acc(a, 1, range(16, 24), 0)
    a("s_waitcnt vmcnt(0)")
    tr_to_acc(a, 1, range(24, 32), 8)
    a("s_waitcnt lgkmcnt(0)")
    st(a, "w1 staged")
    a(f"s_lshl_b32 s60, s{S_WAVE}, 8")
    a(f"s_add_u32 s60, s60, {SYNC_OFF + C_B3*128}")
    poll(a, 6, 60, 2, 7, 32)
    st(a, "B3 passed")
    a(f"s_mul_i32 s71, s{S_WAVE}, {32*16384}")
    a(f"s_lshl_b32 s60, s{S_T1}, 10")
    a("s_add_u32 s71, s71, s60")
    epi1_loads(a)
    main_loop(a, 1, SRD_HN, 71, D0_G1)
    st(a, "G1 main done")
    a("s_barrier")
    dma_setup(a, 2)
    ring_base(a, 12 * 2048, RED_BYTES)
    woff_init(a, 2, S_SJ)
    reduce_write(a)
    dma_issue(a, 2, 12, 0)
    a("s_waitcnt lgkmcnt(0)")
    a("s_barrier")
    st(a, "G1 reduce written + w2 DMA A issued")
    epi1(a)
    st(a, "epi1 done (stores issued)")
    a(f"s_lshl_b32 s60, s{S_T1}, 7")
    a(f"s_add_u32 s60, s60, {SYNC_OFF + C_B4*128}")
    arrive(a, 6, 60)
    st(a, "B4 arrived")
    a("s_branch L_stage2")
    a.label("L_skipG1")
    dma_setup(a, 2)
    ring_base(a, 12 * 2048, RED_BYTES)
    woff_init(a, 2, S_SJ)
    dma_issue(a, 2, 12, 0)
    a("s_waitcnt vmcnt(0)")
    a("s_barrier")
    a.label("L_stage2")
    tr_to_acc(a, 2, range(12), 0)
    a("s_waitcnt lgkmcnt(0)")
    a("s_barrier")
    ring_base(a, 32768, 0)
    dma_issue(a, 2, 16, 0)
    a("s_waitcnt vmcnt(16)")
    tr_to_acc(a, 2, range(12, 20), 0)
    a("s_waitcnt vmcnt(0)")
    tr_to_acc(a, 2, range(20, 28), 8)
    a("s_waitcnt lgkmcnt(0)")
    a(f"s_lshl_b32 s60, s{S_T2}, 7")
    a(f"s_add_u32 s60, s60, {SYNC_OFF + C_B4*128}")
    st(a, "w2 staged")
    poll(a, 6, 60, 1, 7, 28)
    st(a, "B4 passed")
    a(f"s_mul_i32 s71, s{S_WAVE}, {28*16384}")
    a(f"s_lshl_b32 s60, s{S_T2}, 10")
    a("s_add_u32 s71, s71, s60")
    epi2_loads(a)
    main_loop(a, 2, SRD_G2, 71, D0_G2)
    st(a, "G2 main done")
    a("s_barrier")
    reduce_write(a)
    a("s_waitcnt lgkmcnt(0)")
    a("s_barrier")
    epi2(a)
    a("s_waitcnt vmcnt(0)") if STAMPON() else None
    st(a, "end", final=True)
    a.label("L_exit")
    a("s_endpgm")
    return kernel_desc(KNAME, 512, 100, accum=256)

V_TW1, V_TW2 = 243, 244
def touch_setup(a):
    a("s_and_b32 s60, s2, 7")
    a("s_lshr_b32 s60, s60, 1")
    a("s_lshr_b32 s61, s2, 3")
    a(f"s_and_b32 s62, s{S_WAVE}, 1")
    a("s_lshl_b32 s62, s62, 9")
    a("s_lshl_b32 s63, s61, 6")
    a(f"v_add_u32 v{V_TW1}, s63, v2")
    a(f"v_mul_u32_u24 v{V_TW1}, 3584, v{V_TW1}")
    a("s_mul_i32 s63, s60, 896")
    a("s_add_u32 s63, s63, s62")
    a(f"v_add_u32 v{V_TW1}, s63, v{V_TW1}")
    a("s_mul_i32 s63, s61, 56")
    a(f"v_min_u32 v{V_TW2}, 55, v2")
    a(f"v_add_u32 v{V_TW2}, s63, v{V_TW2}")
    a(f"v_lshlrev_b32 v{V_TW2}, 12, v{V_TW2}")
    a("s_lshl_b32 s63, s60, 10")
    a("s_add_u32 s63, s63, s62")
    a(f"v_add_u32 v{V_TW2}, s63, v{V_TW2}")

def touch_point(a, i):
    if not TOUCH: return
    l = newlbl("tp")
    a(f"s_cmp_lt_u32 s{S_WAVE}, 2")
    a(f"s_cbranch_scc1 {l}")
    if i < 4: a(f"buffer_load_dword v255, v{V_TW1}, s[{SRD_W1}:{SRD_W1+3}], 0 offen offset:{128*i}")
    else: a(f"buffer_load_dword v255, v{V_TW2}, s[{SRD_W2}:{SRD_W2+3}], 0 offen offset:{128*(i-4)}")
    a.label(l)

def build(path):
    a = Asm()
    hdr = open("cdna_kernels/" + NAME + ".s.ref").read().split("; Override launch geometry")[0]
    txt = hdr + f"; @launch grid=(256,1,1) block=(256,1,1) lds={LDS_TOTAL}\n" + '.amdgcn_target "amdgcn-amd-amdhsa--gfx950"\n'
    d = gen_fused(a)
    txt += a.finalize() + d
    open(path, "w").write(txt)
    open(path + ".names", "w").write("".join(f"{k} {v}\n" for k, v in ST_NAMES.items()))

if __name__ == "__main__":
    import sys, common
    if "--stamp" in sys.argv:
        common.STAMP = True; sys.argv.remove("--stamp")
    if "--notouch" in sys.argv: TOUCH = False
    build(sys.argv[1])
```

```python
from common import *
from k1 import cmul, wave_max, G_ROW, H_BASE, FT_BASE, FT_DUMMY
import struct

KNAME = NAME + "_kernel"
KG_CH = 27984 + 5888
KC_BASE = 2 * KG_CH
KC_STRIDE = 4160
KCH = 4 * KC_STRIDE
U_BASE = KC_BASE + 2 * KCH
U_CH = 95 * 80
LDS_TOTAL = 163840
FT_ZERO = 2060
RED_BYTES = 65536
D_RING = 8
S_WAVE, S_Q0 = 10, 11
SRD_X, SRD_U2, SRD_YA, SRD_H, SRD_HN, SRD_G2, SRD_W1, SRD_W2, SRD_OUT = 12, 16, 20, 24, 28, 32, 36, 40, 44
S_B1, S_B2 = 48, 50
S_SCALE, S_DSK = 52, 53
S_T1, S_FJ, S_T2, S_SJ = 54, 55, 56, 57
S_WOFF, S_RING = 58, 59
SM, SR = 84, 86
C_B2, C_B3, C_B4 = 0, 8, 16
KIDX = 0
S_TB = 5
VX = 224
V_KROW, V_KA, V_KB, V_KSC, V_KDST = 232, 233, 234, 235, 239
V_CA, V_CB = 248, 249
V_PW, V_PR, V_US = 252, 253, 254
PL = 131072
PL1 = PL2 = 0
YB = 16384

ST_NAMES = {}
_st = [2]
def st(a, name, vt=60, final=False):
    slot = 1 if final else _st[0]
    if not final: _st[0] += 1
    ST_NAMES[slot] = name
    stamp(a, KIDX, slot, 6, vt)

def evalE(a, D, v, zr, zi, t, conj=False):
    bits = struct.unpack('<I', struct.pack('<f', float(v)))[0]
    a(f"s_mov_b32 s80, {hex(bits)}")
    a(f"v_mul_f32 v{t}, s80, v{zr}")
    a(f"v_mul_f32 v{t+1}, s80, v{zi}")
    a(f"v_exp_f32 v{t}, v{t}")
    a(f"v_rndne_f32 v{t+2}, v{t+1}")
    a(f"v_sub_f32 v{t+1}, v{t+1}, v{t+2}")
    a(f"v_cos_f32 v{D}, v{t+1}")
    a(f"v_sin_f32 v{D+1}, v{t+1}")
    a(f"v_mul_f32 v{D}, v{D}, v{t}")
    if conj: a(f"v_mul_f32 v{D+1}, -v{D+1}, v{t}")
    else: a(f"v_mul_f32 v{D+1}, v{D+1}, v{t}")

def pos2chan(a, sd, sq, t):
    a(f"s_and_b32 s{sd}, s{sq}, 0x1c0")
    a(f"s_and_b32 s{t}, s{sq}, 7")
    a(f"s_lshl_b32 s{t}, s{t}, 3")
    a(f"s_or_b32 s{sd}, s{sd}, s{t}")
    a(f"s_lshr_b32 s{t}, s{sq}, 3")
    a(f"s_and_b32 s{t}, s{t}, 7")
    a(f"s_or_b32 s{sd}, s{sd}, s{t}")

_lbl = [0]
def newlbl(p):
    _lbl[0] += 1
    return f"L_{p}{_lbl[0]}"

def arrive(a, base_sgpr_pair, off_sgpr):
    a("s_waitcnt vmcnt(0)")
    a("s_barrier")
    l = newlbl("arr")
    a(f"s_cmp_lg_u32 s{S_WAVE}, 0")
    a(f"s_cbranch_scc1 {l}")
    a(f"v_mov_b32 v13, s{off_sgpr}")
    a("v_mov_b32 v14, 1")
    a("s_mov_b64 s[62:63], exec")
    a("s_mov_b64 exec, 1")
    a(f"global_atomic_add v13, v14, s[{base_sgpr_pair}:{base_sgpr_pair+1}] sc1")
    a("s_mov_b64 exec, s[62:63]")
    a.label(l)

def poll(a, base_sgpr_pair, off_sgpr, n, stride_log2, target):
    l = newlbl("poll")
    a(f"v_and_b32 v13, {n-1}, v2")
    a(f"v_lshlrev_b32 v13, {stride_log2}, v13")
    a(f"v_add_u32 v13, s{off_sgpr}, v13")
    a("s_mov_b32 s61, 0")
    a.label(l)
    a(f"global_load_dword v14, v13, s[{base_sgpr_pair}:{base_sgpr_pair+1}] sc1")
    a("s_waitcnt vmcnt(0)")
    a(f"v_cmp_gt_u32 vcc, {target}, v14")
    a("s_add_u32 s61, s61, 1")
    a(f"s_cbranch_vccz {l}_done")
    a("s_cmp_lt_u32 s61, 0x40000")
    a(f"s_cbranch_scc1 {l}")
    a.label(l + "_done")

def poll_wg(a, base_sgpr_pair, off_sgpr, n, stride_log2, target):
    l = newlbl("pw")
    a(f"s_cmp_lg_u32 s{S_WAVE}, 0")
    a(f"s_cbranch_scc1 {l}")
    poll(a, base_sgpr_pair, off_sgpr, n, stride_log2, target)
    a.label(l)
    a("s_barrier")

def prologue(a):
    a("s_load_dwordx16 s[64:79], s[0:1], 0")
    a("s_load_dwordx2 s[88:89], s[0:1], 64")
    a("s_load_dwordx4 s[80:83], s[0:1], 80")
    a("s_load_dwordx4 s[84:87], s[0:1], 96")
    a("s_load_dwordx4 s[60:63], s[0:1], 112")
    a("s_load_dwordx2 s[6:7], s[0:1], 128")
    a("v_lshrrev_b32 v1, 6, v0")
    a("v_and_b32 v2, 63, v0")
    a(f"v_readfirstlane_b32 s{S_WAVE}, v1")
    a("s_and_b32 s54, s2, 7")
    a("s_lshl_b32 s54, s54, 5")
    a("s_lshr_b32 s55, s2, 3")
    a(f"s_add_u32 s{S_TB}, s54, s55")
    a(f"s_lshl_b32 s{S_Q0}, s{S_TB}, 1")
    a(f"s_lshr_b32 s55, s{S_WAVE}, 1")
    a(f"s_add_u32 s56, s{S_Q0}, s55")
    pos2chan(a, 57, 56, 58)
    a("v_lshlrev_b32 v3, 4, v2")
    a(f"s_lshl_b32 s58, s{S_TB}, 13")
    a(f"s_lshl_b32 s59, s{S_WAVE}, 11")
    a("s_add_u32 s59, s59, s58")
    a(f"s_and_b32 s54, s{S_WAVE}, 1")
    a("s_lshl_b32 s54, s54, 7")
    a("s_lshl_b32 s55, s57, 8")
    a("s_add_u32 s54, s54, s55")
    a("v_lshl_add_u32 v12, v2, 1, s54")
    a("v_xor_b32 v13, 128, v12")
    a("s_waitcnt lgkmcnt(0)")
    stamp(a, KIDX, 0, 6, 250, first=True)
    srd(a, SRD_X, 64, 65, 0, 0x200000)
    a(f"buffer_load_dwordx4 v[{VX}:{VX+3}], v3, s[{SRD_X}:{SRD_X+3}], s59 offen")
    a(f"buffer_load_dwordx4 v[{VX+4}:{VX+7}], v3, s[{SRD_X}:{SRD_X+3}], s59 offen offset:1024")
    a("global_load_ushort v200, v12, s[66:67]")
    a("global_load_ushort v201, v12, s[68:69]")
    a("global_load_ushort v202, v12, s[70:71]")
    a("global_load_ushort v203, v12, s[72:73]")
    a("global_load_ushort v204, v12, s[74:75]")
    a("global_load_ushort v205, v12, s[76:77]")
    a("global_load_ushort v206, v13, s[70:71]")
    a("global_load_ushort v207, v13, s[72:73]")
    a("global_load_ushort v208, v13, s[74:75]")
    a("global_load_ushort v209, v13, s[76:77]")
    a("s_lshl_b32 s54, s57, 1")
    a("s_and_b32 s54, s54, 0xfffffffc")
    a("s_load_dword s52, s[78:79], s54")
    a("s_load_dword s53, s[88:89], s54")
    a("s_and_b32 s91, s57, 1")
    a(f"s_mov_b32 s8, s62"); a("s_mov_b32 s9, s63")
    srd(a, SRD_OUT, 60, 61, 0, 0x200000)
    srd(a, SRD_U2, 6, 7, U2_OFF, U2_SZ)
    srd(a, SRD_YA, 6, 7, YA_OFF, YA_SZ)
    srd(a, SRD_H, 6, 7, H_OFF, H_SZ)
    srd(a, SRD_HN, 6, 7, HN_OFF, HN_SZ)
    srd(a, SRD_G2, 6, 7, G2_OFF, G2_SZ)
    srd(a, SRD_W1, 80, 81, 0, 2048 * 3584)
    srd(a, SRD_W2, 84, 85, 0, 2048 * 3584)
    a(f"s_mov_b32 s{S_B1}, s82"); a(f"s_mov_b32 s{S_B1+1}, s83")
    a(f"s_mov_b32 s{S_B2}, s86"); a(f"s_mov_b32 s{S_B2+1}, s87")
    l = newlbl("z")
    a(f"s_or_b32 s54, s2, s{S_WAVE}")
    a("s_cmp_lg_u32 s54, 0")
    a(f"s_cbranch_scc1 {l}")
    a("v_lshlrev_b32 v14, 7, v2")
    a(f"v_add_u32 v14, {SYNC_OFF}, v14")
    a("v_mov_b32 v15, 0")
    a("global_store_dword v14, v15, s[6:7] sc1")
    a.label(l)
    precompute(a)
    a("s_cmp_eq_u32 s91, 1")
    a("s_cselect_b32 s60, 0, 16")
    a("s_waitcnt lgkmcnt(0)")
    a("s_lshl_b32 s52, s52, s60"); a("s_and_b32 s52, s52, 0xffff0000")
    a("s_lshl_b32 s53, s53, s60"); a("s_and_b32 s53, s53, 0xffff0000")

def precompute(a):
    a("v_lshrrev_b32 v4, 3, v2")
    a("v_mul_u32_u24 v4, 72, v4")
    a("v_and_b32 v5, 7, v2")
    a("v_add_u32 v4, v4, v5")
    a(f"s_mul_i32 s54, s{S_WAVE}, 576")
    a("v_add_u32 v4, s54, v4")
    a(f"v_lshlrev_b32 v{V_PW}, 2, v4")
    a(f"v_add_u32 v{V_PW}, {PL}, v{V_PW}")
    a(f"s_mul_i32 s54, s{S_WAVE}, 72")
    a("v_add_u32 v4, s54, v2")
    a(f"v_lshlrev_b32 v{V_PR}, 2, v4")
    a(f"v_add_u32 v{V_PR}, {PL}, v{V_PR}")
    a(f"v_lshlrev_b32 v{V_US}, 4, v0")
    a(f"s_lshr_b32 s60, s{S_WAVE}, 1")
    a(f"s_mul_i32 s60, s60, {KG_CH}")
    a(f"s_and_b32 s62, s{S_WAVE}, 1")
    a("s_lshl_b32 s61, s62, 8")
    a("s_add_u32 s61, s61, s60")
    a(f"v_lshl_add_u32 v{V_KROW}, v2, 2, s61")
    a("v_and_b32 v7, 15, v2")
    a("v_lshrrev_b32 v8, 4, v2")
    a(f"v_mul_u32_u24 v9, {G_ROW}, v7")
    a("v_lshl_add_u32 v9, v8, 4, v9")
    a(f"s_mul_i32 s63, s62, {16*G_ROW}")
    a("s_add_u32 s63, s63, s60")
    a(f"v_add_u32 v{V_KA}, s63, v9")
    a(f"s_add_u32 s63, s60, {H_BASE}")
    a(f"v_add_u32 v{V_KB}, s63, v9")
    a("v_lshlrev_b32 v16, 3, v7")
    a(f"s_add_u32 s63, s60, {FT_BASE}")
    a(f"s_movk_i32 s54, {FT_DUMMY}")
    a("v_cmp_eq_u32 s[56:57], 1, v8")
    a("v_cmp_eq_u32 s[58:59], 2, v8")
    a("v_cmp_eq_u32 vcc, 3, v8")
    for r in range(4):
        m0_q2 = 256 + 2 * r
        m0_q3 = 512 + 4 * (r & 1) + 256 * (r >> 1)
        m1_q0 = 1024 + 256 * r
        m1_q1 = 2048 if r == 0 else FT_DUMMY
        R = V_KSC + r
        a("s_cmp_eq_u32 s62, 0")
        a(f"s_cselect_b32 s55, {r}, {m1_q0}")
        a(f"v_mov_b32 v{R}, s55")
        a(f"s_cselect_b32 s55, {4+r}, {m1_q1}")
        a("v_mov_b32 v18, s55")
        a(f"v_cndmask_b32 v{R}, v{R}, v18, s[56:57]")
        a(f"s_cselect_b32 s55, {m0_q2}, s54")
        a("v_mov_b32 v18, s55")
        a(f"v_cndmask_b32 v{R}, v{R}, v18, s[58:59]")
        a(f"s_cselect_b32 s55, {m0_q3}, s54")
        a("v_mov_b32 v18, s55")
        a(f"v_cndmask_b32 v{R}, v{R}, v18, vcc")
        a(f"v_add_u32 v{R}, v{R}, v16")
        a(f"v_lshrrev_b32 v18, 4, v{R}")
        a(f"v_lshlrev_b32 v18, 2, v18")
        a(f"v_lshl_add_u32 v{R}, v{R}, 1, v18")
        a(f"v_add_u32 v{R}, s63, v{R}")
    a("s_lshl_b32 s55, s62, 6")
    a("v_add_u32 v19, s55, v2")
    a("v_lshlrev_b32 v100, 5, v19")
    a("v_sub_u32 v100, 4094, v100")
    NE = 19
    for e in range(NE):
        a(f"v_subrev_u32 v{104+e}, {2*e}, v100")
        a(f"v_cvt_f32_u32 v{104+e}, v{104+e}")
    for e in range(0, NE + 1, 2):
        e2 = min(e + 1, NE - 1)
        a(f"v_cvt_pk_bf16_f32 v{124+e//2}, v{104+e}, v{104+e2}")
    for e in range(NE):
        if e % 2 == 0: a(f"v_lshlrev_b32 v{104+e}, 16, v{124+e//2}")
        else: a(f"v_and_b32 v{104+e}, 0xffff0000, v{124+e//2}")
    for e in range(NE): a(f"v_cvt_u32_f32 v{104+e}, v{104+e}")
    for e in range(16, NE): a(f"v_min_u32 v{104+e}, {2*FT_ZERO}, v{104+e}")
    for e in range(NE):
        a(f"v_lshrrev_b32 v18, 5, v{104+e}")
        a(f"v_lshl_add_u32 v{104+e}, v18, 2, v{104+e}")
        a(f"v_add_u32 v{104+e}, s63, v{104+e}")
    a(f"s_lshr_b32 s55, s{S_WAVE}, 1")
    a(f"s_mul_i32 s55, s55, {KCH}")
    a(f"s_add_u32 s55, s55, {KC_BASE}")
    a("v_lshlrev_b32 v19, 5, v19")
    a(f"v_add_u32 v{V_KDST}, s55, v19")
    a(f"s_lshr_b32 s60, s{S_WAVE}, 1")
    a(f"s_and_b32 s61, s{S_WAVE}, 1")
    a("v_and_b32 v52, 31, v2")
    a("v_lshrrev_b32 v53, 5, v2")
    a("v_and_b32 v54, 3, v52")
    a("v_sub_u32 v54, 3, v54")
    a(f"v_mul_u32_u24 v54, {KC_STRIDE}, v54")
    a("v_lshrrev_b32 v55, 2, v52")
    a("v_lshlrev_b32 v55, 3, v55")
    a("v_sub_u32 v54, v54, v55")
    a("v_lshl_add_u32 v54, v53, 4, v54")
    a(f"s_mul_i32 s62, s60, {KCH}")
    a("s_lshl_b32 s63, s61, 6")
    a("s_sub_u32 s62, s62, s63")
    a(f"s_add_u32 s62, s62, {KC_BASE + 2*2044 - 2048 - 64*30}")
    a(f"v_add_u32 v{V_CA}, s62, v54")
    a("v_mul_u32_u24 v55, 80, v52")
    a("v_lshl_add_u32 v55, v53, 4, v55")
    a(f"s_mul_i32 s62, s60, {U_CH}")
    a("s_mul_i32 s63, s61, 80")
    a("s_sub_u32 s62, s62, s63")
    a(f"s_add_u32 s62, s62, {U_BASE + 80*(31-30)}")
    a(f"v_add_u32 v{V_CB}, s62, v55")
    tile_coords(a, 1, S_T1, S_FJ)
    tile_coords(a, 2, S_T2, S_SJ)
    dma_setup(a, 1)
    touch_setup(a)

def planes_out(a, D, plane_base, srd_dst, T):
    for c in range(8):
        a(f"ds_write_b32 v{V_PW}, v{D+c} offset:{plane_base + 32*c}")
    a(f"v_add_u32 v{T+8}, 1152, v{V_PR}")
    a("s_waitcnt lgkmcnt(0)")
    a("s_barrier")
    a(f"ds_read2st64_b32 v[{T}:{T+1}], v{V_PR} offset0:0 offset1:9")
    a(f"ds_read2st64_b32 v[{T+2}:{T+3}], v{V_PR} offset0:18 offset1:27")
    a(f"ds_read2st64_b32 v[{T+4}:{T+5}], v{T+8} offset0:0 offset1:9")
    a(f"ds_read2st64_b32 v[{T+6}:{T+7}], v{T+8} offset0:18 offset1:27")
    a(f"s_lshl_b32 s60, s{S_TB}, 13")
    a("s_add_u32 s61, s60, 4096")
    a("s_waitcnt lgkmcnt(2)")
    a(f"buffer_store_dwordx4 v[{T}:{T+3}], v{V_US}, s[{srd_dst}:{srd_dst+3}], s60 offen sc1")
    a("s_waitcnt lgkmcnt(0)")
    a(f"buffer_store_dwordx4 v[{T+4}:{T+7}], v{V_US}, s[{srd_dst}:{srd_dst+3}], s61 offen sc1")

def unit_addr(a, vd, vt):
    a(f"v_lshrrev_b32 v{vd}, 3, v2")
    a(f"v_lshlrev_b32 v{vd}, 10, v{vd}")
    a(f"v_and_b32 v{vt}, 7, v2")
    a(f"v_lshl_add_u32 v{vd}, v{vt}, 4, v{vd}")

def ln1(a):
    a(f"s_mov_b32 s90, {INV512}")
    a(f"s_mov_b32 s91, {EPS}")
    a("s_waitcnt vmcnt(10)")
    unpack_pairs(a, 16, VX, VX + 4)
    pair_sums(a, 16, 8, 32, 34, 36)
    reduce4(a, 32, 33, 34, 35)
    ln_stats(a, 32, 33, 36, 37, SM, SR)
    ln_apply(a, 16, 8, SM, SR, 40)
    unpack_packed(a, 16, 8, 40)
    for c in range(8):
        a(f"v_cvt_pk_f16_f32 v{40+c}, v{16+2*c}, v{17+2*c}")
    planes_out(a, 40, PL1, SRD_U2, 48)

def kgen(a):
    a(f"s_lshr_b32 s60, s{S_WAVE}, 1")
    a(f"s_mul_i32 s60, s60, {KG_CH}")
    a(f"s_mov_b32 s66, {LOG2E}")
    a(f"s_mov_b32 s67, {LOG2E_LO}")
    a(f"s_mov_b32 s68, {LN2}")
    a(f"s_mov_b32 s69, {INV2PI}")
    a("v_mov_b32 v20, s52")
    a("v_mul_f32 v21, s66, v20")
    a("v_fma_f32 v22, v20, s66, -v21")
    a("v_fmac_f32 v22, s67, v20")
    a("v_exp_f32 v21, v21")
    a("v_mul_f32 v22, s68, v22")
    a("v_fmac_f32 v21, v21, v22")
    bf16_round(a, 21, 21)
    for i in range(10): a(f"v_lshlrev_b32 v{10+i}, 16, v{200+i}")
    a("v_mul_f32 v10, v21, v10")
    a("v_mul_f32 v11, v21, v11")
    a("v_mul_f32 v10, s66, v10")
    a("v_mul_f32 v11, s69, v11")
    for (b, c0, out) in ((12, 14, 24), (16, 18, 26)):
        a(f"v_mul_f32 v{b}, v21, v{b}")
        a(f"v_mul_f32 v{b+1}, v21, v{b+1}")
        a(f"v_mul_f32 v{out}, v{c0}, v{b}")
        a(f"v_mul_f32 v{out+1}, v{c0}, v{b+1}")
        a(f"v_fma_f32 v{out}, -v{c0+1}, v{b+1}, v{out}")
        a(f"v_fmac_f32 v{out+1}, v{c0+1}, v{b}")
    a("v_max3_f32 v28, abs(v24), abs(v25), abs(v26)")
    a("v_max_f32 v28, v28, abs(v27)")
    W1, W256, W512, W1024, W8, W128 = 32, 34, 36, 38, 80, 50
    evalE(a, W1, 1, 10, 11, 40)
    wave_max(a, 28, 29)
    evalE(a, W256, 256, 10, 11, 44)
    a("v_frexp_exp_i32_f32 v29, v28")
    a("v_sub_u32 v30, 0, v29")
    a("v_ldexp_f32 v48, v24, v30")
    a("v_ldexp_f32 v49, v25, v30")
    a("v_mov_b32 v31, 1.0")
    a("v_ldexp_f32 v31, v31, v29")
    evalE(a, W8, 8, 10, 11, 40, conj=True)
    a(f"v_readfirstlane_b32 s{S_SCALE}, v31")
    evalE(a, 84, 128, 10, 11, 44, conj=True)
    cmul(a, W512, W256, W256)
    cmul(a, W1024, W512, W512)
    st(a, "kg: setup done", 250)
    touch_point(a, 1)
    g = lambda i: 48 + 2 * i
    cnt = [0]
    def emit(off, reg):
        t = 96 + (cnt[0] % 8); cnt[0] += 1
        a(f"v_cvt_pk_f16_f32 v{t}, v{reg}, v{reg+1}")
        a(f"ds_write_b32 v{V_KROW}, v{t} offset:{off}")
    grow = lambda r, reg: emit(r * G_ROW, reg)
    hrow = lambda r, reg: emit(H_BASE + r * G_ROW, reg)
    a("v_mov_b32 v82, 1.0"); a("v_mov_b32 v83, 0")
    HA, HB = [82, 86], [84, 88]
    hstate = [0]
    def hstep():
        i = hstate[0]
        if i >= 16: return
        ca, na = HA[i % 2], HA[(i + 1) % 2]
        cb, nb = HB[i % 2], HB[(i + 1) % 2]
        if i < 15:
            cmul(a, na, ca, W8); cmul(a, nb, cb, W8)
        hrow(i, ca); hrow(16 + i, cb)
        hstate[0] += 1
    grow(0, g(0))
    cmul(a, 64, g(0), W1024); cmul(a, 66, g(0), W512); cmul(a, g(1), g(0), W1)
    hstep()
    grow(16, 64); grow(12, 66)
    cmul(a, 68, 64, W256); cmul(a, 70, 66, W256); cmul(a, g(2), g(1), W1); cmul(a, 72, g(0), W256)
    hstep(); hstep()
    grow(1, g(1)); grow(17, 68); grow(14, 70)
    cmul(a, 64, 68, W256); cmul(a, g(3), g(2), W1); cmul(a, 74, g(2), W256)
    hstep(); hstep()
    grow(2, g(2)); grow(8, 72)
    cmul(a, 68, 64, W256); cmul(a, g(4), g(3), W1)
    hstep(); hstep()
    grow(18, 64); grow(3, g(3)); grow(9, 74)
    cmul(a, 64, 68, W256); cmul(a, g(5), g(4), W1); cmul(a, 66, g(4), W512); cmul(a, 72, g(4), W256)
    hstep(); hstep()
    grow(19, 68); grow(4, g(4))
    cmul(a, g(6), g(5), W1); cmul(a, 70, 66, W256)
    hstep(); hstep()
    grow(20, 64); grow(5, g(5)); grow(13, 66); grow(10, 72)
    cmul(a, g(7), g(6), W1); cmul(a, 74, g(6), W256)
    hstep(); hstep()
    grow(6, g(6)); grow(15, 70)
    hstep(); hstep()
    grow(7, g(7)); grow(11, 74)
    while hstate[0] < 16: hstep()
    NE = 19
    a(f"s_add_u32 s63, s60, {FT_BASE}")
    st(a, "kg: chains done", 250)
    touch_point(a, 2)
    a("v_mov_b32 v18, 0")
    a(f"v_mov_b32 v101, s63")
    a(f"ds_write_b16 v101, v18 offset:{2*FT_ZERO + 4*(FT_ZERO >> 4)}")
    a("s_waitcnt lgkmcnt(0)")
    a("s_barrier")
    for ks in range(8):
        a(f"ds_read_b128 v[{128+12*ks}:{131+12*ks}], v{V_KA} offset:{ks*64}")
        a(f"ds_read_b128 v[{132+12*ks}:{135+12*ks}], v{V_KB} offset:{ks*64}")
        a(f"ds_read_b128 v[{136+12*ks}:{139+12*ks}], v{V_KB} offset:{ks*64 + 16*G_ROW}")
        if ks >= 3:
            k = ks - 3
            a("s_waitcnt lgkmcnt(9)")
            cc0 = "0" if k == 0 else "v[20:23]"; cc1 = "0" if k == 0 else "v[24:27]"
            a(f"v_mfma_f32_16x16x32_f16 v[20:23], v[{128+12*k}:{131+12*k}], v[{132+12*k}:{135+12*k}], {cc0}")
            a(f"v_mfma_f32_16x16x32_f16 v[24:27], v[{128+12*k}:{131+12*k}], v[{136+12*k}:{139+12*k}], {cc1}")
    for k in range(5, 8):
        a(f"s_waitcnt lgkmcnt({3*(7-k)})")
        a(f"v_mfma_f32_16x16x32_f16 v[20:23], v[{128+12*k}:{131+12*k}], v[{132+12*k}:{135+12*k}], v[20:23]")
        a(f"v_mfma_f32_16x16x32_f16 v[24:27], v[{128+12*k}:{131+12*k}], v[{136+12*k}:{139+12*k}], v[24:27]")
    for nt in range(2):
        A = 20 + 4 * nt
        a(f"v_cvt_pk_f16_f32 v{28+2*nt}, v{A}, v{A+1}")
        a(f"v_cvt_pk_f16_f32 v{29+2*nt}, v{A+2}, v{A+3}")
        a(f"ds_write_b16 v{V_KSC}, v{28+2*nt} offset:{288*nt}")
        a(f"ds_write_b16_d16_hi v{V_KSC+1}, v{28+2*nt} offset:{288*nt}")
        a(f"ds_write_b16 v{V_KSC+2}, v{29+2*nt} offset:{288*nt}")
        a(f"ds_write_b16_d16_hi v{V_KSC+3}, v{29+2*nt} offset:{288*nt}")
    st(a, "kg: mfma done", 250)
    for r in range(40, 44): a(f"v_mov_b32 v{r}, 0")
    a("v_lshlrev_b32 v5, 4, v0")
    a("v_cmp_gt_u32 vcc, 155, v0")
    a("s_and_saveexec_b64 s[62:63], vcc")
    a(f"v_add_u32 v44, {U_BASE}, v5")
    a(f"ds_write_b128 v44, v[40:43]")
    a(f"ds_write_b128 v44, v[40:43] offset:{U_CH}")
    a("s_mov_b64 exec, s[62:63]")
    a("v_lshrrev_b32 v44, 2, v0")
    a(f"v_mul_u32_u24 v44, {KC_STRIDE}, v44")
    a("v_and_b32 v45, 3, v0")
    a("v_lshl_add_u32 v44, v45, 4, v44")
    a(f"v_add_u32 v44, {KC_BASE + 4096}, v44")
    a("v_cmp_gt_u32 vcc, 32, v0")
    a("s_and_saveexec_b64 s[62:63], vcc")
    a("ds_write_b128 v44, v[40:43]")
    a("s_mov_b64 exec, s[62:63]")
    a("s_waitcnt lgkmcnt(0)")
    a("s_barrier")
    st(a, "kg: scatter+barrier done", 250)
    touch_point(a, 3)
    for e in range(NE): a(f"ds_read_u16 v{128+e}, v{104+e}")
    a("s_waitcnt lgkmcnt(0)")
    for i in range(9):
        a(f"v_lshl_or_b32 v{161+i}, v{129+2*i}, 16, v{128+2*i}")
    for i in range(8):
        a(f"v_mov_b32 v{152+i}, v{161+i}")
    for i in range(9):
        a(f"v_lshl_or_b32 v{181+i}, v{130+2*i}, 16, v{129+2*i}")
    for i in range(8):
        a(f"v_mov_b32 v{172+i}, v{181+i}")
    for (sig, R) in ((0, 152), (1, 172), (2, 162), (3, 182)):
        a(f"ds_write_b128 v{V_KDST}, v[{R}:{R+3}] offset:{sig*KC_STRIDE}")
        a(f"ds_write_b128 v{V_KDST}, v[{R+4}:{R+7}] offset:{sig*KC_STRIDE+16}")

def conv_load_u(a):
    l = newlbl("cu")
    a(f"s_cmp_ge_u32 s{S_WAVE}, 2")
    a(f"s_cbranch_scc1 {l}")
    a(f"s_lshl_b32 s60, s{S_WAVE}, 7")
    a("v_add_u32 v3, s60, v2")
    a("v_lshlrev_b32 v4, 13, v3")
    a(f"s_lshl_b32 s61, s{S_Q0}, 4")
    a(f"s_add_u32 s62, s61, {64*8192}")
    a(f"buffer_load_dwordx4 v[8:11], v4, s[{SRD_U2}:{SRD_U2+3}], s61 offen sc1")
    a(f"buffer_load_dwordx4 v[12:15], v4, s[{SRD_U2}:{SRD_U2+3}], s61 offen offset:16 sc1")
    a(f"buffer_load_dwordx4 v[16:19], v4, s[{SRD_U2}:{SRD_U2+3}], s62 offen sc1")
    a(f"buffer_load_dwordx4 v[20:23], v4, s[{SRD_U2}:{SRD_U2+3}], s62 offen offset:16 sc1")
    a("v_lshrrev_b32 v5, 2, v3")
    a("v_mul_u32_u24 v5, 80, v5")
    a("v_and_b32 v6, 3, v3")
    a("v_lshl_add_u32 v5, v6, 4, v5")
    a(f"v_add_u32 v5, {U_BASE + 31*80}, v5")
    a("s_waitcnt vmcnt(2)")
    a(f"ds_write_b128 v5, v[8:11]")
    a(f"ds_write_b128 v5, v[12:15] offset:{U_CH}")
    a("s_waitcnt vmcnt(0)")
    a(f"ds_write_b128 v5, v[16:19] offset:{16*80}")
    a(f"ds_write_b128 v5, v[20:23] offset:{U_CH + 16*80}")
    a.label(l)

def conv_main(a):
    a(f"s_lshr_b32 s60, s{S_WAVE}, 1")
    a(f"s_and_b32 s61, s{S_WAVE}, 1")
    a("v_and_b32 v52, 31, v2")
    a("v_lshrrev_b32 v53, 5, v2")
    a(f"v_mov_b32 v54, v{V_CA}")
    a(f"v_mov_b32 v55, v{V_CB}")
    a("s_waitcnt lgkmcnt(0)")
    a("s_barrier")
    st(a, "conv start (U in LDS)")
    X, Y = 96, 128
    def load_list(step, R):
        kk = 30 - 2 * step
        oa = 64 * kk; ob = 80 * kk
        return [
            f"ds_read_b64 v[{R+0}:{R+1}], v54 offset:{oa+2048}",
            f"ds_read_b64 v[{R+2}:{R+3}], v54 offset:{oa+2048+8}",
            f"ds_read_b128 v[{R+16}:{R+19}], v55 offset:{ob}",
            f"ds_read_b128 v[{R+24}:{R+27}], v55 offset:{ob+2560}",
            f"ds_read_b64 v[{R+4}:{R+5}], v54 offset:{oa+2048+32}",
            f"ds_read_b64 v[{R+6}:{R+7}], v54 offset:{oa+2048+40}",
            f"ds_read_b128 v[{R+20}:{R+23}], v55 offset:{ob+32}",
            f"ds_read_b128 v[{R+28}:{R+31}], v55 offset:{ob+2560+32}",
            f"ds_read_b64 v[{R+8}:{R+9}], v54 offset:{oa}",
            f"ds_read_b64 v[{R+10}:{R+11}], v54 offset:{oa+8}",
            f"ds_read_b64 v[{R+12}:{R+13}], v54 offset:{oa+32}",
            f"ds_read_b64 v[{R+14}:{R+15}], v54 offset:{oa+40}"]
    def mfma_list(R, first):
        c0 = "0" if first else "v[64:79]"; c1 = "0" if first else "v[80:95]"
        return [
            f"v_mfma_f32_32x32x16_f16 v[64:79], v[{R+0}:{R+3}], v[{R+16}:{R+19}], {c0}",
            f"v_mfma_f32_32x32x16_f16 v[80:95], v[{R+0}:{R+3}], v[{R+24}:{R+27}], {c1}",
            f"v_mfma_f32_32x32x16_f16 v[64:79], v[{R+4}:{R+7}], v[{R+20}:{R+23}], v[64:79]",
            f"v_mfma_f32_32x32x16_f16 v[80:95], v[{R+4}:{R+7}], v[{R+28}:{R+31}], v[80:95]",
            f"v_mfma_f32_32x32x16_f16 v[80:95], v[{R+8}:{R+11}], v[{R+16}:{R+19}], v[80:95]",
            f"v_mfma_f32_32x32x16_f16 v[80:95], v[{R+12}:{R+15}], v[{R+20}:{R+23}], v[80:95]"]
    for l in load_list(0, X): a(l)
    for step in range(16):
        if step in (0, 4, 8, 12): touch_point(a, 4 + step // 4)
        R = X if step % 2 == 0 else Y
        N = Y if step % 2 == 0 else X
        M = mfma_list(R, step == 0)
        Ls = load_list(step + 1, N) if step < 15 else []
        need_upto = [3, 4, 7, 8, 10, 12]
        issued_next = 0
        for i in range(6):
            a(f"s_waitcnt lgkmcnt({min((12 - need_upto[i]) + issued_next, 15)})")
            a(M[i])
            for l in Ls[2*i:2*i+2]: a(l); issued_next += 1
    st(a, "conv main done")
    a("v_lshlrev_b32 v56, 4, v2")
    a(f"s_lshl_b32 s62, s{S_WAVE}, 12")
    a("v_add_u32 v57, s62, v56")
    a(f"s_xor_b32 s63, s{S_WAVE}, 1")
    a("s_lshl_b32 s63, s63, 12")
    a("v_add_u32 v58, s63, v56")
    l1, l2 = newlbl("cp"), newlbl("cr")
    a("s_cmp_eq_u32 s61, 0")
    a(f"s_cbranch_scc0 {l1}")
    a("s_nop 7"); a("s_nop 7")
    for g in range(4): a(f"ds_write_b128 v57, v[{80+4*g}:{83+4*g}] offset:{g*1024}")
    a(f"s_branch {l2}")
    a.label(l1)
    a("s_nop 7"); a("s_nop 7")
    for g in range(4): a(f"ds_write_b128 v57, v[{64+4*g}:{67+4*g}] offset:{g*1024}")
    for r in range(16): a(f"v_mov_b32 v{64+r}, v{80+r}")
    a.label(l2)
    a("s_lshl_b32 s62, s61, 5")
    a("v_add_u32 v59, s62, v52")
    a("v_mul_u32_u24 v60, 80, v59")
    a("v_lshl_add_u32 v60, v53, 3, v60")
    a(f"s_mul_i32 s62, s60, {U_CH}")
    a(f"s_add_u32 s62, s62, {U_BASE + 31*80}")
    a("v_add_u32 v60, s62, v60")
    for g in range(4): a(f"ds_read_b64 v[{112+2*g}:{113+2*g}], v60 offset:{g*16}")
    a("s_waitcnt lgkmcnt(0)")
    a("s_barrier")
    for g in range(4): a(f"ds_read_b128 v[{96+4*g}:{99+4*g}], v58 offset:{g*1024}")
    for g in range(4):
        a(f"v_cvt_f32_f16 v{120+4*g}, v{112+2*g}")
        a(f"v_cvt_f32_f16_sdwa v{121+4*g}, v{112+2*g} dst_sel:DWORD dst_unused:UNUSED_PAD src0_sel:WORD_1")
        a(f"v_cvt_f32_f16 v{122+4*g}, v{113+2*g}")
        a(f"v_cvt_f32_f16_sdwa v{123+4*g}, v{113+2*g} dst_sel:DWORD dst_unused:UNUSED_PAD src0_sel:WORD_1")
    for r in range(16): a(f"v_mul_f32 v{120+r}, s{S_DSK}, v{120+r}")
    for r in range(0, 16, 2): a(f"v_cvt_pk_bf16_f32 v{136+r//2}, v{120+r}, v{121+r}")
    for r in range(0, 16, 2):
        a(f"v_lshlrev_b32 v{120+r}, 16, v{136+r//2}")
        a(f"v_and_b32 v{121+r}, 0xffff0000, v{136+r//2}")
    a("s_waitcnt lgkmcnt(0)")
    for r in range(0, 16, 2): a(f"v_pk_add_f32 v[{64+r}:{65+r}], v[{64+r}:{65+r}], v[{96+r}:{97+r}]")
    for r in range(16): a(f"v_mul_f32 v{64+r}, s{S_SCALE}, v{64+r}")
    for r in range(0, 16, 2): a(f"v_cvt_pk_bf16_f32 v{136+r//2}, v{64+r}, v{65+r}")
    for r in range(0, 16, 2):
        a(f"v_lshlrev_b32 v{64+r}, 16, v{136+r//2}")
        a(f"v_and_b32 v{65+r}, 0xffff0000, v{136+r//2}")
    for r in range(0, 16, 2): a(f"v_pk_add_f32 v[{64+r}:{65+r}], v[{64+r}:{65+r}], v[{120+r}:{121+r}]")
    for r in range(0, 16, 2): a(f"v_cvt_pk_bf16_f32 v{136+r//2}, v{64+r}, v{65+r}")
    for g in (0, 2):
        A0, A1, B0, B1 = 136 + 2 * g, 137 + 2 * g, 138 + 2 * g, 139 + 2 * g
        a(f"v_permlane32_swap_b32 v{A0}, v{B0}")
        a(f"v_permlane32_swap_b32 v{A1}, v{B1}")
    a("v_mul_u32_u24 v61, 144, v59")
    a("v_lshl_add_u32 v61, v53, 5, v61")
    a("s_lshl_b32 s62, s60, 4")
    a(f"s_add_u32 s62, s62, {YB}")
    a("v_add_u32 v61, s62, v61")
    a("ds_write_b128 v61, v[136:139]")
    a("ds_write_b128 v61, v[140:143] offset:64")
    a("v_lshrrev_b32 v62, 3, v0")
    a("v_mul_u32_u24 v62, 144, v62")
    a("v_and_b32 v63, 7, v0")
    a("v_lshl_add_u32 v62, v63, 4, v62")
    a("s_waitcnt lgkmcnt(0)")
    a("s_barrier")
    a(f"ds_read_b128 v[96:99], v62 offset:{YB}")
    a(f"ds_read_b128 v[100:103], v62 offset:{YB + 32*144}")
    a(f"s_lshl_b32 s62, s{S_TB}, 13")
    a("s_add_u32 s63, s62, 4096")
    a("s_waitcnt lgkmcnt(1)")
    a(f"buffer_store_dwordx4 v[96:99], v{V_US}, s[{SRD_YA}:{SRD_YA+3}], s62 offen sc1")
    a("s_waitcnt lgkmcnt(0)")
    a(f"buffer_store_dwordx4 v[100:103], v{V_US}, s[{SRD_YA}:{SRD_YA+3}], s63 offen sc1")

def ln2_loads(a):
    a("v_lshrrev_b32 v4, 1, v0")
    a("v_lshlrev_b32 v4, 13, v4")
    a("v_and_b32 v5, 1, v0")
    a("v_lshl_add_u32 v4, v5, 4, v4")
    a(f"s_lshl_b32 s60, s{S_TB}, 5")
    a("s_add_u32 s61, s60, 0x100000")
    a(f"buffer_load_dwordx4 v[40:43], v4, s[{SRD_YA}:{SRD_YA+3}], s60 offen sc1")
    a(f"buffer_load_dwordx4 v[44:47], v4, s[{SRD_YA}:{SRD_YA+3}], s61 offen sc1")

def ln2_compute(a):
    a(f"s_mov_b32 s90, {INV512}")
    a(f"s_mov_b32 s91, {EPS}")
    a("s_mov_b32 s92, 0x05040100")
    a("s_mov_b32 s93, 0x07060302")
    a(f"v_mov_b32 v48, v{V_PR}")
    a(f"v_add_u32 v49, 1152, v{V_PR}")
    unpack_pairs(a, 16, VX, VX + 4)
    a("s_waitcnt vmcnt(1)")
    a("ds_write2st64_b32 v48, v40, v41 offset0:0 offset1:9")
    a("ds_write2st64_b32 v48, v42, v43 offset0:18 offset1:27")
    a("s_waitcnt vmcnt(0)")
    a("ds_write2st64_b32 v49, v44, v45 offset0:0 offset1:9")
    a("ds_write2st64_b32 v49, v46, v47 offset0:18 offset1:27")
    a("s_waitcnt lgkmcnt(0)")
    a("s_barrier")
    for c in range(8):
        a(f"ds_read_b32 v{40+c}, v{V_PW} offset:{PL2 + 32*c}")
    a("v_lshlrev_b32 v3, 4, v2")
    a(f"s_lshl_b32 s64, s{S_TB}, 13")
    a(f"s_lshl_b32 s65, s{S_WAVE}, 11")
    a("s_add_u32 s64, s64, s65")
    a("s_waitcnt lgkmcnt(0)")
    for c in range(8):
        a(f"v_lshlrev_b32 v{48+2*c}, 16, v{40+c}")
        a(f"v_and_b32 v{49+2*c}, 0xffff0000, v{40+c}")
    for c in range(8):
        a(f"v_pk_add_f32 v[{16+2*c}:{17+2*c}], v[{16+2*c}:{17+2*c}], v[{48+2*c}:{49+2*c}]")
    for c in range(8):
        a(f"v_cvt_pk_bf16_f32 v{40+c}, v{16+2*c}, v{17+2*c}")
    unpack_packed(a, 16, 8, 40)
    for i in range(4):
        a(f"v_perm_b32 v{4+i}, v{41+2*i}, v{40+2*i}, s92")
        a(f"v_perm_b32 v{8+i}, v{41+2*i}, v{40+2*i}, s93")
    a(f"buffer_store_dwordx4 v[4:7], v3, s[{SRD_H}:{SRD_H+3}], s64 offen sc1")
    a(f"buffer_store_dwordx4 v[8:11], v3, s[{SRD_H}:{SRD_H+3}], s64 offen offset:1024 sc1")
    pair_sums(a, 16, 8, 32, 34, 36)
    reduce4(a, 32, 33, 34, 35)
    ln_stats(a, 32, 33, 36, 37, SM, SR)
    ln_apply(a, 16, 8, SM, SR, 40)
    unpack_packed(a, 16, 8, 40)
    pair_sums(a, 16, 8, 32, 34, 36)
    reduce4(a, 32, 33, 34, 35)
    ln_stats(a, 32, 33, 36, 37, SM, SR)
    ln_apply(a, 16, 8, SM, SR, 40)
    a("s_barrier")
    planes_out(a, 40, PL2, SRD_HN, 48)

def tile_coords(a, which, sT, sC):
    a("s_and_b32 s60, s2, 7")
    a("s_lshr_b32 s61, s2, 3")
    a(f"s_and_b32 s{sT}, s60, 1")
    a(f"s_lshl_b32 s{sT}, s{sT}, 2")
    a("s_and_b32 s62, s61, 3")
    a(f"s_add_u32 s{sT}, s{sT}, s62")
    a(f"s_lshr_b32 s{sC}, s60, 1")
    a(f"s_mul_i32 s{sC}, s{sC}, {7 if which == 1 else 8}")
    a("s_lshr_b32 s62, s61, 2")
    a(f"s_add_u32 s{sC}, s{sC}, s62")

VD, VTA, VTB = 240, 241, 242
def dma_setup(a, which):
    WROW = 3584 if which == 1 else 4096
    a(f"v_lshrrev_b32 v{VD}, 3, v2")
    a(f"v_mul_u32_u24 v{VD}, {WROW}, v{VD}")
    a("v_and_b32 v243, 7, v2")
    a("v_lshrrev_b32 v244, 2, v2")
    a("v_and_b32 v244, 4, v244")
    a("v_xor_b32 v243, v243, v244")
    a(f"v_lshl_add_u32 v{VD}, v243, 4, v{VD}")
    a("v_bfe_u32 v243, v2, 2, 2")
    a("v_and_b32 v244, 3, v2")
    a(f"v_bfe_u32 v{VTA}, v2, 4, 1")
    a(f"v_lshlrev_b32 v{VTA}, 1, v{VTA}")
    a("v_lshrrev_b32 v245, 1, v244")
    a(f"v_add_u32 v{VTA}, v{VTA}, v245")
    a("v_lshrrev_b32 v245, 1, v243")
    a("v_lshlrev_b32 v245, 2, v245")
    a(f"v_xor_b32 v{VTA}, v{VTA}, v245")
    a(f"v_lshlrev_b32 v{VTA}, 4, v{VTA}")
    a("v_and_b32 v245, 1, v244")
    a(f"v_lshl_add_u32 v{VTA}, v245, 3, v{VTA}")
    a("v_lshrrev_b32 v245, 5, v2")
    a(f"v_lshlrev_b32 v245, {3 if which == 1 else 2}, v245")
    a("v_add_u32 v245, v245, v243")
    a(f"v_lshl_add_u32 v{VTA}, v245, 7, v{VTA}")
    a(f"v_xor_b32 v{VTB}, 64, v{VTA}")

def ring_base(a, per_wave, base):
    a(f"s_mul_i32 s{S_RING}, s{S_WAVE}, {per_wave}")
    if base: a(f"s_add_u32 s{S_RING}, s{S_RING}, {base}")
    a(f"s_lshr_b32 s60, s{S_WAVE}, 1")
    a("s_lshl_b32 s60, s60, 6")
    a(f"v_xor_b32 v246, s60, v{VTA}")
    a(f"v_xor_b32 v247, 64, v246")
    a(f"v_add_u32 v246, s{S_RING}, v246")
    a(f"v_add_u32 v247, s{S_RING}, v247")

def dma_issue(a, which, n, slot0):
    WROW = 3584 if which == 1 else 4096
    srdw = SRD_W1 if which == 1 else SRD_W2
    for i in range(n):
        a(f"s_add_u32 m0, s{S_RING}, {(slot0+i)*2048}")
        a(f"buffer_load_dwordx4 v{VD}, s[{srdw}:{srdw+3}], s{S_WOFF} offen lds")
        a(f"s_add_u32 s60, s{S_WOFF}, {8*WROW}")
        a(f"s_add_u32 m0, s{S_RING}, {(slot0+i)*2048+1024}")
        a(f"buffer_load_dwordx4 v{VD}, s[{srdw}:{srdw+3}], s60 offen lds")
        a(f"s_add_u32 s{S_WOFF}, s{S_WOFF}, {16*WROW}")

def tr_to_acc(a, which, steps, slot0):
    RHO = 512 if which == 1 else 1024
    for i, s in enumerate(steps):
        o = (slot0 + i) * 2048
        a(f"ds_read_b64_tr_b16 a[{8*s}:{8*s+1}], v246 offset:{o}")
        a(f"ds_read_b64_tr_b16 a[{8*s+2}:{8*s+3}], v246 offset:{o+RHO}")
        a(f"ds_read_b64_tr_b16 a[{8*s+4}:{8*s+5}], v247 offset:{o}")
        a(f"ds_read_b64_tr_b16 a[{8*s+6}:{8*s+7}], v247 offset:{o+RHO}")
        if i % 3 == 2: a("s_waitcnt lgkmcnt(4)")

def woff_init(a, which, sC):
    if which == 1: a(f"s_mul_i32 s{S_WOFF}, s{S_WAVE}, {32*16*3584}")
    else: a(f"s_mul_i32 s{S_WOFF}, s{S_WAVE}, {28*16*4096}")
    a(f"s_lshl_b32 s60, s{sC}, 7")
    a(f"s_add_u32 s{S_WOFF}, s{S_WOFF}, s60")

def gemm_lane_consts(a):
    a("v_lshrrev_b32 v6, 5, v2")
    a("v_and_b32 v7, 31, v2")
    a("v_lshlrev_b32 v10, 13, v6")
    a("v_lshl_add_u32 v10, v7, 4, v10")
    a(f"s_and_b32 s60, s{S_WAVE}, 1")
    a("s_lshl_b32 s60, s60, 9")
    a("v_xor_b32 v8, s60, v10")
    a("v_xor_b32 v9, 512, v8")

def main_loop(a, which, srda, soff, D0):
    NK = 32 if which == 1 else 28
    DR = 14
    ab = lambda s: 128 + 8 * (s % DR)
    issued = [0]
    def issue():
        s = issued[0]
        if s >= NK: return []
        R = ab(s); issued[0] += 1
        return [f"buffer_load_dwordx4 v[{R}:{R+3}], v8, s[{srda}:{srda+3}], s{soff} offen sc1",
                f"buffer_load_dwordx4 v[{R+4}:{R+7}], v9, s[{srda}:{srda+3}], s{soff} offen sc1\ns_add_u32 s{soff}, s{soff}, 16384"]
    for s in range(D0):
        for l in issue(): a(l)
    for s in range(NK):
        a(f"s_waitcnt vmcnt({2*(issued[0] - 1 - s)})")
        nxt = issue() if (issued[0] - s) < DR else []
        R = ab(s); k = 0
        for wt in range(2):
            for at in range(2):
                acc = 64 + 32 * wt + 16 * at
                wq = f"a[{8*s+4*wt}:{8*s+4*wt+3}]"; aq = f"v[{R+4*at}:{R+4*at+3}]"
                cc = "0" if s == 0 else f"v[{acc}:{acc+15}]"
                if which == 1: a(f"v_mfma_f32_32x32x16_bf16 v[{acc}:{acc+15}], {wq}, {aq}, {cc}")
                else: a(f"v_mfma_f32_32x32x16_bf16 v[{acc}:{acc+15}], {aq}, {wq}, {cc}")
                if k == 0 and nxt: a(nxt[0])
                if k == 2 and nxt: a(nxt[1])
                k += 1

def reduce_write(a):
    a("v_lshlrev_b32 v13, 4, v2")
    for j in (1, 2, 3):
        wt, at = j >> 1, j & 1
        acc = 64 + 32 * wt + 16 * at
        a(f"s_xor_b32 s60, s{S_WAVE}, {j}")
        a(f"s_mul_i32 s60, s60, {3*4096}")
        a(f"s_add_u32 s60, s60, {(j-1)*4096}")
        a(f"v_add_u32 v14, s60, v13")
        for g in range(4):
            a(f"ds_write_b128 v14, v[{acc+4*g}:{acc+4*g+3}] offset:{g*1024}")

def reduce_read(a):
    a(f"s_mul_i32 s60, s{S_WAVE}, {3*4096}")
    a("v_add_u32 v14, s60, v13")
    for j in range(3):
        for g in range(4):
            a(f"ds_read_b128 v[{128+16*j+4*g}:{131+16*j+4*g}], v14 offset:{j*4096+g*1024}")
    P = lambda b, r: f"v[{b+r}:{b+r+1}]"
    a("s_waitcnt lgkmcnt(8)")
    for r in range(0, 16, 2): a(f"v_pk_add_f32 {P(64,r)}, {P(64,r)}, {P(128,r)}")
    a("s_waitcnt lgkmcnt(0)")
    for r in range(0, 16, 2): a(f"v_pk_add_f32 {P(144,r)}, {P(144,r)}, {P(160,r)}")
    for r in range(0, 16, 2): a(f"v_pk_add_f32 {P(128,r)}, {P(64,r)}, {P(144,r)}")

def gelu16(a, X, T):
    a("s_mov_b32 s66, 0x3d372713")
    a("s_mov_b32 s67, 0x3d372713")
    kk = -2.0 * 1.4426950408889634 * 0.7978845608028654
    kb = hex(struct.unpack('<I', struct.pack('<f', kk))[0])
    a(f"s_mov_b32 s68, {kb}"); a(f"s_mov_b32 s69, {kb}")
    P = lambda b, r: f"v[{b+r}:{b+r+1}]"
    for r in range(0, 16, 2): a(f"v_pk_mul_f32 {P(T,r)}, {P(X,r)}, {P(X,r)}")
    for r in range(0, 16, 2): a(f"v_pk_mul_f32 {P(T,r)}, {P(T,r)}, s[66:67]")
    for r in range(0, 16, 2): a(f"v_pk_fma_f32 {P(T,r)}, {P(T,r)}, {P(X,r)}, {P(X,r)}")
    for r in range(0, 16, 2): a(f"v_pk_mul_f32 {P(T,r)}, {P(T,r)}, s[68:69]")
    for r in range(16): a(f"v_exp_f32 v{T+r}, v{T+r}")
    for r in range(16): a(f"v_add_f32 v{T+r}, 1.0, v{T+r}")
    for r in range(16): a(f"v_rcp_f32 v{T+r}, v{T+r}")
    for r in range(0, 16, 2): a(f"v_pk_mul_f32 {P(X,r)}, {P(X,r)}, {P(T,r)}")

def epi1_loads(a):
    a(f"s_lshr_b32 s61, s{S_WAVE}, 1")
    a(f"s_lshl_b32 s72, s{S_FJ}, 6")
    a("s_lshl_b32 s64, s61, 5")
    a("s_add_u32 s72, s72, s64")
    a("s_lshl_b32 s64, s72, 1")
    a("v_lshlrev_b32 v15, 3, v6")
    a("v_add_u32 v15, s64, v15")
    for g in range(4):
        a(f"global_load_dwordx2 v[{20+2*g}:{21+2*g}], v15, s[{S_B1}:{S_B1+1}] offset:{16*g}")

def epi1(a):
    P = lambda b, r: f"v[{b+r}:{b+r+1}]"
    reduce_read(a)
    for r in range(0, 16, 2): a(f"v_cvt_pk_bf16_f32 v{144+r//2}, v{128+r}, v{129+r}")
    for r in range(0, 16, 2):
        a(f"v_lshlrev_b32 v{128+r}, 16, v{144+r//2}")
        a(f"v_and_b32 v{129+r}, 0xffff0000, v{144+r//2}")
    for g in range(4):
        a(f"v_lshlrev_b32 v{160+4*g}, 16, v{20+2*g}")
        a(f"v_and_b32 v{161+4*g}, 0xffff0000, v{20+2*g}")
        a(f"v_lshlrev_b32 v{162+4*g}, 16, v{21+2*g}")
        a(f"v_and_b32 v{163+4*g}, 0xffff0000, v{21+2*g}")
    for r in range(0, 16, 2): a(f"v_pk_add_f32 {P(128,r)}, {P(128,r)}, {P(160,r)}")
    for r in range(0, 16, 2): a(f"v_cvt_pk_bf16_f32 v{144+r//2}, v{128+r}, v{129+r}")
    for r in range(0, 16, 2):
        a(f"v_lshlrev_b32 v{128+r}, 16, v{144+r//2}")
        a(f"v_and_b32 v{129+r}, 0xffff0000, v{144+r//2}")
    gelu16(a, 128, 160)
    for r in range(0, 16, 2): a(f"v_cvt_pk_bf16_f32 v{144+r//2}, v{128+r}, v{129+r}")
    a("s_lshr_b32 s64, s72, 4")
    a("s_lshl_b32 s64, s64, 14")
    a(f"s_lshl_b32 s65, s{S_T1}, 10")
    a("s_add_u32 s64, s64, s65")
    a(f"s_and_b32 s62, s{S_WAVE}, 1")
    a("s_lshl_b32 s65, s62, 9")
    a("s_add_u32 s64, s64, s65")
    a(f"buffer_store_dwordx4 v[144:147], v10, s[{SRD_G2}:{SRD_G2+3}], s64 offen sc1")
    a("s_add_u32 s64, s64, 16384")
    a(f"buffer_store_dwordx4 v[148:151], v10, s[{SRD_G2}:{SRD_G2+3}], s64 offen sc1")

def epi2_loads(a):
    a(f"s_lshr_b32 s61, s{S_WAVE}, 1")
    a(f"s_and_b32 s62, s{S_WAVE}, 1")
    a(f"s_lshl_b32 s63, s{S_SJ}, 6")
    a("s_lshl_b32 s64, s61, 5")
    a("s_add_u32 s63, s63, s64")
    a("v_add_u32 v15, s63, v7")
    a("v_lshlrev_b32 v16, 10, v15")
    a("v_lshl_add_u32 v16, v6, 6, v16")
    a(f"s_lshl_b32 s70, s{S_T2}, 7")
    a("s_lshl_b32 s64, s62, 3")
    a("s_add_u32 s70, s70, s64")
    for r in range(4):
        a(f"buffer_load_dwordx2 v[{20+2*r}:{21+2*r}], v16, s[{SRD_H}:{SRD_H+3}], s70 offen offset:{16*r} sc1")
    a("v_lshlrev_b32 v17, 1, v15")
    a(f"global_load_ushort v18, v17, s[{S_B2}:{S_B2+1}]")

def epi2(a):
    P = lambda b, r: f"v[{b+r}:{b+r+1}]"
    reduce_read(a)
    for r in range(4):
        a(f"v_cvt_pk_bf16_f32 v{144+2*r}, v{128+r}, v{132+r}")
        a(f"v_cvt_pk_bf16_f32 v{145+2*r}, v{136+r}, v{140+r}")
    a("v_lshlrev_b32 v18, 16, v18")
    a("v_mov_b32 v19, v18")
    for i in range(8):
        a(f"v_lshlrev_b32 v{160+2*i}, 16, v{144+i}")
        a(f"v_and_b32 v{161+2*i}, 0xffff0000, v{144+i}")
    for r in range(0, 16, 2): a(f"v_pk_add_f32 {P(160,r)}, {P(160,r)}, v[18:19]")
    for i in range(8): a(f"v_cvt_pk_bf16_f32 v{144+i}, v{160+2*i}, v{161+2*i}")
    for i in range(8):
        a(f"v_lshlrev_b32 v{160+2*i}, 16, v{144+i}")
        a(f"v_and_b32 v{161+2*i}, 0xffff0000, v{144+i}")
        a(f"v_lshlrev_b32 v{176+2*i}, 16, v{20+i}")
        a(f"v_and_b32 v{177+2*i}, 0xffff0000, v{20+i}")
    for r in range(0, 16, 2): a(f"v_pk_add_f32 {P(160,r)}, {P(160,r)}, {P(176,r)}")
    for i in range(8): a(f"v_cvt_pk_bf16_f32 v{144+i}, v{160+2*i}, v{161+2*i}")
    for r in range(4):
        a(f"buffer_store_dwordx2 v[{144+2*r}:{145+2*r}], v16, s[{SRD_OUT}:{SRD_OUT+3}], s70 offen offset:{16*r}")

D0_G1, D0_G2 = 8, 8
TOUCH = True
REMAP = False
def gen_fused(a):
    kernel_header(a, KNAME)
    stamp_begin(a)
    a("s_cmp_ge_u32 s2, 256")
    a("s_cbranch_scc1 L_exit")
    if REMAP:
        a("s_and_b32 s4, s2, 7"); a("s_lshl_b32 s4, s4, 5"); a("s_lshr_b32 s2, s2, 3"); a("s_or_b32 s2, s2, s4")
    prologue(a)
    ln1(a)
    st(a, "LN1 done (stores issued)", 250)
    a("s_and_b32 s60, s2, 3")
    a("s_lshl_b32 s60, s60, 6")
    arrive(a, 8, 60)
    st(a, "B1 arrived", 250)
    touch_point(a, 0)
    kgen(a)
    st(a, "Kgen done", 250)
    a("s_mov_b32 s60, 0")
    poll_wg(a, 8, 60, 4, 6, 64)
    st(a, "B1 passed", 250)
    conv_load_u(a)
    conv_main(a)
    st(a, "conv epilogue done (stores issued)")
    a("s_and_b32 s60, s2, 7")
    a("s_lshl_b32 s60, s60, 7")
    a(f"s_add_u32 s60, s60, {SYNC_OFF + C_B2*128}")
    arrive(a, 6, 60)
    st(a, "B2 arrived")
    ring_base(a, 32768, 0)
    woff_init(a, 1, S_FJ)
    lA = newlbl("sa")
    a("s_cmp_ge_u32 s2, 224")
    a(f"s_cbranch_scc1 {lA}")
    dma_issue(a, 1, 16, 0)
    a.label(lA)
    st(a, "w1 DMA A issued")
    a(f"s_mov_b32 s60, {SYNC_OFF + C_B2*128}")
    poll_wg(a, 6, 60, 8, 7, 32)
    st(a, "B2 passed")
    ln2_loads(a)
    lB = newlbl("sb")
    a("s_waitcnt vmcnt(2)")
    a("s_cmp_ge_u32 s2, 224")
    a(f"s_cbranch_scc1 {lB}")
    tr_to_acc(a, 1, range(16), 0)
    a.label(lB)
    ln2_compute(a)
    st(a, "LN2 done (stores issued)")
    a(f"s_lshr_b32 s60, s{S_TB}, 5")
    a("s_lshl_b32 s60, s60, 7")
    a(f"s_add_u32 s60, s60, {SYNC_OFF + C_B3*128}")
    arrive(a, 6, 60)
    st(a, "B3 arrived")
    gemm_lane_consts(a)
    a("s_cmp_ge_u32 s2, 224")
    a("s_cbranch_scc1 L_skipG1")
    a("s_waitcnt lgkmcnt(0)")
    dma_issue(a, 1, 16, 0)
    a("s_waitcnt vmcnt(16)")
    tr_to_acc(a, 1, range(16, 24), 0)
    a("s_waitcnt vmcnt(0)")
    tr_to_acc(a, 1, range(24, 32), 8)
    a("s_waitcnt lgkmcnt(0)")
    st(a, "w1 staged")
    a(f"s_lshl_b32 s60, s{S_WAVE}, 8")
    a(f"s_add_u32 s60, s60, {SYNC_OFF + C_B3*128}")
    poll(a, 6, 60, 2, 7, 32)
    st(a, "B3 passed")
    a(f"s_mul_i32 s71, s{S_WAVE}, {32*16384}")
    a(f"s_lshl_b32 s60, s{S_T1}, 10")
    a("s_add_u32 s71, s71, s60")
    epi1_loads(a)
    main_loop(a, 1, SRD_HN, 71, D0_G1)
    st(a, "G1 main done")
    a("s_barrier")
    dma_setup(a, 2)
    ring_base(a, 12 * 2048, RED_BYTES)
    woff_init(a, 2, S_SJ)
    reduce_write(a)
    dma_issue(a, 2, 12, 0)
    a("s_waitcnt lgkmcnt(0)")
    a("s_barrier")
    st(a, "G1 reduce written + w2 DMA A issued")
    epi1(a)
    st(a, "epi1 done (stores issued)")
    a(f"s_lshl_b32 s60, s{S_T1}, 7")
    a(f"s_add_u32 s60, s60, {SYNC_OFF + C_B4*128}")
    arrive(a, 6, 60)
    st(a, "B4 arrived")
    a("s_branch L_stage2")
    a.label("L_skipG1")
    dma_setup(a, 2)
    ring_base(a, 12 * 2048, RED_BYTES)
    woff_init(a, 2, S_SJ)
    dma_issue(a, 2, 12, 0)
    a("s_waitcnt vmcnt(0)")
    a("s_barrier")
    a.label("L_stage2")
    tr_to_acc(a, 2, range(12), 0)
    a("s_waitcnt lgkmcnt(0)")
    a("s_barrier")
    ring_base(a, 32768, 0)
    dma_issue(a, 2, 16, 0)
    a("s_waitcnt vmcnt(16)")
    tr_to_acc(a, 2, range(12, 20), 0)
    a("s_waitcnt vmcnt(0)")
    tr_to_acc(a, 2, range(20, 28), 8)
    a("s_waitcnt lgkmcnt(0)")
    a(f"s_lshl_b32 s60, s{S_T2}, 7")
    a(f"s_add_u32 s60, s60, {SYNC_OFF + C_B4*128}")
    st(a, "w2 staged")
    poll(a, 6, 60, 1, 7, 28)
    st(a, "B4 passed")
    a(f"s_mul_i32 s71, s{S_WAVE}, {28*16384}")
    a(f"s_lshl_b32 s60, s{S_T2}, 10")
    a("s_add_u32 s71, s71, s60")
    epi2_loads(a)
    main_loop(a, 2, SRD_G2, 71, D0_G2)
    st(a, "G2 main done")
    a("s_barrier")
    reduce_write(a)
    a("s_waitcnt lgkmcnt(0)")
    a("s_barrier")
    epi2(a)
    a("s_waitcnt vmcnt(0)") if STAMPON() else None
    st(a, "end", final=True)
    a.label("L_exit")
    a("s_endpgm")
    return kernel_desc(KNAME, 512, 100, accum=256)

V_TW1, V_TW2 = 243, 244
def touch_setup(a):
    a("s_and_b32 s60, s2, 7")
    a("s_lshr_b32 s60, s60, 1")
    a("s_lshr_b32 s61, s2, 3")
    a(f"s_and_b32 s62, s{S_WAVE}, 1")
    a("s_lshl_b32 s62, s62, 9")
    a("s_lshl_b32 s63, s61, 6")
    a(f"v_add_u32 v{V_TW1}, s63, v2")
    a(f"v_mul_u32_u24 v{V_TW1}, 3584, v{V_TW1}")
    a("s_mul_i32 s63, s60, 896")
    a("s_add_u32 s63, s63, s62")
    a(f"v_add_u32 v{V_TW1}, s63, v{V_TW1}")
    a("s_mul_i32 s63, s61, 56")
    a(f"v_min_u32 v{V_TW2}, 55, v2")
    a(f"v_add_u32 v{V_TW2}, s63, v{V_TW2}")
    a(f"v_lshlrev_b32 v{V_TW2}, 12, v{V_TW2}")
    a("s_lshl_b32 s63, s60, 10")
    a("s_add_u32 s63, s63, s62")
    a(f"v_add_u32 v{V_TW2}, s63, v{V_TW2}")

def touch_point(a, i):
    if not TOUCH: return
    l = newlbl("tp")
    a(f"s_cmp_lt_u32 s{S_WAVE}, 2")
    a(f"s_cbranch_scc1 {l}")
    if i < 4: a(f"buffer_load_dword v255, v{V_TW1}, s[{SRD_W1}:{SRD_W1+3}], 0 offen offset:{128*i}")
    else: a(f"buffer_load_dword v255, v{V_TW2}, s[{SRD_W2}:{SRD_W2+3}], 0 offen offset:{128*(i-4)}")
    a.label(l)

def build(path):
    a = Asm()
    hdr = open("cdna_kernels/" + NAME + ".s.ref").read().split("; Override launch geometry")[0]
    txt = hdr + f"; @launch grid=(256,1,1) block=(256,1,1) lds={LDS_TOTAL}\n" + '.amdgcn_target "amdgcn-amd-amdhsa--gfx950"\n'
    d = gen_fused(a)
    txt += a.finalize() + d
    open(path, "w").write(txt)
    open(path + ".names", "w").write("".join(f"{k} {v}\n" for k, v in ST_NAMES.items()))

if __name__ == "__main__":
    import sys, common
    if "--stamp" in sys.argv:
        common.STAMP = True; sys.argv.remove("--stamp")
    if "--notouch" in sys.argv: TOUCH = False
    if "--remap" in sys.argv: REMAP = True
    build(sys.argv[1])
```

```python
from common import *
from k1 import cmul, wave_max, G_ROW, H_BASE, FT_BASE, FT_DUMMY
import struct

KNAME = NAME + "_kernel"
KG_CH = 27984 + 5888
KC_BASE = 2 * KG_CH
KC_STRIDE = 4160
KCH = 4 * KC_STRIDE
U_BASE = KC_BASE + 2 * KCH
U_CH = 95 * 80
LDS_TOTAL = 163840
FT_ZERO = 2060
RED_BYTES = 65536
D_RING = 8
S_WAVE, S_Q0 = 10, 11
SRD_X, SRD_U2, SRD_YA, SRD_H, SRD_HN, SRD_G2, SRD_W1, SRD_W2, SRD_OUT = 12, 16, 20, 24, 28, 32, 36, 40, 44
S_B1, S_B2 = 48, 50
S_SCALE, S_DSK = 52, 53
S_T1, S_FJ, S_T2, S_SJ = 54, 55, 56, 57
S_WOFF, S_RING = 58, 59
SM, SR = 84, 86
C_B2, C_B3, C_B4 = 0, 8, 16
KIDX = 0
S_TB = 5
VX = 224
V_KROW, V_KA, V_KB, V_KSC, V_KDST = 232, 233, 234, 235, 239
V_CA, V_CB = 248, 249
V_PW, V_PR, V_US = 252, 253, 254
PL = 131072
PL1 = PL2 = 0
YB = 16384

ST_NAMES = {}
DBGST = None
_st = [2]
def st(a, name, vt=60, final=False):
    if DBGST is not None:
        if name in DBGST:
            k = DBGST.index(name) + 1
            l = newlbl("ds")
            a("s_memrealtime s[96:97]")
            a(f"s_or_b32 s94, s2, s{S_WAVE}")
            a("s_cmp_lg_u32 s94, 0")
            a("s_waitcnt lgkmcnt(0)")
            a(f"s_cbranch_scc1 {l}")
            a("s_sub_u32 s96, s96, s98")
            a(f"v_mov_b32 v{vt}, {4*k}")
            a(f"v_mov_b32 v{vt+1}, s96")
            a(f"global_store_dword v{vt}, v{vt+1}, s[8:9]")
            a.label(l)
        return
    slot = 1 if final else _st[0]
    if not final: _st[0] += 1
    ST_NAMES[slot] = name
    stamp(a, KIDX, slot, 6, vt)

def evalE(a, D, v, zr, zi, t, conj=False):
    bits = struct.unpack('<I', struct.pack('<f', float(v)))[0]
    a(f"s_mov_b32 s80, {hex(bits)}")
    a(f"v_mul_f32 v{t}, s80, v{zr}")
    a(f"v_mul_f32 v{t+1}, s80, v{zi}")
    a(f"v_exp_f32 v{t}, v{t}")
    a(f"v_rndne_f32 v{t+2}, v{t+1}")
    a(f"v_sub_f32 v{t+1}, v{t+1}, v{t+2}")
    a(f"v_cos_f32 v{D}, v{t+1}")
    a(f"v_sin_f32 v{D+1}, v{t+1}")
    a(f"v_mul_f32 v{D}, v{D}, v{t}")
    if conj: a(f"v_mul_f32 v{D+1}, -v{D+1}, v{t}")
    else: a(f"v_mul_f32 v{D+1}, v{D+1}, v{t}")

def pos2chan(a, sd, sq, t):
    a(f"s_and_b32 s{sd}, s{sq}, 0x1c0")
    a(f"s_and_b32 s{t}, s{sq}, 7")
    a(f"s_lshl_b32 s{t}, s{t}, 3")
    a(f"s_or_b32 s{sd}, s{sd}, s{t}")
    a(f"s_lshr_b32 s{t}, s{sq}, 3")
    a(f"s_and_b32 s{t}, s{t}, 7")
    a(f"s_or_b32 s{sd}, s{sd}, s{t}")

_lbl = [0]
def newlbl(p):
    _lbl[0] += 1
    return f"L_{p}{_lbl[0]}"

def arrive(a, base_sgpr_pair, off_sgpr):
    a("s_waitcnt vmcnt(0)")
    a("s_barrier")
    l = newlbl("arr")
    a(f"s_cmp_lg_u32 s{S_WAVE}, 0")
    a(f"s_cbranch_scc1 {l}")
    a(f"v_mov_b32 v13, s{off_sgpr}")
    a("v_mov_b32 v14, 1")
    a("s_mov_b64 s[62:63], exec")
    a("s_mov_b64 exec, 1")
    a(f"global_atomic_add v13, v14, s[{base_sgpr_pair}:{base_sgpr_pair+1}] sc1")
    a("s_mov_b64 exec, s[62:63]")
    a.label(l)

def poll(a, base_sgpr_pair, off_sgpr, n, stride_log2, target):
    l = newlbl("poll")
    a(f"v_and_b32 v13, {n-1}, v2")
    a(f"v_lshlrev_b32 v13, {stride_log2}, v13")
    a(f"v_add_u32 v13, s{off_sgpr}, v13")
    a("s_mov_b32 s61, 0")
    a.label(l)
    a(f"global_load_dword v14, v13, s[{base_sgpr_pair}:{base_sgpr_pair+1}] sc1")
    a("s_waitcnt vmcnt(0)")
    a(f"v_cmp_gt_u32 vcc, {target}, v14")
    a("s_add_u32 s61, s61, 1")
    a(f"s_cbranch_vccz {l}_done")
    a("s_cmp_lt_u32 s61, 0x40000")
    a(f"s_cbranch_scc1 {l}")
    a.label(l + "_done")

def poll_wg(a, base_sgpr_pair, off_sgpr, n, stride_log2, target):
    l = newlbl("pw")
    a(f"s_cmp_lg_u32 s{S_WAVE}, 0")
    a(f"s_cbranch_scc1 {l}")
    poll(a, base_sgpr_pair, off_sgpr, n, stride_log2, target)
    a.label(l)
    a("s_barrier")

def prologue(a):
    a("s_load_dwordx16 s[64:79], s[0:1], 0")
    a("s_load_dwordx2 s[88:89], s[0:1], 64")
    a("s_load_dwordx4 s[80:83], s[0:1], 80")
    a("s_load_dwordx4 s[84:87], s[0:1], 96")
    a("s_load_dwordx4 s[60:63], s[0:1], 112")
    a("s_load_dwordx2 s[6:7], s[0:1], 128")
    a("v_lshrrev_b32 v1, 6, v0")
    a("v_and_b32 v2, 63, v0")
    a(f"v_readfirstlane_b32 s{S_WAVE}, v1")
    a("s_and_b32 s54, s2, 7")
    a("s_lshl_b32 s54, s54, 5")
    a("s_lshr_b32 s55, s2, 3")
    a(f"s_add_u32 s{S_TB}, s54, s55")
    a(f"s_lshl_b32 s{S_Q0}, s{S_TB}, 1")
    a(f"s_lshr_b32 s55, s{S_WAVE}, 1")
    a(f"s_add_u32 s56, s{S_Q0}, s55")
    pos2chan(a, 57, 56, 58)
    a("v_lshlrev_b32 v3, 4, v2")
    a(f"s_lshl_b32 s58, s{S_TB}, 13")
    a(f"s_lshl_b32 s59, s{S_WAVE}, 11")
    a("s_add_u32 s59, s59, s58")
    a(f"s_and_b32 s54, s{S_WAVE}, 1")
    a("s_lshl_b32 s54, s54, 7")
    a("s_lshl_b32 s55, s57, 8")
    a("s_add_u32 s54, s54, s55")
    a("v_lshl_add_u32 v12, v2, 1, s54")
    a("v_xor_b32 v13, 128, v12")
    a("s_waitcnt lgkmcnt(0)")
    stamp(a, KIDX, 0, 6, 250, first=True)
    srd(a, SRD_X, 64, 65, 0, 0x200000)
    a(f"buffer_load_dwordx4 v[{VX}:{VX+3}], v3, s[{SRD_X}:{SRD_X+3}], s59 offen")
    a(f"buffer_load_dwordx4 v[{VX+4}:{VX+7}], v3, s[{SRD_X}:{SRD_X+3}], s59 offen offset:1024")
    a("global_load_ushort v200, v12, s[66:67]")
    a("global_load_ushort v201, v12, s[68:69]")
    a("global_load_ushort v202, v12, s[70:71]")
    a("global_load_ushort v203, v12, s[72:73]")
    a("global_load_ushort v204, v12, s[74:75]")
    a("global_load_ushort v205, v12, s[76:77]")
    a("global_load_ushort v206, v13, s[70:71]")
    a("global_load_ushort v207, v13, s[72:73]")
    a("global_load_ushort v208, v13, s[74:75]")
    a("global_load_ushort v209, v13, s[76:77]")
    a("s_lshl_b32 s54, s57, 1")
    a("s_and_b32 s54, s54, 0xfffffffc")
    a("s_load_dword s52, s[78:79], s54")
    a("s_load_dword s53, s[88:89], s54")
    a("s_and_b32 s91, s57, 1")
    a(f"s_mov_b32 s8, s62"); a("s_mov_b32 s9, s63")
    srd(a, SRD_OUT, 60, 61, 0, 0x200000)
    srd(a, SRD_U2, 6, 7, U2_OFF, U2_SZ)
    srd(a, SRD_YA, 6, 7, YA_OFF, YA_SZ)
    srd(a, SRD_H, 6, 7, H_OFF, H_SZ)
    srd(a, SRD_HN, 6, 7, HN_OFF, HN_SZ)
    srd(a, SRD_G2, 6, 7, G2_OFF, G2_SZ)
    srd(a, SRD_W1, 80, 81, 0, 2048 * 3584)
    srd(a, SRD_W2, 84, 85, 0, 2048 * 3584)
    a(f"s_mov_b32 s{S_B1}, s82"); a(f"s_mov_b32 s{S_B1+1}, s83")
    a(f"s_mov_b32 s{S_B2}, s86"); a(f"s_mov_b32 s{S_B2+1}, s87")
    l = newlbl("z")
    a(f"s_or_b32 s54, s2, s{S_WAVE}")
    a("s_cmp_lg_u32 s54, 0")
    a(f"s_cbranch_scc1 {l}")
    a("v_lshlrev_b32 v14, 7, v2")
    a(f"v_add_u32 v14, {SYNC_OFF}, v14")
    a("v_mov_b32 v15, 0")
    a("global_store_dword v14, v15, s[6:7] sc1")
    a.label(l)
    precompute(a)
    a("s_cmp_eq_u32 s91, 1")
    a("s_cselect_b32 s60, 0, 16")
    a("s_waitcnt lgkmcnt(0)")
    a("s_lshl_b32 s52, s52, s60"); a("s_and_b32 s52, s52, 0xffff0000")
    a("s_lshl_b32 s53, s53, s60"); a("s_and_b32 s53, s53, 0xffff0000")

def precompute(a):
    a("v_lshrrev_b32 v4, 3, v2")
    a("v_mul_u32_u24 v4, 72, v4")
    a("v_and_b32 v5, 7, v2")
    a("v_add_u32 v4, v4, v5")
    a(f"s_mul_i32 s54, s{S_WAVE}, 576")
    a("v_add_u32 v4, s54, v4")
    a(f"v_lshlrev_b32 v{V_PW}, 2, v4")
    a(f"v_add_u32 v{V_PW}, {PL}, v{V_PW}")
    a(f"s_mul_i32 s54, s{S_WAVE}, 72")
    a("v_add_u32 v4, s54, v2")
    a(f"v_lshlrev_b32 v{V_PR}, 2, v4")
    a(f"v_add_u32 v{V_PR}, {PL}, v{V_PR}")
    a(f"v_lshlrev_b32 v{V_US}, 4, v0")
    a(f"s_lshr_b32 s60, s{S_WAVE}, 1")
    a(f"s_mul_i32 s60, s60, {KG_CH}")
    a(f"s_and_b32 s62, s{S_WAVE}, 1")
    a("s_lshl_b32 s61, s62, 8")
    a("s_add_u32 s61, s61, s60")
    a(f"v_lshl_add_u32 v{V_KROW}, v2, 2, s61")
    a("v_and_b32 v7, 15, v2")
    a("v_lshrrev_b32 v8, 4, v2")
    a(f"v_mul_u32_u24 v9, {G_ROW}, v7")
    a("v_lshl_add_u32 v9, v8, 4, v9")
    a(f"s_mul_i32 s63, s62, {16*G_ROW}")
    a("s_add_u32 s63, s63, s60")
    a(f"v_add_u32 v{V_KA}, s63, v9")
    a(f"s_add_u32 s63, s60, {H_BASE}")
    a(f"v_add_u32 v{V_KB}, s63, v9")
    a("v_lshlrev_b32 v16, 3, v7")
    a(f"s_add_u32 s63, s60, {FT_BASE}")
    a(f"s_movk_i32 s54, {FT_DUMMY}")
    a("v_cmp_eq_u32 s[56:57], 1, v8")
    a("v_cmp_eq_u32 s[58:59], 2, v8")
    a("v_cmp_eq_u32 vcc, 3, v8")
    for r in range(4):
        m0_q2 = 256 + 2 * r
        m0_q3 = 512 + 4 * (r & 1) + 256 * (r >> 1)
        m1_q0 = 1024 + 256 * r
        m1_q1 = 2048 if r == 0 else FT_DUMMY
        R = V_KSC + r
        a("s_cmp_eq_u32 s62, 0")
        a(f"s_cselect_b32 s55, {r}, {m1_q0}")
        a(f"v_mov_b32 v{R}, s55")
        a(f"s_cselect_b32 s55, {4+r}, {m1_q1}")
        a("v_mov_b32 v18, s55")
        a(f"v_cndmask_b32 v{R}, v{R}, v18, s[56:57]")
        a(f"s_cselect_b32 s55, {m0_q2}, s54")
        a("v_mov_b32 v18, s55")
        a(f"v_cndmask_b32 v{R}, v{R}, v18, s[58:59]")
        a(f"s_cselect_b32 s55, {m0_q3}, s54")
        a("v_mov_b32 v18, s55")
        a(f"v_cndmask_b32 v{R}, v{R}, v18, vcc")
        a(f"v_add_u32 v{R}, v{R}, v16")
        a(f"v_lshrrev_b32 v18, 4, v{R}")
        a(f"v_lshlrev_b32 v18, 2, v18")
        a(f"v_lshl_add_u32 v{R}, v{R}, 1, v18")
        a(f"v_add_u32 v{R}, s63, v{R}")
    a("s_lshl_b32 s55, s62, 6")
    a("v_add_u32 v19, s55, v2")
    a("v_lshlrev_b32 v100, 5, v19")
    a("v_sub_u32 v100, 4094, v100")
    NE = 19
    for e in range(NE):
        a(f"v_subrev_u32 v{104+e}, {2*e}, v100")
        a(f"v_cvt_f32_u32 v{104+e}, v{104+e}")
    for e in range(0, NE + 1, 2):
        e2 = min(e + 1, NE - 1)
        a(f"v_cvt_pk_bf16_f32 v{124+e//2}, v{104+e}, v{104+e2}")
    for e in range(NE):
        if e % 2 == 0: a(f"v_lshlrev_b32 v{104+e}, 16, v{124+e//2}")
        else: a(f"v_and_b32 v{104+e}, 0xffff0000, v{124+e//2}")
    for e in range(NE): a(f"v_cvt_u32_f32 v{104+e}, v{104+e}")
    for e in range(16, NE): a(f"v_min_u32 v{104+e}, {2*FT_ZERO}, v{104+e}")
    for e in range(NE):
        a(f"v_lshrrev_b32 v18, 5, v{104+e}")
        a(f"v_lshl_add_u32 v{104+e}, v18, 2, v{104+e}")
        a(f"v_add_u32 v{104+e}, s63, v{104+e}")
    a(f"s_lshr_b32 s55, s{S_WAVE}, 1")
    a(f"s_mul_i32 s55, s55, {KCH}")
    a(f"s_add_u32 s55, s55, {KC_BASE}")
    a("v_lshlrev_b32 v19, 5, v19")
    a(f"v_add_u32 v{V_KDST}, s55, v19")
    a(f"s_lshr_b32 s60, s{S_WAVE}, 1")
    a(f"s_and_b32 s61, s{S_WAVE}, 1")
    a("v_and_b32 v52, 31, v2")
    a("v_lshrrev_b32 v53, 5, v2")
    a("v_and_b32 v54, 3, v52")
    a("v_sub_u32 v54, 3, v54")
    a(f"v_mul_u32_u24 v54, {KC_STRIDE}, v54")
    a("v_lshrrev_b32 v55, 2, v52")
    a("v_lshlrev_b32 v55, 3, v55")
    a("v_sub_u32 v54, v54, v55")
    a("v_lshl_add_u32 v54, v53, 4, v54")
    a(f"s_mul_i32 s62, s60, {KCH}")
    a("s_lshl_b32 s63, s61, 6")
    a("s_sub_u32 s62, s62, s63")
    a(f"s_add_u32 s62, s62, {KC_BASE + 2*2044 - 2048 - 64*30}")
    a(f"v_add_u32 v{V_CA}, s62, v54")
    a("v_mul_u32_u24 v55, 80, v52")
    a("v_lshl_add_u32 v55, v53, 4, v55")
    a(f"s_mul_i32 s62, s60, {U_CH}")
    a("s_mul_i32 s63, s61, 80")
    a("s_sub_u32 s62, s62, s63")
    a(f"s_add_u32 s62, s62, {U_BASE + 80*(31-30)}")
    a(f"v_add_u32 v{V_CB}, s62, v55")
    tile_coords(a, 1, S_T1, S_FJ)
    tile_coords(a, 2, S_T2, S_SJ)
    dma_setup(a, 1)
    touch_setup(a)

def planes_out(a, D, plane_base, srd_dst, T):
    for c in range(8):
        a(f"ds_write_b32 v{V_PW}, v{D+c} offset:{plane_base + 32*c}")
    a(f"v_add_u32 v{T+8}, 1152, v{V_PR}")
    a("s_waitcnt lgkmcnt(0)")
    a("s_barrier")
    a(f"ds_read2st64_b32 v[{T}:{T+1}], v{V_PR} offset0:0 offset1:9")
    a(f"ds_read2st64_b32 v[{T+2}:{T+3}], v{V_PR} offset0:18 offset1:27")
    a(f"ds_read2st64_b32 v[{T+4}:{T+5}], v{T+8} offset0:0 offset1:9")
    a(f"ds_read2st64_b32 v[{T+6}:{T+7}], v{T+8} offset0:18 offset1:27")
    a(f"s_lshl_b32 s60, s{S_TB}, 13")
    a("s_add_u32 s61, s60, 4096")
    a("s_waitcnt lgkmcnt(2)")
    a(f"buffer_store_dwordx4 v[{T}:{T+3}], v{V_US}, s[{srd_dst}:{srd_dst+3}], s60 offen sc1")
    a("s_waitcnt lgkmcnt(0)")
    a(f"buffer_store_dwordx4 v[{T+4}:{T+7}], v{V_US}, s[{srd_dst}:{srd_dst+3}], s61 offen sc1")

def unit_addr(a, vd, vt):
    a(f"v_lshrrev_b32 v{vd}, 3, v2")
    a(f"v_lshlrev_b32 v{vd}, 10, v{vd}")
    a(f"v_and_b32 v{vt}, 7, v2")
    a(f"v_lshl_add_u32 v{vd}, v{vt}, 4, v{vd}")

def ln1(a):
    a(f"s_mov_b32 s90, {INV512}")
    a(f"s_mov_b32 s91, {EPS}")
    a("s_waitcnt vmcnt(10)")
    unpack_pairs(a, 16, VX, VX + 4)
    pair_sums(a, 16, 8, 32, 34, 36)
    reduce4(a, 32, 33, 34, 35)
    ln_stats(a, 32, 33, 36, 37, SM, SR)
    ln_apply(a, 16, 8, SM, SR, 40)
    unpack_packed(a, 16, 8, 40)
    for c in range(8):
        a(f"v_cvt_pk_f16_f32 v{40+c}, v{16+2*c}, v{17+2*c}")
    planes_out(a, 40, PL1, SRD_U2, 48)

def kgen(a):
    a(f"s_lshr_b32 s60, s{S_WAVE}, 1")
    a(f"s_mul_i32 s60, s60, {KG_CH}")
    a(f"s_mov_b32 s66, {LOG2E}")
    a(f"s_mov_b32 s67, {LOG2E_LO}")
    a(f"s_mov_b32 s68, {LN2}")
    a(f"s_mov_b32 s69, {INV2PI}")
    a("v_mov_b32 v20, s52")
    a("v_mul_f32 v21, s66, v20")
    a("v_fma_f32 v22, v20, s66, -v21")
    a("v_fmac_f32 v22, s67, v20")
    a("v_exp_f32 v21, v21")
    a("v_mul_f32 v22, s68, v22")
    a("v_fmac_f32 v21, v21, v22")
    bf16_round(a, 21, 21)
    for i in range(10): a(f"v_lshlrev_b32 v{10+i}, 16, v{200+i}")
    a("v_mul_f32 v10, v21, v10")
    a("v_mul_f32 v11, v21, v11")
    a("v_mul_f32 v10, s66, v10")
    a("v_mul_f32 v11, s69, v11")
    for (b, c0, out) in ((12, 14, 24), (16, 18, 26)):
        a(f"v_mul_f32 v{b}, v21, v{b}")
        a(f"v_mul_f32 v{b+1}, v21, v{b+1}")
        a(f"v_mul_f32 v{out}, v{c0}, v{b}")
        a(f"v_mul_f32 v{out+1}, v{c0}, v{b+1}")
        a(f"v_fma_f32 v{out}, -v{c0+1}, v{b+1}, v{out}")
        a(f"v_fmac_f32 v{out+1}, v{c0+1}, v{b}")
    a("v_max3_f32 v28, abs(v24), abs(v25), abs(v26)")
    a("v_max_f32 v28, v28, abs(v27)")
    W1, W256, W512, W1024, W8, W128 = 32, 34, 36, 38, 80, 50
    evalE(a, W1, 1, 10, 11, 40)
    wave_max(a, 28, 29)
    evalE(a, W256, 256, 10, 11, 44)
    a("v_frexp_exp_i32_f32 v29, v28")
    a("v_sub_u32 v30, 0, v29")
    a("v_ldexp_f32 v48, v24, v30")
    a("v_ldexp_f32 v49, v25, v30")
    a("v_mov_b32 v31, 1.0")
    a("v_ldexp_f32 v31, v31, v29")
    evalE(a, W8, 8, 10, 11, 40, conj=True)
    a(f"v_readfirstlane_b32 s{S_SCALE}, v31")
    evalE(a, 84, 128, 10, 11, 44, conj=True)
    cmul(a, W512, W256, W256)
    cmul(a, W1024, W512, W512)
    st(a, "kg: setup done", 250)
    touch_point(a, 1)
    g = lambda i: 48 + 2 * i
    cnt = [0]
    def emit(off, reg):
        t = 96 + (cnt[0] % 8); cnt[0] += 1
        a(f"v_cvt_pk_f16_f32 v{t}, v{reg}, v{reg+1}")
        a(f"ds_write_b32 v{V_KROW}, v{t} offset:{off}")
    grow = lambda r, reg: emit(r * G_ROW, reg)
    hrow = lambda r, reg: emit(H_BASE + r * G_ROW, reg)
    a("v_mov_b32 v82, 1.0"); a("v_mov_b32 v83, 0")
    HA, HB = [82, 86], [84, 88]
    hstate = [0]
    def hstep():
        i = hstate[0]
        if i >= 16: return
        ca, na = HA[i % 2], HA[(i + 1) % 2]
        cb, nb = HB[i % 2], HB[(i + 1) % 2]
        if i < 15:
            cmul(a, na, ca, W8); cmul(a, nb, cb, W8)
        hrow(i, ca); hrow(16 + i, cb)
        hstate[0] += 1
    grow(0, g(0))
    cmul(a, 64, g(0), W1024); cmul(a, 66, g(0), W512); cmul(a, g(1), g(0), W1)
    hstep()
    grow(16, 64); grow(12, 66)
    cmul(a, 68, 64, W256); cmul(a, 70, 66, W256); cmul(a, g(2), g(1), W1); cmul(a, 72, g(0), W256)
    hstep(); hstep()
    grow(1, g(1)); grow(17, 68); grow(14, 70)
    cmul(a, 64, 68, W256); cmul(a, g(3), g(2), W1); cmul(a, 74, g(2), W256)
    hstep(); hstep()
    grow(2, g(2)); grow(8, 72)
    cmul(a, 68, 64, W256); cmul(a, g(4), g(3), W1)
    hstep(); hstep()
    grow(18, 64); grow(3, g(3)); grow(9, 74)
    cmul(a, 64, 68, W256); cmul(a, g(5), g(4), W1); cmul(a, 66, g(4), W512); cmul(a, 72, g(4), W256)
    hstep(); hstep()
    grow(19, 68); grow(4, g(4))
    cmul(a, g(6), g(5), W1); cmul(a, 70, 66, W256)
    hstep(); hstep()
    grow(20, 64); grow(5, g(5)); grow(13, 66); grow(10, 72)
    cmul(a, g(7), g(6), W1); cmul(a, 74, g(6), W256)
    hstep(); hstep()
    grow(6, g(6)); grow(15, 70)
    hstep(); hstep()
    grow(7, g(7)); grow(11, 74)
    while hstate[0] < 16: hstep()
    NE = 19
    a(f"s_add_u32 s63, s60, {FT_BASE}")
    st(a, "kg: chains done", 250)
    touch_point(a, 2)
    a("v_mov_b32 v18, 0")
    a(f"v_mov_b32 v101, s63")
    a(f"ds_write_b16 v101, v18 offset:{2*FT_ZERO + 4*(FT_ZERO >> 4)}")
    a("s_waitcnt lgkmcnt(0)")
    a("s_barrier")
    for ks in range(8):
        a(f"ds_read_b128 v[{128+12*ks}:{131+12*ks}], v{V_KA} offset:{ks*64}")
        a(f"ds_read_b128 v[{132+12*ks}:{135+12*ks}], v{V_KB} offset:{ks*64}")
        a(f"ds_read_b128 v[{136+12*ks}:{139+12*ks}], v{V_KB} offset:{ks*64 + 16*G_ROW}")
        if ks >= 3:
            k = ks - 3
            a("s_waitcnt lgkmcnt(9)")
            cc0 = "0" if k == 0 else "v[20:23]"; cc1 = "0" if k == 0 else "v[24:27]"
            a(f"v_mfma_f32_16x16x32_f16 v[20:23], v[{128+12*k}:{131+12*k}], v[{132+12*k}:{135+12*k}], {cc0}")
            a(f"v_mfma_f32_16x16x32_f16 v[24:27], v[{128+12*k}:{131+12*k}], v[{136+12*k}:{139+12*k}], {cc1}")
    for k in range(5, 8):
        a(f"s_waitcnt lgkmcnt({3*(7-k)})")
        a(f"v_mfma_f32_16x16x32_f16 v[20:23], v[{128+12*k}:{131+12*k}], v[{132+12*k}:{135+12*k}], v[20:23]")
        a(f"v_mfma_f32_16x16x32_f16 v[24:27], v[{128+12*k}:{131+12*k}], v[{136+12*k}:{139+12*k}], v[24:27]")
    for nt in range(2):
        A = 20 + 4 * nt
        a(f"v_cvt_pk_f16_f32 v{28+2*nt}, v{A}, v{A+1}")
        a(f"v_cvt_pk_f16_f32 v{29+2*nt}, v{A+2}, v{A+3}")
        a(f"ds_write_b16 v{V_KSC}, v{28+2*nt} offset:{288*nt}")
        a(f"ds_write_b16_d16_hi v{V_KSC+1}, v{28+2*nt} offset:{288*nt}")
        a(f"ds_write_b16 v{V_KSC+2}, v{29+2*nt} offset:{288*nt}")
        a(f"ds_write_b16_d16_hi v{V_KSC+3}, v{29+2*nt} offset:{288*nt}")
    st(a, "kg: mfma done", 250)
    for r in range(40, 44): a(f"v_mov_b32 v{r}, 0")
    a("v_lshlrev_b32 v5, 4, v0")
    a("v_cmp_gt_u32 vcc, 155, v0")
    a("s_and_saveexec_b64 s[62:63], vcc")
    a(f"v_add_u32 v44, {U_BASE}, v5")
    a(f"ds_write_b128 v44, v[40:43]")
    a(f"ds_write_b128 v44, v[40:43] offset:{U_CH}")
    a("s_mov_b64 exec, s[62:63]")
    a("v_lshrrev_b32 v44, 2, v0")
    a(f"v_mul_u32_u24 v44, {KC_STRIDE}, v44")
    a("v_and_b32 v45, 3, v0")
    a("v_lshl_add_u32 v44, v45, 4, v44")
    a(f"v_add_u32 v44, {KC_BASE + 4096}, v44")
    a("v_cmp_gt_u32 vcc, 32, v0")
    a("s_and_saveexec_b64 s[62:63], vcc")
    a("ds_write_b128 v44, v[40:43]")
    a("s_mov_b64 exec, s[62:63]")
    a("s_waitcnt lgkmcnt(0)")
    a("s_barrier")
    st(a, "kg: scatter+barrier done", 250)
    touch_point(a, 3)
    for e in range(NE): a(f"ds_read_u16 v{128+e}, v{104+e}")
    a("s_waitcnt lgkmcnt(0)")
    for i in range(9):
        a(f"v_lshl_or_b32 v{161+i}, v{129+2*i}, 16, v{128+2*i}")
    for i in range(8):
        a(f"v_mov_b32 v{152+i}, v{161+i}")
    for i in range(9):
        a(f"v_lshl_or_b32 v{181+i}, v{130+2*i}, 16, v{129+2*i}")
    for i in range(8):
        a(f"v_mov_b32 v{172+i}, v{181+i}")
    for (sig, R) in ((0, 152), (1, 172), (2, 162), (3, 182)):
        a(f"ds_write_b128 v{V_KDST}, v[{R}:{R+3}] offset:{sig*KC_STRIDE}")
        a(f"ds_write_b128 v{V_KDST}, v[{R+4}:{R+7}] offset:{sig*KC_STRIDE+16}")

def conv_load_u(a):
    l = newlbl("cu")
    a(f"s_cmp_ge_u32 s{S_WAVE}, 2")
    a(f"s_cbranch_scc1 {l}")
    a(f"s_lshl_b32 s60, s{S_WAVE}, 7")
    a("v_add_u32 v3, s60, v2")
    a("v_lshlrev_b32 v4, 13, v3")
    a(f"s_lshl_b32 s61, s{S_Q0}, 4")
    a(f"s_add_u32 s62, s61, {64*8192}")
    a(f"buffer_load_dwordx4 v[8:11], v4, s[{SRD_U2}:{SRD_U2+3}], s61 offen sc1")
    a(f"buffer_load_dwordx4 v[12:15], v4, s[{SRD_U2}:{SRD_U2+3}], s61 offen offset:16 sc1")
    a(f"buffer_load_dwordx4 v[16:19], v4, s[{SRD_U2}:{SRD_U2+3}], s62 offen sc1")
    a(f"buffer_load_dwordx4 v[20:23], v4, s[{SRD_U2}:{SRD_U2+3}], s62 offen offset:16 sc1")
    a("v_lshrrev_b32 v5, 2, v3")
    a("v_mul_u32_u24 v5, 80, v5")
    a("v_and_b32 v6, 3, v3")
    a("v_lshl_add_u32 v5, v6, 4, v5")
    a(f"v_add_u32 v5, {U_BASE + 31*80}, v5")
    a("s_waitcnt vmcnt(2)")
    a(f"ds_write_b128 v5, v[8:11]")
    a(f"ds_write_b128 v5, v[12:15] offset:{U_CH}")
    a("s_waitcnt vmcnt(0)")
    a(f"ds_write_b128 v5, v[16:19] offset:{16*80}")
    a(f"ds_write_b128 v5, v[20:23] offset:{U_CH + 16*80}")
    a.label(l)

def conv_main(a):
    a(f"s_lshr_b32 s60, s{S_WAVE}, 1")
    a(f"s_and_b32 s61, s{S_WAVE}, 1")
    a("v_and_b32 v52, 31, v2")
    a("v_lshrrev_b32 v53, 5, v2")
    a(f"v_mov_b32 v54, v{V_CA}")
    a(f"v_mov_b32 v55, v{V_CB}")
    a("s_waitcnt lgkmcnt(0)")
    a("s_barrier")
    st(a, "conv start (U in LDS)")
    X, Y = 96, 128
    def load_list(step, R):
        kk = 30 - 2 * step
        oa = 64 * kk; ob = 80 * kk
        return [
            f"ds_read_b64 v[{R+0}:{R+1}], v54 offset:{oa+2048}",
            f"ds_read_b64 v[{R+2}:{R+3}], v54 offset:{oa+2048+8}",
            f"ds_read_b128 v[{R+16}:{R+19}], v55 offset:{ob}",
            f"ds_read_b128 v[{R+24}:{R+27}], v55 offset:{ob+2560}",
            f"ds_read_b64 v[{R+4}:{R+5}], v54 offset:{oa+2048+32}",
            f"ds_read_b64 v[{R+6}:{R+7}], v54 offset:{oa+2048+40}",
            f"ds_read_b128 v[{R+20}:{R+23}], v55 offset:{ob+32}",
            f"ds_read_b128 v[{R+28}:{R+31}], v55 offset:{ob+2560+32}",
            f"ds_read_b64 v[{R+8}:{R+9}], v54 offset:{oa}",
            f"ds_read_b64 v[{R+10}:{R+11}], v54 offset:{oa+8}",
            f"ds_read_b64 v[{R+12}:{R+13}], v54 offset:{oa+32}",
            f"ds_read_b64 v[{R+14}:{R+15}], v54 offset:{oa+40}"]
    def mfma_list(R, first):
        c0 = "0" if first else "v[64:79]"; c1 = "0" if first else "v[80:95]"
        return [
            f"v_mfma_f32_32x32x16_f16 v[64:79], v[{R+0}:{R+3}], v[{R+16}:{R+19}], {c0}",
            f"v_mfma_f32_32x32x16_f16 v[80:95], v[{R+0}:{R+3}], v[{R+24}:{R+27}], {c1}",
            f"v_mfma_f32_32x32x16_f16 v[64:79], v[{R+4}:{R+7}], v[{R+20}:{R+23}], v[64:79]",
            f"v_mfma_f32_32x32x16_f16 v[80:95], v[{R+4}:{R+7}], v[{R+28}:{R+31}], v[80:95]",
            f"v_mfma_f32_32x32x16_f16 v[80:95], v[{R+8}:{R+11}], v[{R+16}:{R+19}], v[80:95]",
            f"v_mfma_f32_32x32x16_f16 v[80:95], v[{R+12}:{R+15}], v[{R+20}:{R+23}], v[80:95]"]
    for l in load_list(0, X): a(l)
    for step in range(16):
        if step in (0, 4, 8, 12): touch_point(a, 4 + step // 4)
        R = X if step % 2 == 0 else Y
        N = Y if step % 2 == 0 else X
        M = mfma_list(R, step == 0)
        Ls = load_list(step + 1, N) if step < 15 else []
        need_upto = [3, 4, 7, 8, 10, 12]
        issued_next = 0
        for i in range(6):
            a(f"s_waitcnt lgkmcnt({min((12 - need_upto[i]) + issued_next, 15)})")
            a(M[i])
            for l in Ls[2*i:2*i+2]: a(l); issued_next += 1
    st(a, "conv main done")
    a("v_lshlrev_b32 v56, 4, v2")
    a(f"s_lshl_b32 s62, s{S_WAVE}, 12")
    a("v_add_u32 v57, s62, v56")
    a(f"s_xor_b32 s63, s{S_WAVE}, 1")
    a("s_lshl_b32 s63, s63, 12")
    a("v_add_u32 v58, s63, v56")
    l1, l2 = newlbl("cp"), newlbl("cr")
    a("s_cmp_eq_u32 s61, 0")
    a(f"s_cbranch_scc0 {l1}")
    a("s_nop 7"); a("s_nop 7")
    for g in range(4): a(f"ds_write_b128 v57, v[{80+4*g}:{83+4*g}] offset:{g*1024}")
    a(f"s_branch {l2}")
    a.label(l1)
    a("s_nop 7"); a("s_nop 7")
    for g in range(4): a(f"ds_write_b128 v57, v[{64+4*g}:{67+4*g}] offset:{g*1024}")
    for r in range(16): a(f"v_mov_b32 v{64+r}, v{80+r}")
    a.label(l2)
    a("s_lshl_b32 s62, s61, 5")
    a("v_add_u32 v59, s62, v52")
    a("v_mul_u32_u24 v60, 80, v59")
    a("v_lshl_add_u32 v60, v53, 3, v60")
    a(f"s_mul_i32 s62, s60, {U_CH}")
    a(f"s_add_u32 s62, s62, {U_BASE + 31*80}")
    a("v_add_u32 v60, s62, v60")
    for g in range(4): a(f"ds_read_b64 v[{112+2*g}:{113+2*g}], v60 offset:{g*16}")
    a("s_waitcnt lgkmcnt(0)")
    a("s_barrier")
    for g in range(4): a(f"ds_read_b128 v[{96+4*g}:{99+4*g}], v58 offset:{g*1024}")
    for g in range(4):
        a(f"v_cvt_f32_f16 v{120+4*g}, v{112+2*g}")
        a(f"v_cvt_f32_f16_sdwa v{121+4*g}, v{112+2*g} dst_sel:DWORD dst_unused:UNUSED_PAD src0_sel:WORD_1")
        a(f"v_cvt_f32_f16 v{122+4*g}, v{113+2*g}")
        a(f"v_cvt_f32_f16_sdwa v{123+4*g}, v{113+2*g} dst_sel:DWORD dst_unused:UNUSED_PAD src0_sel:WORD_1")
    for r in range(16): a(f"v_mul_f32 v{120+r}, s{S_DSK}, v{120+r}")
    for r in range(0, 16, 2): a(f"v_cvt_pk_bf16_f32 v{136+r//2}, v{120+r}, v{121+r}")
    for r in range(0, 16, 2):
        a(f"v_lshlrev_b32 v{120+r}, 16, v{136+r//2}")
        a(f"v_and_b32 v{121+r}, 0xffff0000, v{136+r//2}")
    a("s_waitcnt lgkmcnt(0)")
    for r in range(0, 16, 2): a(f"v_pk_add_f32 v[{64+r}:{65+r}], v[{64+r}:{65+r}], v[{96+r}:{97+r}]")
    for r in range(16): a(f"v_mul_f32 v{64+r}, s{S_SCALE}, v{64+r}")
    for r in range(0, 16, 2): a(f"v_cvt_pk_bf16_f32 v{136+r//2}, v{64+r}, v{65+r}")
    for r in range(0, 16, 2):
        a(f"v_lshlrev_b32 v{64+r}, 16, v{136+r//2}")
        a(f"v_and_b32 v{65+r}, 0xffff0000, v{136+r//2}")
    for r in range(0, 16, 2): a(f"v_pk_add_f32 v[{64+r}:{65+r}], v[{64+r}:{65+r}], v[{120+r}:{121+r}]")
    for r in range(0, 16, 2): a(f"v_cvt_pk_bf16_f32 v{136+r//2}, v{64+r}, v{65+r}")
    for g in (0, 2):
        A0, A1, B0, B1 = 136 + 2 * g, 137 + 2 * g, 138 + 2 * g, 139 + 2 * g
        a(f"v_permlane32_swap_b32 v{A0}, v{B0}")
        a(f"v_permlane32_swap_b32 v{A1}, v{B1}")
    a("v_mul_u32_u24 v61, 144, v59")
    a("v_lshl_add_u32 v61, v53, 5, v61")
    a("s_lshl_b32 s62, s60, 4")
    a(f"s_add_u32 s62, s62, {YB}")
    a("v_add_u32 v61, s62, v61")
    a("ds_write_b128 v61, v[136:139]")
    a("ds_write_b128 v61, v[140:143] offset:64")
    a("v_lshrrev_b32 v62, 3, v0")
    a("v_mul_u32_u24 v62, 144, v62")
    a("v_and_b32 v63, 7, v0")
    a("v_lshl_add_u32 v62, v63, 4, v62")
    a("s_waitcnt lgkmcnt(0)")
    a("s_barrier")
    a(f"ds_read_b128 v[96:99], v62 offset:{YB}")
    a(f"ds_read_b128 v[100:103], v62 offset:{YB + 32*144}")
    a(f"s_lshl_b32 s62, s{S_TB}, 13")
    a("s_add_u32 s63, s62, 4096")
    a("s_waitcnt lgkmcnt(1)")
    a(f"buffer_store_dwordx4 v[96:99], v{V_US}, s[{SRD_YA}:{SRD_YA+3}], s62 offen sc1")
    a("s_waitcnt lgkmcnt(0)")
    a(f"buffer_store_dwordx4 v[100:103], v{V_US}, s[{SRD_YA}:{SRD_YA+3}], s63 offen sc1")

def ln2_loads(a):
    a("v_lshrrev_b32 v4, 1, v0")
    a("v_lshlrev_b32 v4, 13, v4")
    a("v_and_b32 v5, 1, v0")
    a("v_lshl_add_u32 v4, v5, 4, v4")
    a(f"s_lshl_b32 s60, s{S_TB}, 5")
    a("s_add_u32 s61, s60, 0x100000")
    a(f"buffer_load_dwordx4 v[40:43], v4, s[{SRD_YA}:{SRD_YA+3}], s60 offen sc1")
    a(f"buffer_load_dwordx4 v[44:47], v4, s[{SRD_YA}:{SRD_YA+3}], s61 offen sc1")

def ln2_compute(a):
    a(f"s_mov_b32 s90, {INV512}")
    a(f"s_mov_b32 s91, {EPS}")
    a("s_mov_b32 s92, 0x05040100")
    a("s_mov_b32 s93, 0x07060302")
    a(f"v_mov_b32 v48, v{V_PR}")
    a(f"v_add_u32 v49, 1152, v{V_PR}")
    unpack_pairs(a, 16, VX, VX + 4)
    a("s_waitcnt vmcnt(1)")
    a("ds_write2st64_b32 v48, v40, v41 offset0:0 offset1:9")
    a("ds_write2st64_b32 v48, v42, v43 offset0:18 offset1:27")
    a("s_waitcnt vmcnt(0)")
    a("ds_write2st64_b32 v49, v44, v45 offset0:0 offset1:9")
    a("ds_write2st64_b32 v49, v46, v47 offset0:18 offset1:27")
    a("s_waitcnt lgkmcnt(0)")
    a("s_barrier")
    for c in range(8):
        a(f"ds_read_b32 v{40+c}, v{V_PW} offset:{PL2 + 32*c}")
    a("v_lshlrev_b32 v3, 4, v2")
    a(f"s_lshl_b32 s64, s{S_TB}, 13")
    a(f"s_lshl_b32 s65, s{S_WAVE}, 11")
    a("s_add_u32 s64, s64, s65")
    a("s_waitcnt lgkmcnt(0)")
    for c in range(8):
        a(f"v_lshlrev_b32 v{48+2*c}, 16, v{40+c}")
        a(f"v_and_b32 v{49+2*c}, 0xffff0000, v{40+c}")
    for c in range(8):
        a(f"v_pk_add_f32 v[{16+2*c}:{17+2*c}], v[{16+2*c}:{17+2*c}], v[{48+2*c}:{49+2*c}]")
    for c in range(8):
        a(f"v_cvt_pk_bf16_f32 v{40+c}, v{16+2*c}, v{17+2*c}")
    unpack_packed(a, 16, 8, 40)
    for i in range(4):
        a(f"v_perm_b32 v{4+i}, v{41+2*i}, v{40+2*i}, s92")
        a(f"v_perm_b32 v{8+i}, v{41+2*i}, v{40+2*i}, s93")
    a(f"buffer_store_dwordx4 v[4:7], v3, s[{SRD_H}:{SRD_H+3}], s64 offen sc1")
    a(f"buffer_store_dwordx4 v[8:11], v3, s[{SRD_H}:{SRD_H+3}], s64 offen offset:1024 sc1")
    pair_sums(a, 16, 8, 32, 34, 36)
    reduce4(a, 32, 33, 34, 35)
    ln_stats(a, 32, 33, 36, 37, SM, SR)
    ln_apply(a, 16, 8, SM, SR, 40)
    unpack_packed(a, 16, 8, 40)
    pair_sums(a, 16, 8, 32, 34, 36)
    reduce4(a, 32, 33, 34, 35)
    ln_stats(a, 32, 33, 36, 37, SM, SR)
    ln_apply(a, 16, 8, SM, SR, 40)
    a("s_barrier")
    planes_out(a, 40, PL2, SRD_HN, 48)

def tile_coords(a, which, sT, sC):
    a("s_and_b32 s60, s2, 7")
    a("s_lshr_b32 s61, s2, 3")
    a(f"s_and_b32 s{sT}, s60, 1")
    a(f"s_lshl_b32 s{sT}, s{sT}, 2")
    a("s_and_b32 s62, s61, 3")
    a(f"s_add_u32 s{sT}, s{sT}, s62")
    a(f"s_lshr_b32 s{sC}, s60, 1")
    a(f"s_mul_i32 s{sC}, s{sC}, {7 if which == 1 else 8}")
    a("s_lshr_b32 s62, s61, 2")
    a(f"s_add_u32 s{sC}, s{sC}, s62")

VD, VTA, VTB = 240, 241, 242
def dma_setup(a, which):
    WROW = 3584 if which == 1 else 4096
    a(f"v_lshrrev_b32 v{VD}, 3, v2")
    a(f"v_mul_u32_u24 v{VD}, {WROW}, v{VD}")
    a("v_and_b32 v243, 7, v2")
    a("v_lshrrev_b32 v244, 2, v2")
    a("v_and_b32 v244, 4, v244")
    a("v_xor_b32 v243, v243, v244")
    a(f"v_lshl_add_u32 v{VD}, v243, 4, v{VD}")
    a("v_bfe_u32 v243, v2, 2, 2")
    a("v_and_b32 v244, 3, v2")
    a(f"v_bfe_u32 v{VTA}, v2, 4, 1")
    a(f"v_lshlrev_b32 v{VTA}, 1, v{VTA}")
    a("v_lshrrev_b32 v245, 1, v244")
    a(f"v_add_u32 v{VTA}, v{VTA}, v245")
    a("v_lshrrev_b32 v245, 1, v243")
    a("v_lshlrev_b32 v245, 2, v245")
    a(f"v_xor_b32 v{VTA}, v{VTA}, v245")
    a(f"v_lshlrev_b32 v{VTA}, 4, v{VTA}")
    a("v_and_b32 v245, 1, v244")
    a(f"v_lshl_add_u32 v{VTA}, v245, 3, v{VTA}")
    a("v_lshrrev_b32 v245, 5, v2")
    a(f"v_lshlrev_b32 v245, {3 if which == 1 else 2}, v245")
    a("v_add_u32 v245, v245, v243")
    a(f"v_lshl_add_u32 v{VTA}, v245, 7, v{VTA}")
    a(f"v_xor_b32 v{VTB}, 64, v{VTA}")

def ring_base(a, per_wave, base):
    a(f"s_mul_i32 s{S_RING}, s{S_WAVE}, {per_wave}")
    if base: a(f"s_add_u32 s{S_RING}, s{S_RING}, {base}")
    a(f"s_lshr_b32 s60, s{S_WAVE}, 1")
    a("s_lshl_b32 s60, s60, 6")
    a(f"v_xor_b32 v246, s60, v{VTA}")
    a(f"v_xor_b32 v247, 64, v246")
    a(f"v_add_u32 v246, s{S_RING}, v246")
    a(f"v_add_u32 v247, s{S_RING}, v247")

def dma_issue(a, which, n, slot0):
    WROW = 3584 if which == 1 else 4096
    srdw = SRD_W1 if which == 1 else SRD_W2
    for i in range(n):
        a(f"s_add_u32 m0, s{S_RING}, {(slot0+i)*2048}")
        a(f"buffer_load_dwordx4 v{VD}, s[{srdw}:{srdw+3}], s{S_WOFF} offen lds")
        a(f"s_add_u32 s60, s{S_WOFF}, {8*WROW}")
        a(f"s_add_u32 m0, s{S_RING}, {(slot0+i)*2048+1024}")
        a(f"buffer_load_dwordx4 v{VD}, s[{srdw}:{srdw+3}], s60 offen lds")
        a(f"s_add_u32 s{S_WOFF}, s{S_WOFF}, {16*WROW}")

def tr_to_acc(a, which, steps, slot0):
    RHO = 512 if which == 1 else 1024
    for i, s in enumerate(steps):
        o = (slot0 + i) * 2048
        a(f"ds_read_b64_tr_b16 a[{8*s}:{8*s+1}], v246 offset:{o}")
        a(f"ds_read_b64_tr_b16 a[{8*s+2}:{8*s+3}], v246 offset:{o+RHO}")
        a(f"ds_read_b64_tr_b16 a[{8*s+4}:{8*s+5}], v247 offset:{o}")
        a(f"ds_read_b64_tr_b16 a[{8*s+6}:{8*s+7}], v247 offset:{o+RHO}")
        if i % 3 == 2: a("s_waitcnt lgkmcnt(4)")

def woff_init(a, which, sC):
    if which == 1: a(f"s_mul_i32 s{S_WOFF}, s{S_WAVE}, {32*16*3584}")
    else: a(f"s_mul_i32 s{S_WOFF}, s{S_WAVE}, {28*16*4096}")
    a(f"s_lshl_b32 s60, s{sC}, 7")
    a(f"s_add_u32 s{S_WOFF}, s{S_WOFF}, s60")

def gemm_lane_consts(a):
    a("v_lshrrev_b32 v6, 5, v2")
    a("v_and_b32 v7, 31, v2")
    a("v_lshlrev_b32 v10, 13, v6")
    a("v_lshl_add_u32 v10, v7, 4, v10")
    a(f"s_and_b32 s60, s{S_WAVE}, 1")
    a("s_lshl_b32 s60, s60, 9")
    a("v_xor_b32 v8, s60, v10")
    a("v_xor_b32 v9, 512, v8")

def main_loop(a, which, srda, soff, D0):
    NK = 32 if which == 1 else 28
    DR = 14
    ab = lambda s: 128 + 8 * (s % DR)
    issued = [0]
    def issue():
        s = issued[0]
        if s >= NK: return []
        R = ab(s); issued[0] += 1
        return [f"buffer_load_dwordx4 v[{R}:{R+3}], v8, s[{srda}:{srda+3}], s{soff} offen sc1",
                f"buffer_load_dwordx4 v[{R+4}:{R+7}], v9, s[{srda}:{srda+3}], s{soff} offen sc1\ns_add_u32 s{soff}, s{soff}, 16384"]
    for s in range(D0):
        for l in issue(): a(l)
    for s in range(NK):
        a(f"s_waitcnt vmcnt({2*(issued[0] - 1 - s)})")
        nxt = issue() if (issued[0] - s) < DR else []
        R = ab(s); k = 0
        for wt in range(2):
            for at in range(2):
                acc = 64 + 32 * wt + 16 * at
                wq = f"a[{8*s+4*wt}:{8*s+4*wt+3}]"; aq = f"v[{R+4*at}:{R+4*at+3}]"
                cc = "0" if s == 0 else f"v[{acc}:{acc+15}]"
                if which == 1: a(f"v_mfma_f32_32x32x16_bf16 v[{acc}:{acc+15}], {wq}, {aq}, {cc}")
                else: a(f"v_mfma_f32_32x32x16_bf16 v[{acc}:{acc+15}], {aq}, {wq}, {cc}")
                if k == 0 and nxt: a(nxt[0])
                if k == 2 and nxt: a(nxt[1])
                k += 1

def reduce_write(a):
    a("v_lshlrev_b32 v13, 4, v2")
    for j in (1, 2, 3):
        wt, at = j >> 1, j & 1
        acc = 64 + 32 * wt + 16 * at
        a(f"s_xor_b32 s60, s{S_WAVE}, {j}")
        a(f"s_mul_i32 s60, s60, {3*4096}")
        a(f"s_add_u32 s60, s60, {(j-1)*4096}")
        a(f"v_add_u32 v14, s60, v13")
        for g in range(4):
            a(f"ds_write_b128 v14, v[{acc+4*g}:{acc+4*g+3}] offset:{g*1024}")

def reduce_read(a):
    a(f"s_mul_i32 s60, s{S_WAVE}, {3*4096}")
    a("v_add_u32 v14, s60, v13")
    for j in range(3):
        for g in range(4):
            a(f"ds_read_b128 v[{128+16*j+4*g}:{131+16*j+4*g}], v14 offset:{j*4096+g*1024}")
    P = lambda b, r: f"v[{b+r}:{b+r+1}]"
    a("s_waitcnt lgkmcnt(8)")
    for r in range(0, 16, 2): a(f"v_pk_add_f32 {P(64,r)}, {P(64,r)}, {P(128,r)}")
    a("s_waitcnt lgkmcnt(0)")
    for r in range(0, 16, 2): a(f"v_pk_add_f32 {P(144,r)}, {P(144,r)}, {P(160,r)}")
    for r in range(0, 16, 2): a(f"v_pk_add_f32 {P(128,r)}, {P(64,r)}, {P(144,r)}")

def gelu16(a, X, T):
    a("s_mov_b32 s66, 0x3d372713")
    a("s_mov_b32 s67, 0x3d372713")
    kk = -2.0 * 1.4426950408889634 * 0.7978845608028654
    kb = hex(struct.unpack('<I', struct.pack('<f', kk))[0])
    a(f"s_mov_b32 s68, {kb}"); a(f"s_mov_b32 s69, {kb}")
    P = lambda b, r: f"v[{b+r}:{b+r+1}]"
    for r in range(0, 16, 2): a(f"v_pk_mul_f32 {P(T,r)}, {P(X,r)}, {P(X,r)}")
    for r in range(0, 16, 2): a(f"v_pk_mul_f32 {P(T,r)}, {P(T,r)}, s[66:67]")
    for r in range(0, 16, 2): a(f"v_pk_fma_f32 {P(T,r)}, {P(T,r)}, {P(X,r)}, {P(X,r)}")
    for r in range(0, 16, 2): a(f"v_pk_mul_f32 {P(T,r)}, {P(T,r)}, s[68:69]")
    for r in range(16): a(f"v_exp_f32 v{T+r}, v{T+r}")
    for r in range(16): a(f"v_add_f32 v{T+r}, 1.0, v{T+r}")
    for r in range(16): a(f"v_rcp_f32 v{T+r}, v{T+r}")
    for r in range(0, 16, 2): a(f"v_pk_mul_f32 {P(X,r)}, {P(X,r)}, {P(T,r)}")

def epi1_loads(a):
    a(f"s_lshr_b32 s61, s{S_WAVE}, 1")
    a(f"s_lshl_b32 s72, s{S_FJ}, 6")
    a("s_lshl_b32 s64, s61, 5")
    a("s_add_u32 s72, s72, s64")
    a("s_lshl_b32 s64, s72, 1")
    a("v_lshlrev_b32 v15, 3, v6")
    a("v_add_u32 v15, s64, v15")
    for g in range(4):
        a(f"global_load_dwordx2 v[{20+2*g}:{21+2*g}], v15, s[{S_B1}:{S_B1+1}] offset:{16*g}")

def epi1(a):
    P = lambda b, r: f"v[{b+r}:{b+r+1}]"
    reduce_read(a)
    for r in range(0, 16, 2): a(f"v_cvt_pk_bf16_f32 v{144+r//2}, v{128+r}, v{129+r}")
    for r in range(0, 16, 2):
        a(f"v_lshlrev_b32 v{128+r}, 16, v{144+r//2}")
        a(f"v_and_b32 v{129+r}, 0xffff0000, v{144+r//2}")
    for g in range(4):
        a(f"v_lshlrev_b32 v{160+4*g}, 16, v{20+2*g}")
        a(f"v_and_b32 v{161+4*g}, 0xffff0000, v{20+2*g}")
        a(f"v_lshlrev_b32 v{162+4*g}, 16, v{21+2*g}")
        a(f"v_and_b32 v{163+4*g}, 0xffff0000, v{21+2*g}")
    for r in range(0, 16, 2): a(f"v_pk_add_f32 {P(128,r)}, {P(128,r)}, {P(160,r)}")
    for r in range(0, 16, 2): a(f"v_cvt_pk_bf16_f32 v{144+r//2}, v{128+r}, v{129+r}")
    for r in range(0, 16, 2):
        a(f"v_lshlrev_b32 v{128+r}, 16, v{144+r//2}")
        a(f"v_and_b32 v{129+r}, 0xffff0000, v{144+r//2}")
    gelu16(a, 128, 160)
    for r in range(0, 16, 2): a(f"v_cvt_pk_bf16_f32 v{144+r//2}, v{128+r}, v{129+r}")
    a("s_lshr_b32 s64, s72, 4")
    a("s_lshl_b32 s64, s64, 14")
    a(f"s_lshl_b32 s65, s{S_T1}, 10")
    a("s_add_u32 s64, s64, s65")
    a(f"s_and_b32 s62, s{S_WAVE}, 1")
    a("s_lshl_b32 s65, s62, 9")
    a("s_add_u32 s64, s64, s65")
    a(f"buffer_store_dwordx4 v[144:147], v10, s[{SRD_G2}:{SRD_G2+3}], s64 offen sc1")
    a("s_add_u32 s64, s64, 16384")
    a(f"buffer_store_dwordx4 v[148:151], v10, s[{SRD_G2}:{SRD_G2+3}], s64 offen sc1")

def epi2_loads(a):
    a(f"s_lshr_b32 s61, s{S_WAVE}, 1")
    a(f"s_and_b32 s62, s{S_WAVE}, 1")
    a(f"s_lshl_b32 s63, s{S_SJ}, 6")
    a("s_lshl_b32 s64, s61, 5")
    a("s_add_u32 s63, s63, s64")
    a("v_add_u32 v15, s63, v7")
    a("v_lshlrev_b32 v16, 10, v15")
    a("v_lshl_add_u32 v16, v6, 6, v16")
    a(f"s_lshl_b32 s70, s{S_T2}, 7")
    a("s_lshl_b32 s64, s62, 3")
    a("s_add_u32 s70, s70, s64")
    for r in range(4):
        a(f"buffer_load_dwordx2 v[{20+2*r}:{21+2*r}], v16, s[{SRD_H}:{SRD_H+3}], s70 offen offset:{16*r} sc1")
    a("v_lshlrev_b32 v17, 1, v15")
    a(f"global_load_ushort v18, v17, s[{S_B2}:{S_B2+1}]")

def epi2(a):
    P = lambda b, r: f"v[{b+r}:{b+r+1}]"
    reduce_read(a)
    for r in range(4):
        a(f"v_cvt_pk_bf16_f32 v{144+2*r}, v{128+r}, v{132+r}")
        a(f"v_cvt_pk_bf16_f32 v{145+2*r}, v{136+r}, v{140+r}")
    a("v_lshlrev_b32 v18, 16, v18")
    a("v_mov_b32 v19, v18")
    for i in range(8):
        a(f"v_lshlrev_b32 v{160+2*i}, 16, v{144+i}")
        a(f"v_and_b32 v{161+2*i}, 0xffff0000, v{144+i}")
    for r in range(0, 16, 2): a(f"v_pk_add_f32 {P(160,r)}, {P(160,r)}, v[18:19]")
    for i in range(8): a(f"v_cvt_pk_bf16_f32 v{144+i}, v{160+2*i}, v{161+2*i}")
    for i in range(8):
        a(f"v_lshlrev_b32 v{160+2*i}, 16, v{144+i}")
        a(f"v_and_b32 v{161+2*i}, 0xffff0000, v{144+i}")
        a(f"v_lshlrev_b32 v{176+2*i}, 16, v{20+i}")
        a(f"v_and_b32 v{177+2*i}, 0xffff0000, v{20+i}")
    for r in range(0, 16, 2): a(f"v_pk_add_f32 {P(160,r)}, {P(160,r)}, {P(176,r)}")
    for i in range(8): a(f"v_cvt_pk_bf16_f32 v{144+i}, v{160+2*i}, v{161+2*i}")
    for r in range(4):
        a(f"buffer_store_dwordx2 v[{144+2*r}:{145+2*r}], v16, s[{SRD_OUT}:{SRD_OUT+3}], s70 offen offset:{16*r}")

D0_G1, D0_G2 = 8, 8
TOUCH = True
REMAP = False
def gen_fused(a):
    kernel_header(a, KNAME)
    stamp_begin(a)
    if DBGST is not None: a("s_memrealtime s[98:99]")
    a("s_cmp_ge_u32 s2, 256")
    a("s_cbranch_scc1 L_exit")
    if REMAP:
        a("s_and_b32 s4, s2, 7"); a("s_lshl_b32 s4, s4, 5"); a("s_lshr_b32 s2, s2, 3"); a("s_or_b32 s2, s2, s4")
    prologue(a)
    ln1(a)
    st(a, "LN1 done (stores issued)", 250)
    a("s_and_b32 s60, s2, 3")
    a("s_lshl_b32 s60, s60, 6")
    arrive(a, 8, 60)
    st(a, "B1 arrived", 250)
    touch_point(a, 0)
    kgen(a)
    st(a, "Kgen done", 250)
    a("s_mov_b32 s60, 0")
    poll_wg(a, 8, 60, 4, 6, 64)
    st(a, "B1 passed", 250)
    conv_load_u(a)
    conv_main(a)
    st(a, "conv epilogue done (stores issued)")
    a("s_and_b32 s60, s2, 7")
    a("s_lshl_b32 s60, s60, 7")
    a(f"s_add_u32 s60, s60, {SYNC_OFF + C_B2*128}")
    arrive(a, 6, 60)
    st(a, "B2 arrived")
    ring_base(a, 32768, 0)
    woff_init(a, 1, S_FJ)
    lA = newlbl("sa")
    a("s_cmp_ge_u32 s2, 224")
    a(f"s_cbranch_scc1 {lA}")
    dma_issue(a, 1, 16, 0)
    a.label(lA)
    st(a, "w1 DMA A issued")
    a(f"s_mov_b32 s60, {SYNC_OFF + C_B2*128}")
    poll_wg(a, 6, 60, 8, 7, 32)
    st(a, "B2 passed")
    ln2_loads(a)
    lB = newlbl("sb")
    a("s_waitcnt vmcnt(2)")
    a("s_cmp_ge_u32 s2, 224")
    a(f"s_cbranch_scc1 {lB}")
    tr_to_acc(a, 1, range(16), 0)
    a.label(lB)
    ln2_compute(a)
    st(a, "LN2 done (stores issued)")
    a(f"s_lshr_b32 s60, s{S_TB}, 5")
    a("s_lshl_b32 s60, s60, 7")
    a(f"s_add_u32 s60, s60, {SYNC_OFF + C_B3*128}")
    arrive(a, 6, 60)
    st(a, "B3 arrived")
    gemm_lane_consts(a)
    a("s_cmp_ge_u32 s2, 224")
    a("s_cbranch_scc1 L_skipG1")
    a("s_waitcnt lgkmcnt(0)")
    dma_issue(a, 1, 16, 0)
    a("s_waitcnt vmcnt(16)")
    tr_to_acc(a, 1, range(16, 24), 0)
    a("s_waitcnt vmcnt(0)")
    tr_to_acc(a, 1, range(24, 32), 8)
    a("s_waitcnt lgkmcnt(0)")
    st(a, "w1 staged")
    a(f"s_lshl_b32 s60, s{S_WAVE}, 8")
    a(f"s_add_u32 s60, s60, {SYNC_OFF + C_B3*128}")
    poll(a, 6, 60, 2, 7, 32)
    st(a, "B3 passed")
    a(f"s_mul_i32 s71, s{S_WAVE}, {32*16384}")
    a(f"s_lshl_b32 s60, s{S_T1}, 10")
    a("s_add_u32 s71, s71, s60")
    epi1_loads(a)
    main_loop(a, 1, SRD_HN, 71, D0_G1)
    st(a, "G1 main done")
    a("s_barrier")
    dma_setup(a, 2)
    ring_base(a, 12 * 2048, RED_BYTES)
    woff_init(a, 2, S_SJ)
    reduce_write(a)
    dma_issue(a, 2, 12, 0)
    a("s_waitcnt lgkmcnt(0)")
    a("s_barrier")
    st(a, "G1 reduce written + w2 DMA A issued")
    epi1(a)
    st(a, "epi1 done (stores issued)")
    a(f"s_lshl_b32 s60, s{S_T1}, 7")
    a(f"s_add_u32 s60, s60, {SYNC_OFF + C_B4*128}")
    arrive(a, 6, 60)
    st(a, "B4 arrived")
    a("s_branch L_stage2")
    a.label("L_skipG1")
    dma_setup(a, 2)
    ring_base(a, 12 * 2048, RED_BYTES)
    woff_init(a, 2, S_SJ)
    dma_issue(a, 2, 12, 0)
    a("s_waitcnt vmcnt(0)")
    a("s_barrier")
    a.label("L_stage2")
    tr_to_acc(a, 2, range(12), 0)
    a("s_waitcnt lgkmcnt(0)")
    a("s_barrier")
    ring_base(a, 32768, 0)
    dma_issue(a, 2, 16, 0)
    a("s_waitcnt vmcnt(16)")
    tr_to_acc(a, 2, range(12, 20), 0)
    a("s_waitcnt vmcnt(0)")
    tr_to_acc(a, 2, range(20, 28), 8)
    a("s_waitcnt lgkmcnt(0)")
    a(f"s_lshl_b32 s60, s{S_T2}, 7")
    a(f"s_add_u32 s60, s60, {SYNC_OFF + C_B4*128}")
    st(a, "w2 staged")
    poll(a, 6, 60, 1, 7, 28)
    st(a, "B4 passed")
    a(f"s_mul_i32 s71, s{S_WAVE}, {28*16384}")
    a(f"s_lshl_b32 s60, s{S_T2}, 10")
    a("s_add_u32 s71, s71, s60")
    epi2_loads(a)
    main_loop(a, 2, SRD_G2, 71, D0_G2)
    st(a, "G2 main done")
    a("s_barrier")
    reduce_write(a)
    a("s_waitcnt lgkmcnt(0)")
    a("s_barrier")
    epi2(a)
    a("s_waitcnt vmcnt(0)") if STAMPON() else None
    st(a, "end", final=True)
    a.label("L_exit")
    a("s_endpgm")
    return kernel_desc(KNAME, 512, 100, accum=256)

V_TW1, V_TW2 = 243, 244
def touch_setup(a):
    a("s_and_b32 s60, s2, 7")
    a("s_lshr_b32 s60, s60, 1")
    a("s_lshr_b32 s61, s2, 3")
    a(f"s_and_b32 s62, s{S_WAVE}, 1")
    a("s_lshl_b32 s62, s62, 9")
    a("s_lshl_b32 s63, s61, 6")
    a(f"v_add_u32 v{V_TW1}, s63, v2")
    a(f"v_mul_u32_u24 v{V_TW1}, 3584, v{V_TW1}")
    a("s_mul_i32 s63, s60, 896")
    a("s_add_u32 s63, s63, s62")
    a(f"v_add_u32 v{V_TW1}, s63, v{V_TW1}")
    a("s_mul_i32 s63, s61, 56")
    a(f"v_min_u32 v{V_TW2}, 55, v2")
    a(f"v_add_u32 v{V_TW2}, s63, v{V_TW2}")
    a(f"v_lshlrev_b32 v{V_TW2}, 12, v{V_TW2}")
    a("s_lshl_b32 s63, s60, 10")
    a("s_add_u32 s63, s63, s62")
    a(f"v_add_u32 v{V_TW2}, s63, v{V_TW2}")

def touch_point(a, i):
    if not TOUCH: return
    l = newlbl("tp")
    a(f"s_cmp_lt_u32 s{S_WAVE}, 2")
    a(f"s_cbranch_scc1 {l}")
    if i < 4: a(f"buffer_load_dword v255, v{V_TW1}, s[{SRD_W1}:{SRD_W1+3}], 0 offen offset:{128*i}")
    else: a(f"buffer_load_dword v255, v{V_TW2}, s[{SRD_W2}:{SRD_W2+3}], 0 offen offset:{128*(i-4)}")
    a.label(l)

def build(path):
    a = Asm()
    hdr = open("cdna_kernels/" + NAME + ".s.ref").read().split("; Override launch geometry")[0]
    txt = hdr + f"; @launch grid=(256,1,1) block=(256,1,1) lds={LDS_TOTAL}\n" + '.amdgcn_target "amdgcn-amd-amdhsa--gfx950"\n'
    d = gen_fused(a)
    txt += a.finalize() + d
    open(path, "w").write(txt)
    open(path + ".names", "w").write("".join(f"{k} {v}\n" for k, v in ST_NAMES.items()))

if __name__ == "__main__":
    import sys, common
    if "--stamp" in sys.argv:
        common.STAMP = True; sys.argv.remove("--stamp")
    if "--notouch" in sys.argv: TOUCH = False
    if "--remap" in sys.argv: REMAP = True
    if "--dbgst" in sys.argv:
        DBGST = ["LN1 done (stores issued)", "B1 arrived", "Kgen done", "B1 passed", "conv start (U in LDS)", "conv main done", "B2 arrived", "B2 passed",
                 "LN2 done (stores issued)", "B3 passed", "G1 main done", "B4 arrived", "B4 passed", "G2 main done", "end"]
    build(sys.argv[1])
```

```python
import re

REG_RE = re.compile(r'^(-|abs\()?\s*([vas])(\d+|\[(\d+):(\d+)\])\)?$')

def parse_reg(tok):
    tok = tok.strip()
    if tok.startswith('-'): tok = tok[1:]
    if tok.startswith('abs(') and tok.endswith(')'): tok = tok[4:-1]
    if tok.startswith('|') and tok.endswith('|'): tok = tok[1:-1]
    if tok == 'vcc': return [('s', 106), ('s', 107)]
    if tok == 'vcc_lo': return [('s', 106)]
    if tok == 'vcc_hi': return [('s', 107)]
    if tok == 'exec': return [('s', 126), ('s', 127)]
    if tok == 'exec_lo': return [('s', 126)]
    if tok == 'exec_hi': return [('s', 127)]
    if tok == 'm0': return [('s', 124)]
    m = re.match(r'^([vas])(\d+)$', tok)
    if m: return [(m.group(1), int(m.group(2)))]
    m = re.match(r'^([vas])\[(\d+):(\d+)\]$', tok)
    if m: return [(m.group(1), i) for i in range(int(m.group(2)), int(m.group(3)) + 1)]
    return []

TRANS = ('v_exp_f32', 'v_log_f32', 'v_rcp_f32', 'v_rsq_f32', 'v_sqrt_f32', 'v_sin_f32', 'v_cos_f32', 'v_rcp_iflag_f32')

class Ins:
    def __init__(self, text):
        self.text = text
        t = text.split(';')[0].strip()
        self.is_label = t.endswith(':')
        self.is_dir = t.startswith('.') and not self.is_label
        self.empty = (t == '')
        self.op = ''
        self.ops = []
        self.mods = ''
        if self.is_label or self.is_dir or self.empty:
            self.label = t[:-1] if self.is_label else None
            return
        parts = t.split(None, 1)
        self.op = parts[0]
        rest = parts[1] if len(parts) > 1 else ''
        toks, depth, cur = [], 0, ''
        for ch in rest:
            if ch in '[(': depth += 1
            if ch in '])': depth -= 1
            if ch == ',' and depth == 0:
                toks.append(cur.strip()); cur = ''
            else: cur += ch
        if cur.strip(): toks.append(cur.strip())
        if toks:
            last = toks[-1].split(None, 1)
            toks[-1] = last[0]
            self.mods = last[1] if len(last) > 1 else ''
        self.ops = toks
        self.classify()

    def classify(self):
        op, ops = self.op, self.ops
        R = lambda i: parse_reg(ops[i]) if i < len(ops) else []
        allr = lambda a: [r for i in a for r in R(i)]
        n = len(ops)
        self.kind = 'other'
        self.wr, self.rd = [], []
        self.srcC = []; self.srcAB = []
        self.dpp = ('row_' in self.mods or 'quad_perm' in self.mods or 'wave_' in self.mods or op.endswith('_dpp'))
        base = re.sub(r'_(e32|e64|dpp|sdwa)$', '', op)
        self.base = base
        if op.startswith('v_mfma'):
            self.kind = 'mfma'
            self.wr = R(0); self.srcAB = R(1) + R(2); self.srcC = R(3); self.rd = self.srcAB + self.srcC
            self.passes = 8 if '32x32' in op else 4
        elif op.startswith('v_'):
            self.kind = 'valu'
            if base.startswith('v_cmpx'):
                self.wr = R(0) + [('s', 126), ('s', 127)]; self.rd = allr(range(1, n))
            elif base.startswith('v_cmp'):
                self.wr = R(0); self.rd = allr(range(1, n))
            elif base in ('v_readlane_b32', 'v_readfirstlane_b32'):
                self.wr = R(0); self.rd = allr(range(1, n))
            elif base in ('v_permlane32_swap_b32', 'v_permlane16_swap_b32', 'v_swap_b32'):
                self.wr = R(0) + R(1); self.rd = R(0) + R(1)
            elif base in ('v_add_co_u32', 'v_sub_co_u32', 'v_subrev_co_u32'):
                self.wr = R(0) + R(1); self.rd = allr(range(2, n))
            elif base in ('v_addc_co_u32', 'v_subb_co_u32'):
                self.wr = R(0) + R(1); self.rd = allr(range(2, n))
            elif base in ('v_fmac_f32', 'v_dot2c_f32_bf16', 'v_pk_fmac_f16', 'v_writelane_b32', 'v_fmac_f16'):
                self.wr = R(0); self.rd = allr(range(0, n))
            elif base == 'v_cndmask_b32':
                self.wr = R(0); self.rd = allr(range(1, n))
                if n == 3: self.rd += parse_reg('vcc')
            elif base == 'v_nop':
                pass
            else:
                self.wr = R(0); self.rd = allr(range(1, n))
                if 'dst_unused:UNUSED_PRESERVE' in self.mods or self.dpp: self.rd += R(0)
            self.trans = base in TRANS
        elif op.startswith('ds_'):
            self.kind = 'ds'
            if op.startswith('ds_read') or op.startswith('ds_bpermute') or op.startswith('ds_permute') or op.startswith('ds_swizzle'):
                self.wr = R(0); self.rd = allr(range(1, n))
                if 'd16' in op: self.rd += R(0)
            else:
                self.rd = allr(range(0, n))
        elif op.startswith('buffer_') or op.startswith('global_'):
            self.kind = 'vmem'
            lds = (' lds' in (' ' + self.mods)) or ('_lds_' in op)
            self.lds = lds
            self.store = ('store' in op) or ('atomic' in op)
            if op in ('buffer_inv', 'buffer_wbl2'):
                pass
            elif op.startswith('buffer_'):
                if lds: self.rd = allr(range(0, n)) + [('s', 124)]
                elif 'load' in op:
                    self.wr = R(0); self.rd = allr(range(1, n))
                    if 'd16' in op: self.rd += R(0)
                else:
                    self.rd = allr(range(0, n)); self.data = R(0)
                    if 'atomic' in op and 'sc0' in self.mods: self.wr = R(0)
            else:
                if lds: self.rd = allr(range(0, n)) + [('s', 124)]
                elif 'load' in op:
                    self.wr = R(0); self.rd = allr(range(1, n))
                    if 'd16' in op: self.rd += R(0)
                elif 'atomic' in op and 'sc0' in self.mods:
                    self.wr = R(0); self.rd = allr(range(1, n)); self.data = R(2)
                else:
                    self.rd = allr(range(0, n)); self.data = R(1)
            self.wide_store = self.store and ('x4' in op or 'x3' in op)
        elif op.startswith('s_'):
            self.kind = 'salu'
            if op in ('s_nop', 's_waitcnt', 's_barrier', 's_endpgm', 's_branch', 's_sleep', 's_setprio') or op.startswith('s_cbranch'):
                if op == 's_cbranch_vccz' or op == 's_cbranch_vccnz': self.rd = parse_reg('vcc')
                if op == 's_cbranch_execz' or op == 's_cbranch_execnz': self.rd = parse_reg('exec')
            elif op.startswith('s_cmp') or op.startswith('s_bitcmp'):
                self.rd = allr(range(0, n))
            elif op.startswith('s_load') or op.startswith('s_buffer_load') or op in ('s_memtime', 's_memrealtime'):
                self.kind = 'smem'; self.wr = R(0); self.rd = allr(range(1, n))
            elif 'saveexec' in op:
                self.wr = R(0) + parse_reg('exec'); self.rd = allr(range(1, n)) + parse_reg('exec')
            else:
                self.wr = R(0); self.rd = allr(range(1, n))
                if op in ('s_addk_i32', 's_mulk_i32'): self.rd += R(0)

    def states(self):
        if self.is_label or self.is_dir or self.empty: return 0
        if self.op == 's_nop': return int(self.ops[0], 0) + 1
        return 1

def need(prod, cons):
    n = 0
    pw = set(prod.wr); cr = set(cons.rd); cw = set(cons.wr)
    isv = lambda r: r[0] in 'va'
    if prod.kind == 'valu':
        vw = {r for r in pw if isv(r)}
        sw = {r for r in pw if r[0] == 's'}
        if cons.kind == 'mfma' and vw & cr: n = max(n, 2)
        if cons.kind == 'valu':
            if cons.base.startswith('v_permlane') and vw & cr: n = max(n, 2)
            if cons.dpp and vw & cr: n = max(n, 2)
            if cons.base in ('v_readlane_b32', 'v_readfirstlane_b32') and vw & cr: n = max(n, 1)
            if prod.trans and not cons.trans and vw & cr: n = max(n, 1)
            if prod.trans and cons.trans and vw & cr: n = max(n, 1)
            if sw & cr:
                if cons.base in ('v_readlane_b32', 'v_writelane_b32'): n = max(n, 4)
                else: n = max(n, 2)
            if 'sdwa' in prod.op or 'op_sel' in prod.mods and not prod.op.startswith('v_pk'):
                if vw & (cr | cw): n = max(n, 1)
            if ('s', 126) in sw:
                if cons.dpp: n = max(n, 5)
                if cons.base in ('v_readlane_b32', 'v_readfirstlane_b32', 'v_writelane_b32') or cons.base.startswith('v_permlane'): n = max(n, 4)
        if cons.kind == 'mfma' and ('s', 126) in sw: n = max(n, 4)
        if cons.kind == 'vmem' and sw & cr: n = max(n, 5)
        if cons.kind == 'salu' and sw & cr:
            if cons.op in ('s_cbranch_vccz', 's_cbranch_vccnz', 's_cbranch_execz', 's_cbranch_execnz'): n = max(n, 5)
            else: n = max(n, 3)
        if cons.kind == 'smem' and sw & cr: n = max(n, 5)
    if prod.kind == 'mfma':
        p = prod.passes
        d = pw
        if cons.kind == 'mfma':
            if d & set(cons.srcAB): n = max(n, 8 if p == 4 else 12)
            c = set(cons.srcC)
            if d & c:
                if c == d and cons.passes == p: pass
                else: n = max(n, 6 if p == 4 else 10)
            if (d & cw) and not (cw == d and set(cons.srcC) == d):
                n = max(n, 6 if p == 4 else 10)
        elif cons.kind in ('valu', 'vmem', 'ds'):
            if d & (cr | cw): n = max(n, 8 if p == 4 else 12)
        if cons.kind == 'valu' and set(prod.srcC) & cw: n = max(n, 3 if p == 4 else 7)
    if prod.kind == 'vmem' and getattr(prod, 'wide_store', False):
        dd = set(prod.data)
        if dd & cw: n = max(n, 2 if cons.kind == 'valu' else 1)
    if prod.kind == 'salu':
        if ('s', 124) in pw and cons.kind == 'vmem' and getattr(cons, 'lds', False): n = max(n, 1)
        if ('s', 126) in pw or ('s', 127) in pw:
            if cons.kind == 'valu' and (cons.dpp or cons.base.startswith('v_permlane')): n = max(n, 2)
            if cons.kind == 'mfma': n = max(n, 2)
    return n

WINDOW = 20

class Asm:
    def __init__(self):
        self.lines = []
    def __call__(self, s):
        for l in s.split('\n'):
            l = l.strip()
            if l: self.lines.append(l)
    def label(self, name): self.lines.append(name + ':')
    def comment(self, s): self.lines.append('; ' + s)

    def finalize(self):
        ins = [Ins(l) for l in self.lines]
        out = []
        def dist_need(hist, c):
            extra = 0; d = 0
            for p in reversed(hist):
                if p.is_label or p.is_dir or p.empty: continue
                r = need(p, c)
                if r > d: extra = max(extra, r - d)
                d += p.states()
                if d > WINDOW: break
            return extra
        for c in ins:
            if not (c.is_label or c.is_dir or c.empty):
                e = dist_need(out[-60:], c)
                while e > 0:
                    k = min(e, 16)
                    out.append(Ins('s_nop %d' % (k - 1))); e -= k
            out.append(c)
        labels = {c.label: i for i, c in enumerate(out) if c.is_label}
        errs = []
        for i, c in enumerate(out):
            if c.op.startswith('s_cbranch') or c.op == 's_branch':
                tgt = c.ops[0]
                if tgt not in labels: continue
                j = labels[tgt]
                hist = [x for x in out[max(0, i - 60):i + 1]]
                k = j
                cnt = 0
                while k < len(out) and cnt < WINDOW:
                    x = out[k]
                    if not (x.is_label or x.is_dir or x.empty):
                        e = dist_need(hist, x)
                        if e > 0: errs.append('hazard across branch %s -> %s at "%s": needs %d more' % (c.text, tgt, x.text, e))
                        cnt += x.states()
                        if x.op in ('s_endpgm', 's_branch'): break
                    hist.append(x); k += 1
        if errs: raise RuntimeError('\n'.join(errs))
        return '\n'.join(('' if (x.is_label or x.is_dir) else '    ') + x.text for x in out) + '\n'

import subprocess, tempfile, os
PROMO = ('v_mov_b32', 'v_add_u32', 'v_sub_u32', 'v_subrev_u32', 'v_lshlrev_b32', 'v_lshrrev_b32', 'v_and_b32', 'v_or_b32', 'v_xor_b32',
         'v_mul_f32', 'v_add_f32', 'v_sub_f32', 'v_max_f32', 'v_min_f32', 'v_cvt_f32_u32', 'v_cvt_u32_f32', 'v_exp_f32', 'v_rcp_f32', 'v_sqrt_f32',
         'v_sin_f32', 'v_cos_f32', 'v_rndne_f32', 'v_fmac_f32', 'v_mul_u32_u24', 'v_min_u32', 'v_cvt_f32_f16')

def inst_sizes(text):
    with tempfile.TemporaryDirectory() as d:
        p = os.path.join(d, 't.s'); o = os.path.join(d, 't.o')
        open(p, 'w').write('.amdgcn_target "amdgcn-amd-amdhsa--gfx950"\n' + text)
        r = subprocess.run(['clang', '-x', 'assembler', '-target', 'amdgcn-amd-amdhsa', '-mcpu=gfx950', '-c', p, '-o', o], capture_output=True, text=True)
        assert r.returncode == 0, r.stderr[:2000]
        dis = subprocess.run(['llvm-objdump', '-d', '--mcpu=gfx950', o], capture_output=True, text=True).stdout
    out = []
    for l in dis.split('\n'):
        m = re.search(r'// ([0-9A-F]{12}): ([0-9A-F ]+)$', l.strip())
        if m: out.append(4 * len(m.group(2).split()))
    return out

def align8(text, min_run=5):
    lines = text.split('\n')
    idx = [i for i, l in enumerate(lines) if l.strip() and not l.strip().endswith(':') and not l.strip().startswith('.') and not l.strip().startswith(';')]
    sizes = inst_sizes(text)
    assert len(sizes) == len(idx), (len(sizes), len(idx))
    addr = 0
    out_ins = {}
    k = 0
    n = len(idx)
    promoted = nops = 0
    while k < n:
        sz = sizes[k]
        if sz >= 8 and addr % 8 == 4:
            pk = k - 1
            prev = lines[idx[pk]].strip() if pk >= 0 else ''
            op = prev.split()[0] if prev else ''
            contiguous = pk >= 0 and all(not lines[j].strip().endswith(':') for j in range(idx[pk] + 1, idx[k]))
            run = 0
            while k + run < n and sizes[k + run] >= 8: run += 1
            if contiguous and sizes[pk] == 4 and op in PROMO and 'dpp' not in prev and 'sdwa' not in prev and run >= 1:
                lines[idx[pk]] = lines[idx[pk]].replace(op, op + '_e64', 1)
                addr += 4; promoted += 1
            elif run >= min_run and not lines[idx[k]].strip().startswith(('v_mfma', 'ds_', 'buffer_', 'global_')):
                out_ins[idx[k]] = '    s_nop 0'
                addr += 4; nops += 1
        addr += sz
        k += 1
    res = []
    for i, l in enumerate(lines):
        if i in out_ins: res.append(out_ins[i])
        res.append(l)
    return '\n'.join(res), promoted, nops
```

```python
from common import *
from k1 import cmul, wave_max, G_ROW, H_BASE, FT_BASE, FT_DUMMY
import struct

KNAME = NAME + "_kernel"
KG_CH = 27984 + 5888
KC_BASE = 2 * KG_CH
KC_STRIDE = 4160
KCH = 4 * KC_STRIDE
U_BASE = KC_BASE + 2 * KCH
U_CH = 95 * 80
LDS_TOTAL = 163840
FT_ZERO = 2060
RED_BYTES = 49152
D_RING = 8
S_WAVE, S_Q0 = 10, 11
SRD_X, SRD_U2, SRD_YA, SRD_H, SRD_HN, SRD_G2, SRD_W1, SRD_W2, SRD_OUT = 12, 16, 20, 24, 28, 32, 36, 40, 44
SRD_W2R = 80
S_B1, S_B2 = 48, 50
S_SCALE, S_DSK = 52, 53
S_T1, S_FJ, S_T2, S_SJ = 54, 55, 56, 57
S_WOFF, S_RING = 58, 59
SM, SR = 84, 86
C_B2, C_B3, C_B4 = 0, 8, 16
KIDX = 0
S_TB = 5
VX = 224
V_KROW, V_KA, V_KB, V_KSC, V_KDST = 232, 233, 234, 235, 239
V_CA, V_CB = 248, 249
V_PW, V_PR, V_US = 252, 253, 254
V_TW1, V_TW2 = 1, 30
PL = 116224
PL1 = PL2 = 0
YB = 16384

ST_NAMES = {}
DBGST = None
_st = [2]
def st(a, name, vt=60, final=False):
    if DBGST is not None:
        if name in DBGST:
            k = DBGST.index(name) + 1
            l = newlbl("ds")
            a("s_memrealtime s[96:97]")
            a(f"s_or_b32 s94, s2, s{S_WAVE}")
            a("s_cmp_lg_u32 s94, 0")
            a("s_waitcnt lgkmcnt(0)")
            a(f"s_cbranch_scc1 {l}")
            a("s_sub_u32 s96, s96, s98")
            a(f"v_mov_b32 v{vt}, {4*k}")
            a(f"v_mov_b32 v{vt+1}, s96")
            a(f"global_store_dword v{vt}, v{vt+1}, s[8:9]")
            a.label(l)
        return
    slot = 1 if final else _st[0]
    if not final: _st[0] += 1
    ST_NAMES[slot] = name
    stamp(a, KIDX, slot, 6, vt)

def evalE(a, D, v, zr, zi, t, conj=False):
    bits = struct.unpack('<I', struct.pack('<f', float(v)))[0]
    a(f"s_mov_b32 s78, {hex(bits)}")
    a(f"v_mul_f32 v{t}, s78, v{zr}")
    a(f"v_mul_f32 v{t+1}, s78, v{zi}")
    a(f"v_exp_f32 v{t}, v{t}")
    a(f"v_rndne_f32 v{t+2}, v{t+1}")
    a(f"v_sub_f32 v{t+1}, v{t+1}, v{t+2}")
    a(f"v_cos_f32 v{D}, v{t+1}")
    a(f"v_sin_f32 v{D+1}, v{t+1}")
    a(f"v_mul_f32 v{D}, v{D}, v{t}")
    if conj: a(f"v_mul_f32 v{D+1}, -v{D+1}, v{t}")
    else: a(f"v_mul_f32 v{D+1}, v{D+1}, v{t}")

def pos2chan(a, sd, sq, t):
    a(f"s_and_b32 s{sd}, s{sq}, 0x1c0")
    a(f"s_and_b32 s{t}, s{sq}, 7")
    a(f"s_lshl_b32 s{t}, s{t}, 3")
    a(f"s_or_b32 s{sd}, s{sd}, s{t}")
    a(f"s_lshr_b32 s{t}, s{sq}, 3")
    a(f"s_and_b32 s{t}, s{t}, 7")
    a(f"s_or_b32 s{sd}, s{sd}, s{t}")

_lbl = [0]
def newlbl(p):
    _lbl[0] += 1
    return f"L_{p}{_lbl[0]}"

def arrive(a, base_sgpr_pair, off_sgpr, lo_only=False):
    if lo_only:
        l0 = newlbl("ad")
        a(f"s_cmp_ge_u32 s{S_WAVE}, 2")
        a(f"s_cbranch_scc1 {l0}")
        a("s_waitcnt vmcnt(0)")
        a.label(l0)
    else:
        a("s_waitcnt vmcnt(0)")
    a("s_barrier")
    l = newlbl("arr")
    a(f"s_cmp_lg_u32 s{S_WAVE}, 0")
    a(f"s_cbranch_scc1 {l}")
    a(f"v_mov_b32 v13, s{off_sgpr}")
    a("v_mov_b32 v14, 1")
    a("s_mov_b64 s[62:63], exec")
    a("s_mov_b64 exec, 1")
    a(f"global_atomic_add v13, v14, s[{base_sgpr_pair}:{base_sgpr_pair+1}] sc1")
    a("s_mov_b64 exec, s[62:63]")
    a.label(l)

def poll(a, base_sgpr_pair, off_sgpr, n, stride_log2, target):
    l = newlbl("poll")
    a(f"v_and_b32 v13, {n-1}, v2")
    a(f"v_lshlrev_b32 v13, {stride_log2}, v13")
    a(f"v_add_u32 v13, s{off_sgpr}, v13")
    a("s_mov_b32 s61, 0")
    a.label(l)
    a(f"global_load_dword v14, v13, s[{base_sgpr_pair}:{base_sgpr_pair+1}] sc1")
    a("s_waitcnt vmcnt(0)")
    a(f"v_cmp_gt_u32 vcc, {target}, v14")
    a("s_add_u32 s61, s61, 1")
    a(f"s_cbranch_vccz {l}_done")
    a("s_cmp_lt_u32 s61, 0x40000")
    a(f"s_cbranch_scc1 {l}")
    a.label(l + "_done")

def poll_wg(a, base_sgpr_pair, off_sgpr, n, stride_log2, target):
    l = newlbl("pw")
    a(f"s_cmp_lg_u32 s{S_WAVE}, 0")
    a(f"s_cbranch_scc1 {l}")
    poll(a, base_sgpr_pair, off_sgpr, n, stride_log2, target)
    a.label(l)
    a("s_barrier")

def prologue(a):
    a("s_load_dwordx16 s[64:79], s[0:1], 0")
    a("s_load_dwordx2 s[88:89], s[0:1], 64")
    a("s_load_dwordx4 s[80:83], s[0:1], 80")
    a("s_load_dwordx4 s[84:87], s[0:1], 96")
    a("s_load_dwordx4 s[60:63], s[0:1], 112")
    a("s_load_dwordx2 s[6:7], s[0:1], 128")
    a("v_lshrrev_b32 v1, 6, v0")
    a("v_and_b32 v2, 63, v0")
    a(f"v_readfirstlane_b32 s{S_WAVE}, v1")
    a("s_and_b32 s54, s2, 7")
    a("s_lshl_b32 s54, s54, 5")
    a("s_lshr_b32 s55, s2, 3")
    a(f"s_add_u32 s{S_TB}, s54, s55")
    a(f"s_lshl_b32 s{S_Q0}, s{S_TB}, 1")
    a(f"s_lshr_b32 s55, s{S_WAVE}, 1")
    a(f"s_add_u32 s56, s{S_Q0}, s55")
    pos2chan(a, 57, 56, 58)
    a("v_lshlrev_b32 v3, 4, v2")
    a(f"s_lshl_b32 s58, s{S_TB}, 13")
    a(f"s_lshl_b32 s59, s{S_WAVE}, 11")
    a("s_add_u32 s59, s59, s58")
    a(f"s_and_b32 s54, s{S_WAVE}, 1")
    a("s_lshl_b32 s54, s54, 7")
    a("s_lshl_b32 s55, s57, 8")
    a("s_add_u32 s54, s54, s55")
    a("v_lshl_add_u32 v12, v2, 1, s54")
    a("v_xor_b32 v13, 128, v12")
    a("s_waitcnt lgkmcnt(0)")
    stamp(a, KIDX, 0, 6, 250, first=True)
    srd(a, SRD_X, 64, 65, 0, 0x200000)
    a(f"buffer_load_dwordx4 v[{VX}:{VX+3}], v3, s[{SRD_X}:{SRD_X+3}], s59 offen")
    a(f"buffer_load_dwordx4 v[{VX+4}:{VX+7}], v3, s[{SRD_X}:{SRD_X+3}], s59 offen offset:1024")
    a("global_load_ushort v200, v12, s[66:67]")
    a("global_load_ushort v201, v12, s[68:69]")
    a("global_load_ushort v202, v12, s[70:71]")
    a("global_load_ushort v203, v12, s[72:73]")
    a("global_load_ushort v204, v12, s[74:75]")
    a("global_load_ushort v205, v12, s[76:77]")
    a("global_load_ushort v206, v13, s[70:71]")
    a("global_load_ushort v207, v13, s[72:73]")
    a("global_load_ushort v208, v13, s[74:75]")
    a("global_load_ushort v209, v13, s[76:77]")
    a("s_lshl_b32 s54, s57, 1")
    a("s_and_b32 s54, s54, 0xfffffffc")
    a("s_load_dword s52, s[78:79], s54")
    a("s_load_dword s53, s[88:89], s54")
    a("s_and_b32 s91, s57, 1")
    a(f"s_mov_b32 s8, s62"); a("s_mov_b32 s9, s63")
    srd(a, SRD_OUT, 60, 61, 0, 0x200000)
    srd(a, SRD_U2, 6, 7, U2_OFF, U2_SZ)
    srd(a, SRD_YA, 6, 7, YA_OFF, YA_SZ)
    srd(a, SRD_H, 6, 7, H_OFF, H_SZ)
    srd(a, SRD_HN, 6, 7, HN_OFF, HN_SZ)
    srd(a, SRD_G2, 6, 7, G2_OFF, G2_SZ)
    srd(a, SRD_W1, 80, 81, 0, 2048 * 3584)
    srd(a, SRD_W2, 84, 85, 0, 2048 * 3584)
    a(f"s_mov_b32 s{S_B1}, s82"); a(f"s_mov_b32 s{S_B1+1}, s83")
    a(f"s_mov_b32 s{S_B2}, s86"); a(f"s_mov_b32 s{S_B2+1}, s87")
    srd(a, SRD_W2R, 6, 7, W2R_OFF, W2R_SZ)
    l = newlbl("z")
    a(f"s_or_b32 s54, s2, s{S_WAVE}")
    a("s_cmp_lg_u32 s54, 0")
    a(f"s_cbranch_scc1 {l}")
    a("v_lshlrev_b32 v14, 7, v2")
    a(f"v_add_u32 v14, {SYNC_OFF}, v14")
    a("v_mov_b32 v15, 0")
    a("global_store_dword v14, v15, s[6:7] sc1")
    a.label(l)
    if CODEPF:
        l = newlbl("cpf")
        a(f"s_cmp_lg_u32 s{S_WAVE}, 3")
        a(f"s_cbranch_scc1 {l}")
        a("s_getpc_b64 s[54:55]")
        a.label("L_pcbase")
        a("v_lshlrev_b32 v14, 7, v2")
        a("s_mov_b32 s56, L_exit-L_pcbase")
        for k in range(4):
            a("v_min_u32 v15, s56, v14")
            a(f"global_load_dword v255, v15, s[54:55]")
            if k < 3: a("v_add_u32 v14, 8192, v14")
        a.label(l)
    touch_setup(a)
    bulk(a, "P0")
    precompute(a)
    a("s_cmp_eq_u32 s91, 1")
    a("s_cselect_b32 s60, 0, 16")
    a("s_waitcnt lgkmcnt(0)")
    a("s_lshl_b32 s52, s52, s60"); a("s_and_b32 s52, s52, 0xffff0000")
    a("s_lshl_b32 s53, s53, s60"); a("s_and_b32 s53, s53, 0xffff0000")

def precompute(a):
    a("v_lshrrev_b32 v4, 3, v2")
    a("v_mul_u32_u24 v4, 72, v4")
    a("v_and_b32 v5, 7, v2")
    a("v_add_u32 v4, v4, v5")
    a(f"s_mul_i32 s54, s{S_WAVE}, 576")
    a("v_add_u32 v4, s54, v4")
    a(f"v_lshlrev_b32 v{V_PW}, 2, v4")
    a(f"v_add_u32 v{V_PW}, {PL}, v{V_PW}")
    a(f"s_mul_i32 s54, s{S_WAVE}, 72")
    a("v_add_u32 v4, s54, v2")
    a(f"v_lshlrev_b32 v{V_PR}, 2, v4")
    a(f"v_add_u32 v{V_PR}, {PL}, v{V_PR}")
    a(f"v_lshlrev_b32 v{V_US}, 4, v0")
    a(f"s_lshr_b32 s60, s{S_WAVE}, 1")
    a(f"s_mul_i32 s60, s60, {KG_CH}")
    a(f"s_and_b32 s62, s{S_WAVE}, 1")
    a("s_lshl_b32 s61, s62, 8")
    a("s_add_u32 s61, s61, s60")
    a(f"v_lshl_add_u32 v{V_KROW}, v2, 2, s61")
    a("v_and_b32 v7, 15, v2")
    a("v_lshrrev_b32 v8, 4, v2")
    a(f"v_mul_u32_u24 v9, {G_ROW}, v7")
    a("v_lshl_add_u32 v9, v8, 4, v9")
    a(f"s_mul_i32 s63, s62, {16*G_ROW}")
    a("s_add_u32 s63, s63, s60")
    a(f"v_add_u32 v{V_KA}, s63, v9")
    a(f"s_add_u32 s63, s60, {H_BASE}")
    a(f"v_add_u32 v{V_KB}, s63, v9")
    a("v_lshlrev_b32 v16, 3, v7")
    a(f"s_add_u32 s63, s60, {FT_BASE}")
    a(f"s_movk_i32 s54, {FT_DUMMY}")
    a("v_cmp_eq_u32 s[56:57], 1, v8")
    a("v_cmp_eq_u32 s[58:59], 2, v8")
    a("v_cmp_eq_u32 vcc, 3, v8")
    for r in range(4):
        m0_q2 = 256 + 2 * r
        m0_q3 = 512 + 4 * (r & 1) + 256 * (r >> 1)
        m1_q0 = 1024 + 256 * r
        m1_q1 = 2048 if r == 0 else FT_DUMMY
        R = V_KSC + r
        a("s_cmp_eq_u32 s62, 0")
        a(f"s_cselect_b32 s55, {r}, {m1_q0}")
        a(f"v_mov_b32 v{R}, s55")
        a(f"s_cselect_b32 s55, {4+r}, {m1_q1}")
        a("v_mov_b32 v18, s55")
        a(f"v_cndmask_b32 v{R}, v{R}, v18, s[56:57]")
        a(f"s_cselect_b32 s55, {m0_q2}, s54")
        a("v_mov_b32 v18, s55")
        a(f"v_cndmask_b32 v{R}, v{R}, v18, s[58:59]")
        a(f"s_cselect_b32 s55, {m0_q3}, s54")
        a("v_mov_b32 v18, s55")
        a(f"v_cndmask_b32 v{R}, v{R}, v18, vcc")
        a(f"v_add_u32 v{R}, v{R}, v16")
        a(f"v_lshrrev_b32 v18, 4, v{R}")
        a(f"v_lshlrev_b32 v18, 2, v18")
        a(f"v_lshl_add_u32 v{R}, v{R}, 1, v18")
        a(f"v_add_u32 v{R}, s63, v{R}")
    a("s_lshl_b32 s55, s62, 6")
    a("v_add_u32 v19, s55, v2")
    a("v_lshlrev_b32 v100, 5, v19")
    a("v_sub_u32 v100, 4094, v100")
    NE = 19
    for e in range(NE):
        a(f"v_subrev_u32 v{104+e}, {2*e}, v100")
        a(f"v_cvt_f32_u32 v{104+e}, v{104+e}")
    for e in range(0, NE + 1, 2):
        e2 = min(e + 1, NE - 1)
        a(f"v_cvt_pk_bf16_f32 v{124+e//2}, v{104+e}, v{104+e2}")
    for e in range(NE):
        if e % 2 == 0: a(f"v_lshlrev_b32 v{104+e}, 16, v{124+e//2}")
        else: a(f"v_and_b32 v{104+e}, 0xffff0000, v{124+e//2}")
    for e in range(NE): a(f"v_cvt_u32_f32 v{104+e}, v{104+e}")
    for e in range(16, NE): a(f"v_min_u32 v{104+e}, {2*FT_ZERO}, v{104+e}")
    for e in range(NE):
        a(f"v_lshrrev_b32 v18, 5, v{104+e}")
        a(f"v_lshl_add_u32 v{104+e}, v18, 2, v{104+e}")
        a(f"v_add_u32 v{104+e}, s63, v{104+e}")
    a(f"s_lshr_b32 s55, s{S_WAVE}, 1")
    a(f"s_mul_i32 s55, s55, {KCH}")
    a(f"s_add_u32 s55, s55, {KC_BASE}")
    a("v_lshlrev_b32 v19, 5, v19")
    a(f"v_add_u32 v{V_KDST}, s55, v19")
    bulk(a, "P1")
    a(f"s_lshr_b32 s60, s{S_WAVE}, 1")
    a(f"s_and_b32 s61, s{S_WAVE}, 1")
    a("v_and_b32 v52, 31, v2")
    a("v_lshrrev_b32 v53, 5, v2")
    a("v_and_b32 v54, 3, v52")
    a("v_sub_u32 v54, 3, v54")
    a(f"v_mul_u32_u24 v54, {KC_STRIDE}, v54")
    a("v_lshrrev_b32 v55, 2, v52")
    a("v_lshlrev_b32 v55, 3, v55")
    a("v_sub_u32 v54, v54, v55")
    a("v_lshl_add_u32 v54, v53, 4, v54")
    a(f"s_mul_i32 s62, s60, {KCH}")
    a("s_lshl_b32 s63, s61, 6")
    a("s_sub_u32 s62, s62, s63")
    a(f"s_add_u32 s62, s62, {KC_BASE + 2*2044 - 2048 - 64*30}")
    a(f"v_add_u32 v{V_CA}, s62, v54")
    a("v_mul_u32_u24 v55, 80, v52")
    a("v_lshl_add_u32 v55, v53, 4, v55")
    a(f"s_mul_i32 s62, s60, {U_CH}")
    a("s_mul_i32 s63, s61, 80")
    a("s_sub_u32 s62, s62, s63")
    a(f"s_add_u32 s62, s62, {U_BASE + 80*(31-30)}")
    a(f"v_add_u32 v{V_CB}, s62, v55")
    tile_coords(a, 1, S_T1, S_FJ)
    tile_coords(a, 2, S_T2, S_SJ)
    dma_setup(a, 1)

def planes_out(a, D, plane_base, srd_dst, T, lo_only=False):
    for c in range(8):
        a(f"ds_write_b32 v{V_PW}, v{D+c} offset:{plane_base + 32*c}")
    a("s_waitcnt lgkmcnt(0)")
    a("s_barrier")
    a(f"s_lshl_b32 s60, s{S_TB}, 13")
    if not lo_only:
        a(f"v_add_u32 v{T+8}, 1152, v{V_PR}")
        a(f"ds_read2st64_b32 v[{T}:{T+1}], v{V_PR} offset0:0 offset1:9")
        a(f"ds_read2st64_b32 v[{T+2}:{T+3}], v{V_PR} offset0:18 offset1:27")
        a(f"ds_read2st64_b32 v[{T+4}:{T+5}], v{T+8} offset0:0 offset1:9")
        a(f"ds_read2st64_b32 v[{T+6}:{T+7}], v{T+8} offset0:18 offset1:27")
        a("s_add_u32 s61, s60, 4096")
        a("s_waitcnt lgkmcnt(2)")
        a(f"buffer_store_dwordx4 v[{T}:{T+3}], v{V_US}, s[{srd_dst}:{srd_dst+3}], s60 offen sc1")
        a("s_waitcnt lgkmcnt(0)")
        a(f"buffer_store_dwordx4 v[{T+4}:{T+7}], v{V_US}, s[{srd_dst}:{srd_dst+3}], s61 offen sc1")
    else:
        l = newlbl("po")
        a(f"s_cmp_ge_u32 s{S_WAVE}, 2")
        a(f"s_cbranch_scc1 {l}")
        for k in range(4):
            a(f"v_add_u32 v{T+16}, {576*k}, v{V_PR}")
            a(f"ds_read2st64_b32 v[{T+4*k}:{T+4*k+1}], v{T+16} offset0:0 offset1:9")
            a(f"ds_read2st64_b32 v[{T+4*k+2}:{T+4*k+3}], v{T+16} offset0:18 offset1:27")
        for k in range(4):
            a(f"s_waitcnt lgkmcnt({2*(3-k)})")
            a(f"buffer_store_dwordx4 v[{T+4*k}:{T+4*k+3}], v{V_US}, s[{srd_dst}:{srd_dst+3}], s60 offen sc1")
            if k < 3: a("s_add_u32 s60, s60, 2048")
        a.label(l)

def unit_addr(a, vd, vt):
    a(f"v_lshrrev_b32 v{vd}, 3, v2")
    a(f"v_lshlrev_b32 v{vd}, 10, v{vd}")
    a(f"v_and_b32 v{vt}, 7, v2")
    a(f"v_lshl_add_u32 v{vd}, v{vt}, 4, v{vd}")

def ln1(a):
    a(f"s_mov_b32 s90, {INV512}")
    a(f"s_mov_b32 s91, {EPS}")
    a("s_waitcnt vmcnt(10)")
    unpack_pairs(a, 16, VX, VX + 4)
    pair_sums(a, 16, 8, 32, 34, 36)
    reduce4(a, 32, 33, 34, 35)
    ln_stats(a, 32, 33, 36, 37, SM, SR)
    ln_apply(a, 16, 8, SM, SR, 40)
    unpack_packed(a, 16, 8, 40)
    for c in range(8):
        a(f"v_cvt_pk_f16_f32 v{40+c}, v{16+2*c}, v{17+2*c}")
    planes_out(a, 40, PL1, SRD_U2, 48, lo_only=True)

def kgen(a):
    a(f"s_lshr_b32 s60, s{S_WAVE}, 1")
    a(f"s_mul_i32 s60, s60, {KG_CH}")
    a(f"s_mov_b32 s66, {LOG2E}")
    a(f"s_mov_b32 s67, {LOG2E_LO}")
    a(f"s_mov_b32 s68, {LN2}")
    a(f"s_mov_b32 s69, {INV2PI}")
    a("v_mov_b32 v20, s52")
    a("v_mul_f32 v21, s66, v20")
    a("v_fma_f32 v22, v20, s66, -v21")
    a("v_fmac_f32 v22, s67, v20")
    a("v_exp_f32 v21, v21")
    a("v_mul_f32 v22, s68, v22")
    a("v_fmac_f32 v21, v21, v22")
    bf16_round(a, 21, 21)
    for i in range(10): a(f"v_lshlrev_b32 v{10+i}, 16, v{200+i}")
    a("v_mul_f32 v10, v21, v10")
    a("v_mul_f32 v11, v21, v11")
    a("v_mul_f32 v10, s66, v10")
    a("v_mul_f32 v11, s69, v11")
    for (b, c0, out) in ((12, 14, 24), (16, 18, 26)):
        a(f"v_mul_f32 v{b}, v21, v{b}")
        a(f"v_mul_f32 v{b+1}, v21, v{b+1}")
        a(f"v_mul_f32 v{out}, v{c0}, v{b}")
        a(f"v_mul_f32 v{out+1}, v{c0}, v{b+1}")
        a(f"v_fma_f32 v{out}, -v{c0+1}, v{b+1}, v{out}")
        a(f"v_fmac_f32 v{out+1}, v{c0+1}, v{b}")
    a("v_max3_f32 v28, abs(v24), abs(v25), abs(v26)")
    a("v_max_f32 v28, v28, abs(v27)")
    W1, W256, W512, W1024, W8, W128 = 32, 34, 36, 38, 80, 50
    evalE(a, W1, 1, 10, 11, 40)
    wave_max(a, 28, 29)
    evalE(a, W256, 256, 10, 11, 44)
    a("v_frexp_exp_i32_f32 v29, v28")
    a("v_sub_u32 v30, 0, v29")
    a("v_ldexp_f32 v48, v24, v30")
    a("v_ldexp_f32 v49, v25, v30")
    a("v_mov_b32 v31, 1.0")
    a("v_ldexp_f32 v31, v31, v29")
    evalE(a, W8, 8, 10, 11, 40, conj=True)
    a(f"v_readfirstlane_b32 s{S_SCALE}, v31")
    evalE(a, 84, 128, 10, 11, 44, conj=True)
    cmul(a, W512, W256, W256)
    cmul(a, W1024, W512, W512)
    st(a, "kg: setup done", 250)
    bulk(a, "P3")
    g = lambda i: 48 + 2 * i
    cnt = [0]
    def emit(off, reg):
        t = 96 + (cnt[0] % 8); cnt[0] += 1
        a(f"v_cvt_pk_f16_f32 v{t}, v{reg}, v{reg+1}")
        a(f"ds_write_b32 v{V_KROW}, v{t} offset:{off}")
    grow = lambda r, reg: emit(r * G_ROW, reg)
    hrow = lambda r, reg: emit(H_BASE + r * G_ROW, reg)
    a("v_mov_b32 v82, 1.0"); a("v_mov_b32 v83, 0")
    HA, HB = [82, 86], [84, 88]
    hstate = [0]
    def hstep():
        i = hstate[0]
        if i >= 16: return
        ca, na = HA[i % 2], HA[(i + 1) % 2]
        cb, nb = HB[i % 2], HB[(i + 1) % 2]
        if i < 15:
            cmul(a, na, ca, W8); cmul(a, nb, cb, W8)
        hrow(i, ca); hrow(16 + i, cb)
        hstate[0] += 1
    grow(0, g(0))
    cmul(a, 64, g(0), W1024); cmul(a, 66, g(0), W512); cmul(a, g(1), g(0), W1)
    hstep()
    grow(16, 64); grow(12, 66)
    cmul(a, 68, 64, W256); cmul(a, 70, 66, W256); cmul(a, g(2), g(1), W1); cmul(a, 72, g(0), W256)
    hstep(); hstep()
    grow(1, g(1)); grow(17, 68); grow(14, 70)
    cmul(a, 64, 68, W256); cmul(a, g(3), g(2), W1); cmul(a, 74, g(2), W256)
    hstep(); hstep()
    grow(2, g(2)); grow(8, 72)
    cmul(a, 68, 64, W256); cmul(a, g(4), g(3), W1)
    hstep(); hstep()
    grow(18, 64); grow(3, g(3)); grow(9, 74)
    cmul(a, 64, 68, W256); cmul(a, g(5), g(4), W1); cmul(a, 66, g(4), W512); cmul(a, 72, g(4), W256)
    hstep(); hstep()
    grow(19, 68); grow(4, g(4))
    cmul(a, g(6), g(5), W1); cmul(a, 70, 66, W256)
    hstep(); hstep()
    grow(20, 64); grow(5, g(5)); grow(13, 66); grow(10, 72)
    cmul(a, g(7), g(6), W1); cmul(a, 74, g(6), W256)
    hstep(); hstep()
    grow(6, g(6)); grow(15, 70)
    hstep(); hstep()
    grow(7, g(7)); grow(11, 74)
    while hstate[0] < 16: hstep()
    NE = 19
    a(f"s_add_u32 s63, s60, {FT_BASE}")
    st(a, "kg: chains done", 250)
    bulk(a, "P5")
    a("v_mov_b32 v18, 0")
    a(f"v_mov_b32 v101, s63")
    a(f"ds_write_b16 v101, v18 offset:{2*FT_ZERO + 4*(FT_ZERO >> 4)}")
    a("s_waitcnt lgkmcnt(0)")
    a("s_barrier")
    for ks in range(8):
        a(f"ds_read_b128 v[{128+12*ks}:{131+12*ks}], v{V_KA} offset:{ks*64}")
        a(f"ds_read_b128 v[{132+12*ks}:{135+12*ks}], v{V_KB} offset:{ks*64}")
        a(f"ds_read_b128 v[{136+12*ks}:{139+12*ks}], v{V_KB} offset:{ks*64 + 16*G_ROW}")
        if ks >= 3:
            k = ks - 3
            a("s_waitcnt lgkmcnt(9)")
            cc0 = "0" if k == 0 else "v[20:23]"; cc1 = "0" if k == 0 else "v[24:27]"
            a(f"v_mfma_f32_16x16x32_f16 v[20:23], v[{128+12*k}:{131+12*k}], v[{132+12*k}:{135+12*k}], {cc0}")
            a(f"v_mfma_f32_16x16x32_f16 v[24:27], v[{128+12*k}:{131+12*k}], v[{136+12*k}:{139+12*k}], {cc1}")
    for k in range(5, 8):
        a(f"s_waitcnt lgkmcnt({3*(7-k)})")
        a(f"v_mfma_f32_16x16x32_f16 v[20:23], v[{128+12*k}:{131+12*k}], v[{132+12*k}:{135+12*k}], v[20:23]")
        a(f"v_mfma_f32_16x16x32_f16 v[24:27], v[{128+12*k}:{131+12*k}], v[{136+12*k}:{139+12*k}], v[24:27]")
    for nt in range(2):
        A = 20 + 4 * nt
        a(f"v_cvt_pk_f16_f32 v{28+2*nt}, v{A}, v{A+1}")
        a(f"v_cvt_pk_f16_f32 v{29+2*nt}, v{A+2}, v{A+3}")
        a(f"ds_write_b16 v{V_KSC}, v{28+2*nt} offset:{288*nt}")
        a(f"ds_write_b16_d16_hi v{V_KSC+1}, v{28+2*nt} offset:{288*nt}")
        a(f"ds_write_b16 v{V_KSC+2}, v{29+2*nt} offset:{288*nt}")
        a(f"ds_write_b16_d16_hi v{V_KSC+3}, v{29+2*nt} offset:{288*nt}")
    st(a, "kg: mfma done", 250)
    lp = newlbl("pb1")
    a(f"s_cmp_lg_u32 s{S_WAVE}, 0")
    a(f"s_cbranch_scc1 {lp}")
    a("s_mov_b32 s62, 0")
    poll(a, 8, 62, 4, 6, 64)
    a.label(lp)
    st(a, "B1 passed (wave 0)", 250)
    for r in range(40, 44): a(f"v_mov_b32 v{r}, 0")
    a("v_lshlrev_b32 v5, 4, v0")
    a("v_cmp_gt_u32 vcc, 155, v0")
    a("s_and_saveexec_b64 s[62:63], vcc")
    a(f"v_add_u32 v44, {U_BASE}, v5")
    a(f"ds_write_b128 v44, v[40:43]")
    a(f"ds_write_b128 v44, v[40:43] offset:{U_CH}")
    a("s_mov_b64 exec, s[62:63]")
    a("v_lshrrev_b32 v44, 2, v0")
    a(f"v_mul_u32_u24 v44, {KC_STRIDE}, v44")
    a("v_and_b32 v45, 3, v0")
    a("v_lshl_add_u32 v44, v45, 4, v44")
    a(f"v_add_u32 v44, {KC_BASE + 4096}, v44")
    a("v_cmp_gt_u32 vcc, 32, v0")
    a("s_and_saveexec_b64 s[62:63], vcc")
    a("ds_write_b128 v44, v[40:43]")
    a("s_mov_b64 exec, s[62:63]")
    a("s_waitcnt lgkmcnt(0)")
    a("s_barrier")
    st(a, "kg: scatter+barrier done", 250)
    conv_u_loads(a)
    bulk(a, "P6")
    for e in range(NE): a(f"ds_read_u16 v{128+e}, v{104+e}")
    a("s_waitcnt lgkmcnt(0)")
    for i in range(9):
        a(f"v_lshl_or_b32 v{161+i}, v{129+2*i}, 16, v{128+2*i}")
    for i in range(8):
        a(f"v_mov_b32 v{152+i}, v{161+i}")
    for i in range(9):
        a(f"v_lshl_or_b32 v{181+i}, v{130+2*i}, 16, v{129+2*i}")
    for i in range(8):
        a(f"v_mov_b32 v{172+i}, v{181+i}")
    for (sig, R) in ((0, 152), (1, 172), (2, 162), (3, 182)):
        a(f"ds_write_b128 v{V_KDST}, v[{R}:{R+3}] offset:{sig*KC_STRIDE}")
        a(f"ds_write_b128 v{V_KDST}, v[{R+4}:{R+7}] offset:{sig*KC_STRIDE+16}")

def conv_u_loads(a):
    l = newlbl("cu")
    a(f"s_cmp_ge_u32 s{S_WAVE}, 2")
    a(f"s_cbranch_scc1 {l}")
    a(f"s_lshl_b32 s62, s{S_WAVE}, 7")
    a("v_add_u32 v3, s62, v2")
    a("v_lshlrev_b32 v4, 13, v3")
    a(f"s_lshl_b32 s61, s{S_Q0}, 4")
    a(f"s_add_u32 s62, s61, {64*8192}")
    a(f"buffer_load_dwordx4 a[0:3], v4, s[{SRD_U2}:{SRD_U2+3}], s61 offen sc1")
    a(f"buffer_load_dwordx4 a[4:7], v4, s[{SRD_U2}:{SRD_U2+3}], s61 offen offset:16 sc1")
    a(f"buffer_load_dwordx4 a[8:11], v4, s[{SRD_U2}:{SRD_U2+3}], s62 offen sc1")
    a(f"buffer_load_dwordx4 a[12:15], v4, s[{SRD_U2}:{SRD_U2+3}], s62 offen offset:16 sc1")
    a.label(l)

def conv_u_writes(a):
    l = newlbl("cw")
    a(f"s_cmp_ge_u32 s{S_WAVE}, 2")
    a(f"s_cbranch_scc1 {l}")
    a(f"s_lshl_b32 s62, s{S_WAVE}, 7")
    a("v_add_u32 v3, s62, v2")
    a("v_lshrrev_b32 v5, 2, v3")
    a("v_mul_u32_u24 v5, 80, v5")
    a("v_and_b32 v6, 3, v3")
    a("v_lshl_add_u32 v5, v6, 4, v5")
    a(f"v_add_u32 v5, {U_BASE + 31*80}, v5")
    a("s_waitcnt vmcnt(2)")
    a(f"ds_write_b128 v5, a[0:3]")
    a(f"ds_write_b128 v5, a[4:7] offset:{U_CH}")
    a("s_waitcnt vmcnt(0)")
    a(f"ds_write_b128 v5, a[8:11] offset:{16*80}")
    a(f"ds_write_b128 v5, a[12:15] offset:{U_CH + 16*80}")
    a.label(l)

def conv_main(a):
    a(f"s_lshr_b32 s60, s{S_WAVE}, 1")
    a(f"s_and_b32 s61, s{S_WAVE}, 1")
    a("v_and_b32 v52, 31, v2")
    a("v_lshrrev_b32 v53, 5, v2")
    a(f"v_mov_b32 v54, v{V_CA}")
    a(f"v_mov_b32 v55, v{V_CB}")
    a("s_waitcnt lgkmcnt(0)")
    a("s_barrier")
    st(a, "conv start (U in LDS)")
    X, Y = 96, 128
    def load_list(step, R):
        kk = 30 - 2 * step
        oa = 64 * kk; ob = 80 * kk
        return [
            f"ds_read_b64 v[{R+0}:{R+1}], v54 offset:{oa+2048}",
            f"ds_read_b64 v[{R+2}:{R+3}], v54 offset:{oa+2048+8}",
            f"ds_read_b128 v[{R+16}:{R+19}], v55 offset:{ob}",
            f"ds_read_b128 v[{R+24}:{R+27}], v55 offset:{ob+2560}",
            f"ds_read_b64 v[{R+4}:{R+5}], v54 offset:{oa+2048+32}",
            f"ds_read_b64 v[{R+6}:{R+7}], v54 offset:{oa+2048+40}",
            f"ds_read_b128 v[{R+20}:{R+23}], v55 offset:{ob+32}",
            f"ds_read_b128 v[{R+28}:{R+31}], v55 offset:{ob+2560+32}",
            f"ds_read_b64 v[{R+8}:{R+9}], v54 offset:{oa}",
            f"ds_read_b64 v[{R+10}:{R+11}], v54 offset:{oa+8}",
            f"ds_read_b64 v[{R+12}:{R+13}], v54 offset:{oa+32}",
            f"ds_read_b64 v[{R+14}:{R+15}], v54 offset:{oa+40}"]
    def mfma_list(R, first):
        c0 = "0" if first else "v[64:79]"; c1 = "0" if first else "v[80:95]"
        return [
            f"v_mfma_f32_32x32x16_f16 v[64:79], v[{R+0}:{R+3}], v[{R+16}:{R+19}], {c0}",
            f"v_mfma_f32_32x32x16_f16 v[80:95], v[{R+0}:{R+3}], v[{R+24}:{R+27}], {c1}",
            f"v_mfma_f32_32x32x16_f16 v[64:79], v[{R+4}:{R+7}], v[{R+20}:{R+23}], v[64:79]",
            f"v_mfma_f32_32x32x16_f16 v[80:95], v[{R+4}:{R+7}], v[{R+28}:{R+31}], v[80:95]",
            f"v_mfma_f32_32x32x16_f16 v[80:95], v[{R+8}:{R+11}], v[{R+16}:{R+19}], v[80:95]",
            f"v_mfma_f32_32x32x16_f16 v[80:95], v[{R+12}:{R+15}], v[{R+20}:{R+23}], v[80:95]"]
    bg = dma_groups(1, 9, 0)
    for l in load_list(0, X): a(l)
    for step in range(16):
        bulk(a, f"c{step}")
        for _ in range(2 if (step % 8) in (1, 5) else 1):
            if bg and step >= 0:
                for l in bg.pop(0): a(l)
        R = X if step % 2 == 0 else Y
        N = Y if step % 2 == 0 else X
        M = mfma_list(R, step == 0)
        Ls = load_list(step + 1, N) if step < 15 else []
        need_upto = [3, 4, 7, 8, 10, 12]
        issued_next = 0
        for i in range(6):
            a(f"s_waitcnt lgkmcnt({min((12 - need_upto[i]) + issued_next, 15)})")
            a(M[i])
            for l in Ls[2*i:2*i+2]: a(l); issued_next += 1
    for grp in bg:
        for l in grp: a(l)
    st(a, "conv main done")
    a("v_lshlrev_b32 v56, 4, v2")
    a(f"s_lshl_b32 s62, s{S_WAVE}, 12")
    a("v_add_u32 v57, s62, v56")
    a(f"s_xor_b32 s63, s{S_WAVE}, 1")
    a("s_lshl_b32 s63, s63, 12")
    a("v_add_u32 v58, s63, v56")
    l1, l2 = newlbl("cp"), newlbl("cr")
    a("s_cmp_eq_u32 s61, 0")
    a(f"s_cbranch_scc0 {l1}")
    a("s_nop 7"); a("s_nop 7")
    for g in range(4): a(f"ds_write_b128 v57, v[{80+4*g}:{83+4*g}] offset:{g*1024}")
    a(f"s_branch {l2}")
    a.label(l1)
    a("s_nop 7"); a("s_nop 7")
    for g in range(4): a(f"ds_write_b128 v57, v[{64+4*g}:{67+4*g}] offset:{g*1024}")
    for r in range(16): a(f"v_mov_b32 v{64+r}, v{80+r}")
    a.label(l2)
    a("s_lshl_b32 s62, s61, 5")
    a("v_add_u32 v59, s62, v52")
    a("v_mul_u32_u24 v60, 80, v59")
    a("v_lshl_add_u32 v60, v53, 3, v60")
    a(f"s_mul_i32 s62, s60, {U_CH}")
    a(f"s_add_u32 s62, s62, {U_BASE + 31*80}")
    a("v_add_u32 v60, s62, v60")
    for g in range(4): a(f"ds_read_b64 v[{112+2*g}:{113+2*g}], v60 offset:{g*16}")
    a("s_waitcnt lgkmcnt(0)")
    a("s_barrier")
    for g in range(4): a(f"ds_read_b128 v[{96+4*g}:{99+4*g}], v58 offset:{g*1024}")
    for g in range(4):
        a(f"v_cvt_f32_f16 v{120+4*g}, v{112+2*g}")
        a(f"v_cvt_f32_f16_sdwa v{121+4*g}, v{112+2*g} dst_sel:DWORD dst_unused:UNUSED_PAD src0_sel:WORD_1")
        a(f"v_cvt_f32_f16 v{122+4*g}, v{113+2*g}")
        a(f"v_cvt_f32_f16_sdwa v{123+4*g}, v{113+2*g} dst_sel:DWORD dst_unused:UNUSED_PAD src0_sel:WORD_1")
    for r in range(16): a(f"v_mul_f32 v{120+r}, s{S_DSK}, v{120+r}")
    for r in range(0, 16, 2): a(f"v_cvt_pk_bf16_f32 v{136+r//2}, v{120+r}, v{121+r}")
    for r in range(0, 16, 2):
        a(f"v_lshlrev_b32 v{120+r}, 16, v{136+r//2}")
        a(f"v_and_b32 v{121+r}, 0xffff0000, v{136+r//2}")
    a("s_waitcnt lgkmcnt(0)")
    for r in range(0, 16, 2): a(f"v_pk_add_f32 v[{64+r}:{65+r}], v[{64+r}:{65+r}], v[{96+r}:{97+r}]")
    for r in range(16): a(f"v_mul_f32 v{64+r}, s{S_SCALE}, v{64+r}")
    for r in range(0, 16, 2): a(f"v_cvt_pk_bf16_f32 v{136+r//2}, v{64+r}, v{65+r}")
    for r in range(0, 16, 2):
        a(f"v_lshlrev_b32 v{64+r}, 16, v{136+r//2}")
        a(f"v_and_b32 v{65+r}, 0xffff0000, v{136+r//2}")
    for r in range(0, 16, 2): a(f"v_pk_add_f32 v[{64+r}:{65+r}], v[{64+r}:{65+r}], v[{120+r}:{121+r}]")
    for r in range(0, 16, 2): a(f"v_cvt_pk_bf16_f32 v{136+r//2}, v{64+r}, v{65+r}")
    for g in (0, 2):
        A0, A1, B0, B1 = 136 + 2 * g, 137 + 2 * g, 138 + 2 * g, 139 + 2 * g
        a(f"v_permlane32_swap_b32 v{A0}, v{B0}")
        a(f"v_permlane32_swap_b32 v{A1}, v{B1}")
    a("v_mul_u32_u24 v61, 144, v59")
    a("v_lshl_add_u32 v61, v53, 5, v61")
    a("s_lshl_b32 s62, s60, 4")
    a(f"s_add_u32 s62, s62, {YB}")
    a("v_add_u32 v61, s62, v61")
    a("ds_write_b128 v61, v[136:139]")
    a("ds_write_b128 v61, v[140:143] offset:64")
    a("v_lshrrev_b32 v62, 3, v0")
    a("v_mul_u32_u24 v62, 144, v62")
    a("v_and_b32 v63, 7, v0")
    a("v_lshl_add_u32 v62, v63, 4, v62")
    a("s_waitcnt lgkmcnt(0)")
    a("s_barrier")
    ly = newlbl("yo")
    a(f"s_cmp_ge_u32 s{S_WAVE}, 2")
    a(f"s_cbranch_scc1 {ly}")
    for k in range(4):
        a(f"ds_read_b128 v[{96+4*k}:{99+4*k}], v62 offset:{YB + 16*144*k}")
    a(f"s_lshl_b32 s62, s{S_TB}, 13")
    for k in range(4):
        a(f"s_waitcnt lgkmcnt({3-k})")
        a(f"buffer_store_dwordx4 v[{96+4*k}:{99+4*k}], v{V_US}, s[{SRD_YA}:{SRD_YA+3}], s62 offen sc1")
        if k < 3: a("s_add_u32 s62, s62, 2048")
    a.label(ly)

def ln2_loads(a):
    a("v_lshrrev_b32 v4, 1, v0")
    a("v_lshlrev_b32 v4, 13, v4")
    a("v_and_b32 v5, 1, v0")
    a("v_lshl_add_u32 v4, v5, 4, v4")
    a(f"s_lshl_b32 s60, s{S_TB}, 5")
    a("s_add_u32 s61, s60, 0x100000")
    a(f"buffer_load_dwordx4 v[40:43], v4, s[{SRD_YA}:{SRD_YA+3}], s60 offen sc1")
    a(f"buffer_load_dwordx4 v[44:47], v4, s[{SRD_YA}:{SRD_YA+3}], s61 offen sc1")

def ln2_compute(a):
    a(f"s_mov_b32 s90, {INV512}")
    a(f"s_mov_b32 s91, {EPS}")
    a("s_mov_b32 s92, 0x05040100")
    a("s_mov_b32 s93, 0x07060302")
    a(f"v_mov_b32 v48, v{V_PR}")
    a(f"v_add_u32 v49, 1152, v{V_PR}")
    unpack_pairs(a, 16, VX, VX + 4)
    a("s_waitcnt vmcnt(1)")
    a("ds_write2st64_b32 v48, v40, v41 offset0:0 offset1:9")
    a("ds_write2st64_b32 v48, v42, v43 offset0:18 offset1:27")
    a("s_waitcnt vmcnt(0)")
    a("ds_write2st64_b32 v49, v44, v45 offset0:0 offset1:9")
    a("ds_write2st64_b32 v49, v46, v47 offset0:18 offset1:27")
    a("s_waitcnt lgkmcnt(0)")
    a("s_barrier")
    for c in range(8):
        a(f"ds_read_b32 v{40+c}, v{V_PW} offset:{PL2 + 32*c}")
    a("v_lshlrev_b32 v3, 4, v2")
    a(f"s_lshl_b32 s64, s{S_TB}, 13")
    a(f"s_lshl_b32 s65, s{S_WAVE}, 11")
    a("s_add_u32 s64, s64, s65")
    a("s_waitcnt lgkmcnt(0)")
    for c in range(8):
        a(f"v_lshlrev_b32 v{48+2*c}, 16, v{40+c}")
        a(f"v_and_b32 v{49+2*c}, 0xffff0000, v{40+c}")
    for c in range(8):
        a(f"v_pk_add_f32 v[{16+2*c}:{17+2*c}], v[{16+2*c}:{17+2*c}], v[{48+2*c}:{49+2*c}]")
    for c in range(8):
        a(f"v_cvt_pk_bf16_f32 v{40+c}, v{16+2*c}, v{17+2*c}")
    unpack_packed(a, 16, 8, 40)
    for i in range(4):
        a(f"v_perm_b32 v{4+i}, v{41+2*i}, v{40+2*i}, s92")
        a(f"v_perm_b32 v{8+i}, v{41+2*i}, v{40+2*i}, s93")
    a(f"buffer_store_dwordx4 v[4:7], v3, s[{SRD_H}:{SRD_H+3}], s64 offen sc1")
    a(f"buffer_store_dwordx4 v[8:11], v3, s[{SRD_H}:{SRD_H+3}], s64 offen offset:1024 sc1")
    pair_sums(a, 16, 8, 32, 34, 36)
    reduce4(a, 32, 33, 34, 35)
    ln_stats(a, 32, 33, 36, 37, SM, SR)
    ln_apply(a, 16, 8, SM, SR, 40)
    unpack_packed(a, 16, 8, 40)
    pair_sums(a, 16, 8, 32, 34, 36)
    reduce4(a, 32, 33, 34, 35)
    ln_stats(a, 32, 33, 36, 37, SM, SR)
    ln_apply(a, 16, 8, SM, SR, 40)
    a("s_barrier")
    planes_out(a, 40, PL2, SRD_HN, 48)

def tile_coords(a, which, sT, sC):
    a("s_and_b32 s60, s2, 7")
    a("s_lshr_b32 s61, s2, 3")
    a(f"s_and_b32 s{sT}, s60, 1")
    a(f"s_lshl_b32 s{sT}, s{sT}, 2")
    a("s_and_b32 s62, s61, 3")
    a(f"s_add_u32 s{sT}, s{sT}, s62")
    a(f"s_lshr_b32 s{sC}, s60, 1")
    a(f"s_mul_i32 s{sC}, s{sC}, {7 if which == 1 else 8}")
    a("s_lshr_b32 s62, s61, 2")
    if which == 2 and SJROT:
        a(f"s_add_u32 s62, s62, {SJROT}"); a("s_and_b32 s62, s62, 7")
    a(f"s_add_u32 s{sC}, s{sC}, s62")

VD, VTA, VTB = 240, 241, 242
def dma_setup(a, which):
    WROW = 3584 if which == 1 else 128
    a(f"v_lshrrev_b32 v{VD}, 3, v2")
    a(f"v_mul_u32_u24 v{VD}, {WROW}, v{VD}")
    a("v_and_b32 v243, 7, v2")
    a("v_lshrrev_b32 v244, 2, v2")
    a("v_and_b32 v244, 4, v244")
    a("v_xor_b32 v243, v243, v244")
    a(f"v_lshl_add_u32 v{VD}, v243, 4, v{VD}")
    a("v_bfe_u32 v243, v2, 2, 2")
    a("v_and_b32 v244, 3, v2")
    a(f"v_bfe_u32 v{VTA}, v2, 4, 1")
    a(f"v_lshlrev_b32 v{VTA}, 1, v{VTA}")
    a("v_lshrrev_b32 v245, 1, v244")
    a(f"v_add_u32 v{VTA}, v{VTA}, v245")
    a("v_lshrrev_b32 v245, 1, v243")
    a("v_lshlrev_b32 v245, 2, v245")
    a(f"v_xor_b32 v{VTA}, v{VTA}, v245")
    a(f"v_lshlrev_b32 v{VTA}, 4, v{VTA}")
    a("v_and_b32 v245, 1, v244")
    a(f"v_lshl_add_u32 v{VTA}, v245, 3, v{VTA}")
    a("v_lshrrev_b32 v245, 5, v2")
    a(f"v_lshlrev_b32 v245, {3 if which == 1 else 2}, v245")
    a("v_add_u32 v245, v245, v243")
    a(f"v_lshl_add_u32 v{VTA}, v245, 7, v{VTA}")
    a(f"v_xor_b32 v{VTB}, 64, v{VTA}")

def ring_base_sel(a, lo_base, per_wave, split, hi_base):
    a(f"s_mul_i32 s{S_RING}, s{S_WAVE}, {per_wave}")
    a(f"s_cmp_lt_u32 s{S_WAVE}, {split}")
    a(f"s_mov_b32 s60, {lo_base}")
    a(f"s_cselect_b32 s60, s60, {hi_base - split*per_wave}")
    a(f"s_add_u32 s{S_RING}, s{S_RING}, s60")
    a(f"s_lshr_b32 s60, s{S_WAVE}, 1")
    a("s_lshl_b32 s60, s60, 6")
    a(f"v_xor_b32 v246, s60, v{VTA}")
    a(f"v_xor_b32 v247, 64, v246")
    a(f"v_add_u32 v246, s{S_RING}, v246")
    a(f"v_add_u32 v247, s{S_RING}, v247")

def ring_base(a, per_wave, base):
    a(f"s_mul_i32 s{S_RING}, s{S_WAVE}, {per_wave}")
    if base: a(f"s_add_u32 s{S_RING}, s{S_RING}, {base}")
    a(f"s_lshr_b32 s60, s{S_WAVE}, 1")
    a("s_lshl_b32 s60, s60, 6")
    a(f"v_xor_b32 v246, s60, v{VTA}")
    a(f"v_xor_b32 v247, 64, v246")
    a(f"v_add_u32 v246, s{S_RING}, v246")
    a(f"v_add_u32 v247, s{S_RING}, v247")

S_WA, S_WB = 76, 77
def dma_groups(which, n, slot0):
    WROW = 3584 if which == 1 else 128
    srdw = SRD_W1 if which == 1 else SRD_W2R
    sc = "" if which == 1 else " sc1"
    g = []
    for i in range(n):
        g.append([f"s_add_u32 m0, s{S_RING}, {(slot0+i)*2048}",
                  f"buffer_load_dwordx4 v{VD}, s[{srdw}:{srdw+3}], s{S_WA} offen{sc} lds",
                  f"s_add_u32 s{S_WA}, s{S_WA}, {16*WROW}"])
        g.append([f"s_add_u32 m0, s{S_RING}, {(slot0+i)*2048+1024}",
                  f"buffer_load_dwordx4 v{VD}, s[{srdw}:{srdw+3}], s{S_WB} offen{sc} lds",
                  f"s_add_u32 s{S_WB}, s{S_WB}, {16*WROW}"])
    return g

def dma_issue(a, which, n, slot0):
    for grp in dma_groups(which, n, slot0):
        for l in grp: a(l)

SCC_READ = ('s_cbranch_scc', 's_cselect', 's_addc', 's_subb', 's_cmov')
SCC_WRITE = ('s_cmp', 's_add_', 's_sub_', 's_and_', 's_or_', 's_xor_', 's_lshl', 's_lshr', 's_bitcmp', 's_min', 's_max', 's_ashr', 's_not', 's_bfe')
def scc_safe(lines, i):
    for l in lines[i:]:
        op = l.split()[0]
        if op.startswith(SCC_READ): return False
        if op.startswith(SCC_WRITE) or op.endswith(':') or op in ('s_branch', 's_endpgm', 's_barrier'): return True
    return True

def with_bg(a, fg, groups, skip=0, stride=20, after=None):
    i0 = len(a.lines)
    fg()
    body = a.lines[i0:]
    del a.lines[i0:]
    start = skip
    if after is not None:
        start = next(k for k, l in enumerate(body) if after in l) + 1 + skip
    out = []; gi = 0; nxt = start
    for k, l in enumerate(body):
        if gi < len(groups) and k >= nxt and scc_safe(body, k) and not l.endswith(':'):
            out += groups[gi]; gi += 1; nxt = k + stride
        out.append(l)
    while gi < len(groups):
        out += groups[gi]; gi += 1
    a.lines += out

def tr_to_acc(a, which, steps, slot0):
    RHO = 512 if which == 1 else 1024
    for i, s in enumerate(steps):
        o = (slot0 + i) * 2048
        a(f"ds_read_b64_tr_b16 a[{8*s}:{8*s+1}], v246 offset:{o}")
        a(f"ds_read_b64_tr_b16 a[{8*s+2}:{8*s+3}], v246 offset:{o+RHO}")
        a(f"ds_read_b64_tr_b16 a[{8*s+4}:{8*s+5}], v247 offset:{o}")
        a(f"ds_read_b64_tr_b16 a[{8*s+6}:{8*s+7}], v247 offset:{o+RHO}")
        if i % 3 == 2: a("s_waitcnt lgkmcnt(4)")

def woff_init(a, which, sC):
    WROW = 3584 if which == 1 else 128
    if which == 1:
        a(f"s_mul_i32 s{S_WA}, s{S_WAVE}, {32*16*3584}")
        a(f"s_lshl_b32 s60, s{sC}, 7")
    else:
        a(f"s_mul_i32 s{S_WA}, s{S_WAVE}, {28*16*128}")
        a(f"s_mul_i32 s60, s{sC}, {W2R_TILE}")
    a(f"s_add_u32 s{S_WA}, s{S_WA}, s60")
    a(f"s_add_u32 s{S_WB}, s{S_WA}, {8*WROW}")

def gemm_lane_consts(a):
    a("v_lshrrev_b32 v6, 5, v2")
    a("v_and_b32 v7, 31, v2")
    a("v_lshlrev_b32 v10, 13, v6")
    a("v_lshl_add_u32 v10, v7, 4, v10")
    a(f"s_and_b32 s60, s{S_WAVE}, 1")
    a("s_lshl_b32 s60, s60, 9")
    a("v_xor_b32 v8, s60, v10")
    a("v_xor_b32 v9, 512, v8")

def main_loop(a, which, srda, soff, D0):
    NK = 32 if which == 1 else 28
    DR = 14
    ab = lambda s: 128 + 8 * (s % DR)
    issued = [0]
    def issue():
        s = issued[0]
        if s >= NK: return []
        R = ab(s); issued[0] += 1
        return [f"buffer_load_dwordx4 v[{R}:{R+3}], v8, s[{srda}:{srda+3}], s{soff} offen sc1",
                f"buffer_load_dwordx4 v[{R+4}:{R+7}], v9, s[{srda}:{srda+3}], s{soff} offen sc1\ns_add_u32 s{soff}, s{soff}, 16384"]
    for s in range(D0):
        for l in issue(): a(l)
    for s in range(NK):
        a(f"s_waitcnt vmcnt({2*(issued[0] - 1 - s)})")
        nxt = issue() if (issued[0] - s) < DR else []
        R = ab(s); k = 0
        for wt in range(2):
            for at in range(2):
                acc = 64 + 32 * wt + 16 * at
                wq = f"a[{8*s+4*wt}:{8*s+4*wt+3}]"; aq = f"v[{R+4*at}:{R+4*at+3}]"
                cc = "0" if s == 0 else f"v[{acc}:{acc+15}]"
                if which == 1: a(f"v_mfma_f32_32x32x16_bf16 v[{acc}:{acc+15}], {wq}, {aq}, {cc}")
                else: a(f"v_mfma_f32_32x32x16_bf16 v[{acc}:{acc+15}], {aq}, {wq}, {cc}")
                if k == 0 and nxt: a(nxt[0])
                if k == 2 and nxt: a(nxt[1])
                k += 1

def reduce_write(a):
    a("v_lshlrev_b32 v13, 4, v2")
    for j in (1, 2, 3):
        wt, at = j >> 1, j & 1
        acc = 64 + 32 * wt + 16 * at
        a(f"s_xor_b32 s60, s{S_WAVE}, {j}")
        a(f"s_mul_i32 s60, s60, {3*4096}")
        a(f"s_add_u32 s60, s60, {(j-1)*4096}")
        a(f"v_add_u32 v14, s60, v13")
        for g in range(4):
            a(f"ds_write_b128 v14, v[{acc+4*g}:{acc+4*g+3}] offset:{g*1024}")

def reduce_read(a):
    a(f"s_mul_i32 s60, s{S_WAVE}, {3*4096}")
    a("v_add_u32 v14, s60, v13")
    for j in range(3):
        for g in range(4):
            a(f"ds_read_b128 v[{128+16*j+4*g}:{131+16*j+4*g}], v14 offset:{j*4096+g*1024}")
    P = lambda b, r: f"v[{b+r}:{b+r+1}]"
    a("s_waitcnt lgkmcnt(8)")
    for r in range(0, 16, 2): a(f"v_pk_add_f32 {P(64,r)}, {P(64,r)}, {P(128,r)}")
    a("s_waitcnt lgkmcnt(0)")
    for r in range(0, 16, 2): a(f"v_pk_add_f32 {P(144,r)}, {P(144,r)}, {P(160,r)}")
    for r in range(0, 16, 2): a(f"v_pk_add_f32 {P(128,r)}, {P(64,r)}, {P(144,r)}")

def gelu16(a, X, T):
    a("s_mov_b32 s66, 0x3d372713")
    a("s_mov_b32 s67, 0x3d372713")
    kk = -2.0 * 1.4426950408889634 * 0.7978845608028654
    kb = hex(struct.unpack('<I', struct.pack('<f', kk))[0])
    a(f"s_mov_b32 s68, {kb}"); a(f"s_mov_b32 s69, {kb}")
    P = lambda b, r: f"v[{b+r}:{b+r+1}]"
    for r in range(0, 16, 2): a(f"v_pk_mul_f32 {P(T,r)}, {P(X,r)}, {P(X,r)}")
    for r in range(0, 16, 2): a(f"v_pk_mul_f32 {P(T,r)}, {P(T,r)}, s[66:67]")
    for r in range(0, 16, 2): a(f"v_pk_fma_f32 {P(T,r)}, {P(T,r)}, {P(X,r)}, {P(X,r)}")
    for r in range(0, 16, 2): a(f"v_pk_mul_f32 {P(T,r)}, {P(T,r)}, s[68:69]")
    for r in range(16): a(f"v_exp_f32 v{T+r}, v{T+r}")
    for r in range(16): a(f"v_add_f32 v{T+r}, 1.0, v{T+r}")
    for r in range(16): a(f"v_rcp_f32 v{T+r}, v{T+r}")
    for r in range(0, 16, 2): a(f"v_pk_mul_f32 {P(X,r)}, {P(X,r)}, {P(T,r)}")

def epi1_loads(a):
    a(f"s_lshr_b32 s61, s{S_WAVE}, 1")
    a(f"s_lshl_b32 s72, s{S_FJ}, 6")
    a("s_lshl_b32 s64, s61, 5")
    a("s_add_u32 s72, s72, s64")
    a("s_lshl_b32 s64, s72, 1")
    a("v_lshlrev_b32 v15, 3, v6")
    a("v_add_u32 v15, s64, v15")
    for g in range(4):
        a(f"global_load_dwordx2 v[{20+2*g}:{21+2*g}], v15, s[{S_B1}:{S_B1+1}] offset:{16*g}")

def epi1(a):
    P = lambda b, r: f"v[{b+r}:{b+r+1}]"
    reduce_read(a)
    for r in range(0, 16, 2): a(f"v_cvt_pk_bf16_f32 v{144+r//2}, v{128+r}, v{129+r}")
    for r in range(0, 16, 2):
        a(f"v_lshlrev_b32 v{128+r}, 16, v{144+r//2}")
        a(f"v_and_b32 v{129+r}, 0xffff0000, v{144+r//2}")
    for g in range(4):
        a(f"v_lshlrev_b32 v{160+4*g}, 16, v{20+2*g}")
        a(f"v_and_b32 v{161+4*g}, 0xffff0000, v{20+2*g}")
        a(f"v_lshlrev_b32 v{162+4*g}, 16, v{21+2*g}")
        a(f"v_and_b32 v{163+4*g}, 0xffff0000, v{21+2*g}")
    for r in range(0, 16, 2): a(f"v_pk_add_f32 {P(128,r)}, {P(128,r)}, {P(160,r)}")
    for r in range(0, 16, 2): a(f"v_cvt_pk_bf16_f32 v{144+r//2}, v{128+r}, v{129+r}")
    for r in range(0, 16, 2):
        a(f"v_lshlrev_b32 v{128+r}, 16, v{144+r//2}")
        a(f"v_and_b32 v{129+r}, 0xffff0000, v{144+r//2}")
    gelu16(a, 128, 160)
    for r in range(0, 16, 2): a(f"v_cvt_pk_bf16_f32 v{144+r//2}, v{128+r}, v{129+r}")
    a("s_lshr_b32 s64, s72, 4")
    a("s_lshl_b32 s64, s64, 14")
    a(f"s_lshl_b32 s65, s{S_T1}, 10")
    a("s_add_u32 s64, s64, s65")
    a(f"s_and_b32 s62, s{S_WAVE}, 1")
    a("s_lshl_b32 s65, s62, 9")
    a("s_add_u32 s64, s64, s65")
    a(f"buffer_store_dwordx4 v[144:147], v10, s[{SRD_G2}:{SRD_G2+3}], s64 offen sc1")
    a("s_add_u32 s64, s64, 16384")
    a(f"buffer_store_dwordx4 v[148:151], v10, s[{SRD_G2}:{SRD_G2+3}], s64 offen sc1")

def epi2_loads(a):
    a(f"s_lshr_b32 s61, s{S_WAVE}, 1")
    a(f"s_and_b32 s62, s{S_WAVE}, 1")
    a(f"s_lshl_b32 s63, s{S_SJ}, 6")
    a("s_lshl_b32 s64, s61, 5")
    a("s_add_u32 s63, s63, s64")
    a("v_add_u32 v15, s63, v7")
    a("v_lshlrev_b32 v16, 10, v15")
    a("v_lshl_add_u32 v16, v6, 6, v16")
    a(f"s_lshl_b32 s70, s{S_T2}, 7")
    a("s_lshl_b32 s64, s62, 3")
    a("s_add_u32 s70, s70, s64")
    for r in range(4):
        a(f"buffer_load_dwordx2 v[{20+2*r}:{21+2*r}], v16, s[{SRD_H}:{SRD_H+3}], s70 offen offset:{16*r} sc1")
    a("v_lshlrev_b32 v17, 1, v15")
    a(f"global_load_ushort v18, v17, s[{S_B2}:{S_B2+1}]")

def epi2(a):
    P = lambda b, r: f"v[{b+r}:{b+r+1}]"
    reduce_read(a)
    for r in range(4):
        a(f"v_cvt_pk_bf16_f32 v{144+2*r}, v{128+r}, v{132+r}")
        a(f"v_cvt_pk_bf16_f32 v{145+2*r}, v{136+r}, v{140+r}")
    a("v_lshlrev_b32 v18, 16, v18")
    a("v_mov_b32 v19, v18")
    for i in range(8):
        a(f"v_lshlrev_b32 v{160+2*i}, 16, v{144+i}")
        a(f"v_and_b32 v{161+2*i}, 0xffff0000, v{144+i}")
    for r in range(0, 16, 2): a(f"v_pk_add_f32 {P(160,r)}, {P(160,r)}, v[18:19]")
    for i in range(8): a(f"v_cvt_pk_bf16_f32 v{144+i}, v{160+2*i}, v{161+2*i}")
    for i in range(8):
        a(f"v_lshlrev_b32 v{160+2*i}, 16, v{144+i}")
        a(f"v_and_b32 v{161+2*i}, 0xffff0000, v{144+i}")
        a(f"v_lshlrev_b32 v{176+2*i}, 16, v{20+i}")
        a(f"v_and_b32 v{177+2*i}, 0xffff0000, v{20+i}")
    for r in range(0, 16, 2): a(f"v_pk_add_f32 {P(160,r)}, {P(160,r)}, {P(176,r)}")
    for i in range(8): a(f"v_cvt_pk_bf16_f32 v{144+i}, v{160+2*i}, v{161+2*i}")
    for r in range(4):
        a(f"buffer_store_dwordx2 v[{144+2*r}:{145+2*r}], v16, s[{SRD_OUT}:{SRD_OUT+3}], s70 offen offset:{16*r}")

D0_G1, D0_G2 = 8, 8
TOUCH = True
SJROT = 0
TOUCHREV = False
REMAP = False
ALIGN = True
CODEPF = True
def gen_fused(a):
    kernel_header(a, KNAME)
    stamp_begin(a)
    if DBGST is not None: a("s_memrealtime s[98:99]")
    a("s_cmp_ge_u32 s2, 256")
    a("s_cbranch_scc1 L_exit")
    if REMAP:
        a("s_and_b32 s4, s2, 7"); a("s_lshl_b32 s4, s4, 5"); a("s_lshr_b32 s2, s2, 3"); a("s_or_b32 s2, s2, s4")
    prologue(a)
    ln1(a)
    st(a, "LN1 done (stores issued)", 250)
    a("s_and_b32 s60, s2, 3")
    a("s_lshl_b32 s60, s60, 6")
    arrive(a, 8, 60, lo_only=True)
    st(a, "B1 arrived", 250)
    a("s_waitcnt vmcnt(2)")
    bulk(a, "P2")
    kgen(a)
    st(a, "Kgen done", 250)
    ring_base_sel(a, 25600, 18432, 2, 125440)
    woff_init(a, 1, S_FJ)
    conv_u_writes(a)
    conv_main(a)
    st(a, "conv epilogue done (stores issued)")
    a("s_and_b32 s60, s2, 7")
    a("s_lshl_b32 s60, s60, 7")
    a(f"s_add_u32 s60, s60, {SYNC_OFF + C_B2*128}")
    arrive(a, 6, 60, lo_only=True)
    st(a, "B2 arrived")
    a("s_waitcnt vmcnt(0)")
    lw = newlbl("ws")
    a(f"s_cmp_lt_u32 s{S_WAVE}, 2")
    a(f"s_cbranch_scc1 {lw}")
    w2copy_dst(a)
    for i in range(14):
        for l in w2copy_store(a, i): a(l)
    a.label(lw)
    tr_to_acc(a, 1, range(9), 0)
    a("s_waitcnt lgkmcnt(0)")
    a("s_barrier")
    ring_base_sel(a, 0, 34816, 3, 125440)
    dma_issue(a, 1, 17, 0)
    st(a, "w1 DMA B issued")
    a(f"s_mov_b32 s60, {SYNC_OFF + C_B2*128}")
    poll_wg(a, 6, 60, 8, 7, 32)
    st(a, "B2 passed")
    ln2_loads(a)
    a("s_waitcnt vmcnt(2)")
    tr_to_acc(a, 1, range(9, 26), 0)
    a("s_waitcnt lgkmcnt(0)")
    ring_base(a, 12288, 0)
    with_bg(a, lambda: ln2_compute(a), dma_groups(1, 6, 0), skip=30, stride=22, after="s_barrier")
    st(a, "LN2 done (stores issued)")
    a(f"s_lshr_b32 s60, s{S_TB}, 5")
    a("s_lshl_b32 s60, s60, 7")
    a(f"s_add_u32 s60, s60, {SYNC_OFF + C_B3*128}")
    arrive(a, 6, 60)
    st(a, "B3 arrived")
    tr_to_acc(a, 1, range(26, 32), 0)
    gemm_lane_consts(a)
    dma_setup(a, 2)
    a("s_waitcnt lgkmcnt(0)")
    ring_base(a, 28672, RED_BYTES)
    woff_init(a, 2, S_SJ)
    dma_issue(a, 2, 14, 0)
    st(a, "w2 DMA A issued")
    a("s_cmp_ge_u32 s2, 224")
    a("s_cbranch_scc1 L_skipG1")
    a(f"s_lshl_b32 s60, s{S_WAVE}, 8")
    a(f"s_add_u32 s60, s60, {SYNC_OFF + C_B3*128}")
    poll(a, 6, 60, 2, 7, 32)
    st(a, "B3 passed")
    a(f"s_mul_i32 s71, s{S_WAVE}, {32*16384}")
    a(f"s_lshl_b32 s60, s{S_T1}, 10")
    a("s_add_u32 s71, s71, s60")
    epi1_loads(a)
    main_loop(a, 1, SRD_HN, 71, D0_G1)
    st(a, "G1 main done")
    def g1_tail():
        reduce_write(a)
        a("s_waitcnt lgkmcnt(0)")
        a("s_barrier")
        epi1(a)
    tr_to_acc(a, 2, range(14), 0)
    a("s_waitcnt lgkmcnt(0)")
    a("s_barrier")
    with_bg(a, g1_tail, dma_groups(2, 14, 0), skip=2, stride=7)
    st(a, "epi1 done (stores issued)")
    a(f"s_lshl_b32 s60, s{S_T1}, 7")
    a(f"s_add_u32 s60, s60, {SYNC_OFF + C_B4*128}")
    arrive(a, 6, 60)
    st(a, "B4 arrived")
    a("s_branch L_stage2")
    a.label("L_skipG1")
    a("s_waitcnt vmcnt(0)")
    tr_to_acc(a, 2, range(14), 0)
    a("s_waitcnt lgkmcnt(0)")
    dma_issue(a, 2, 14, 0)
    a("s_waitcnt vmcnt(0)")
    a.label("L_stage2")
    tr_to_acc(a, 2, range(14, 28), 0)
    a("s_waitcnt lgkmcnt(0)")
    a(f"s_lshl_b32 s60, s{S_T2}, 7")
    a(f"s_add_u32 s60, s60, {SYNC_OFF + C_B4*128}")
    st(a, "w2 staged")
    poll(a, 6, 60, 1, 7, 28)
    st(a, "B4 passed")
    a(f"s_mul_i32 s71, s{S_WAVE}, {28*16384}")
    a(f"s_lshl_b32 s60, s{S_T2}, 10")
    a("s_add_u32 s71, s71, s60")
    epi2_loads(a)
    main_loop(a, 2, SRD_G2, 71, D0_G2)
    st(a, "G2 main done")
    a("s_barrier")
    reduce_write(a)
    a("s_waitcnt lgkmcnt(0)")
    a("s_barrier")
    epi2(a)
    a("s_waitcnt vmcnt(0)") if STAMPON() else None
    st(a, "end", final=True)
    a.label("L_exit")
    a("s_endpgm")
    return kernel_desc(KNAME, 512, 100, accum=256)

def touch_setup(a):
    a("s_and_b32 s60, s2, 7")
    a("s_lshr_b32 s60, s60, 1")
    a("s_lshr_b32 s61, s2, 3")
    a(f"s_and_b32 s62, s{S_WAVE}, 1")
    a("s_lshl_b32 s62, s62, 9")
    a("s_lshl_b32 s63, s61, 6")
    a(f"v_add_u32 v{V_TW1}, s63, v2")
    a(f"v_mul_u32_u24 v{V_TW1}, 3584, v{V_TW1}")
    a("s_mul_i32 s63, s60, 896")
    a("s_add_u32 s63, s63, s62")
    a(f"v_add_u32 v{V_TW1}, s63, v{V_TW1}")
    a("s_mul_i32 s79, s2, 28672")
    a(f"s_and_b32 s61, s{S_WAVE}, 1")
    a("s_mul_i32 s61, s61, 14336")
    a("s_add_u32 s79, s79, s61")

BULK = {"P0": ["T0"], "P1": ["T1"], "P2": ["T2"], "P5": ["T3"], "P6": ["C0"], "c0": ["C1"], "c2": ["C2"], "c4": ["C3"], "c6": ["C4"], "c8": ["C5"], "c10": ["C6"]}
def bulk(a, slot):
    ops = BULK.get(slot, [])
    if not ops or not TOUCH: return
    l = newlbl("bk")
    a(f"s_cmp_lt_u32 s{S_WAVE}, 2")
    a(f"s_cbranch_scc1 {l}")
    for op in ops:
        k = int(op[1:])
        if op[0] == "T":
            a(f"buffer_load_dword a199, v{V_TW1}, s[{SRD_W1}:{SRD_W1+3}], 0 offen offset:{128*k}")
        else:
            a("v_lshlrev_b32 v255, 4, v2")
            for i in (2 * k, 2 * k + 1):
                a(f"buffer_load_dwordx4 a[{A_CP+4*i}:{A_CP+4*i+3}], v255, s[{SRD_W2}:{SRD_W2+3}], s79 offen offset:{(i%4)*1024}")
                if i % 4 == 3: a("s_add_u32 s79, s79, 4096")
    a.label(l)

A_CP = 200
def w2copy_dst(a):
    a("v_lshrrev_b32 v245, 3, v2")
    a(f"s_mov_b32 s60, {W2R_TILE}")
    a("v_mul_lo_u32 v245, v245, s60")
    a(f"v_and_b32 v{V_TW2}, 7, v2")
    a(f"v_lshl_add_u32 v{V_TW2}, v{V_TW2}, 4, v245")

def w2copy_store(a, i):
    return [f"s_and_b32 s74, s{S_WAVE}, 1",
            "s_mul_i32 s74, s74, 14",
            f"s_add_u32 s74, s74, {i}",
            "s_and_b32 s75, s74, 3",
            f"s_mul_i32 s75, s75, {8*W2R_TILE}",
            "s_lshr_b32 s74, s74, 2",
            "s_lshl_b32 s74, s74, 7",
            "s_add_u32 s75, s75, s74",
            "s_mul_i32 s74, s2, 896",
            "s_add_u32 s75, s75, s74",
            f"buffer_store_dwordx4 a[{A_CP+4*i}:{A_CP+4*i+3}], v{V_TW2}, s[{SRD_W2R}:{SRD_W2R+3}], s75 offen sc1"]

def build(path):
    a = Asm()
    hdr = open("cdna_kernels/" + NAME + ".s.ref").read().split("; Override launch geometry")[0]
    txt = hdr + f"; @launch grid=(256,1,1) block=(256,1,1) lds={LDS_TOTAL}\n" + '.amdgcn_target "amdgcn-amd-amdhsa--gfx950"\n'
    d = gen_fused(a)
    body = a.finalize()
    if ALIGN:
        import asmlib
        body, np_, nn_ = asmlib.align8(body)
        print("align8: promoted", np_, "nops", nn_)
    txt += body + d
    open(path, "w").write(txt)
    open(path + ".names", "w").write("".join(f"{k} {v}\n" for k, v in ST_NAMES.items()))

if __name__ == "__main__":
    import sys, common
    if "--stamp" in sys.argv:
        common.STAMP = True; sys.argv.remove("--stamp")
    if "--notouch" in sys.argv: TOUCH = False
    if "--remap" in sys.argv: REMAP = True
    for x in sys.argv:
        if x.startswith("--bulk="): BULK = eval(x[7:])
        if x.startswith("--d0="): D0_G1 = D0_G2 = int(x[5:])
    if "--sjrot" in sys.argv: SJROT = 2
    if "--touchrev" in sys.argv: TOUCHREV = True
    if "--noalign" in sys.argv: ALIGN = False
    if "--nocodepf" in sys.argv: CODEPF = False
    if "--dbgst" in sys.argv:
        DBGST = ["LN1 done (stores issued)", "B1 arrived", "Kgen done", "B1 passed", "conv start (U in LDS)", "conv main done", "B2 arrived", "B2 passed",
                 "LN2 done (stores issued)", "B3 passed", "G1 main done", "B4 arrived", "B4 passed", "G2 main done", "end"]
    build(sys.argv[1])
```

```python
from common import *
from k1 import cmul, wave_max, G_ROW, H_BASE, FT_BASE, FT_DUMMY
import struct

KNAME = NAME + "_kernel"
KG_CH = 27984 + 5888
KC_BASE = 2 * KG_CH
KC_STRIDE = 4160
KCH = 4 * KC_STRIDE
U_BASE = KC_BASE + 2 * KCH
U_CH = 95 * 80
LDS_TOTAL = 163840
FT_ZERO = 2060
RED_BYTES = 49152
D_RING = 8
S_WAVE, S_Q0 = 10, 11
SRD_X, SRD_U2, SRD_YA, SRD_H, SRD_HN, SRD_G2, SRD_W1, SRD_W2, SRD_OUT = 12, 16, 20, 24, 28, 32, 36, 40, 44
SRD_W2R = 80
S_B1, S_B2 = 48, 50
S_SCALE, S_DSK = 52, 53
S_T1, S_FJ, S_T2, S_SJ = 54, 55, 56, 57
S_WOFF, S_RING = 58, 59
SM, SR = 84, 86
C_B2, C_B3, C_B4 = 0, 8, 16
KIDX = 0
S_TB = 5
VX = 224
V_KROW, V_KA, V_KB, V_KSC, V_KDST = 232, 233, 234, 235, 239
V_CA, V_CB = 248, 249
V_PW, V_PR, V_US = 252, 253, 254
V_TW1, V_TW2 = 1, 30
PL = 116224
PL1 = PL2 = 0
YB = 16384

ST_NAMES = {}
DBGST = None
_st = [2]
def st(a, name, vt=60, final=False):
    if DBGST is not None:
        if name in DBGST:
            k = DBGST.index(name) + 1
            l = newlbl("ds")
            a("s_memrealtime s[96:97]")
            a(f"s_or_b32 s94, s2, s{S_WAVE}")
            a("s_cmp_lg_u32 s94, 0")
            a("s_waitcnt lgkmcnt(0)")
            a(f"s_cbranch_scc1 {l}")
            a("s_sub_u32 s96, s96, s98")
            a(f"v_mov_b32 v{vt}, {4*k}")
            a(f"v_mov_b32 v{vt+1}, s96")
            a(f"global_store_dword v{vt}, v{vt+1}, s[8:9]")
            a.label(l)
        return
    slot = 1 if final else _st[0]
    if not final: _st[0] += 1
    ST_NAMES[slot] = name
    stamp(a, KIDX, slot, 6, vt)

def evalE(a, D, v, zr, zi, t, conj=False):
    bits = struct.unpack('<I', struct.pack('<f', float(v)))[0]
    a(f"s_mov_b32 s78, {hex(bits)}")
    a(f"v_mul_f32 v{t}, s78, v{zr}")
    a(f"v_mul_f32 v{t+1}, s78, v{zi}")
    a(f"v_exp_f32 v{t}, v{t}")
    a(f"v_rndne_f32 v{t+2}, v{t+1}")
    a(f"v_sub_f32 v{t+1}, v{t+1}, v{t+2}")
    a(f"v_cos_f32 v{D}, v{t+1}")
    a(f"v_sin_f32 v{D+1}, v{t+1}")
    a(f"v_mul_f32 v{D}, v{D}, v{t}")
    if conj: a(f"v_mul_f32 v{D+1}, -v{D+1}, v{t}")
    else: a(f"v_mul_f32 v{D+1}, v{D+1}, v{t}")

def pos2chan(a, sd, sq, t):
    a(f"s_and_b32 s{sd}, s{sq}, 0x1c0")
    a(f"s_and_b32 s{t}, s{sq}, 7")
    a(f"s_lshl_b32 s{t}, s{t}, 3")
    a(f"s_or_b32 s{sd}, s{sd}, s{t}")
    a(f"s_lshr_b32 s{t}, s{sq}, 3")
    a(f"s_and_b32 s{t}, s{t}, 7")
    a(f"s_or_b32 s{sd}, s{sd}, s{t}")

_lbl = [0]
def newlbl(p):
    _lbl[0] += 1
    return f"L_{p}{_lbl[0]}"

def arrive(a, base_sgpr_pair, off_sgpr, lo_only=False):
    if lo_only:
        l0 = newlbl("ad")
        a(f"s_cmp_ge_u32 s{S_WAVE}, 2")
        a(f"s_cbranch_scc1 {l0}")
        a("s_waitcnt vmcnt(0)")
        a.label(l0)
    else:
        a("s_waitcnt vmcnt(0)")
    a("s_barrier")
    l = newlbl("arr")
    a(f"s_cmp_lg_u32 s{S_WAVE}, 0")
    a(f"s_cbranch_scc1 {l}")
    a(f"v_mov_b32 v13, s{off_sgpr}")
    a("v_mov_b32 v14, 1")
    a("s_mov_b64 s[62:63], exec")
    a("s_mov_b64 exec, 1")
    a(f"global_atomic_add v13, v14, s[{base_sgpr_pair}:{base_sgpr_pair+1}] sc1")
    a("s_mov_b64 exec, s[62:63]")
    a.label(l)

def poll(a, base_sgpr_pair, off_sgpr, n, stride_log2, target):
    l = newlbl("poll")
    a(f"v_and_b32 v13, {n-1}, v2")
    a(f"v_lshlrev_b32 v13, {stride_log2}, v13")
    a(f"v_add_u32 v13, s{off_sgpr}, v13")
    a("s_mov_b32 s61, 0")
    a.label(l)
    a(f"global_load_dword v14, v13, s[{base_sgpr_pair}:{base_sgpr_pair+1}] sc1")
    a("s_waitcnt vmcnt(0)")
    a(f"v_cmp_gt_u32 vcc, {target}, v14")
    a("s_add_u32 s61, s61, 1")
    a(f"s_cbranch_vccz {l}_done")
    a("s_cmp_lt_u32 s61, 0x40000")
    a(f"s_cbranch_scc1 {l}")
    a.label(l + "_done")

def poll_wg(a, base_sgpr_pair, off_sgpr, n, stride_log2, target):
    l = newlbl("pw")
    a(f"s_cmp_lg_u32 s{S_WAVE}, 0")
    a(f"s_cbranch_scc1 {l}")
    poll(a, base_sgpr_pair, off_sgpr, n, stride_log2, target)
    a.label(l)
    a("s_barrier")

def prologue(a):
    a("s_load_dwordx16 s[64:79], s[0:1], 0")
    a("s_load_dwordx2 s[88:89], s[0:1], 64")
    a("s_load_dwordx4 s[80:83], s[0:1], 80")
    a("s_load_dwordx4 s[84:87], s[0:1], 96")
    a("s_load_dwordx4 s[60:63], s[0:1], 112")
    a("s_load_dwordx2 s[6:7], s[0:1], 128")
    a("v_lshrrev_b32 v1, 6, v0")
    a("v_and_b32 v2, 63, v0")
    a(f"v_readfirstlane_b32 s{S_WAVE}, v1")
    a("s_and_b32 s54, s2, 7")
    a("s_lshl_b32 s54, s54, 5")
    a("s_lshr_b32 s55, s2, 3")
    a(f"s_add_u32 s{S_TB}, s54, s55")
    a(f"s_lshl_b32 s{S_Q0}, s{S_TB}, 1")
    a(f"s_lshr_b32 s55, s{S_WAVE}, 1")
    a(f"s_add_u32 s56, s{S_Q0}, s55")
    pos2chan(a, 57, 56, 58)
    a("v_lshlrev_b32 v3, 4, v2")
    a(f"s_lshl_b32 s58, s{S_TB}, 13")
    a(f"s_lshl_b32 s59, s{S_WAVE}, 11")
    a("s_add_u32 s59, s59, s58")
    a(f"s_and_b32 s54, s{S_WAVE}, 1")
    a("s_lshl_b32 s54, s54, 7")
    a("s_lshl_b32 s55, s57, 8")
    a("s_add_u32 s54, s54, s55")
    a("v_lshl_add_u32 v12, v2, 1, s54")
    a("v_xor_b32 v13, 128, v12")
    a("s_waitcnt lgkmcnt(0)")
    stamp(a, KIDX, 0, 6, 250, first=True)
    srd(a, SRD_X, 64, 65, 0, 0x200000)
    a(f"buffer_load_dwordx4 v[{VX}:{VX+3}], v3, s[{SRD_X}:{SRD_X+3}], s59 offen")
    a(f"buffer_load_dwordx4 v[{VX+4}:{VX+7}], v3, s[{SRD_X}:{SRD_X+3}], s59 offen offset:1024")
    a("global_load_ushort v200, v12, s[66:67]")
    a("global_load_ushort v201, v12, s[68:69]")
    a("global_load_ushort v202, v12, s[70:71]")
    a("global_load_ushort v203, v12, s[72:73]")
    a("global_load_ushort v204, v12, s[74:75]")
    a("global_load_ushort v205, v12, s[76:77]")
    a("global_load_ushort v206, v13, s[70:71]")
    a("global_load_ushort v207, v13, s[72:73]")
    a("global_load_ushort v208, v13, s[74:75]")
    a("global_load_ushort v209, v13, s[76:77]")
    a("s_lshl_b32 s54, s57, 1")
    a("s_and_b32 s54, s54, 0xfffffffc")
    a("s_load_dword s52, s[78:79], s54")
    a("s_load_dword s53, s[88:89], s54")
    a("s_and_b32 s91, s57, 1")
    a(f"s_mov_b32 s8, s62"); a("s_mov_b32 s9, s63")
    srd(a, SRD_OUT, 60, 61, 0, 0x200000)
    srd(a, SRD_U2, 6, 7, U2_OFF, U2_SZ)
    srd(a, SRD_YA, 6, 7, YA_OFF, YA_SZ)
    srd(a, SRD_H, 6, 7, H_OFF, H_SZ)
    srd(a, SRD_HN, 6, 7, HN_OFF, HN_SZ)
    srd(a, SRD_G2, 6, 7, G2_OFF, G2_SZ)
    srd(a, SRD_W1, 80, 81, 0, 2048 * 3584)
    srd(a, SRD_W2, 84, 85, 0, 2048 * 3584)
    a(f"s_mov_b32 s{S_B1}, s82"); a(f"s_mov_b32 s{S_B1+1}, s83")
    a(f"s_mov_b32 s{S_B2}, s86"); a(f"s_mov_b32 s{S_B2+1}, s87")
    srd(a, SRD_W2R, 6, 7, W2R_OFF, W2R_SZ)
    l = newlbl("z")
    a(f"s_or_b32 s54, s2, s{S_WAVE}")
    a("s_cmp_lg_u32 s54, 0")
    a(f"s_cbranch_scc1 {l}")
    a("v_lshlrev_b32 v14, 7, v2")
    a(f"v_add_u32 v14, {SYNC_OFF}, v14")
    a("v_mov_b32 v15, 0")
    a("global_store_dword v14, v15, s[6:7] sc1")
    a.label(l)
    if CODEPF:
        l = newlbl("cpf")
        a(f"s_cmp_lg_u32 s{S_WAVE}, 3")
        a(f"s_cbranch_scc1 {l}")
        a("s_getpc_b64 s[54:55]")
        a.label("L_pcbase")
        a("v_lshlrev_b32 v14, 7, v2")
        a("s_mov_b32 s56, L_code_end-L_pcbase")
        for k in range(5):
            a("v_min_u32 v15, s56, v14")
            a(f"global_load_dword v255, v15, s[54:55]")
            if k < 4: a("v_add_u32 v14, 8192, v14")
        a.label(l)
    touch_setup(a)
    bulk(a, "P0")
    precompute(a)
    a("s_cmp_eq_u32 s91, 1")
    a("s_cselect_b32 s60, 0, 16")
    a("s_waitcnt lgkmcnt(0)")
    a("s_lshl_b32 s52, s52, s60"); a("s_and_b32 s52, s52, 0xffff0000")
    a("s_lshl_b32 s53, s53, s60"); a("s_and_b32 s53, s53, 0xffff0000")

V_ONES = 216
def prefill_op(a, k):
    if k == 0:
        for r in range(V_ONES, V_ONES + 4): a(f"v_mov_b32 v{r}, -1")
    D = f"v[{V_ONES}:{V_ONES+3}]"
    if k < 4:
        a(f"s_lshl_b32 s74, s{S_TB}, 13")
        if k % 2: a("s_add_u32 s74, s74, 4096")
        sr = SRD_YA if k < 2 else SRD_HN
        a(f"buffer_store_dwordx4 {D}, v{V_US}, s[{sr}:{sr+3}], s74 offen sc1")
    else:
        a(f"s_lshl_b32 s74, s{S_FJ}, 16")
        a(f"s_lshl_b32 s75, s{S_WAVE}, 13")
        a("s_add_u32 s74, s74, s75")
        a(f"s_lshl_b32 s75, s{S_T1}, 10")
        a("s_add_u32 s74, s74, s75")
        if k == 5: a("s_add_u32 s74, s74, 32768")
        a("v_lshlrev_b32 v220, 4, v2")
        a(f"buffer_store_dwordx4 {D}, v220, s[{SRD_G2}:{SRD_G2+3}], s74 offen sc1")

def precompute(a):
    a("v_lshrrev_b32 v4, 3, v2")
    a("v_mul_u32_u24 v4, 72, v4")
    a("v_and_b32 v5, 7, v2")
    a("v_add_u32 v4, v4, v5")
    a(f"s_mul_i32 s54, s{S_WAVE}, 576")
    a("v_add_u32 v4, s54, v4")
    a(f"v_lshlrev_b32 v{V_PW}, 2, v4")
    a(f"v_add_u32 v{V_PW}, {PL}, v{V_PW}")
    a(f"s_mul_i32 s54, s{S_WAVE}, 72")
    a("v_add_u32 v4, s54, v2")
    a(f"v_lshlrev_b32 v{V_PR}, 2, v4")
    a(f"v_add_u32 v{V_PR}, {PL}, v{V_PR}")
    a(f"v_lshlrev_b32 v{V_US}, 4, v0")
    a(f"s_lshr_b32 s60, s{S_WAVE}, 1")
    a(f"s_mul_i32 s60, s60, {KG_CH}")
    a(f"s_and_b32 s62, s{S_WAVE}, 1")
    a("s_lshl_b32 s61, s62, 8")
    a("s_add_u32 s61, s61, s60")
    a(f"v_lshl_add_u32 v{V_KROW}, v2, 2, s61")
    a("v_and_b32 v7, 15, v2")
    a("v_lshrrev_b32 v8, 4, v2")
    a(f"v_mul_u32_u24 v9, {G_ROW}, v7")
    a("v_lshl_add_u32 v9, v8, 4, v9")
    a(f"s_mul_i32 s63, s62, {16*G_ROW}")
    a("s_add_u32 s63, s63, s60")
    a(f"v_add_u32 v{V_KA}, s63, v9")
    a(f"s_add_u32 s63, s60, {H_BASE}")
    a(f"v_add_u32 v{V_KB}, s63, v9")
    a("v_lshlrev_b32 v16, 3, v7")
    a(f"s_add_u32 s63, s60, {FT_BASE}")
    a(f"s_movk_i32 s54, {FT_DUMMY}")
    a("v_cmp_eq_u32 s[56:57], 1, v8")
    a("v_cmp_eq_u32 s[58:59], 2, v8")
    a("v_cmp_eq_u32 vcc, 3, v8")
    for r in range(4):
        m0_q2 = 256 + 2 * r
        m0_q3 = 512 + 4 * (r & 1) + 256 * (r >> 1)
        m1_q0 = 1024 + 256 * r
        m1_q1 = 2048 if r == 0 else FT_DUMMY
        R = V_KSC + r
        a("s_cmp_eq_u32 s62, 0")
        a(f"s_cselect_b32 s55, {r}, {m1_q0}")
        a(f"v_mov_b32 v{R}, s55")
        a(f"s_cselect_b32 s55, {4+r}, {m1_q1}")
        a("v_mov_b32 v18, s55")
        a(f"v_cndmask_b32 v{R}, v{R}, v18, s[56:57]")
        a(f"s_cselect_b32 s55, {m0_q2}, s54")
        a("v_mov_b32 v18, s55")
        a(f"v_cndmask_b32 v{R}, v{R}, v18, s[58:59]")
        a(f"s_cselect_b32 s55, {m0_q3}, s54")
        a("v_mov_b32 v18, s55")
        a(f"v_cndmask_b32 v{R}, v{R}, v18, vcc")
        a(f"v_add_u32 v{R}, v{R}, v16")
        a(f"v_lshrrev_b32 v18, 4, v{R}")
        a(f"v_lshlrev_b32 v18, 2, v18")
        a(f"v_lshl_add_u32 v{R}, v{R}, 1, v18")
        a(f"v_add_u32 v{R}, s63, v{R}")
    a("s_lshl_b32 s55, s62, 6")
    a("v_add_u32 v19, s55, v2")
    a("v_lshlrev_b32 v100, 5, v19")
    a("v_sub_u32 v100, 4094, v100")
    NE = 19
    for e in range(NE):
        a(f"v_subrev_u32 v{104+e}, {2*e}, v100")
        a(f"v_cvt_f32_u32 v{104+e}, v{104+e}")
    for e in range(0, NE + 1, 2):
        e2 = min(e + 1, NE - 1)
        a(f"v_cvt_pk_bf16_f32 v{124+e//2}, v{104+e}, v{104+e2}")
    for e in range(NE):
        if e % 2 == 0: a(f"v_lshlrev_b32 v{104+e}, 16, v{124+e//2}")
        else: a(f"v_and_b32 v{104+e}, 0xffff0000, v{124+e//2}")
    for e in range(NE): a(f"v_cvt_u32_f32 v{104+e}, v{104+e}")
    for e in range(16, NE): a(f"v_min_u32 v{104+e}, {2*FT_ZERO}, v{104+e}")
    for e in range(NE):
        a(f"v_lshrrev_b32 v18, 5, v{104+e}")
        a(f"v_lshl_add_u32 v{104+e}, v18, 2, v{104+e}")
        a(f"v_add_u32 v{104+e}, s63, v{104+e}")
    a(f"s_lshr_b32 s55, s{S_WAVE}, 1")
    a(f"s_mul_i32 s55, s55, {KCH}")
    a(f"s_add_u32 s55, s55, {KC_BASE}")
    a("v_lshlrev_b32 v19, 5, v19")
    a(f"v_add_u32 v{V_KDST}, s55, v19")
    bulk(a, "P1")
    a(f"s_lshr_b32 s60, s{S_WAVE}, 1")
    a(f"s_and_b32 s61, s{S_WAVE}, 1")
    a("v_and_b32 v52, 31, v2")
    a("v_lshrrev_b32 v53, 5, v2")
    a("v_and_b32 v54, 3, v52")
    a("v_sub_u32 v54, 3, v54")
    a(f"v_mul_u32_u24 v54, {KC_STRIDE}, v54")
    a("v_lshrrev_b32 v55, 2, v52")
    a("v_lshlrev_b32 v55, 3, v55")
    a("v_sub_u32 v54, v54, v55")
    a("v_lshl_add_u32 v54, v53, 4, v54")
    a(f"s_mul_i32 s62, s60, {KCH}")
    a("s_lshl_b32 s63, s61, 6")
    a("s_sub_u32 s62, s62, s63")
    a(f"s_add_u32 s62, s62, {KC_BASE + 2*2044 - 2048 - 64*30}")
    a(f"v_add_u32 v{V_CA}, s62, v54")
    a("v_mul_u32_u24 v55, 80, v52")
    a("v_lshl_add_u32 v55, v53, 4, v55")
    a(f"s_mul_i32 s62, s60, {U_CH}")
    a("s_mul_i32 s63, s61, 80")
    a("s_sub_u32 s62, s62, s63")
    a(f"s_add_u32 s62, s62, {U_BASE + 80*(31-30)}")
    a(f"v_add_u32 v{V_CB}, s62, v55")
    tile_coords(a, 1, S_T1, S_FJ)
    tile_coords(a, 2, S_T2, S_SJ)
    dma_setup(a, 1)

def planes_out(a, D, plane_base, srd_dst, T, lo_only=False):
    for c in range(8):
        a(f"ds_write_b32 v{V_PW}, v{D+c} offset:{plane_base + 32*c}")
    a("s_waitcnt lgkmcnt(0)")
    a("s_barrier")
    a(f"s_lshl_b32 s60, s{S_TB}, 13")
    if not lo_only:
        a(f"v_add_u32 v{T+8}, 1152, v{V_PR}")
        a(f"ds_read2st64_b32 v[{T}:{T+1}], v{V_PR} offset0:0 offset1:9")
        a(f"ds_read2st64_b32 v[{T+2}:{T+3}], v{V_PR} offset0:18 offset1:27")
        a(f"ds_read2st64_b32 v[{T+4}:{T+5}], v{T+8} offset0:0 offset1:9")
        a(f"ds_read2st64_b32 v[{T+6}:{T+7}], v{T+8} offset0:18 offset1:27")
        a("s_add_u32 s61, s60, 4096")
        a("s_waitcnt lgkmcnt(2)")
        a(f"buffer_store_dwordx4 v[{T}:{T+3}], v{V_US}, s[{srd_dst}:{srd_dst+3}], s60 offen sc1")
        a("s_waitcnt lgkmcnt(0)")
        a(f"buffer_store_dwordx4 v[{T+4}:{T+7}], v{V_US}, s[{srd_dst}:{srd_dst+3}], s61 offen sc1")
    else:
        l = newlbl("po")
        a(f"s_cmp_ge_u32 s{S_WAVE}, 2")
        a(f"s_cbranch_scc1 {l}")
        for k in range(4):
            a(f"v_add_u32 v{T+16}, {576*k}, v{V_PR}")
            a(f"ds_read2st64_b32 v[{T+4*k}:{T+4*k+1}], v{T+16} offset0:0 offset1:9")
            a(f"ds_read2st64_b32 v[{T+4*k+2}:{T+4*k+3}], v{T+16} offset0:18 offset1:27")
        for k in range(4):
            a(f"s_waitcnt lgkmcnt({2*(3-k)})")
            a(f"buffer_store_dwordx4 v[{T+4*k}:{T+4*k+3}], v{V_US}, s[{srd_dst}:{srd_dst+3}], s60 offen sc1")
            if k < 3: a("s_add_u32 s60, s60, 2048")
        a.label(l)

def unit_addr(a, vd, vt):
    a(f"v_lshrrev_b32 v{vd}, 3, v2")
    a(f"v_lshlrev_b32 v{vd}, 10, v{vd}")
    a(f"v_and_b32 v{vt}, 7, v2")
    a(f"v_lshl_add_u32 v{vd}, v{vt}, 4, v{vd}")

def ln1(a):
    a(f"s_mov_b32 s90, {INV512}")
    a(f"s_mov_b32 s91, {EPS}")
    a("s_waitcnt vmcnt(10)")
    unpack_pairs(a, 16, VX, VX + 4)
    pair_sums(a, 16, 8, 32, 34, 36)
    reduce4(a, 32, 33, 34, 35)
    ln_stats(a, 32, 33, 36, 37, SM, SR)
    ln_apply(a, 16, 8, SM, SR, 40)
    unpack_packed(a, 16, 8, 40)
    for c in range(8):
        a(f"v_cvt_pk_f16_f32 v{40+c}, v{16+2*c}, v{17+2*c}")
    planes_out(a, 40, PL1, SRD_U2, 48, lo_only=True)

def kgen(a):
    a(f"s_lshr_b32 s60, s{S_WAVE}, 1")
    a(f"s_mul_i32 s60, s60, {KG_CH}")
    a(f"s_mov_b32 s66, {LOG2E}")
    a(f"s_mov_b32 s67, {LOG2E_LO}")
    a(f"s_mov_b32 s68, {LN2}")
    a(f"s_mov_b32 s69, {INV2PI}")
    a("v_mov_b32 v20, s52")
    a("v_mul_f32 v21, s66, v20")
    a("v_fma_f32 v22, v20, s66, -v21")
    a("v_fmac_f32 v22, s67, v20")
    a("v_exp_f32 v21, v21")
    a("v_mul_f32 v22, s68, v22")
    a("v_fmac_f32 v21, v21, v22")
    bf16_round(a, 21, 21)
    for i in range(10): a(f"v_lshlrev_b32 v{10+i}, 16, v{200+i}")
    a("v_mul_f32 v10, v21, v10")
    a("v_mul_f32 v11, v21, v11")
    a("v_mul_f32 v10, s66, v10")
    a("v_mul_f32 v11, s69, v11")
    for (b, c0, out) in ((12, 14, 24), (16, 18, 26)):
        a(f"v_mul_f32 v{b}, v21, v{b}")
        a(f"v_mul_f32 v{b+1}, v21, v{b+1}")
        a(f"v_mul_f32 v{out}, v{c0}, v{b}")
        a(f"v_mul_f32 v{out+1}, v{c0}, v{b+1}")
        a(f"v_fma_f32 v{out}, -v{c0+1}, v{b+1}, v{out}")
        a(f"v_fmac_f32 v{out+1}, v{c0+1}, v{b}")
    a("v_max3_f32 v28, abs(v24), abs(v25), abs(v26)")
    a("v_max_f32 v28, v28, abs(v27)")
    W1, W256, W512, W1024, W8, W128 = 32, 34, 36, 38, 80, 50
    evalE(a, W1, 1, 10, 11, 40)
    wave_max(a, 28, 29)
    evalE(a, W256, 256, 10, 11, 44)
    a("v_frexp_exp_i32_f32 v29, v28")
    a("v_sub_u32 v30, 0, v29")
    a("v_ldexp_f32 v48, v24, v30")
    a("v_ldexp_f32 v49, v25, v30")
    a("v_mov_b32 v31, 1.0")
    a("v_ldexp_f32 v31, v31, v29")
    evalE(a, W8, 8, 10, 11, 40, conj=True)
    a(f"v_readfirstlane_b32 s{S_SCALE}, v31")
    evalE(a, 84, 128, 10, 11, 44, conj=True)
    cmul(a, W512, W256, W256)
    cmul(a, W1024, W512, W512)
    st(a, "kg: setup done", 250)
    bulk(a, "P3")
    g = lambda i: 48 + 2 * i
    cnt = [0]
    def emit(off, reg):
        t = 96 + (cnt[0] % 8); cnt[0] += 1
        a(f"v_cvt_pk_f16_f32 v{t}, v{reg}, v{reg+1}")
        a(f"ds_write_b32 v{V_KROW}, v{t} offset:{off}")
    grow = lambda r, reg: emit(r * G_ROW, reg)
    hrow = lambda r, reg: emit(H_BASE + r * G_ROW, reg)
    a("v_mov_b32 v82, 1.0"); a("v_mov_b32 v83, 0")
    HA, HB = [82, 86], [84, 88]
    hstate = [0]
    def hstep():
        i = hstate[0]
        if i >= 16: return
        ca, na = HA[i % 2], HA[(i + 1) % 2]
        cb, nb = HB[i % 2], HB[(i + 1) % 2]
        if i < 15:
            cmul(a, na, ca, W8); cmul(a, nb, cb, W8)
        hrow(i, ca); hrow(16 + i, cb)
        hstate[0] += 1
    grow(0, g(0))
    cmul(a, 64, g(0), W1024); cmul(a, 66, g(0), W512); cmul(a, g(1), g(0), W1)
    hstep()
    grow(16, 64); grow(12, 66)
    cmul(a, 68, 64, W256); cmul(a, 70, 66, W256); cmul(a, g(2), g(1), W1); cmul(a, 72, g(0), W256)
    hstep(); hstep()
    grow(1, g(1)); grow(17, 68); grow(14, 70)
    cmul(a, 64, 68, W256); cmul(a, g(3), g(2), W1); cmul(a, 74, g(2), W256)
    hstep(); hstep()
    grow(2, g(2)); grow(8, 72)
    cmul(a, 68, 64, W256); cmul(a, g(4), g(3), W1)
    hstep(); hstep()
    grow(18, 64); grow(3, g(3)); grow(9, 74)
    cmul(a, 64, 68, W256); cmul(a, g(5), g(4), W1); cmul(a, 66, g(4), W512); cmul(a, 72, g(4), W256)
    hstep(); hstep()
    grow(19, 68); grow(4, g(4))
    cmul(a, g(6), g(5), W1); cmul(a, 70, 66, W256)
    hstep(); hstep()
    grow(20, 64); grow(5, g(5)); grow(13, 66); grow(10, 72)
    cmul(a, g(7), g(6), W1); cmul(a, 74, g(6), W256)
    hstep(); hstep()
    grow(6, g(6)); grow(15, 70)
    hstep(); hstep()
    grow(7, g(7)); grow(11, 74)
    while hstate[0] < 16: hstep()
    NE = 19
    a(f"s_add_u32 s63, s60, {FT_BASE}")
    st(a, "kg: chains done", 250)
    bulk(a, "P5")
    a("v_mov_b32 v18, 0")
    a(f"v_mov_b32 v101, s63")
    a(f"ds_write_b16 v101, v18 offset:{2*FT_ZERO + 4*(FT_ZERO >> 4)}")
    a("s_waitcnt lgkmcnt(0)")
    a("s_barrier")
    for ks in range(8):
        a(f"ds_read_b128 v[{128+12*ks}:{131+12*ks}], v{V_KA} offset:{ks*64}")
        a(f"ds_read_b128 v[{132+12*ks}:{135+12*ks}], v{V_KB} offset:{ks*64}")
        a(f"ds_read_b128 v[{136+12*ks}:{139+12*ks}], v{V_KB} offset:{ks*64 + 16*G_ROW}")
        if ks >= 3:
            k = ks - 3
            a("s_waitcnt lgkmcnt(9)")
            cc0 = "0" if k == 0 else "v[20:23]"; cc1 = "0" if k == 0 else "v[24:27]"
            a(f"v_mfma_f32_16x16x32_f16 v[20:23], v[{128+12*k}:{131+12*k}], v[{132+12*k}:{135+12*k}], {cc0}")
            a(f"v_mfma_f32_16x16x32_f16 v[24:27], v[{128+12*k}:{131+12*k}], v[{136+12*k}:{139+12*k}], {cc1}")
    for k in range(5, 8):
        a(f"s_waitcnt lgkmcnt({3*(7-k)})")
        a(f"v_mfma_f32_16x16x32_f16 v[20:23], v[{128+12*k}:{131+12*k}], v[{132+12*k}:{135+12*k}], v[20:23]")
        a(f"v_mfma_f32_16x16x32_f16 v[24:27], v[{128+12*k}:{131+12*k}], v[{136+12*k}:{139+12*k}], v[24:27]")
    for nt in range(2):
        A = 20 + 4 * nt
        a(f"v_cvt_pk_f16_f32 v{28+2*nt}, v{A}, v{A+1}")
        a(f"v_cvt_pk_f16_f32 v{29+2*nt}, v{A+2}, v{A+3}")
        a(f"ds_write_b16 v{V_KSC}, v{28+2*nt} offset:{288*nt}")
        a(f"ds_write_b16_d16_hi v{V_KSC+1}, v{28+2*nt} offset:{288*nt}")
        a(f"ds_write_b16 v{V_KSC+2}, v{29+2*nt} offset:{288*nt}")
        a(f"ds_write_b16_d16_hi v{V_KSC+3}, v{29+2*nt} offset:{288*nt}")
    st(a, "kg: mfma done", 250)
    lp = newlbl("pb1")
    a(f"s_cmp_lg_u32 s{S_WAVE}, 0")
    a(f"s_cbranch_scc1 {lp}")
    a("s_mov_b32 s62, 0")
    poll(a, 8, 62, 4, 6, 64)
    a.label(lp)
    st(a, "B1 passed (wave 0)", 250)
    for r in range(40, 44): a(f"v_mov_b32 v{r}, 0")
    a("v_lshlrev_b32 v5, 4, v0")
    a("v_cmp_gt_u32 vcc, 155, v0")
    a("s_and_saveexec_b64 s[62:63], vcc")
    a(f"v_add_u32 v44, {U_BASE}, v5")
    a(f"ds_write_b128 v44, v[40:43]")
    a(f"ds_write_b128 v44, v[40:43] offset:{U_CH}")
    a("s_mov_b64 exec, s[62:63]")
    a("v_lshrrev_b32 v44, 2, v0")
    a(f"v_mul_u32_u24 v44, {KC_STRIDE}, v44")
    a("v_and_b32 v45, 3, v0")
    a("v_lshl_add_u32 v44, v45, 4, v44")
    a(f"v_add_u32 v44, {KC_BASE + 4096}, v44")
    a("v_cmp_gt_u32 vcc, 32, v0")
    a("s_and_saveexec_b64 s[62:63], vcc")
    a("ds_write_b128 v44, v[40:43]")
    a("s_mov_b64 exec, s[62:63]")
    a("s_waitcnt lgkmcnt(0)")
    a("s_barrier")
    st(a, "kg: scatter+barrier done", 250)
    conv_u_loads(a)
    bulk(a, "P6")
    for e in range(NE): a(f"ds_read_u16 v{128+e}, v{104+e}")
    a("s_waitcnt lgkmcnt(0)")
    for i in range(9):
        a(f"v_lshl_or_b32 v{161+i}, v{129+2*i}, 16, v{128+2*i}")
    for i in range(8):
        a(f"v_mov_b32 v{152+i}, v{161+i}")
    for i in range(9):
        a(f"v_lshl_or_b32 v{181+i}, v{130+2*i}, 16, v{129+2*i}")
    for i in range(8):
        a(f"v_mov_b32 v{172+i}, v{181+i}")
    for (sig, R) in ((0, 152), (1, 172), (2, 162), (3, 182)):
        a(f"ds_write_b128 v{V_KDST}, v[{R}:{R+3}] offset:{sig*KC_STRIDE}")
        a(f"ds_write_b128 v{V_KDST}, v[{R+4}:{R+7}] offset:{sig*KC_STRIDE+16}")

def conv_u_loads(a):
    l = newlbl("cu")
    a(f"s_cmp_ge_u32 s{S_WAVE}, 2")
    a(f"s_cbranch_scc1 {l}")
    a(f"s_lshl_b32 s62, s{S_WAVE}, 7")
    a("v_add_u32 v3, s62, v2")
    a("v_lshlrev_b32 v4, 13, v3")
    a(f"s_lshl_b32 s61, s{S_Q0}, 4")
    a(f"s_add_u32 s62, s61, {64*8192}")
    a(f"buffer_load_dwordx4 a[0:3], v4, s[{SRD_U2}:{SRD_U2+3}], s61 offen sc1")
    a(f"buffer_load_dwordx4 a[4:7], v4, s[{SRD_U2}:{SRD_U2+3}], s61 offen offset:16 sc1")
    a(f"buffer_load_dwordx4 a[8:11], v4, s[{SRD_U2}:{SRD_U2+3}], s62 offen sc1")
    a(f"buffer_load_dwordx4 a[12:15], v4, s[{SRD_U2}:{SRD_U2+3}], s62 offen offset:16 sc1")
    a.label(l)

def conv_u_writes(a):
    l = newlbl("cw")
    a(f"s_cmp_ge_u32 s{S_WAVE}, 2")
    a(f"s_cbranch_scc1 {l}")
    a(f"s_lshl_b32 s62, s{S_WAVE}, 7")
    a("v_add_u32 v3, s62, v2")
    a("v_lshrrev_b32 v5, 2, v3")
    a("v_mul_u32_u24 v5, 80, v5")
    a("v_and_b32 v6, 3, v3")
    a("v_lshl_add_u32 v5, v6, 4, v5")
    a(f"v_add_u32 v5, {U_BASE + 31*80}, v5")
    a("s_waitcnt vmcnt(2)")
    a(f"ds_write_b128 v5, a[0:3]")
    a(f"ds_write_b128 v5, a[4:7] offset:{U_CH}")
    a("s_waitcnt vmcnt(0)")
    a(f"ds_write_b128 v5, a[8:11] offset:{16*80}")
    a(f"ds_write_b128 v5, a[12:15] offset:{U_CH + 16*80}")
    a.label(l)

def conv_main(a):
    a(f"s_lshr_b32 s60, s{S_WAVE}, 1")
    a(f"s_and_b32 s61, s{S_WAVE}, 1")
    a("v_and_b32 v52, 31, v2")
    a("v_lshrrev_b32 v53, 5, v2")
    a(f"v_mov_b32 v54, v{V_CA}")
    a(f"v_mov_b32 v55, v{V_CB}")
    lh = newlbl("ph")
    a(f"s_cmp_lt_u32 s{S_WAVE}, 2")
    a(f"s_cbranch_scc1 {lh}")
    a(f"s_waitcnt vmcnt({hi_younger('F5')})")
    a.label(lh)
    a("s_waitcnt lgkmcnt(0)")
    a("s_barrier")
    lpa = newlbl("pa")
    a(f"s_cmp_lg_u32 s{S_WAVE}, 0")
    a(f"s_cbranch_scc1 {lpa}")
    a("s_and_b32 s62, s2, 7")
    a("s_lshl_b32 s62, s62, 7")
    a(f"s_add_u32 s62, s62, {SYNC_OFF + 8*128}")
    a("v_mov_b32 v13, s62")
    a("v_mov_b32 v14, 1")
    a("s_mov_b64 s[62:63], exec")
    a("s_mov_b64 exec, 1")
    a(f"global_atomic_add v13, v14, s[6:7] sc1")
    a("s_mov_b64 exec, s[62:63]")
    a.label(lpa)
    st(a, "conv start (U in LDS)")
    X, Y = 96, 128
    def load_list(step, R):
        kk = 30 - 2 * step
        oa = 64 * kk; ob = 80 * kk
        return [
            f"ds_read_b64 v[{R+0}:{R+1}], v54 offset:{oa+2048}",
            f"ds_read_b64 v[{R+2}:{R+3}], v54 offset:{oa+2048+8}",
            f"ds_read_b128 v[{R+16}:{R+19}], v55 offset:{ob}",
            f"ds_read_b128 v[{R+24}:{R+27}], v55 offset:{ob+2560}",
            f"ds_read_b64 v[{R+4}:{R+5}], v54 offset:{oa+2048+32}",
            f"ds_read_b64 v[{R+6}:{R+7}], v54 offset:{oa+2048+40}",
            f"ds_read_b128 v[{R+20}:{R+23}], v55 offset:{ob+32}",
            f"ds_read_b128 v[{R+28}:{R+31}], v55 offset:{ob+2560+32}",
            f"ds_read_b64 v[{R+8}:{R+9}], v54 offset:{oa}",
            f"ds_read_b64 v[{R+10}:{R+11}], v54 offset:{oa+8}",
            f"ds_read_b64 v[{R+12}:{R+13}], v54 offset:{oa+32}",
            f"ds_read_b64 v[{R+14}:{R+15}], v54 offset:{oa+40}"]
    def mfma_list(R, first):
        c0 = "0" if first else "v[64:79]"; c1 = "0" if first else "v[80:95]"
        return [
            f"v_mfma_f32_32x32x16_f16 v[64:79], v[{R+0}:{R+3}], v[{R+16}:{R+19}], {c0}",
            f"v_mfma_f32_32x32x16_f16 v[80:95], v[{R+0}:{R+3}], v[{R+24}:{R+27}], {c1}",
            f"v_mfma_f32_32x32x16_f16 v[64:79], v[{R+4}:{R+7}], v[{R+20}:{R+23}], v[64:79]",
            f"v_mfma_f32_32x32x16_f16 v[80:95], v[{R+4}:{R+7}], v[{R+28}:{R+31}], v[80:95]",
            f"v_mfma_f32_32x32x16_f16 v[80:95], v[{R+8}:{R+11}], v[{R+16}:{R+19}], v[80:95]",
            f"v_mfma_f32_32x32x16_f16 v[80:95], v[{R+12}:{R+15}], v[{R+20}:{R+23}], v[80:95]"]
    bg = dma_groups(1, 9, 0)
    for l in load_list(0, X): a(l)
    for step in range(16):
        bulk(a, f"c{step}")
        for _ in range(2 if (step % 8) in (1, 5) else 1):
            if bg and step >= 0:
                for l in bg.pop(0): a(l)
                HIQ.append("D")
        R = X if step % 2 == 0 else Y
        N = Y if step % 2 == 0 else X
        M = mfma_list(R, step == 0)
        Ls = load_list(step + 1, N) if step < 15 else []
        need_upto = [3, 4, 7, 8, 10, 12]
        issued_next = 0
        for i in range(6):
            a(f"s_waitcnt lgkmcnt({min((12 - need_upto[i]) + issued_next, 15)})")
            a(M[i])
            for l in Ls[2*i:2*i+2]: a(l); issued_next += 1
    for grp in bg:
        for l in grp: a(l)
        HIQ.append("D")
    st(a, "conv main done")
    lpf = newlbl("pf")
    a(f"s_cmp_lg_u32 s{S_WAVE}, 0")
    a(f"s_cbranch_scc1 {lpf}")
    a("v_and_b32 v50, 7, v2")
    a("v_lshlrev_b32 v50, 7, v50")
    a(f"v_add_u32 v50, {SYNC_OFF + 8*128}, v50")
    a("global_load_dword v51, v50, s[6:7] sc1")
    a.label(lpf)
    a("v_lshlrev_b32 v56, 4, v2")
    a(f"s_lshl_b32 s62, s{S_WAVE}, 12")
    a("v_add_u32 v57, s62, v56")
    a(f"s_xor_b32 s63, s{S_WAVE}, 1")
    a("s_lshl_b32 s63, s63, 12")
    a("v_add_u32 v58, s63, v56")
    l1, l2 = newlbl("cp"), newlbl("cr")
    a("s_cmp_eq_u32 s61, 0")
    a(f"s_cbranch_scc0 {l1}")
    a("s_nop 7"); a("s_nop 7")
    for g in range(4): a(f"ds_write_b128 v57, v[{80+4*g}:{83+4*g}] offset:{g*1024}")
    a(f"s_branch {l2}")
    a.label(l1)
    a("s_nop 7"); a("s_nop 7")
    for g in range(4): a(f"ds_write_b128 v57, v[{64+4*g}:{67+4*g}] offset:{g*1024}")
    for r in range(16): a(f"v_mov_b32 v{64+r}, v{80+r}")
    a.label(l2)
    a("s_lshl_b32 s62, s61, 5")
    a("v_add_u32 v59, s62, v52")
    a("v_mul_u32_u24 v60, 80, v59")
    a("v_lshl_add_u32 v60, v53, 3, v60")
    a(f"s_mul_i32 s62, s60, {U_CH}")
    a(f"s_add_u32 s62, s62, {U_BASE + 31*80}")
    a("v_add_u32 v60, s62, v60")
    for g in range(4): a(f"ds_read_b64 v[{112+2*g}:{113+2*g}], v60 offset:{g*16}")
    a("s_waitcnt lgkmcnt(0)")
    a("s_barrier")
    for g in range(4): a(f"ds_read_b128 v[{96+4*g}:{99+4*g}], v58 offset:{g*1024}")
    for g in range(4):
        a(f"v_cvt_f32_f16 v{120+4*g}, v{112+2*g}")
        a(f"v_cvt_f32_f16_sdwa v{121+4*g}, v{112+2*g} dst_sel:DWORD dst_unused:UNUSED_PAD src0_sel:WORD_1")
        a(f"v_cvt_f32_f16 v{122+4*g}, v{113+2*g}")
        a(f"v_cvt_f32_f16_sdwa v{123+4*g}, v{113+2*g} dst_sel:DWORD dst_unused:UNUSED_PAD src0_sel:WORD_1")
    for r in range(16): a(f"v_mul_f32 v{120+r}, s{S_DSK}, v{120+r}")
    for r in range(0, 16, 2): a(f"v_cvt_pk_bf16_f32 v{136+r//2}, v{120+r}, v{121+r}")
    for r in range(0, 16, 2):
        a(f"v_lshlrev_b32 v{120+r}, 16, v{136+r//2}")
        a(f"v_and_b32 v{121+r}, 0xffff0000, v{136+r//2}")
    a("s_waitcnt lgkmcnt(0)")
    for r in range(0, 16, 2): a(f"v_pk_add_f32 v[{64+r}:{65+r}], v[{64+r}:{65+r}], v[{96+r}:{97+r}]")
    for r in range(16): a(f"v_mul_f32 v{64+r}, s{S_SCALE}, v{64+r}")
    for r in range(0, 16, 2): a(f"v_cvt_pk_bf16_f32 v{136+r//2}, v{64+r}, v{65+r}")
    for r in range(0, 16, 2):
        a(f"v_lshlrev_b32 v{64+r}, 16, v{136+r//2}")
        a(f"v_and_b32 v{65+r}, 0xffff0000, v{136+r//2}")
    for r in range(0, 16, 2): a(f"v_pk_add_f32 v[{64+r}:{65+r}], v[{64+r}:{65+r}], v[{120+r}:{121+r}]")
    for r in range(0, 16, 2): a(f"v_cvt_pk_bf16_f32 v{136+r//2}, v{64+r}, v{65+r}")
    for g in (0, 2):
        A0, A1, B0, B1 = 136 + 2 * g, 137 + 2 * g, 138 + 2 * g, 139 + 2 * g
        a(f"v_permlane32_swap_b32 v{A0}, v{B0}")
        a(f"v_permlane32_swap_b32 v{A1}, v{B1}")
    a("v_mul_u32_u24 v61, 144, v59")
    a("v_lshl_add_u32 v61, v53, 5, v61")
    a("s_lshl_b32 s62, s60, 4")
    a(f"s_add_u32 s62, s62, {YB}")
    a("v_add_u32 v61, s62, v61")
    a("ds_write_b128 v61, v[136:139]")
    a("ds_write_b128 v61, v[140:143] offset:64")
    a("v_lshrrev_b32 v62, 3, v0")
    a("v_mul_u32_u24 v62, 144, v62")
    a("v_and_b32 v63, 7, v0")
    a("v_lshl_add_u32 v62, v63, 4, v62")
    a("s_waitcnt lgkmcnt(0)")
    a("s_barrier")
    ly = newlbl("yo")
    a(f"s_cmp_ge_u32 s{S_WAVE}, 2")
    a(f"s_cbranch_scc1 {ly}")
    for k in range(4):
        a(f"ds_read_b128 v[{96+4*k}:{99+4*k}], v62 offset:{YB + 16*144*k}")
    a(f"s_lshl_b32 s62, s{S_TB}, 13")
    for k in range(4):
        a(f"s_waitcnt lgkmcnt({3-k})")
        a(f"buffer_store_dwordx4 v[{96+4*k}:{99+4*k}], v{V_US}, s[{SRD_YA}:{SRD_YA+3}], s62 offen sc1")
        if k < 3: a("s_add_u32 s62, s62, 2048")
    a.label(ly)

def ln2_loads(a):
    a("v_lshrrev_b32 v4, 1, v0")
    a("v_lshlrev_b32 v4, 13, v4")
    a("v_and_b32 v5, 1, v0")
    a("v_lshl_add_u32 v4, v5, 4, v4")
    a(f"s_lshl_b32 s60, s{S_TB}, 5")
    a("s_add_u32 s62, s60, 0x100000")
    l = newlbl("ys")
    a("s_mov_b32 s61, 0")
    a.label(l)
    a(f"buffer_load_dwordx4 v[40:43], v4, s[{SRD_YA}:{SRD_YA+3}], s60 offen sc1")
    a(f"buffer_load_dwordx4 v[44:47], v4, s[{SRD_YA}:{SRD_YA+3}], s62 offen sc1")
    a("s_add_u32 s61, s61, 1")
    a("s_waitcnt vmcnt(0)")
    for x in check8(40, 12): a(x)
    a(f"s_cbranch_vccz {l}_ok")
    a(f"s_cmp_lt_u32 s61, {SPIN_MAX}")
    a(f"s_cbranch_scc1 {l}")
    a.label(l + "_ok")

def ln2_compute(a):
    a(f"s_mov_b32 s90, {INV512}")
    a(f"s_mov_b32 s91, {EPS}")
    a("s_mov_b32 s92, 0x05040100")
    a("s_mov_b32 s93, 0x07060302")
    a(f"v_mov_b32 v48, v{V_PR}")
    a(f"v_add_u32 v49, 1152, v{V_PR}")
    a("ds_write2st64_b32 v48, v40, v41 offset0:0 offset1:9")
    a("ds_write2st64_b32 v48, v42, v43 offset0:18 offset1:27")
    a("ds_write2st64_b32 v49, v44, v45 offset0:0 offset1:9")
    a("ds_write2st64_b32 v49, v46, v47 offset0:18 offset1:27")
    unpack_pairs(a, 16, VX, VX + 4)
    a("s_waitcnt lgkmcnt(0)")
    a("s_barrier")
    lw5 = newlbl("w2q")
    a(f"s_cmp_lg_u32 s{S_WAVE}, 0")
    a(f"s_cbranch_scc1 {lw5}")
    a("v_and_b32 v14, 7, v2")
    a("v_lshlrev_b32 v14, 7, v14")
    a(f"v_add_u32 v14, {SYNC_OFF}, v14")
    a("global_load_dword v15, v14, s[6:7] sc1")
    a.label(lw5)
    for c in range(8):
        a(f"ds_read_b32 v{40+c}, v{V_PW} offset:{PL2 + 32*c}")
    a("v_lshlrev_b32 v3, 4, v2")
    a(f"s_lshl_b32 s64, s{S_TB}, 13")
    a(f"s_lshl_b32 s65, s{S_WAVE}, 11")
    a("s_add_u32 s64, s64, s65")
    a("s_waitcnt lgkmcnt(0)")
    for c in range(8):
        a(f"v_lshlrev_b32 v{48+2*c}, 16, v{40+c}")
        a(f"v_and_b32 v{49+2*c}, 0xffff0000, v{40+c}")
    for c in range(8):
        a(f"v_pk_add_f32 v[{16+2*c}:{17+2*c}], v[{16+2*c}:{17+2*c}], v[{48+2*c}:{49+2*c}]")
    for c in range(8):
        a(f"v_cvt_pk_bf16_f32 v{40+c}, v{16+2*c}, v{17+2*c}")
    unpack_packed(a, 16, 8, 40)
    for i in range(4):
        a(f"v_perm_b32 v{4+i}, v{41+2*i}, v{40+2*i}, s92")
        a(f"v_perm_b32 v{8+i}, v{41+2*i}, v{40+2*i}, s93")
    a(f"buffer_store_dwordx4 v[4:7], v3, s[{SRD_H}:{SRD_H+3}], s64 offen sc1")
    a(f"buffer_store_dwordx4 v[8:11], v3, s[{SRD_H}:{SRD_H+3}], s64 offen offset:1024 sc1")
    pair_sums(a, 16, 8, 32, 34, 36)
    reduce4(a, 32, 33, 34, 35)
    ln_stats(a, 32, 33, 36, 37, SM, SR)
    ln_apply(a, 16, 8, SM, SR, 40)
    unpack_packed(a, 16, 8, 40)
    pair_sums(a, 16, 8, 32, 34, 36)
    reduce4(a, 32, 33, 34, 35)
    ln_stats(a, 32, 33, 36, 37, SM, SR)
    ln_apply(a, 16, 8, SM, SR, 40)
    lw3 = newlbl("w2p")
    a("; BGSTOP")
    a("s_waitcnt vmcnt(0)")
    a(f"s_cmp_lg_u32 s{S_WAVE}, 0")
    a(f"s_cbranch_scc1 {lw3}")
    a("v_cmp_gt_u32 vcc, 32, v15")
    a(f"s_cbranch_vccz {lw3}")
    a(f"s_mov_b32 s60, {SYNC_OFF}")
    poll(a, 6, 60, 8, 7, 32)
    a.label(lw3)
    a("s_barrier")
    planes_out(a, 40, PL2, SRD_HN, 48)

def tile_coords(a, which, sT, sC):
    a("s_and_b32 s60, s2, 7")
    a("s_lshr_b32 s61, s2, 3")
    a(f"s_and_b32 s{sT}, s60, 1")
    a(f"s_lshl_b32 s{sT}, s{sT}, 2")
    a("s_and_b32 s62, s61, 3")
    a(f"s_add_u32 s{sT}, s{sT}, s62")
    a(f"s_lshr_b32 s{sC}, s60, 1")
    a(f"s_mul_i32 s{sC}, s{sC}, {7 if which == 1 else 8}")
    a("s_lshr_b32 s62, s61, 2")
    if which == 2 and SJROT:
        a(f"s_add_u32 s62, s62, {SJROT}"); a("s_and_b32 s62, s62, 7")
    a(f"s_add_u32 s{sC}, s{sC}, s62")

VD, VTA, VTB = 240, 241, 242
def dma_setup(a, which):
    WROW = 3584 if which == 1 else 128
    a(f"v_lshrrev_b32 v{VD}, 3, v2")
    a(f"v_mul_u32_u24 v{VD}, {WROW}, v{VD}")
    a("v_and_b32 v243, 7, v2")
    a("v_lshrrev_b32 v244, 2, v2")
    a("v_and_b32 v244, 4, v244")
    a("v_xor_b32 v243, v243, v244")
    a(f"v_lshl_add_u32 v{VD}, v243, 4, v{VD}")
    a("v_bfe_u32 v243, v2, 2, 2")
    a("v_and_b32 v244, 3, v2")
    a(f"v_bfe_u32 v{VTA}, v2, 4, 1")
    a(f"v_lshlrev_b32 v{VTA}, 1, v{VTA}")
    a("v_lshrrev_b32 v245, 1, v244")
    a(f"v_add_u32 v{VTA}, v{VTA}, v245")
    a("v_lshrrev_b32 v245, 1, v243")
    a("v_lshlrev_b32 v245, 2, v245")
    a(f"v_xor_b32 v{VTA}, v{VTA}, v245")
    a(f"v_lshlrev_b32 v{VTA}, 4, v{VTA}")
    a("v_and_b32 v245, 1, v244")
    a(f"v_lshl_add_u32 v{VTA}, v245, 3, v{VTA}")
    a("v_lshrrev_b32 v245, 5, v2")
    a(f"v_lshlrev_b32 v245, {3 if which == 1 else 2}, v245")
    a("v_add_u32 v245, v245, v243")
    a(f"v_lshl_add_u32 v{VTA}, v245, 7, v{VTA}")
    a(f"v_xor_b32 v{VTB}, 64, v{VTA}")

def ring_base_sel(a, lo_base, per_wave, split, hi_base):
    a(f"s_mul_i32 s{S_RING}, s{S_WAVE}, {per_wave}")
    a(f"s_cmp_lt_u32 s{S_WAVE}, {split}")
    a(f"s_mov_b32 s60, {lo_base}")
    a(f"s_cselect_b32 s60, s60, {hi_base - split*per_wave}")
    a(f"s_add_u32 s{S_RING}, s{S_RING}, s60")
    a(f"s_lshr_b32 s60, s{S_WAVE}, 1")
    a("s_lshl_b32 s60, s60, 6")
    a(f"v_xor_b32 v246, s60, v{VTA}")
    a(f"v_xor_b32 v247, 64, v246")
    a(f"v_add_u32 v246, s{S_RING}, v246")
    a(f"v_add_u32 v247, s{S_RING}, v247")

def ring_base(a, per_wave, base):
    a(f"s_mul_i32 s{S_RING}, s{S_WAVE}, {per_wave}")
    if base: a(f"s_add_u32 s{S_RING}, s{S_RING}, {base}")
    a(f"s_lshr_b32 s60, s{S_WAVE}, 1")
    a("s_lshl_b32 s60, s60, 6")
    a(f"v_xor_b32 v246, s60, v{VTA}")
    a(f"v_xor_b32 v247, 64, v246")
    a(f"v_add_u32 v246, s{S_RING}, v246")
    a(f"v_add_u32 v247, s{S_RING}, v247")

S_WA, S_WB = 76, 77
def dma_groups(which, n, slot0):
    WROW = 3584 if which == 1 else 128
    srdw = SRD_W1 if which == 1 else SRD_W2R
    sc = "" if which == 1 else " sc1"
    g = []
    for i in range(n):
        g.append([f"s_add_u32 m0, s{S_RING}, {(slot0+i)*2048}",
                  f"buffer_load_dwordx4 v{VD}, s[{srdw}:{srdw+3}], s{S_WA} offen{sc} lds",
                  f"s_add_u32 s{S_WA}, s{S_WA}, {16*WROW}"])
        g.append([f"s_add_u32 m0, s{S_RING}, {(slot0+i)*2048+1024}",
                  f"buffer_load_dwordx4 v{VD}, s[{srdw}:{srdw+3}], s{S_WB} offen{sc} lds",
                  f"s_add_u32 s{S_WB}, s{S_WB}, {16*WROW}"])
    return g

def dma_issue(a, which, n, slot0):
    for grp in dma_groups(which, n, slot0):
        for l in grp: a(l)

SCC_READ = ('s_cbranch_scc', 's_cselect', 's_addc', 's_subb', 's_cmov')
SCC_WRITE = ('s_cmp', 's_add_', 's_sub_', 's_and_', 's_or_', 's_xor_', 's_lshl', 's_lshr', 's_bitcmp', 's_min', 's_max', 's_ashr', 's_not', 's_bfe')
def scc_safe(lines, i):
    for l in lines[i:]:
        op = l.split()[0]
        if op.startswith(SCC_READ): return False
        if op.startswith(SCC_WRITE) or op.endswith(':') or op in ('s_branch', 's_endpgm', 's_barrier'): return True
    return True

def with_bg(a, fg, groups, skip=0, stride=20, after=None, before=None):
    i0 = len(a.lines)
    fg()
    body = a.lines[i0:]
    del a.lines[i0:]
    start = skip
    if after is not None:
        start = next(k for k, l in enumerate(body) if after in l) + 1 + skip
    out = []; gi = 0; nxt = start
    stop = False
    for k, l in enumerate(body):
        if before is not None and not stop and before in l:
            stop = True
            while gi < len(groups):
                out += groups[gi]; gi += 1
        if not stop and gi < len(groups) and k >= nxt and scc_safe(body, k) and not l.endswith(':'):
            out += groups[gi]; gi += 1; nxt = k + stride
        out.append(l)
    while gi < len(groups):
        out += groups[gi]; gi += 1
    a.lines += out

def tr_to_acc(a, which, steps, slot0):
    RHO = 512 if which == 1 else 1024
    for i, s in enumerate(steps):
        o = (slot0 + i) * 2048
        a(f"ds_read_b64_tr_b16 a[{8*s}:{8*s+1}], v246 offset:{o}")
        a(f"ds_read_b64_tr_b16 a[{8*s+2}:{8*s+3}], v246 offset:{o+RHO}")
        a(f"ds_read_b64_tr_b16 a[{8*s+4}:{8*s+5}], v247 offset:{o}")
        a(f"ds_read_b64_tr_b16 a[{8*s+6}:{8*s+7}], v247 offset:{o+RHO}")
        if i % 3 == 2: a("s_waitcnt lgkmcnt(4)")

def woff_init(a, which, sC):
    WROW = 3584 if which == 1 else 128
    if which == 1:
        a(f"s_mul_i32 s{S_WA}, s{S_WAVE}, {32*16*3584}")
        a(f"s_lshl_b32 s60, s{sC}, 7")
    else:
        a(f"s_mul_i32 s{S_WA}, s{S_WAVE}, {28*16*128}")
        a(f"s_mul_i32 s60, s{sC}, {W2R_TILE}")
    a(f"s_add_u32 s{S_WA}, s{S_WA}, s60")
    a(f"s_add_u32 s{S_WB}, s{S_WA}, {8*WROW}")

def gemm_lane_consts(a):
    a("v_lshrrev_b32 v6, 5, v2")
    a("v_and_b32 v7, 31, v2")
    a("v_lshlrev_b32 v10, 13, v6")
    a("v_lshl_add_u32 v10, v7, 4, v10")
    a(f"s_and_b32 s60, s{S_WAVE}, 1")
    a("s_lshl_b32 s60, s60, 9")
    a("v_xor_b32 v8, s60, v10")
    a("v_xor_b32 v9, 512, v8")

def main_loop(a, which, srda, soff, D0):
    NK = 32 if which == 1 else 28
    DR = 14
    ab = lambda s: 128 + 8 * (s % DR)
    issued = [0]
    def issue():
        s = issued[0]
        if s >= NK: return []
        R = ab(s); issued[0] += 1
        return [f"buffer_load_dwordx4 v[{R}:{R+3}], v8, s[{srda}:{srda+3}], s{soff} offen sc1",
                f"buffer_load_dwordx4 v[{R+4}:{R+7}], v9, s[{srda}:{srda+3}], s{soff} offen sc1\ns_add_u32 s{soff}, s{soff}, 16384"]
    for s in range(D0):
        for l in issue(): a(l)
    for s in range(NK):
        a(f"s_waitcnt vmcnt({2*(issued[0] - 1 - s)})")
        nxt = issue() if (issued[0] - s) < DR else []
        R = ab(s); k = 0
        for wt in range(2):
            for at in range(2):
                acc = 64 + 32 * wt + 16 * at
                wq = f"a[{8*s+4*wt}:{8*s+4*wt+3}]"; aq = f"v[{R+4*at}:{R+4*at+3}]"
                cc = "0" if s == 0 else f"v[{acc}:{acc+15}]"
                if which == 1: a(f"v_mfma_f32_32x32x16_bf16 v[{acc}:{acc+15}], {wq}, {aq}, {cc}")
                else: a(f"v_mfma_f32_32x32x16_bf16 v[{acc}:{acc+15}], {aq}, {wq}, {cc}")
                if k == 0 and nxt: a(nxt[0])
                if k == 2 and nxt: a(nxt[1])
                k += 1

def check8(R, T):
    return [f"v_max3_u32 v{T}, v{R}, v{R+1}, v{R+2}", f"v_max3_u32 v{T}, v{T}, v{R+3}, v{R+4}", f"v_max3_u32 v{T}, v{T}, v{R+5}, v{R+6}",
            f"v_max_u32 v{T}, v{T}, v{R+7}", f"v_cmp_eq_u32 vcc, -1, v{T}"]

SPIN_MAX = 0x20000
def probe_spin(a, srd_, vaddr, soff_sgpr):
    l = newlbl("pr")
    a("s_mov_b32 s61, 0")
    a.label(l)
    a(f"buffer_load_dword v14, v{vaddr}, s[{srd_}:{srd_+3}], s{soff_sgpr} offen sc1")
    a("s_add_u32 s61, s61, 1")
    a("s_waitcnt vmcnt(0)")
    a("v_cmp_eq_u32 vcc, -1, v14")
    a(f"s_cbranch_vccz {l}_ok")
    a(f"s_cmp_lt_u32 s61, {SPIN_MAX}")
    a(f"s_cbranch_scc1 {l}")
    a.label(l + "_ok")

RETRY = []
def main_loop2(a, which, srda, sbase, D0):
    NK = 32 if which == 1 else 28
    DR = 14
    ab = lambda s: 128 + 8 * (s % DR)
    a(f"s_mov_b32 s73, s{sbase}")
    issued = [0]
    def issue():
        s = issued[0]
        if s >= NK: return []
        R = ab(s); issued[0] += 1
        return [f"buffer_load_dwordx4 v[{R}:{R+3}], v8, s[{srda}:{srda+3}], s73 offen sc1",
                f"buffer_load_dwordx4 v[{R+4}:{R+7}], v9, s[{srda}:{srda+3}], s73 offen sc1\ns_add_u32 s73, s73, 16384"]
    def retry(t):
        lr, lb = newlbl("rt"), newlbl("rb")
        R = ab(t)
        blk = [lr + ":", "s_mov_b32 s61, 0", f"s_add_u32 s62, s{sbase}, {t*16384}", lr + "_l:",
               f"buffer_load_dwordx4 v[{R}:{R+3}], v8, s[{srda}:{srda+3}], s62 offen sc1",
               f"buffer_load_dwordx4 v[{R+4}:{R+7}], v9, s[{srda}:{srda+3}], s62 offen sc1",
               "s_add_u32 s61, s61, 1", "s_waitcnt vmcnt(0)"] + check8(R, 12) + \
              [f"s_cbranch_vccz {lb}", f"s_cmp_lt_u32 s61, {SPIN_MAX}", f"s_cbranch_scc1 {lr}_l", f"s_branch {lb}"]
        RETRY.extend(blk)
        return lr, lb
    for s in range(D0):
        for l in issue(): a(l)
    a(f"s_waitcnt vmcnt({2*(issued[0] - 1)})")
    for l in check8(ab(0), 12): a(l)
    lr, lb = retry(0)
    a(f"s_cbranch_vccnz {lr}")
    a.label(lb)
    for s in range(NK):
        nxt = issue() if (issued[0] - s) < DR and (issued[0] - s) <= D0 else []
        R = ab(s); k = 0
        for wt in range(2):
            for at in range(2):
                acc = 64 + 32 * wt + 16 * at
                wq = f"a[{8*s+4*wt}:{8*s+4*wt+3}]"; aq = f"v[{R+4*at}:{R+4*at+3}]"
                cc = "0" if s == 0 else f"v[{acc}:{acc+15}]"
                if which == 1: a(f"v_mfma_f32_32x32x16_bf16 v[{acc}:{acc+15}], {wq}, {aq}, {cc}")
                else: a(f"v_mfma_f32_32x32x16_bf16 v[{acc}:{acc+15}], {aq}, {wq}, {cc}")
                if k == 0 and nxt: a(nxt[0])
                if k == 1:
                    if nxt: a(nxt[1])
                    if s + 1 < NK:
                        a(f"s_waitcnt vmcnt({2*(issued[0] - 1 - (s + 1))})")
                        for l in check8(ab(s + 1), 12): a(l)
                k += 1
        if s + 1 < NK:
            lr, lb = retry(s + 1)
            a("s_nop 2")
            a(f"s_cbranch_vccnz {lr}")
            a.label(lb)

def reduce_write(a):
    a("v_lshlrev_b32 v13, 4, v2")
    for j in (1, 2, 3):
        wt, at = j >> 1, j & 1
        acc = 64 + 32 * wt + 16 * at
        a(f"s_xor_b32 s60, s{S_WAVE}, {j}")
        a(f"s_mul_i32 s60, s60, {3*4096}")
        a(f"s_add_u32 s60, s60, {(j-1)*4096}")
        a(f"v_add_u32 v14, s60, v13")
        for g in range(4):
            a(f"ds_write_b128 v14, v[{acc+4*g}:{acc+4*g+3}] offset:{g*1024}")

def reduce_read(a):
    a(f"s_mul_i32 s60, s{S_WAVE}, {3*4096}")
    a("v_add_u32 v14, s60, v13")
    for j in range(3):
        for g in range(4):
            a(f"ds_read_b128 v[{128+16*j+4*g}:{131+16*j+4*g}], v14 offset:{j*4096+g*1024}")
    P = lambda b, r: f"v[{b+r}:{b+r+1}]"
    a("s_waitcnt lgkmcnt(8)")
    for r in range(0, 16, 2): a(f"v_pk_add_f32 {P(64,r)}, {P(64,r)}, {P(128,r)}")
    a("s_waitcnt lgkmcnt(0)")
    for r in range(0, 16, 2): a(f"v_pk_add_f32 {P(144,r)}, {P(144,r)}, {P(160,r)}")
    for r in range(0, 16, 2): a(f"v_pk_add_f32 {P(128,r)}, {P(64,r)}, {P(144,r)}")

def gelu16(a, X, T):
    a("s_mov_b32 s66, 0x3d372713")
    a("s_mov_b32 s67, 0x3d372713")
    kk = -2.0 * 1.4426950408889634 * 0.7978845608028654
    kb = hex(struct.unpack('<I', struct.pack('<f', kk))[0])
    a(f"s_mov_b32 s68, {kb}"); a(f"s_mov_b32 s69, {kb}")
    P = lambda b, r: f"v[{b+r}:{b+r+1}]"
    for r in range(0, 16, 2): a(f"v_pk_mul_f32 {P(T,r)}, {P(X,r)}, {P(X,r)}")
    for r in range(0, 16, 2): a(f"v_pk_mul_f32 {P(T,r)}, {P(T,r)}, s[66:67]")
    for r in range(0, 16, 2): a(f"v_pk_fma_f32 {P(T,r)}, {P(T,r)}, {P(X,r)}, {P(X,r)}")
    for r in range(0, 16, 2): a(f"v_pk_mul_f32 {P(T,r)}, {P(T,r)}, s[68:69]")
    for r in range(16): a(f"v_exp_f32 v{T+r}, v{T+r}")
    for r in range(16): a(f"v_add_f32 v{T+r}, 1.0, v{T+r}")
    for r in range(16): a(f"v_rcp_f32 v{T+r}, v{T+r}")
    for r in range(0, 16, 2): a(f"v_pk_mul_f32 {P(X,r)}, {P(X,r)}, {P(T,r)}")

def epi1_loads(a):
    a(f"s_lshr_b32 s61, s{S_WAVE}, 1")
    a(f"s_lshl_b32 s72, s{S_FJ}, 6")
    a("s_lshl_b32 s64, s61, 5")
    a("s_add_u32 s72, s72, s64")
    a("s_lshl_b32 s64, s72, 1")
    a("v_lshlrev_b32 v15, 3, v6")
    a("v_add_u32 v15, s64, v15")
    for g in range(4):
        a(f"global_load_dwordx2 v[{20+2*g}:{21+2*g}], v15, s[{S_B1}:{S_B1+1}] offset:{16*g}")

def epi1(a):
    P = lambda b, r: f"v[{b+r}:{b+r+1}]"
    reduce_read(a)
    for r in range(0, 16, 2): a(f"v_cvt_pk_bf16_f32 v{144+r//2}, v{128+r}, v{129+r}")
    for r in range(0, 16, 2):
        a(f"v_lshlrev_b32 v{128+r}, 16, v{144+r//2}")
        a(f"v_and_b32 v{129+r}, 0xffff0000, v{144+r//2}")
    for g in range(4):
        a(f"v_lshlrev_b32 v{160+4*g}, 16, v{20+2*g}")
        a(f"v_and_b32 v{161+4*g}, 0xffff0000, v{20+2*g}")
        a(f"v_lshlrev_b32 v{162+4*g}, 16, v{21+2*g}")
        a(f"v_and_b32 v{163+4*g}, 0xffff0000, v{21+2*g}")
    for r in range(0, 16, 2): a(f"v_pk_add_f32 {P(128,r)}, {P(128,r)}, {P(160,r)}")
    for r in range(0, 16, 2): a(f"v_cvt_pk_bf16_f32 v{144+r//2}, v{128+r}, v{129+r}")
    for r in range(0, 16, 2):
        a(f"v_lshlrev_b32 v{128+r}, 16, v{144+r//2}")
        a(f"v_and_b32 v{129+r}, 0xffff0000, v{144+r//2}")
    gelu16(a, 128, 160)
    for r in range(0, 16, 2): a(f"v_cvt_pk_bf16_f32 v{144+r//2}, v{128+r}, v{129+r}")
    a("s_lshr_b32 s64, s72, 4")
    a("s_lshl_b32 s64, s64, 14")
    a(f"s_lshl_b32 s65, s{S_T1}, 10")
    a("s_add_u32 s64, s64, s65")
    a(f"s_and_b32 s62, s{S_WAVE}, 1")
    a("s_lshl_b32 s65, s62, 9")
    a("s_add_u32 s64, s64, s65")
    a(f"buffer_store_dwordx4 v[144:147], v10, s[{SRD_G2}:{SRD_G2+3}], s64 offen sc1")
    a("s_add_u32 s64, s64, 16384")
    a(f"buffer_store_dwordx4 v[148:151], v10, s[{SRD_G2}:{SRD_G2+3}], s64 offen sc1")

def epi2_loads(a):
    a(f"s_lshr_b32 s61, s{S_WAVE}, 1")
    a(f"s_and_b32 s62, s{S_WAVE}, 1")
    a(f"s_lshl_b32 s63, s{S_SJ}, 6")
    a("s_lshl_b32 s64, s61, 5")
    a("s_add_u32 s63, s63, s64")
    a("v_add_u32 v15, s63, v7")
    a("v_lshlrev_b32 v16, 10, v15")
    a("v_lshl_add_u32 v16, v6, 6, v16")
    a(f"s_lshl_b32 s70, s{S_T2}, 7")
    a("s_lshl_b32 s64, s62, 3")
    a("s_add_u32 s70, s70, s64")
    for r in range(4):
        a(f"buffer_load_dwordx2 v[{20+2*r}:{21+2*r}], v16, s[{SRD_H}:{SRD_H+3}], s70 offen offset:{16*r} sc1")
    a("v_lshlrev_b32 v17, 1, v15")
    a(f"global_load_ushort v18, v17, s[{S_B2}:{S_B2+1}]")

def epi2(a):
    P = lambda b, r: f"v[{b+r}:{b+r+1}]"
    reduce_read(a)
    for r in range(4):
        a(f"v_cvt_pk_bf16_f32 v{144+2*r}, v{128+r}, v{132+r}")
        a(f"v_cvt_pk_bf16_f32 v{145+2*r}, v{136+r}, v{140+r}")
    a("v_lshlrev_b32 v18, 16, v18")
    a("v_mov_b32 v19, v18")
    for i in range(8):
        a(f"v_lshlrev_b32 v{160+2*i}, 16, v{144+i}")
        a(f"v_and_b32 v{161+2*i}, 0xffff0000, v{144+i}")
    for r in range(0, 16, 2): a(f"v_pk_add_f32 {P(160,r)}, {P(160,r)}, v[18:19]")
    for i in range(8): a(f"v_cvt_pk_bf16_f32 v{144+i}, v{160+2*i}, v{161+2*i}")
    for i in range(8):
        a(f"v_lshlrev_b32 v{160+2*i}, 16, v{144+i}")
        a(f"v_and_b32 v{161+2*i}, 0xffff0000, v{144+i}")
        a(f"v_lshlrev_b32 v{176+2*i}, 16, v{20+i}")
        a(f"v_and_b32 v{177+2*i}, 0xffff0000, v{20+i}")
    for r in range(0, 16, 2): a(f"v_pk_add_f32 {P(160,r)}, {P(160,r)}, {P(176,r)}")
    for i in range(8): a(f"v_cvt_pk_bf16_f32 v{144+i}, v{160+2*i}, v{161+2*i}")
    for r in range(4):
        a(f"buffer_store_dwordx2 v[{144+2*r}:{145+2*r}], v16, s[{SRD_OUT}:{SRD_OUT+3}], s70 offen offset:{16*r}")

D0_G1, D0_G2 = 6, 6
NPRE = 14
TOUCH = True
SJROT = 0
TOUCHREV = False
REMAP = False
ALIGN = True
CODEPF = True
def gen_fused(a):
    kernel_header(a, KNAME)
    stamp_begin(a)
    if DBGST is not None: a("s_memrealtime s[98:99]")
    a("s_cmp_ge_u32 s2, 256")
    a("s_cbranch_scc1 L_exit")
    if REMAP:
        a("s_and_b32 s4, s2, 7"); a("s_lshl_b32 s4, s4, 5"); a("s_lshr_b32 s2, s2, 3"); a("s_or_b32 s2, s2, s4")
    prologue(a)
    ln1(a)
    st(a, "LN1 done (stores issued)", 250)
    a("s_and_b32 s60, s2, 3")
    a("s_lshl_b32 s60, s60, 6")
    arrive(a, 8, 60, lo_only=True)
    st(a, "B1 arrived", 250)
    a("s_waitcnt vmcnt(2)")
    bulk(a, "P2")
    kgen(a)
    st(a, "Kgen done", 250)
    ring_base_sel(a, 25600, 18432, 2, 125440)
    woff_init(a, 1, S_FJ)
    conv_u_writes(a)
    conv_main(a)
    st(a, "conv epilogue done (stores issued)")
    lw, lw2 = newlbl("ws"), newlbl("ws")
    a(f"s_cmp_lt_u32 s{S_WAVE}, 2")
    a(f"s_cbranch_scc1 {lw}")
    a("s_waitcnt vmcnt(0)")
    a(f"s_branch {lw2}")
    a.label(lw)
    a("s_waitcnt vmcnt(4)")
    lq = newlbl("pq")
    a(f"s_cmp_lg_u32 s{S_WAVE}, 0")
    a(f"s_cbranch_scc1 {lw2}")
    a("v_cmp_gt_u32 vcc, 32, v51")
    a(f"s_cbranch_vccz {lw2}")
    a(f"s_mov_b32 s60, {SYNC_OFF + 8*128}")
    poll(a, 6, 60, 8, 7, 32)
    a.label(lw2)
    tr_to_acc(a, 1, range(9), 0)
    a("s_waitcnt lgkmcnt(0)")
    a("s_barrier")
    lw4 = newlbl("w2a")
    a(f"s_cmp_lg_u32 s{S_WAVE}, 0")
    a(f"s_cbranch_scc1 {lw4}")
    a("s_and_b32 s60, s2, 7")
    a("s_lshl_b32 s60, s60, 7")
    a(f"s_add_u32 s60, s60, {SYNC_OFF}")
    a("v_mov_b32 v13, s60")
    a("v_mov_b32 v14, 1")
    a("s_mov_b64 s[62:63], exec")
    a("s_mov_b64 exec, 1")
    a(f"global_atomic_add v13, v14, s[6:7] sc1")
    a("s_mov_b64 exec, s[62:63]")
    a.label(lw4)
    ring_base_sel(a, 0, 34816, 3, 125440)
    dma_issue(a, 1, 10, 0)
    st(a, "w1 DMA B issued")
    ln2_loads(a)
    st(a, "YA ready")
    def trgrp(sidx, slot, va=246, vb=247, rho=512):
        o = slot * 2048
        return [f"ds_read_b64_tr_b16 a[{8*sidx}:{8*sidx+1}], v{va} offset:{o}", f"ds_read_b64_tr_b16 a[{8*sidx+2}:{8*sidx+3}], v{va} offset:{o+rho}",
                f"ds_read_b64_tr_b16 a[{8*sidx+4}:{8*sidx+5}], v{vb} offset:{o}", f"ds_read_b64_tr_b16 a[{8*sidx+6}:{8*sidx+7}], v{vb} offset:{o+rho}"]
    grp = [trgrp(9 + i, i) for i in range(6)]
    d1 = dma_groups(1, 7, 10)
    d2 = dma_groups(1, 6, 0)
    d2[0] = ["s_waitcnt lgkmcnt(0)"] + d2[0]
    with_bg(a, lambda: ln2_compute(a), grp + d1 + d2, skip=6, stride=9, after="ds_read_b32 v47", before="BGSTOP")
    st(a, "LN2 done (stores issued)")
    for i in range(15, 26):
        for l in trgrp(i, i - 9): a(l)
        if i % 3 == 2: a("s_waitcnt lgkmcnt(4)")
    for i in range(26, 32):
        for l in trgrp(i, i - 26): a(l)
        if i % 3 == 2: a("s_waitcnt lgkmcnt(4)")
    gemm_lane_consts(a)
    dma_setup(a, 2)
    a("s_waitcnt lgkmcnt(0)")
    a("s_barrier")
    ring_base(a, 28672, RED_BYTES)
    woff_init(a, 2, S_SJ)
    dma_issue(a, 2, NPRE, 0)
    st(a, "w2 DMA A issued")
    a("s_cmp_ge_u32 s2, 224")
    a("s_cbranch_scc1 L_skipG1")
    a(f"s_mul_i32 s71, s{S_WAVE}, {32*16384}")
    a(f"s_lshl_b32 s60, s{S_T1}, 10")
    a("s_add_u32 s71, s71, s60")
    a("v_lshlrev_b32 v15, 13, v2")
    a("v_add_u32 v15, 1020, v15")
    probe_spin(a, SRD_HN, 15, 71)
    st(a, "HN probe ok")
    epi1_loads(a)
    a("s_waitcnt lgkmcnt(0)")
    main_loop2(a, 1, SRD_HN, 71, D0_G1)
    st(a, "G1 main done")
    def g1_tail():
        reduce_write(a)
        a("s_waitcnt lgkmcnt(0)")
        a("s_barrier")
        epi1(a)
    tr_to_acc(a, 2, range(NPRE), 0)
    a("s_waitcnt lgkmcnt(0)")
    a("s_barrier")
    with_bg(a, g1_tail, dma_groups(2, 14, 0), skip=2, stride=7)
    st(a, "epi1 done (stores issued)")
    dma_issue(a, 2, 28 - NPRE - 14, 14) if 28 - NPRE - 14 > 0 else None
    a("s_branch L_stage2")
    a.label("L_skipG1")
    a("s_waitcnt vmcnt(0) lgkmcnt(0)")
    tr_to_acc(a, 2, range(NPRE), 0)
    a("s_waitcnt lgkmcnt(0)")
    dma_issue(a, 2, 28 - NPRE, 0)
    a.label("L_stage2")
    a("s_waitcnt vmcnt(0)")
    tr_to_acc(a, 2, range(NPRE, 28), 0)
    a(f"s_mul_i32 s71, s{S_WAVE}, {28*16384}")
    a(f"s_lshl_b32 s60, s{S_T2}, 10")
    a("s_add_u32 s71, s71, s60")
    a("v_min_u32 v15, 55, v2")
    a("v_lshlrev_b32 v15, 13, v15")
    a("v_add_u32 v15, 1020, v15")
    st(a, "w2 staged")
    probe_spin(a, SRD_G2, 15, 71)
    st(a, "G probe ok")
    epi2_loads(a)
    a("s_waitcnt lgkmcnt(0)")
    main_loop2(a, 2, SRD_G2, 71, D0_G2)
    st(a, "G2 main done")
    a("s_barrier")
    reduce_write(a)
    a("s_waitcnt lgkmcnt(0)")
    a("s_barrier")
    epi2(a)
    a("s_waitcnt vmcnt(0)") if STAMPON() else None
    st(a, "end", final=True)
    a.label("L_exit")
    a("s_endpgm")
    for l in RETRY: a.lines.append(l)
    a.label("L_code_end")
    a("s_endpgm")
    return kernel_desc(KNAME, 512, 100, accum=256)

def touch_setup(a):
    a("s_and_b32 s60, s2, 7")
    a("s_lshr_b32 s60, s60, 1")
    a("s_lshr_b32 s61, s2, 3")
    a(f"s_and_b32 s62, s{S_WAVE}, 1")
    a("s_lshl_b32 s62, s62, 9")
    a("s_lshl_b32 s63, s61, 6")
    a(f"v_add_u32 v{V_TW1}, s63, v2")
    a(f"v_mul_u32_u24 v{V_TW1}, 3584, v{V_TW1}")
    a("s_mul_i32 s63, s60, 896")
    a("s_add_u32 s63, s63, s62")
    a(f"v_add_u32 v{V_TW1}, s63, v{V_TW1}")
    a("s_mul_i32 s79, s2, 28672")
    a(f"s_and_b32 s61, s{S_WAVE}, 1")
    a("s_mul_i32 s61, s61, 14336")
    a("s_add_u32 s79, s79, s61")

BULK = {"P0": ["T0"], "P1": ["T1"], "P2": ["F0", "F1", "T2"], "P3": ["F2", "F3", "T3", "C0"], "P5": ["F4", "F5", "C1"], "P6": ["C2", "C3"],
        "c0": ["C4"], "c1": ["C5"], "c2": ["C6"], "c10": ["S0", "S1", "S2"], "c11": ["S3", "S4"], "c12": ["S5", "S6", "S7"], "c13": ["S8", "S9"], "c14": ["S10", "S11"], "c15": ["S12", "S13"]}
HIQ = []
def hi_younger(tag):
    idx = max(i for i, t in enumerate(HIQ) if t == tag)
    return len(HIQ) - 1 - idx
def bulk(a, slot):
    ops = BULK.get(slot, [])
    if not ops: return
    for op in ops:
        if op[0] == "F":
            prefill_op(a, int(op[1:])); HIQ.append(op)
    ops = [o for o in ops if o[0] != "F"]
    if not TOUCH: ops = [o for o in ops if o[0] != "T"]
    if not ops: return
    l = newlbl("bk")
    a(f"s_cmp_lt_u32 s{S_WAVE}, 2")
    a(f"s_cbranch_scc1 {l}")
    for op in ops:
        k = int(op[1:])
        if op[0] == "T":
            a(f"buffer_load_dword a199, v{V_TW1}, s[{SRD_W1}:{SRD_W1+3}], 0 offen offset:{128*k}"); HIQ.append(op)
        elif op[0] == "C":
            a("v_lshlrev_b32 v255, 4, v2")
            for i in (2 * k, 2 * k + 1):
                a(f"buffer_load_dwordx4 a[{A_CP+4*i}:{A_CP+4*i+3}], v255, s[{SRD_W2}:{SRD_W2+3}], s79 offen offset:{(i%4)*1024}")
                if i % 4 == 3: a("s_add_u32 s79, s79, 4096")
                HIQ.append("C")
        else:
            if k == 0:
                a(f"s_waitcnt vmcnt({hi_younger('C')})")
                w2copy_dst(a)
            for x in w2copy_store(a, k): a(x)
            HIQ.append("S")
    a.label(l)

A_CP = 200
def w2copy_dst(a):
    a("v_lshrrev_b32 v245, 3, v2")
    a(f"s_mov_b32 s74, {W2R_TILE}")
    a("v_mul_lo_u32 v245, v245, s74")
    a(f"v_and_b32 v{V_TW2}, 7, v2")
    a(f"v_lshl_add_u32 v{V_TW2}, v{V_TW2}, 4, v245")

def w2copy_store(a, i):
    return [f"s_and_b32 s74, s{S_WAVE}, 1",
            "s_mul_i32 s74, s74, 14",
            f"s_add_u32 s74, s74, {i}",
            "s_and_b32 s75, s74, 3",
            f"s_mul_i32 s75, s75, {8*W2R_TILE}",
            "s_lshr_b32 s74, s74, 2",
            "s_lshl_b32 s74, s74, 7",
            "s_add_u32 s75, s75, s74",
            "s_mul_i32 s74, s2, 896",
            "s_add_u32 s75, s75, s74",
            f"buffer_store_dwordx4 a[{A_CP+4*i}:{A_CP+4*i+3}], v{V_TW2}, s[{SRD_W2R}:{SRD_W2R+3}], s75 offen sc1"]

def build(path):
    a = Asm()
    hdr = open("cdna_kernels/" + NAME + ".s.ref").read().split("; Override launch geometry")[0]
    txt = hdr + f"; @launch grid=(256,1,1) block=(256,1,1) lds={LDS_TOTAL}\n" + '.amdgcn_target "amdgcn-amd-amdhsa--gfx950"\n'
    d = gen_fused(a)
    body = a.finalize()
    if ALIGN:
        import asmlib
        body, np_, nn_ = asmlib.align8(body)
        print("align8: promoted", np_, "nops", nn_)
    txt += body + d
    open(path, "w").write(txt)
    open(path + ".names", "w").write("".join(f"{k} {v}\n" for k, v in ST_NAMES.items()))

if __name__ == "__main__":
    import sys, common
    if "--stamp" in sys.argv:
        common.STAMP = True; sys.argv.remove("--stamp")
    if "--notouch" in sys.argv: TOUCH = False
    if "--remap" in sys.argv: REMAP = True
    for x in sys.argv:
        if x.startswith("--bulk="): BULK = eval(x[7:])
        if x.startswith("--d0="): D0_G1 = D0_G2 = int(x[5:])
    if "--sjrot" in sys.argv: SJROT = 2
    if "--touchrev" in sys.argv: TOUCHREV = True
    if "--noalign" in sys.argv: ALIGN = False
    if "--nocodepf" in sys.argv: CODEPF = False
    if "--dbgst" in sys.argv:
        DBGST = ["LN1 done (stores issued)", "B1 arrived", "Kgen done", "B1 passed", "conv start (U in LDS)", "conv main done", "B2 arrived", "B2 passed",
                 "LN2 done (stores issued)", "B3 passed", "G1 main done", "B4 arrived", "B4 passed", "G2 main done", "end"]
    build(sys.argv[1])
```

```python
from common import *
from k1 import cmul, wave_max, G_ROW, H_BASE, FT_BASE, FT_DUMMY
import struct

KNAME = NAME + "_kernel"
KG_CH = 27984 + 5888
KC_BASE = 2 * KG_CH
KC_STRIDE = 4160
KCH = 4 * KC_STRIDE
U_BASE = KC_BASE + 2 * KCH
U_CH = 95 * 80
LDS_TOTAL = 163840
FT_ZERO = 2060
RED_BYTES = 49152
D_RING = 8
S_WAVE, S_Q0 = 10, 11
SRD_X, SRD_U2, SRD_YA, SRD_H, SRD_HN, SRD_G2, SRD_W1, SRD_W2, SRD_OUT = 12, 16, 20, 24, 28, 32, 36, 40, 44
SRD_W2R = 80
S_B1, S_B2 = 48, 50
S_SCALE, S_DSK = 52, 53
S_T1, S_FJ, S_T2, S_SJ = 54, 55, 56, 57
S_WOFF, S_RING = 58, 59
SM, SR = 84, 86
C_B2, C_B3, C_B4 = 0, 8, 16
KIDX = 0
S_TB = 5
VX = 224
V_KROW, V_KA, V_KB, V_KSC, V_KDST = 232, 233, 234, 235, 239
V_CA, V_CB = 248, 249
V_PW, V_PR, V_US = 252, 253, 254
V_TW1, V_TW2 = 1, 30
PL = 116224
PL1 = PL2 = 0
YB = 16384

ST_NAMES = {}
DIAG_THR = 0
DBGST = None
_st = [2]
def st(a, name, vt=60, final=False):
    if DBGST is not None:
        if name in DBGST:
            k = DBGST.index(name) + 1
            l = newlbl("ds")
            a("s_memrealtime s[96:97]")
            a(f"s_or_b32 s94, s2, s{S_WAVE}")
            a("s_cmp_lg_u32 s94, 0")
            a("s_waitcnt lgkmcnt(0)")
            a(f"s_cbranch_scc1 {l}")
            a("s_sub_u32 s96, s96, s98")
            a(f"v_mov_b32 v{vt}, {4*k}")
            a(f"v_mov_b32 v{vt+1}, s96")
            a(f"global_store_dword v{vt}, v{vt+1}, s[8:9]")
            a.label(l)
        return
    slot = 1 if final else _st[0]
    if not final: _st[0] += 1
    ST_NAMES[slot] = name
    stamp(a, KIDX, slot, 6, vt)

def evalE(a, D, v, zr, zi, t, conj=False):
    bits = struct.unpack('<I', struct.pack('<f', float(v)))[0]
    a(f"s_mov_b32 s78, {hex(bits)}")
    a(f"v_mul_f32 v{t}, s78, v{zr}")
    a(f"v_mul_f32 v{t+1}, s78, v{zi}")
    a(f"v_exp_f32 v{t}, v{t}")
    a(f"v_rndne_f32 v{t+2}, v{t+1}")
    a(f"v_sub_f32 v{t+1}, v{t+1}, v{t+2}")
    a(f"v_cos_f32 v{D}, v{t+1}")
    a(f"v_sin_f32 v{D+1}, v{t+1}")
    a(f"v_mul_f32 v{D}, v{D}, v{t}")
    if conj: a(f"v_mul_f32 v{D+1}, -v{D+1}, v{t}")
    else: a(f"v_mul_f32 v{D+1}, v{D+1}, v{t}")

def pos2chan(a, sd, sq, t):
    a(f"s_and_b32 s{sd}, s{sq}, 0x1c0")
    a(f"s_and_b32 s{t}, s{sq}, 7")
    a(f"s_lshl_b32 s{t}, s{t}, 3")
    a(f"s_or_b32 s{sd}, s{sd}, s{t}")
    a(f"s_lshr_b32 s{t}, s{sq}, 3")
    a(f"s_and_b32 s{t}, s{t}, 7")
    a(f"s_or_b32 s{sd}, s{sd}, s{t}")

_lbl = [0]
def newlbl(p):
    _lbl[0] += 1
    return f"L_{p}{_lbl[0]}"

def arrive(a, base_sgpr_pair, off_sgpr, lo_only=False):
    if lo_only:
        l0 = newlbl("ad")
        a(f"s_cmp_ge_u32 s{S_WAVE}, 2")
        a(f"s_cbranch_scc1 {l0}")
        a("s_waitcnt vmcnt(0)")
        a.label(l0)
    else:
        a("s_waitcnt vmcnt(0)")
    a("s_barrier")
    l = newlbl("arr")
    a(f"s_cmp_lg_u32 s{S_WAVE}, 0")
    a(f"s_cbranch_scc1 {l}")
    a(f"v_mov_b32 v13, s{off_sgpr}")
    a("v_mov_b32 v14, 1")
    a("s_mov_b64 s[62:63], exec")
    a("s_mov_b64 exec, 1")
    a(f"global_atomic_add v13, v14, s[{base_sgpr_pair}:{base_sgpr_pair+1}] sc1")
    a("s_mov_b64 exec, s[62:63]")
    a.label(l)

def poll(a, base_sgpr_pair, off_sgpr, n, stride_log2, target):
    l = newlbl("poll")
    a(f"v_and_b32 v13, {n-1}, v2")
    a(f"v_lshlrev_b32 v13, {stride_log2}, v13")
    a(f"v_add_u32 v13, s{off_sgpr}, v13")
    a("s_mov_b32 s61, 0")
    a.label(l)
    a(f"global_load_dword v14, v13, s[{base_sgpr_pair}:{base_sgpr_pair+1}] sc1")
    a("s_waitcnt vmcnt(0)")
    a(f"v_cmp_gt_u32 vcc, {target}, v14")
    a("s_add_u32 s61, s61, 1")
    a(f"s_cbranch_vccz {l}_done")
    a("s_cmp_lt_u32 s61, 0x40000")
    a(f"s_cbranch_scc1 {l}")
    a.label(l + "_done")

def poll_wg(a, base_sgpr_pair, off_sgpr, n, stride_log2, target):
    l = newlbl("pw")
    a(f"s_cmp_lg_u32 s{S_WAVE}, 0")
    a(f"s_cbranch_scc1 {l}")
    poll(a, base_sgpr_pair, off_sgpr, n, stride_log2, target)
    a.label(l)
    a("s_barrier")

def prologue(a):
    a("s_load_dwordx16 s[64:79], s[0:1], 0")
    a("s_load_dwordx2 s[88:89], s[0:1], 64")
    a("s_load_dwordx4 s[80:83], s[0:1], 80")
    a("s_load_dwordx4 s[84:87], s[0:1], 96")
    a("s_load_dwordx4 s[60:63], s[0:1], 112")
    a("s_load_dwordx2 s[6:7], s[0:1], 128")
    a("v_lshrrev_b32 v1, 6, v0")
    a("v_and_b32 v2, 63, v0")
    a(f"v_readfirstlane_b32 s{S_WAVE}, v1")
    a("s_and_b32 s54, s2, 7")
    a("s_lshl_b32 s54, s54, 5")
    a("s_lshr_b32 s55, s2, 3")
    a(f"s_add_u32 s{S_TB}, s54, s55")
    a(f"s_lshl_b32 s{S_Q0}, s{S_TB}, 1")
    a(f"s_lshr_b32 s55, s{S_WAVE}, 1")
    a(f"s_add_u32 s56, s{S_Q0}, s55")
    pos2chan(a, 57, 56, 58)
    a("v_lshlrev_b32 v3, 4, v2")
    a(f"s_lshl_b32 s58, s{S_TB}, 13")
    a(f"s_lshl_b32 s59, s{S_WAVE}, 11")
    a("s_add_u32 s59, s59, s58")
    a(f"s_and_b32 s54, s{S_WAVE}, 1")
    a("s_lshl_b32 s54, s54, 7")
    a("s_lshl_b32 s55, s57, 8")
    a("s_add_u32 s54, s54, s55")
    a("v_lshl_add_u32 v12, v2, 1, s54")
    a("v_xor_b32 v13, 128, v12")
    a("s_waitcnt lgkmcnt(0)")
    stamp(a, KIDX, 0, 6, 250, first=True)
    srd(a, SRD_X, 64, 65, 0, 0x200000)
    a(f"buffer_load_dwordx4 v[{VX}:{VX+3}], v3, s[{SRD_X}:{SRD_X+3}], s59 offen")
    a(f"buffer_load_dwordx4 v[{VX+4}:{VX+7}], v3, s[{SRD_X}:{SRD_X+3}], s59 offen offset:1024")
    a("global_load_ushort v200, v12, s[66:67]")
    a("global_load_ushort v201, v12, s[68:69]")
    a("global_load_ushort v202, v12, s[70:71]")
    a("global_load_ushort v203, v12, s[72:73]")
    a("global_load_ushort v204, v12, s[74:75]")
    a("global_load_ushort v205, v12, s[76:77]")
    a("global_load_ushort v206, v13, s[70:71]")
    a("global_load_ushort v207, v13, s[72:73]")
    a("global_load_ushort v208, v13, s[74:75]")
    a("global_load_ushort v209, v13, s[76:77]")
    a("s_lshl_b32 s54, s57, 1")
    a("s_and_b32 s54, s54, 0xfffffffc")
    a("s_load_dword s52, s[78:79], s54")
    a("s_load_dword s53, s[88:89], s54")
    a("s_and_b32 s91, s57, 1")
    a(f"s_mov_b32 s8, s62"); a("s_mov_b32 s9, s63")
    srd(a, SRD_OUT, 60, 61, 0, 0x200000)
    srd(a, SRD_U2, 6, 7, U2_OFF, U2_SZ)
    srd(a, SRD_YA, 6, 7, YA_OFF, YA_SZ)
    srd(a, SRD_H, 6, 7, H_OFF, H_SZ)
    srd(a, SRD_HN, 6, 7, HN_OFF, HN_SZ)
    srd(a, SRD_G2, 6, 7, G2_OFF, G2_SZ)
    srd(a, SRD_W1, 80, 81, 0, 2048 * 3584)
    srd(a, SRD_W2, 84, 85, 0, 2048 * 3584)
    a(f"s_mov_b32 s{S_B1}, s82"); a(f"s_mov_b32 s{S_B1+1}, s83")
    a(f"s_mov_b32 s{S_B2}, s86"); a(f"s_mov_b32 s{S_B2+1}, s87")
    srd(a, SRD_W2R, 6, 7, W2R_OFF, W2R_SZ)
    l = newlbl("z")
    a(f"s_or_b32 s54, s2, s{S_WAVE}")
    a("s_cmp_lg_u32 s54, 0")
    a(f"s_cbranch_scc1 {l}")
    a("v_lshlrev_b32 v14, 7, v2")
    a(f"v_add_u32 v14, {SYNC_OFF}, v14")
    a("v_mov_b32 v15, 0")
    a("global_store_dword v14, v15, s[6:7] sc1")
    a.label(l)
    if CODEPF:
        l = newlbl("cpf")
        a(f"s_cmp_lg_u32 s{S_WAVE}, 3")
        a(f"s_cbranch_scc1 {l}")
        a("s_getpc_b64 s[54:55]")
        a.label("L_pcbase")
        a("v_lshlrev_b32 v14, 7, v2")
        a("s_mov_b32 s56, L_code_end-L_pcbase")
        for k in range(5):
            a("v_min_u32 v15, s56, v14")
            a(f"global_load_dword v255, v15, s[54:55]")
            if k < 4: a("v_add_u32 v14, 8192, v14")
        a.label(l)
    touch_setup(a)
    bulk(a, "P0")
    precompute(a)
    a("s_cmp_eq_u32 s91, 1")
    a("s_cselect_b32 s60, 0, 16")
    a("s_waitcnt lgkmcnt(0)")
    a("s_lshl_b32 s52, s52, s60"); a("s_and_b32 s52, s52, 0xffff0000")
    a("s_lshl_b32 s53, s53, s60"); a("s_and_b32 s53, s53, 0xffff0000")

V_ONES = 216
def prefill_op(a, k):
    if k == 0:
        for r in range(V_ONES, V_ONES + 4): a(f"v_mov_b32 v{r}, -1")
    D = f"v[{V_ONES}:{V_ONES+3}]"
    if k < 4:
        a(f"s_lshl_b32 s74, s{S_TB}, 13")
        if k % 2: a("s_add_u32 s74, s74, 4096")
        sr = SRD_YA if k < 2 else SRD_HN
        a(f"buffer_store_dwordx4 {D}, v{V_US}, s[{sr}:{sr+3}], s74 offen sc1")
    else:
        a(f"s_lshl_b32 s74, s{S_FJ}, 16")
        a(f"s_lshl_b32 s75, s{S_WAVE}, 13")
        a("s_add_u32 s74, s74, s75")
        a(f"s_lshl_b32 s75, s{S_T1}, 10")
        a("s_add_u32 s74, s74, s75")
        if k == 5: a("s_add_u32 s74, s74, 32768")
        a("v_lshlrev_b32 v220, 4, v2")
        a(f"buffer_store_dwordx4 {D}, v220, s[{SRD_G2}:{SRD_G2+3}], s74 offen sc1")

def precompute(a):
    a("v_lshrrev_b32 v4, 3, v2")
    a("v_mul_u32_u24 v4, 72, v4")
    a("v_and_b32 v5, 7, v2")
    a("v_add_u32 v4, v4, v5")
    a(f"s_mul_i32 s54, s{S_WAVE}, 576")
    a("v_add_u32 v4, s54, v4")
    a(f"v_lshlrev_b32 v{V_PW}, 2, v4")
    a(f"v_add_u32 v{V_PW}, {PL}, v{V_PW}")
    a(f"s_mul_i32 s54, s{S_WAVE}, 72")
    a("v_add_u32 v4, s54, v2")
    a(f"v_lshlrev_b32 v{V_PR}, 2, v4")
    a(f"v_add_u32 v{V_PR}, {PL}, v{V_PR}")
    a(f"v_lshlrev_b32 v{V_US}, 4, v0")
    a(f"s_lshr_b32 s60, s{S_WAVE}, 1")
    a(f"s_mul_i32 s60, s60, {KG_CH}")
    a(f"s_and_b32 s62, s{S_WAVE}, 1")
    a("s_lshl_b32 s61, s62, 8")
    a("s_add_u32 s61, s61, s60")
    a(f"v_lshl_add_u32 v{V_KROW}, v2, 2, s61")
    a("v_and_b32 v7, 15, v2")
    a("v_lshrrev_b32 v8, 4, v2")
    a(f"v_mul_u32_u24 v9, {G_ROW}, v7")
    a("v_lshl_add_u32 v9, v8, 4, v9")
    a(f"s_mul_i32 s63, s62, {16*G_ROW}")
    a("s_add_u32 s63, s63, s60")
    a(f"v_add_u32 v{V_KA}, s63, v9")
    a(f"s_add_u32 s63, s60, {H_BASE}")
    a(f"v_add_u32 v{V_KB}, s63, v9")
    a("v_lshlrev_b32 v16, 3, v7")
    a(f"s_add_u32 s63, s60, {FT_BASE}")
    a(f"s_movk_i32 s54, {FT_DUMMY}")
    a("v_cmp_eq_u32 s[56:57], 1, v8")
    a("v_cmp_eq_u32 s[58:59], 2, v8")
    a("v_cmp_eq_u32 vcc, 3, v8")
    for r in range(4):
        m0_q2 = 256 + 2 * r
        m0_q3 = 512 + 4 * (r & 1) + 256 * (r >> 1)
        m1_q0 = 1024 + 256 * r
        m1_q1 = 2048 if r == 0 else FT_DUMMY
        R = V_KSC + r
        a("s_cmp_eq_u32 s62, 0")
        a(f"s_cselect_b32 s55, {r}, {m1_q0}")
        a(f"v_mov_b32 v{R}, s55")
        a(f"s_cselect_b32 s55, {4+r}, {m1_q1}")
        a("v_mov_b32 v18, s55")
        a(f"v_cndmask_b32 v{R}, v{R}, v18, s[56:57]")
        a(f"s_cselect_b32 s55, {m0_q2}, s54")
        a("v_mov_b32 v18, s55")
        a(f"v_cndmask_b32 v{R}, v{R}, v18, s[58:59]")
        a(f"s_cselect_b32 s55, {m0_q3}, s54")
        a("v_mov_b32 v18, s55")
        a(f"v_cndmask_b32 v{R}, v{R}, v18, vcc")
        a(f"v_add_u32 v{R}, v{R}, v16")
        a(f"v_lshrrev_b32 v18, 4, v{R}")
        a(f"v_lshlrev_b32 v18, 2, v18")
        a(f"v_lshl_add_u32 v{R}, v{R}, 1, v18")
        a(f"v_add_u32 v{R}, s63, v{R}")
    a("s_lshl_b32 s55, s62, 6")
    a("v_add_u32 v19, s55, v2")
    a("v_lshlrev_b32 v100, 5, v19")
    a("v_sub_u32 v100, 4094, v100")
    NE = 19
    for e in range(NE):
        a(f"v_subrev_u32 v{104+e}, {2*e}, v100")
        a(f"v_cvt_f32_u32 v{104+e}, v{104+e}")
    for e in range(0, NE + 1, 2):
        e2 = min(e + 1, NE - 1)
        a(f"v_cvt_pk_bf16_f32 v{124+e//2}, v{104+e}, v{104+e2}")
    for e in range(NE):
        if e % 2 == 0: a(f"v_lshlrev_b32 v{104+e}, 16, v{124+e//2}")
        else: a(f"v_and_b32 v{104+e}, 0xffff0000, v{124+e//2}")
    for e in range(NE): a(f"v_cvt_u32_f32 v{104+e}, v{104+e}")
    for e in range(16, NE): a(f"v_min_u32 v{104+e}, {2*FT_ZERO}, v{104+e}")
    for e in range(NE):
        a(f"v_lshrrev_b32 v18, 5, v{104+e}")
        a(f"v_lshl_add_u32 v{104+e}, v18, 2, v{104+e}")
        a(f"v_add_u32 v{104+e}, s63, v{104+e}")
    a(f"s_lshr_b32 s55, s{S_WAVE}, 1")
    a(f"s_mul_i32 s55, s55, {KCH}")
    a(f"s_add_u32 s55, s55, {KC_BASE}")
    a("v_lshlrev_b32 v19, 5, v19")
    a(f"v_add_u32 v{V_KDST}, s55, v19")
    bulk(a, "P1")
    a(f"s_lshr_b32 s60, s{S_WAVE}, 1")
    a(f"s_and_b32 s61, s{S_WAVE}, 1")
    a("v_and_b32 v52, 31, v2")
    a("v_lshrrev_b32 v53, 5, v2")
    a("v_and_b32 v54, 3, v52")
    a("v_sub_u32 v54, 3, v54")
    a(f"v_mul_u32_u24 v54, {KC_STRIDE}, v54")
    a("v_lshrrev_b32 v55, 2, v52")
    a("v_lshlrev_b32 v55, 3, v55")
    a("v_sub_u32 v54, v54, v55")
    a("v_lshl_add_u32 v54, v53, 4, v54")
    a(f"s_mul_i32 s62, s60, {KCH}")
    a("s_lshl_b32 s63, s61, 6")
    a("s_sub_u32 s62, s62, s63")
    a(f"s_add_u32 s62, s62, {KC_BASE + 2*2044 - 2048 - 64*30}")
    a(f"v_add_u32 v{V_CA}, s62, v54")
    a("v_mul_u32_u24 v55, 80, v52")
    a("v_lshl_add_u32 v55, v53, 4, v55")
    a(f"s_mul_i32 s62, s60, {U_CH}")
    a("s_mul_i32 s63, s61, 80")
    a("s_sub_u32 s62, s62, s63")
    a(f"s_add_u32 s62, s62, {U_BASE + 80*(31-30)}")
    a(f"v_add_u32 v{V_CB}, s62, v55")
    tile_coords(a, 1, S_T1, S_FJ)
    tile_coords(a, 2, S_T2, S_SJ)
    dma_setup(a, 1)

def planes_out(a, D, plane_base, srd_dst, T, lo_only=False):
    for c in range(8):
        a(f"ds_write_b32 v{V_PW}, v{D+c} offset:{plane_base + 32*c}")
    a("s_waitcnt lgkmcnt(0)")
    a("s_barrier")
    a(f"s_lshl_b32 s60, s{S_TB}, 13")
    if not lo_only:
        a(f"v_add_u32 v{T+8}, 1152, v{V_PR}")
        a(f"ds_read2st64_b32 v[{T}:{T+1}], v{V_PR} offset0:0 offset1:9")
        a(f"ds_read2st64_b32 v[{T+2}:{T+3}], v{V_PR} offset0:18 offset1:27")
        a(f"ds_read2st64_b32 v[{T+4}:{T+5}], v{T+8} offset0:0 offset1:9")
        a(f"ds_read2st64_b32 v[{T+6}:{T+7}], v{T+8} offset0:18 offset1:27")
        a("s_add_u32 s61, s60, 4096")
        a("s_waitcnt lgkmcnt(2)")
        a(f"buffer_store_dwordx4 v[{T}:{T+3}], v{V_US}, s[{srd_dst}:{srd_dst+3}], s60 offen sc1")
        a("s_waitcnt lgkmcnt(0)")
        a(f"buffer_store_dwordx4 v[{T+4}:{T+7}], v{V_US}, s[{srd_dst}:{srd_dst+3}], s61 offen sc1")
    else:
        l = newlbl("po")
        a(f"s_cmp_ge_u32 s{S_WAVE}, 2")
        a(f"s_cbranch_scc1 {l}")
        for k in range(4):
            a(f"v_add_u32 v{T+16}, {576*k}, v{V_PR}")
            a(f"ds_read2st64_b32 v[{T+4*k}:{T+4*k+1}], v{T+16} offset0:0 offset1:9")
            a(f"ds_read2st64_b32 v[{T+4*k+2}:{T+4*k+3}], v{T+16} offset0:18 offset1:27")
        for k in range(4):
            a(f"s_waitcnt lgkmcnt({2*(3-k)})")
            a(f"buffer_store_dwordx4 v[{T+4*k}:{T+4*k+3}], v{V_US}, s[{srd_dst}:{srd_dst+3}], s60 offen sc1")
            if k < 3: a("s_add_u32 s60, s60, 2048")
        a.label(l)

def unit_addr(a, vd, vt):
    a(f"v_lshrrev_b32 v{vd}, 3, v2")
    a(f"v_lshlrev_b32 v{vd}, 10, v{vd}")
    a(f"v_and_b32 v{vt}, 7, v2")
    a(f"v_lshl_add_u32 v{vd}, v{vt}, 4, v{vd}")

def ln1(a):
    a(f"s_mov_b32 s90, {INV512}")
    a(f"s_mov_b32 s91, {EPS}")
    a("s_waitcnt vmcnt(10)")
    unpack_pairs(a, 16, VX, VX + 4)
    pair_sums(a, 16, 8, 32, 34, 36)
    reduce4(a, 32, 33, 34, 35)
    ln_stats(a, 32, 33, 36, 37, SM, SR)
    ln_apply(a, 16, 8, SM, SR, 40)
    unpack_packed(a, 16, 8, 40)
    for c in range(8):
        a(f"v_cvt_pk_f16_f32 v{40+c}, v{16+2*c}, v{17+2*c}")
    planes_out(a, 40, PL1, SRD_U2, 48, lo_only=True)

def kgen(a):
    a(f"s_lshr_b32 s60, s{S_WAVE}, 1")
    a(f"s_mul_i32 s60, s60, {KG_CH}")
    a(f"s_mov_b32 s66, {LOG2E}")
    a(f"s_mov_b32 s67, {LOG2E_LO}")
    a(f"s_mov_b32 s68, {LN2}")
    a(f"s_mov_b32 s69, {INV2PI}")
    a("v_mov_b32 v20, s52")
    a("v_mul_f32 v21, s66, v20")
    a("v_fma_f32 v22, v20, s66, -v21")
    a("v_fmac_f32 v22, s67, v20")
    a("v_exp_f32 v21, v21")
    a("v_mul_f32 v22, s68, v22")
    a("v_fmac_f32 v21, v21, v22")
    bf16_round(a, 21, 21)
    for i in range(10): a(f"v_lshlrev_b32 v{10+i}, 16, v{200+i}")
    a("v_mul_f32 v10, v21, v10")
    a("v_mul_f32 v11, v21, v11")
    a("v_mul_f32 v10, s66, v10")
    a("v_mul_f32 v11, s69, v11")
    for (b, c0, out) in ((12, 14, 24), (16, 18, 26)):
        a(f"v_mul_f32 v{b}, v21, v{b}")
        a(f"v_mul_f32 v{b+1}, v21, v{b+1}")
        a(f"v_mul_f32 v{out}, v{c0}, v{b}")
        a(f"v_mul_f32 v{out+1}, v{c0}, v{b+1}")
        a(f"v_fma_f32 v{out}, -v{c0+1}, v{b+1}, v{out}")
        a(f"v_fmac_f32 v{out+1}, v{c0+1}, v{b}")
    a("v_max3_f32 v28, abs(v24), abs(v25), abs(v26)")
    a("v_max_f32 v28, v28, abs(v27)")
    W1, W256, W512, W1024, W8, W128 = 32, 34, 36, 38, 80, 50
    evalE(a, W1, 1, 10, 11, 40)
    wave_max(a, 28, 29)
    evalE(a, W256, 256, 10, 11, 44)
    a("v_frexp_exp_i32_f32 v29, v28")
    a("v_sub_u32 v30, 0, v29")
    a("v_ldexp_f32 v48, v24, v30")
    a("v_ldexp_f32 v49, v25, v30")
    a("v_mov_b32 v31, 1.0")
    a("v_ldexp_f32 v31, v31, v29")
    evalE(a, W8, 8, 10, 11, 40, conj=True)
    a(f"v_readfirstlane_b32 s{S_SCALE}, v31")
    evalE(a, 84, 128, 10, 11, 44, conj=True)
    cmul(a, W512, W256, W256)
    cmul(a, W1024, W512, W512)
    st(a, "kg: setup done", 250)
    bulk(a, "P3")
    g = lambda i: 48 + 2 * i
    cnt = [0]
    def emit(off, reg):
        t = 96 + (cnt[0] % 8); cnt[0] += 1
        a(f"v_cvt_pk_f16_f32 v{t}, v{reg}, v{reg+1}")
        a(f"ds_write_b32 v{V_KROW}, v{t} offset:{off}")
    grow = lambda r, reg: emit(r * G_ROW, reg)
    hrow = lambda r, reg: emit(H_BASE + r * G_ROW, reg)
    a("v_mov_b32 v82, 1.0"); a("v_mov_b32 v83, 0")
    HA, HB = [82, 86], [84, 88]
    hstate = [0]
    def hstep():
        i = hstate[0]
        if i >= 16: return
        ca, na = HA[i % 2], HA[(i + 1) % 2]
        cb, nb = HB[i % 2], HB[(i + 1) % 2]
        if i < 15:
            cmul(a, na, ca, W8); cmul(a, nb, cb, W8)
        hrow(i, ca); hrow(16 + i, cb)
        hstate[0] += 1
    grow(0, g(0))
    cmul(a, 64, g(0), W1024); cmul(a, 66, g(0), W512); cmul(a, g(1), g(0), W1)
    hstep()
    grow(16, 64); grow(12, 66)
    cmul(a, 68, 64, W256); cmul(a, 70, 66, W256); cmul(a, g(2), g(1), W1); cmul(a, 72, g(0), W256)
    hstep(); hstep()
    grow(1, g(1)); grow(17, 68); grow(14, 70)
    cmul(a, 64, 68, W256); cmul(a, g(3), g(2), W1); cmul(a, 74, g(2), W256)
    hstep(); hstep()
    grow(2, g(2)); grow(8, 72)
    cmul(a, 68, 64, W256); cmul(a, g(4), g(3), W1)
    hstep(); hstep()
    grow(18, 64); grow(3, g(3)); grow(9, 74)
    cmul(a, 64, 68, W256); cmul(a, g(5), g(4), W1); cmul(a, 66, g(4), W512); cmul(a, 72, g(4), W256)
    hstep(); hstep()
    grow(19, 68); grow(4, g(4))
    cmul(a, g(6), g(5), W1); cmul(a, 70, 66, W256)
    hstep(); hstep()
    grow(20, 64); grow(5, g(5)); grow(13, 66); grow(10, 72)
    cmul(a, g(7), g(6), W1); cmul(a, 74, g(6), W256)
    hstep(); hstep()
    grow(6, g(6)); grow(15, 70)
    hstep(); hstep()
    grow(7, g(7)); grow(11, 74)
    while hstate[0] < 16: hstep()
    NE = 19
    a(f"s_add_u32 s63, s60, {FT_BASE}")
    st(a, "kg: chains done", 250)
    bulk(a, "P5")
    a("v_mov_b32 v18, 0")
    a(f"v_mov_b32 v101, s63")
    a(f"ds_write_b16 v101, v18 offset:{2*FT_ZERO + 4*(FT_ZERO >> 4)}")
    a("s_waitcnt lgkmcnt(0)")
    a("s_barrier")
    for ks in range(8):
        a(f"ds_read_b128 v[{128+12*ks}:{131+12*ks}], v{V_KA} offset:{ks*64}")
        a(f"ds_read_b128 v[{132+12*ks}:{135+12*ks}], v{V_KB} offset:{ks*64}")
        a(f"ds_read_b128 v[{136+12*ks}:{139+12*ks}], v{V_KB} offset:{ks*64 + 16*G_ROW}")
        if ks >= 3:
            k = ks - 3
            a("s_waitcnt lgkmcnt(9)")
            cc0 = "0" if k == 0 else "v[20:23]"; cc1 = "0" if k == 0 else "v[24:27]"
            a(f"v_mfma_f32_16x16x32_f16 v[20:23], v[{128+12*k}:{131+12*k}], v[{132+12*k}:{135+12*k}], {cc0}")
            a(f"v_mfma_f32_16x16x32_f16 v[24:27], v[{128+12*k}:{131+12*k}], v[{136+12*k}:{139+12*k}], {cc1}")
    for k in range(5, 8):
        a(f"s_waitcnt lgkmcnt({3*(7-k)})")
        a(f"v_mfma_f32_16x16x32_f16 v[20:23], v[{128+12*k}:{131+12*k}], v[{132+12*k}:{135+12*k}], v[20:23]")
        a(f"v_mfma_f32_16x16x32_f16 v[24:27], v[{128+12*k}:{131+12*k}], v[{136+12*k}:{139+12*k}], v[24:27]")
    for nt in range(2):
        A = 20 + 4 * nt
        a(f"v_cvt_pk_f16_f32 v{28+2*nt}, v{A}, v{A+1}")
        a(f"v_cvt_pk_f16_f32 v{29+2*nt}, v{A+2}, v{A+3}")
        a(f"ds_write_b16 v{V_KSC}, v{28+2*nt} offset:{288*nt}")
        a(f"ds_write_b16_d16_hi v{V_KSC+1}, v{28+2*nt} offset:{288*nt}")
        a(f"ds_write_b16 v{V_KSC+2}, v{29+2*nt} offset:{288*nt}")
        a(f"ds_write_b16_d16_hi v{V_KSC+3}, v{29+2*nt} offset:{288*nt}")
    st(a, "kg: mfma done", 250)
    lp = newlbl("pb1")
    a(f"s_cmp_lg_u32 s{S_WAVE}, 0")
    a(f"s_cbranch_scc1 {lp}")
    a("s_mov_b32 s62, 0")
    poll(a, 8, 62, 4, 6, 64)
    a.label(lp)
    st(a, "B1 passed (wave 0)", 250)
    for r in range(40, 44): a(f"v_mov_b32 v{r}, 0")
    a("v_lshlrev_b32 v5, 4, v0")
    a("v_cmp_gt_u32 vcc, 155, v0")
    a("s_and_saveexec_b64 s[62:63], vcc")
    a(f"v_add_u32 v44, {U_BASE}, v5")
    a(f"ds_write_b128 v44, v[40:43]")
    a(f"ds_write_b128 v44, v[40:43] offset:{U_CH}")
    a("s_mov_b64 exec, s[62:63]")
    a("v_lshrrev_b32 v44, 2, v0")
    a(f"v_mul_u32_u24 v44, {KC_STRIDE}, v44")
    a("v_and_b32 v45, 3, v0")
    a("v_lshl_add_u32 v44, v45, 4, v44")
    a(f"v_add_u32 v44, {KC_BASE + 4096}, v44")
    a("v_cmp_gt_u32 vcc, 32, v0")
    a("s_and_saveexec_b64 s[62:63], vcc")
    a("ds_write_b128 v44, v[40:43]")
    a("s_mov_b64 exec, s[62:63]")
    a("s_waitcnt lgkmcnt(0)")
    a("s_barrier")
    st(a, "kg: scatter+barrier done", 250)
    conv_u_loads(a)
    bulk(a, "P6")
    for e in range(NE): a(f"ds_read_u16 v{128+e}, v{104+e}")
    a("s_waitcnt lgkmcnt(0)")
    for i in range(9):
        a(f"v_lshl_or_b32 v{161+i}, v{129+2*i}, 16, v{128+2*i}")
    for i in range(8):
        a(f"v_mov_b32 v{152+i}, v{161+i}")
    for i in range(9):
        a(f"v_lshl_or_b32 v{181+i}, v{130+2*i}, 16, v{129+2*i}")
    for i in range(8):
        a(f"v_mov_b32 v{172+i}, v{181+i}")
    for (sig, R) in ((0, 152), (1, 172), (2, 162), (3, 182)):
        a(f"ds_write_b128 v{V_KDST}, v[{R}:{R+3}] offset:{sig*KC_STRIDE}")
        a(f"ds_write_b128 v{V_KDST}, v[{R+4}:{R+7}] offset:{sig*KC_STRIDE+16}")

def conv_u_loads(a):
    l = newlbl("cu")
    a(f"s_cmp_ge_u32 s{S_WAVE}, 2")
    a(f"s_cbranch_scc1 {l}")
    a(f"s_lshl_b32 s62, s{S_WAVE}, 7")
    a("v_add_u32 v3, s62, v2")
    a("v_lshlrev_b32 v4, 13, v3")
    a(f"s_lshl_b32 s61, s{S_Q0}, 4")
    a(f"s_add_u32 s62, s61, {64*8192}")
    a(f"buffer_load_dwordx4 a[0:3], v4, s[{SRD_U2}:{SRD_U2+3}], s61 offen sc1")
    a(f"buffer_load_dwordx4 a[4:7], v4, s[{SRD_U2}:{SRD_U2+3}], s61 offen offset:16 sc1")
    a(f"buffer_load_dwordx4 a[8:11], v4, s[{SRD_U2}:{SRD_U2+3}], s62 offen sc1")
    a(f"buffer_load_dwordx4 a[12:15], v4, s[{SRD_U2}:{SRD_U2+3}], s62 offen offset:16 sc1")
    a.label(l)

def conv_u_writes(a):
    l = newlbl("cw")
    a(f"s_cmp_ge_u32 s{S_WAVE}, 2")
    a(f"s_cbranch_scc1 {l}")
    a(f"s_lshl_b32 s62, s{S_WAVE}, 7")
    a("v_add_u32 v3, s62, v2")
    a("v_lshrrev_b32 v5, 2, v3")
    a("v_mul_u32_u24 v5, 80, v5")
    a("v_and_b32 v6, 3, v3")
    a("v_lshl_add_u32 v5, v6, 4, v5")
    a(f"v_add_u32 v5, {U_BASE + 31*80}, v5")
    a("s_waitcnt vmcnt(2)")
    a(f"ds_write_b128 v5, a[0:3]")
    a(f"ds_write_b128 v5, a[4:7] offset:{U_CH}")
    a("s_waitcnt vmcnt(0)")
    a(f"ds_write_b128 v5, a[8:11] offset:{16*80}")
    a(f"ds_write_b128 v5, a[12:15] offset:{U_CH + 16*80}")
    a.label(l)

def conv_main(a):
    a(f"s_lshr_b32 s60, s{S_WAVE}, 1")
    a(f"s_and_b32 s61, s{S_WAVE}, 1")
    a("v_and_b32 v52, 31, v2")
    a("v_lshrrev_b32 v53, 5, v2")
    a(f"v_mov_b32 v54, v{V_CA}")
    a(f"v_mov_b32 v55, v{V_CB}")
    lh = newlbl("ph")
    a(f"s_cmp_lt_u32 s{S_WAVE}, 2")
    a(f"s_cbranch_scc1 {lh}")
    a(f"s_waitcnt vmcnt({hi_younger('F5')})")
    a.label(lh)
    a("s_waitcnt lgkmcnt(0)")
    a("s_barrier")
    lpa = newlbl("pa")
    a(f"s_cmp_lg_u32 s{S_WAVE}, 0")
    a(f"s_cbranch_scc1 {lpa}")
    a("s_and_b32 s62, s2, 7")
    a("s_lshl_b32 s62, s62, 7")
    a(f"s_add_u32 s62, s62, {SYNC_OFF + 8*128}")
    a("v_mov_b32 v13, s62")
    a("v_mov_b32 v14, 1")
    a("s_mov_b64 s[62:63], exec")
    a("s_mov_b64 exec, 1")
    a(f"global_atomic_add v13, v14, s[6:7] sc1")
    a("s_mov_b64 exec, s[62:63]")
    a.label(lpa)
    st(a, "conv start (U in LDS)")
    X, Y = 96, 128
    def load_list(step, R):
        kk = 30 - 2 * step
        oa = 64 * kk; ob = 80 * kk
        return [
            f"ds_read_b64 v[{R+0}:{R+1}], v54 offset:{oa+2048}",
            f"ds_read_b64 v[{R+2}:{R+3}], v54 offset:{oa+2048+8}",
            f"ds_read_b128 v[{R+16}:{R+19}], v55 offset:{ob}",
            f"ds_read_b128 v[{R+24}:{R+27}], v55 offset:{ob+2560}",
            f"ds_read_b64 v[{R+4}:{R+5}], v54 offset:{oa+2048+32}",
            f"ds_read_b64 v[{R+6}:{R+7}], v54 offset:{oa+2048+40}",
            f"ds_read_b128 v[{R+20}:{R+23}], v55 offset:{ob+32}",
            f"ds_read_b128 v[{R+28}:{R+31}], v55 offset:{ob+2560+32}",
            f"ds_read_b64 v[{R+8}:{R+9}], v54 offset:{oa}",
            f"ds_read_b64 v[{R+10}:{R+11}], v54 offset:{oa+8}",
            f"ds_read_b64 v[{R+12}:{R+13}], v54 offset:{oa+32}",
            f"ds_read_b64 v[{R+14}:{R+15}], v54 offset:{oa+40}"]
    def mfma_list(R, first):
        c0 = "0" if first else "v[64:79]"; c1 = "0" if first else "v[80:95]"
        return [
            f"v_mfma_f32_32x32x16_f16 v[64:79], v[{R+0}:{R+3}], v[{R+16}:{R+19}], {c0}",
            f"v_mfma_f32_32x32x16_f16 v[80:95], v[{R+0}:{R+3}], v[{R+24}:{R+27}], {c1}",
            f"v_mfma_f32_32x32x16_f16 v[64:79], v[{R+4}:{R+7}], v[{R+20}:{R+23}], v[64:79]",
            f"v_mfma_f32_32x32x16_f16 v[80:95], v[{R+4}:{R+7}], v[{R+28}:{R+31}], v[80:95]",
            f"v_mfma_f32_32x32x16_f16 v[80:95], v[{R+8}:{R+11}], v[{R+16}:{R+19}], v[80:95]",
            f"v_mfma_f32_32x32x16_f16 v[80:95], v[{R+12}:{R+15}], v[{R+20}:{R+23}], v[80:95]"]
    bg = dma_groups(1, 9, 0)
    for l in load_list(0, X): a(l)
    for step in range(16):
        bulk(a, f"c{step}")
        for _ in range(2 if (step % 8) in (1, 5) else 1):
            if bg and step >= 0:
                for l in bg.pop(0): a(l)
                HIQ.append("D")
        R = X if step % 2 == 0 else Y
        N = Y if step % 2 == 0 else X
        M = mfma_list(R, step == 0)
        Ls = load_list(step + 1, N) if step < 15 else []
        need_upto = [3, 4, 7, 8, 10, 12]
        issued_next = 0
        for i in range(6):
            a(f"s_waitcnt lgkmcnt({min((12 - need_upto[i]) + issued_next, 15)})")
            a(M[i])
            for l in Ls[2*i:2*i+2]: a(l); issued_next += 1
    for grp in bg:
        for l in grp: a(l)
        HIQ.append("D")
    st(a, "conv main done")
    lpf = newlbl("pf")
    a(f"s_cmp_lg_u32 s{S_WAVE}, 0")
    a(f"s_cbranch_scc1 {lpf}")
    a("v_and_b32 v50, 7, v2")
    a("v_lshlrev_b32 v50, 7, v50")
    a(f"v_add_u32 v50, {SYNC_OFF + 8*128}, v50")
    a("global_load_dword v51, v50, s[6:7] sc1")
    a.label(lpf)
    a("v_lshlrev_b32 v56, 4, v2")
    a(f"s_lshl_b32 s62, s{S_WAVE}, 12")
    a("v_add_u32 v57, s62, v56")
    a(f"s_xor_b32 s63, s{S_WAVE}, 1")
    a("s_lshl_b32 s63, s63, 12")
    a("v_add_u32 v58, s63, v56")
    l1, l2 = newlbl("cp"), newlbl("cr")
    a("s_cmp_eq_u32 s61, 0")
    a(f"s_cbranch_scc0 {l1}")
    a("s_nop 7"); a("s_nop 7")
    for g in range(4): a(f"ds_write_b128 v57, v[{80+4*g}:{83+4*g}] offset:{g*1024}")
    a(f"s_branch {l2}")
    a.label(l1)
    a("s_nop 7"); a("s_nop 7")
    for g in range(4): a(f"ds_write_b128 v57, v[{64+4*g}:{67+4*g}] offset:{g*1024}")
    for r in range(16): a(f"v_mov_b32 v{64+r}, v{80+r}")
    a.label(l2)
    a("s_lshl_b32 s62, s61, 5")
    a("v_add_u32 v59, s62, v52")
    a("v_mul_u32_u24 v60, 80, v59")
    a("v_lshl_add_u32 v60, v53, 3, v60")
    a(f"s_mul_i32 s62, s60, {U_CH}")
    a(f"s_add_u32 s62, s62, {U_BASE + 31*80}")
    a("v_add_u32 v60, s62, v60")
    for g in range(4): a(f"ds_read_b64 v[{112+2*g}:{113+2*g}], v60 offset:{g*16}")
    a("s_waitcnt lgkmcnt(0)")
    a("s_barrier")
    for g in range(4): a(f"ds_read_b128 v[{96+4*g}:{99+4*g}], v58 offset:{g*1024}")
    for g in range(4):
        a(f"v_cvt_f32_f16 v{120+4*g}, v{112+2*g}")
        a(f"v_cvt_f32_f16_sdwa v{121+4*g}, v{112+2*g} dst_sel:DWORD dst_unused:UNUSED_PAD src0_sel:WORD_1")
        a(f"v_cvt_f32_f16 v{122+4*g}, v{113+2*g}")
        a(f"v_cvt_f32_f16_sdwa v{123+4*g}, v{113+2*g} dst_sel:DWORD dst_unused:UNUSED_PAD src0_sel:WORD_1")
    for r in range(16): a(f"v_mul_f32 v{120+r}, s{S_DSK}, v{120+r}")
    for r in range(0, 16, 2): a(f"v_cvt_pk_bf16_f32 v{136+r//2}, v{120+r}, v{121+r}")
    for r in range(0, 16, 2):
        a(f"v_lshlrev_b32 v{120+r}, 16, v{136+r//2}")
        a(f"v_and_b32 v{121+r}, 0xffff0000, v{136+r//2}")
    a("s_waitcnt lgkmcnt(0)")
    for r in range(0, 16, 2): a(f"v_pk_add_f32 v[{64+r}:{65+r}], v[{64+r}:{65+r}], v[{96+r}:{97+r}]")
    for r in range(16): a(f"v_mul_f32 v{64+r}, s{S_SCALE}, v{64+r}")
    for r in range(0, 16, 2): a(f"v_cvt_pk_bf16_f32 v{136+r//2}, v{64+r}, v{65+r}")
    for r in range(0, 16, 2):
        a(f"v_lshlrev_b32 v{64+r}, 16, v{136+r//2}")
        a(f"v_and_b32 v{65+r}, 0xffff0000, v{136+r//2}")
    for r in range(0, 16, 2): a(f"v_pk_add_f32 v[{64+r}:{65+r}], v[{64+r}:{65+r}], v[{120+r}:{121+r}]")
    for r in range(0, 16, 2): a(f"v_cvt_pk_bf16_f32 v{136+r//2}, v{64+r}, v{65+r}")
    for g in (0, 2):
        A0, A1, B0, B1 = 136 + 2 * g, 137 + 2 * g, 138 + 2 * g, 139 + 2 * g
        a(f"v_permlane32_swap_b32 v{A0}, v{B0}")
        a(f"v_permlane32_swap_b32 v{A1}, v{B1}")
    a("v_mul_u32_u24 v61, 144, v59")
    a("v_lshl_add_u32 v61, v53, 5, v61")
    a("s_lshl_b32 s62, s60, 4")
    a(f"s_add_u32 s62, s62, {YB}")
    a("v_add_u32 v61, s62, v61")
    a("ds_write_b128 v61, v[136:139]")
    a("ds_write_b128 v61, v[140:143] offset:64")
    a("v_lshrrev_b32 v62, 3, v0")
    a("v_mul_u32_u24 v62, 144, v62")
    a("v_and_b32 v63, 7, v0")
    a("v_lshl_add_u32 v62, v63, 4, v62")
    a("s_waitcnt lgkmcnt(0)")
    a("s_barrier")
    ly = newlbl("yo")
    a(f"s_cmp_ge_u32 s{S_WAVE}, 2")
    a(f"s_cbranch_scc1 {ly}")
    for k in range(4):
        a(f"ds_read_b128 v[{96+4*k}:{99+4*k}], v62 offset:{YB + 16*144*k}")
    a(f"s_lshl_b32 s62, s{S_TB}, 13")
    for k in range(4):
        a(f"s_waitcnt lgkmcnt({3-k})")
        a(f"buffer_store_dwordx4 v[{96+4*k}:{99+4*k}], v{V_US}, s[{SRD_YA}:{SRD_YA+3}], s62 offen sc1")
        if k < 3: a("s_add_u32 s62, s62, 2048")
    a.label(ly)

def ln2_loads(a):
    a("v_lshrrev_b32 v4, 1, v0")
    a("v_lshlrev_b32 v4, 13, v4")
    a("v_and_b32 v5, 1, v0")
    a("v_lshl_add_u32 v4, v5, 4, v4")
    a(f"s_lshl_b32 s60, s{S_TB}, 5")
    a("s_add_u32 s62, s60, 0x100000")
    l = newlbl("ys")
    a("s_mov_b32 s61, 0")
    a.label(l)
    a(f"buffer_load_dwordx4 v[40:43], v4, s[{SRD_YA}:{SRD_YA+3}], s60 offen sc1")
    a(f"buffer_load_dwordx4 v[44:47], v4, s[{SRD_YA}:{SRD_YA+3}], s62 offen sc1")
    a("s_add_u32 s61, s61, 1")
    a("s_waitcnt vmcnt(0)")
    for x in check8(40, 12): a(x)
    a(f"s_cbranch_vccz {l}_ok")
    a(f"s_cmp_lt_u32 s61, {SPIN_MAX}")
    a(f"s_cbranch_scc1 {l}")
    a.label(l + "_ok")

def ln2_compute(a):
    a(f"s_mov_b32 s90, {INV512}")
    a(f"s_mov_b32 s91, {EPS}")
    a("s_mov_b32 s92, 0x05040100")
    a("s_mov_b32 s93, 0x07060302")
    a(f"v_mov_b32 v48, v{V_PR}")
    a(f"v_add_u32 v49, 1152, v{V_PR}")
    a("ds_write2st64_b32 v48, v40, v41 offset0:0 offset1:9")
    a("ds_write2st64_b32 v48, v42, v43 offset0:18 offset1:27")
    a("ds_write2st64_b32 v49, v44, v45 offset0:0 offset1:9")
    a("ds_write2st64_b32 v49, v46, v47 offset0:18 offset1:27")
    unpack_pairs(a, 16, VX, VX + 4)
    a("s_waitcnt lgkmcnt(0)")
    a("s_barrier")
    lw5 = newlbl("w2q")
    a(f"s_cmp_lg_u32 s{S_WAVE}, 0")
    a(f"s_cbranch_scc1 {lw5}")
    a("v_and_b32 v14, 7, v2")
    a("v_lshlrev_b32 v14, 7, v14")
    a(f"v_add_u32 v14, {SYNC_OFF}, v14")
    a("global_load_dword v15, v14, s[6:7] sc1")
    a.label(lw5)
    for c in range(8):
        a(f"ds_read_b32 v{40+c}, v{V_PW} offset:{PL2 + 32*c}")
    a("v_lshlrev_b32 v3, 4, v2")
    a(f"s_lshl_b32 s64, s{S_TB}, 13")
    a(f"s_lshl_b32 s65, s{S_WAVE}, 11")
    a("s_add_u32 s64, s64, s65")
    a("s_waitcnt lgkmcnt(0)")
    for c in range(8):
        a(f"v_lshlrev_b32 v{48+2*c}, 16, v{40+c}")
        a(f"v_and_b32 v{49+2*c}, 0xffff0000, v{40+c}")
    for c in range(8):
        a(f"v_pk_add_f32 v[{16+2*c}:{17+2*c}], v[{16+2*c}:{17+2*c}], v[{48+2*c}:{49+2*c}]")
    for c in range(8):
        a(f"v_cvt_pk_bf16_f32 v{40+c}, v{16+2*c}, v{17+2*c}")
    unpack_packed(a, 16, 8, 40)
    for i in range(4):
        a(f"v_perm_b32 v{4+i}, v{41+2*i}, v{40+2*i}, s92")
        a(f"v_perm_b32 v{8+i}, v{41+2*i}, v{40+2*i}, s93")
    a(f"buffer_store_dwordx4 v[4:7], v3, s[{SRD_H}:{SRD_H+3}], s64 offen sc1")
    a(f"buffer_store_dwordx4 v[8:11], v3, s[{SRD_H}:{SRD_H+3}], s64 offen offset:1024 sc1")
    pair_sums(a, 16, 8, 32, 34, 36)
    reduce4(a, 32, 33, 34, 35)
    ln_stats(a, 32, 33, 36, 37, SM, SR)
    ln_apply(a, 16, 8, SM, SR, 40)
    unpack_packed(a, 16, 8, 40)
    pair_sums(a, 16, 8, 32, 34, 36)
    reduce4(a, 32, 33, 34, 35)
    ln_stats(a, 32, 33, 36, 37, SM, SR)
    ln_apply(a, 16, 8, SM, SR, 40)
    lw3 = newlbl("w2p")
    a("; BGSTOP")
    a("s_waitcnt vmcnt(0)")
    a(f"s_cmp_lg_u32 s{S_WAVE}, 0")
    a(f"s_cbranch_scc1 {lw3}")
    a("v_cmp_gt_u32 vcc, 32, v15")
    a(f"s_cbranch_vccz {lw3}")
    a(f"s_mov_b32 s60, {SYNC_OFF}")
    poll(a, 6, 60, 8, 7, 32)
    a.label(lw3)
    a("s_barrier")
    planes_out(a, 40, PL2, SRD_HN, 48)

def tile_coords(a, which, sT, sC):
    a("s_and_b32 s60, s2, 7")
    a("s_lshr_b32 s61, s2, 3")
    a(f"s_and_b32 s{sT}, s60, 1")
    a(f"s_lshl_b32 s{sT}, s{sT}, 2")
    a("s_and_b32 s62, s61, 3")
    a(f"s_add_u32 s{sT}, s{sT}, s62")
    a(f"s_lshr_b32 s{sC}, s60, 1")
    a(f"s_mul_i32 s{sC}, s{sC}, {7 if which == 1 else 8}")
    a("s_lshr_b32 s62, s61, 2")
    if which == 2 and SJROT:
        a(f"s_add_u32 s62, s62, {SJROT}"); a("s_and_b32 s62, s62, 7")
    a(f"s_add_u32 s{sC}, s{sC}, s62")

VD, VTA, VTB = 240, 241, 242
def dma_setup(a, which):
    WROW = 3584 if which == 1 else 128
    a(f"v_lshrrev_b32 v{VD}, 3, v2")
    a(f"v_mul_u32_u24 v{VD}, {WROW}, v{VD}")
    a("v_and_b32 v243, 7, v2")
    a("v_lshrrev_b32 v244, 2, v2")
    a("v_and_b32 v244, 4, v244")
    a("v_xor_b32 v243, v243, v244")
    a(f"v_lshl_add_u32 v{VD}, v243, 4, v{VD}")
    a("v_bfe_u32 v243, v2, 2, 2")
    a("v_and_b32 v244, 3, v2")
    a(f"v_bfe_u32 v{VTA}, v2, 4, 1")
    a(f"v_lshlrev_b32 v{VTA}, 1, v{VTA}")
    a("v_lshrrev_b32 v245, 1, v244")
    a(f"v_add_u32 v{VTA}, v{VTA}, v245")
    a("v_lshrrev_b32 v245, 1, v243")
    a("v_lshlrev_b32 v245, 2, v245")
    a(f"v_xor_b32 v{VTA}, v{VTA}, v245")
    a(f"v_lshlrev_b32 v{VTA}, 4, v{VTA}")
    a("v_and_b32 v245, 1, v244")
    a(f"v_lshl_add_u32 v{VTA}, v245, 3, v{VTA}")
    a("v_lshrrev_b32 v245, 5, v2")
    a(f"v_lshlrev_b32 v245, {3 if which == 1 else 2}, v245")
    a("v_add_u32 v245, v245, v243")
    a(f"v_lshl_add_u32 v{VTA}, v245, 7, v{VTA}")
    a(f"v_xor_b32 v{VTB}, 64, v{VTA}")

def ring_base_sel(a, lo_base, per_wave, split, hi_base):
    a(f"s_mul_i32 s{S_RING}, s{S_WAVE}, {per_wave}")
    a(f"s_cmp_lt_u32 s{S_WAVE}, {split}")
    a(f"s_mov_b32 s60, {lo_base}")
    a(f"s_cselect_b32 s60, s60, {hi_base - split*per_wave}")
    a(f"s_add_u32 s{S_RING}, s{S_RING}, s60")
    a(f"s_lshr_b32 s60, s{S_WAVE}, 1")
    a("s_lshl_b32 s60, s60, 6")
    a(f"v_xor_b32 v246, s60, v{VTA}")
    a(f"v_xor_b32 v247, 64, v246")
    a(f"v_add_u32 v246, s{S_RING}, v246")
    a(f"v_add_u32 v247, s{S_RING}, v247")

def ring_base(a, per_wave, base):
    a(f"s_mul_i32 s{S_RING}, s{S_WAVE}, {per_wave}")
    if base: a(f"s_add_u32 s{S_RING}, s{S_RING}, {base}")
    a(f"s_lshr_b32 s60, s{S_WAVE}, 1")
    a("s_lshl_b32 s60, s60, 6")
    a(f"v_xor_b32 v246, s60, v{VTA}")
    a(f"v_xor_b32 v247, 64, v246")
    a(f"v_add_u32 v246, s{S_RING}, v246")
    a(f"v_add_u32 v247, s{S_RING}, v247")

S_WA, S_WB = 76, 77
def dma_groups(which, n, slot0):
    WROW = 3584 if which == 1 else 128
    srdw = SRD_W1 if which == 1 else SRD_W2R
    sc = "" if which == 1 else " sc1"
    g = []
    for i in range(n):
        g.append([f"s_add_u32 m0, s{S_RING}, {(slot0+i)*2048}",
                  f"buffer_load_dwordx4 v{VD}, s[{srdw}:{srdw+3}], s{S_WA} offen{sc} lds",
                  f"s_add_u32 s{S_WA}, s{S_WA}, {16*WROW}"])
        g.append([f"s_add_u32 m0, s{S_RING}, {(slot0+i)*2048+1024}",
                  f"buffer_load_dwordx4 v{VD}, s[{srdw}:{srdw+3}], s{S_WB} offen{sc} lds",
                  f"s_add_u32 s{S_WB}, s{S_WB}, {16*WROW}"])
    return g

def dma_issue(a, which, n, slot0):
    for grp in dma_groups(which, n, slot0):
        for l in grp: a(l)

SCC_READ = ('s_cbranch_scc', 's_cselect', 's_addc', 's_subb', 's_cmov')
SCC_WRITE = ('s_cmp', 's_add_', 's_sub_', 's_and_', 's_or_', 's_xor_', 's_lshl', 's_lshr', 's_bitcmp', 's_min', 's_max', 's_ashr', 's_not', 's_bfe')
def scc_safe(lines, i):
    for l in lines[i:]:
        op = l.split()[0]
        if op.startswith(SCC_READ): return False
        if op.startswith(SCC_WRITE) or op.endswith(':') or op in ('s_branch', 's_endpgm', 's_barrier'): return True
    return True

def with_bg(a, fg, groups, skip=0, stride=20, after=None, before=None):
    i0 = len(a.lines)
    fg()
    body = a.lines[i0:]
    del a.lines[i0:]
    start = skip
    if after is not None:
        start = next(k for k, l in enumerate(body) if after in l) + 1 + skip
    out = []; gi = 0; nxt = start
    stop = False
    for k, l in enumerate(body):
        if before is not None and not stop and before in l:
            stop = True
            while gi < len(groups):
                out += groups[gi]; gi += 1
        if not stop and gi < len(groups) and k >= nxt and scc_safe(body, k) and not l.endswith(':'):
            out += groups[gi]; gi += 1; nxt = k + stride
        out.append(l)
    while gi < len(groups):
        out += groups[gi]; gi += 1
    a.lines += out

def tr_to_acc(a, which, steps, slot0):
    RHO = 512 if which == 1 else 1024
    for i, s in enumerate(steps):
        o = (slot0 + i) * 2048
        a(f"ds_read_b64_tr_b16 a[{8*s}:{8*s+1}], v246 offset:{o}")
        a(f"ds_read_b64_tr_b16 a[{8*s+2}:{8*s+3}], v246 offset:{o+RHO}")
        a(f"ds_read_b64_tr_b16 a[{8*s+4}:{8*s+5}], v247 offset:{o}")
        a(f"ds_read_b64_tr_b16 a[{8*s+6}:{8*s+7}], v247 offset:{o+RHO}")
        if i % 3 == 2: a("s_waitcnt lgkmcnt(4)")

def woff_init(a, which, sC):
    WROW = 3584 if which == 1 else 128
    if which == 1:
        a(f"s_mul_i32 s{S_WA}, s{S_WAVE}, {32*16*3584}")
        a(f"s_lshl_b32 s60, s{sC}, 7")
    else:
        a(f"s_mul_i32 s{S_WA}, s{S_WAVE}, {28*16*128}")
        a(f"s_mul_i32 s60, s{sC}, {W2R_TILE}")
    a(f"s_add_u32 s{S_WA}, s{S_WA}, s60")
    a(f"s_add_u32 s{S_WB}, s{S_WA}, {8*WROW}")

def gemm_lane_consts(a):
    a("v_lshrrev_b32 v6, 5, v2")
    a("v_and_b32 v7, 31, v2")
    a("v_lshlrev_b32 v10, 13, v6")
    a("v_lshl_add_u32 v10, v7, 4, v10")
    a(f"s_and_b32 s60, s{S_WAVE}, 1")
    a("s_lshl_b32 s60, s60, 9")
    a("v_xor_b32 v8, s60, v10")
    a("v_xor_b32 v9, 512, v8")

def main_loop(a, which, srda, soff, D0):
    NK = 32 if which == 1 else 28
    DR = 14
    ab = lambda s: 128 + 8 * (s % DR)
    issued = [0]
    def issue():
        s = issued[0]
        if s >= NK: return []
        R = ab(s); issued[0] += 1
        return [f"buffer_load_dwordx4 v[{R}:{R+3}], v8, s[{srda}:{srda+3}], s{soff} offen sc1",
                f"buffer_load_dwordx4 v[{R+4}:{R+7}], v9, s[{srda}:{srda+3}], s{soff} offen sc1\ns_add_u32 s{soff}, s{soff}, 16384"]
    for s in range(D0):
        for l in issue(): a(l)
    for s in range(NK):
        a(f"s_waitcnt vmcnt({2*(issued[0] - 1 - s)})")
        nxt = issue() if (issued[0] - s) < DR else []
        R = ab(s); k = 0
        for wt in range(2):
            for at in range(2):
                acc = 64 + 32 * wt + 16 * at
                wq = f"a[{8*s+4*wt}:{8*s+4*wt+3}]"; aq = f"v[{R+4*at}:{R+4*at+3}]"
                cc = "0" if s == 0 else f"v[{acc}:{acc+15}]"
                if which == 1: a(f"v_mfma_f32_32x32x16_bf16 v[{acc}:{acc+15}], {wq}, {aq}, {cc}")
                else: a(f"v_mfma_f32_32x32x16_bf16 v[{acc}:{acc+15}], {aq}, {wq}, {cc}")
                if k == 0 and nxt: a(nxt[0])
                if k == 2 and nxt: a(nxt[1])
                k += 1

def check8(R, T):
    return [f"v_max3_u32 v{T}, v{R}, v{R+1}, v{R+2}", f"v_max3_u32 v{T}, v{T}, v{R+3}, v{R+4}", f"v_max3_u32 v{T}, v{T}, v{R+5}, v{R+6}",
            f"v_max_u32 v{T}, v{T}, v{R+7}", f"v_cmp_eq_u32 vcc, -1, v{T}"]

SPIN_MAX = 0x20000
def probe_spin(a, srd_, vaddr, soff_sgpr):
    l = newlbl("pr")
    a("s_mov_b32 s61, 0")
    a.label(l)
    a(f"buffer_load_dword v14, v{vaddr}, s[{srd_}:{srd_+3}], s{soff_sgpr} offen sc1")
    a("s_add_u32 s61, s61, 1")
    a("s_waitcnt vmcnt(0)")
    a("v_cmp_eq_u32 vcc, -1, v14")
    a(f"s_cbranch_vccz {l}_ok")
    a(f"s_cmp_lt_u32 s61, {SPIN_MAX}")
    a(f"s_cbranch_scc1 {l}")
    a.label(l + "_ok")

RETRY = []
def main_loop2(a, which, srda, sbase, D0):
    NK = 32 if which == 1 else 28
    DR = 14
    ab = lambda s: 128 + 8 * (s % DR)
    a(f"s_mov_b32 s73, s{sbase}")
    issued = [0]
    def issue():
        s = issued[0]
        if s >= NK: return []
        R = ab(s); issued[0] += 1
        return [f"buffer_load_dwordx4 v[{R}:{R+3}], v8, s[{srda}:{srda+3}], s73 offen sc1",
                f"buffer_load_dwordx4 v[{R+4}:{R+7}], v9, s[{srda}:{srda+3}], s73 offen sc1\ns_add_u32 s73, s73, 16384"]
    def retry(t):
        lr, lb = newlbl("rt"), newlbl("rb")
        R = ab(t)
        blk = [lr + ":", "s_mov_b32 s61, 0", f"s_add_u32 s62, s{sbase}, {t*16384}", lr + "_l:",
               f"buffer_load_dwordx4 v[{R}:{R+3}], v8, s[{srda}:{srda+3}], s62 offen sc1",
               f"buffer_load_dwordx4 v[{R+4}:{R+7}], v9, s[{srda}:{srda+3}], s62 offen sc1",
               "s_add_u32 s61, s61, 1", "s_waitcnt vmcnt(0)"] + check8(R, 12) + \
              [f"s_cbranch_vccz {lb}", f"s_cmp_lt_u32 s61, {SPIN_MAX}", f"s_cbranch_scc1 {lr}_l", f"s_branch {lb}"]
        RETRY.extend(blk)
        return lr, lb
    for s in range(D0):
        for l in issue(): a(l)
    a(f"s_waitcnt vmcnt({2*(issued[0] - 1)})")
    for l in check8(ab(0), 12): a(l)
    lr, lb = retry(0)
    a(f"s_cbranch_vccnz {lr}")
    a.label(lb)
    for s in range(NK):
        nxt = issue() if (issued[0] - s) < DR and (issued[0] - s) <= D0 else []
        R = ab(s); k = 0
        for wt in range(2):
            for at in range(2):
                acc = 64 + 32 * wt + 16 * at
                wq = f"a[{8*s+4*wt}:{8*s+4*wt+3}]"; aq = f"v[{R+4*at}:{R+4*at+3}]"
                cc = "0" if s == 0 else f"v[{acc}:{acc+15}]"
                if which == 1: a(f"v_mfma_f32_32x32x16_bf16 v[{acc}:{acc+15}], {wq}, {aq}, {cc}")
                else: a(f"v_mfma_f32_32x32x16_bf16 v[{acc}:{acc+15}], {aq}, {wq}, {cc}")
                if k == 0 and nxt: a(nxt[0])
                if k == 1:
                    if nxt: a(nxt[1])
                    if s + 1 < NK:
                        a(f"s_waitcnt vmcnt({2*(issued[0] - 1 - (s + 1))})")
                        for l in check8(ab(s + 1), 12): a(l)
                k += 1
        if s + 1 < NK:
            lr, lb = retry(s + 1)
            a("s_nop 2")
            a(f"s_cbranch_vccnz {lr}")
            a.label(lb)

def reduce_write(a):
    a("v_lshlrev_b32 v13, 4, v2")
    for j in (1, 2, 3):
        wt, at = j >> 1, j & 1
        acc = 64 + 32 * wt + 16 * at
        a(f"s_xor_b32 s60, s{S_WAVE}, {j}")
        a(f"s_mul_i32 s60, s60, {3*4096}")
        a(f"s_add_u32 s60, s60, {(j-1)*4096}")
        a(f"v_add_u32 v14, s60, v13")
        for g in range(4):
            a(f"ds_write_b128 v14, v[{acc+4*g}:{acc+4*g+3}] offset:{g*1024}")

def reduce_read(a):
    a(f"s_mul_i32 s60, s{S_WAVE}, {3*4096}")
    a("v_add_u32 v14, s60, v13")
    for j in range(3):
        for g in range(4):
            a(f"ds_read_b128 v[{128+16*j+4*g}:{131+16*j+4*g}], v14 offset:{j*4096+g*1024}")
    P = lambda b, r: f"v[{b+r}:{b+r+1}]"
    a("s_waitcnt lgkmcnt(8)")
    for r in range(0, 16, 2): a(f"v_pk_add_f32 {P(64,r)}, {P(64,r)}, {P(128,r)}")
    a("s_waitcnt lgkmcnt(0)")
    for r in range(0, 16, 2): a(f"v_pk_add_f32 {P(144,r)}, {P(144,r)}, {P(160,r)}")
    for r in range(0, 16, 2): a(f"v_pk_add_f32 {P(128,r)}, {P(64,r)}, {P(144,r)}")

def gelu16(a, X, T):
    a("s_mov_b32 s66, 0x3d372713")
    a("s_mov_b32 s67, 0x3d372713")
    kk = -2.0 * 1.4426950408889634 * 0.7978845608028654
    kb = hex(struct.unpack('<I', struct.pack('<f', kk))[0])
    a(f"s_mov_b32 s68, {kb}"); a(f"s_mov_b32 s69, {kb}")
    P = lambda b, r: f"v[{b+r}:{b+r+1}]"
    for r in range(0, 16, 2): a(f"v_pk_mul_f32 {P(T,r)}, {P(X,r)}, {P(X,r)}")
    for r in range(0, 16, 2): a(f"v_pk_mul_f32 {P(T,r)}, {P(T,r)}, s[66:67]")
    for r in range(0, 16, 2): a(f"v_pk_fma_f32 {P(T,r)}, {P(T,r)}, {P(X,r)}, {P(X,r)}")
    for r in range(0, 16, 2): a(f"v_pk_mul_f32 {P(T,r)}, {P(T,r)}, s[68:69]")
    for r in range(16): a(f"v_exp_f32 v{T+r}, v{T+r}")
    for r in range(16): a(f"v_add_f32 v{T+r}, 1.0, v{T+r}")
    for r in range(16): a(f"v_rcp_f32 v{T+r}, v{T+r}")
    for r in range(0, 16, 2): a(f"v_pk_mul_f32 {P(X,r)}, {P(X,r)}, {P(T,r)}")

def epi1_loads(a):
    a(f"s_lshr_b32 s61, s{S_WAVE}, 1")
    a(f"s_lshl_b32 s72, s{S_FJ}, 6")
    a("s_lshl_b32 s64, s61, 5")
    a("s_add_u32 s72, s72, s64")
    a("s_lshl_b32 s64, s72, 1")
    a("v_lshlrev_b32 v15, 3, v6")
    a("v_add_u32 v15, s64, v15")
    for g in range(4):
        a(f"global_load_dwordx2 v[{20+2*g}:{21+2*g}], v15, s[{S_B1}:{S_B1+1}] offset:{16*g}")

def epi1(a):
    P = lambda b, r: f"v[{b+r}:{b+r+1}]"
    reduce_read(a)
    for r in range(0, 16, 2): a(f"v_cvt_pk_bf16_f32 v{144+r//2}, v{128+r}, v{129+r}")
    for r in range(0, 16, 2):
        a(f"v_lshlrev_b32 v{128+r}, 16, v{144+r//2}")
        a(f"v_and_b32 v{129+r}, 0xffff0000, v{144+r//2}")
    for g in range(4):
        a(f"v_lshlrev_b32 v{160+4*g}, 16, v{20+2*g}")
        a(f"v_and_b32 v{161+4*g}, 0xffff0000, v{20+2*g}")
        a(f"v_lshlrev_b32 v{162+4*g}, 16, v{21+2*g}")
        a(f"v_and_b32 v{163+4*g}, 0xffff0000, v{21+2*g}")
    for r in range(0, 16, 2): a(f"v_pk_add_f32 {P(128,r)}, {P(128,r)}, {P(160,r)}")
    for r in range(0, 16, 2): a(f"v_cvt_pk_bf16_f32 v{144+r//2}, v{128+r}, v{129+r}")
    for r in range(0, 16, 2):
        a(f"v_lshlrev_b32 v{128+r}, 16, v{144+r//2}")
        a(f"v_and_b32 v{129+r}, 0xffff0000, v{144+r//2}")
    gelu16(a, 128, 160)
    for r in range(0, 16, 2): a(f"v_cvt_pk_bf16_f32 v{144+r//2}, v{128+r}, v{129+r}")
    a("s_lshr_b32 s64, s72, 4")
    a("s_lshl_b32 s64, s64, 14")
    a(f"s_lshl_b32 s65, s{S_T1}, 10")
    a("s_add_u32 s64, s64, s65")
    a(f"s_and_b32 s62, s{S_WAVE}, 1")
    a("s_lshl_b32 s65, s62, 9")
    a("s_add_u32 s64, s64, s65")
    a(f"buffer_store_dwordx4 v[144:147], v10, s[{SRD_G2}:{SRD_G2+3}], s64 offen sc1")
    a("s_add_u32 s64, s64, 16384")
    a(f"buffer_store_dwordx4 v[148:151], v10, s[{SRD_G2}:{SRD_G2+3}], s64 offen sc1")

def epi2_loads(a):
    a(f"s_lshr_b32 s61, s{S_WAVE}, 1")
    a(f"s_and_b32 s62, s{S_WAVE}, 1")
    a(f"s_lshl_b32 s63, s{S_SJ}, 6")
    a("s_lshl_b32 s64, s61, 5")
    a("s_add_u32 s63, s63, s64")
    a("v_add_u32 v15, s63, v7")
    a("v_lshlrev_b32 v16, 10, v15")
    a("v_lshl_add_u32 v16, v6, 6, v16")
    a(f"s_lshl_b32 s70, s{S_T2}, 7")
    a("s_lshl_b32 s64, s62, 3")
    a("s_add_u32 s70, s70, s64")
    for r in range(4):
        a(f"buffer_load_dwordx2 v[{20+2*r}:{21+2*r}], v16, s[{SRD_H}:{SRD_H+3}], s70 offen offset:{16*r} sc1")
    a("v_lshlrev_b32 v17, 1, v15")
    a(f"global_load_ushort v18, v17, s[{S_B2}:{S_B2+1}]")

def epi2(a):
    P = lambda b, r: f"v[{b+r}:{b+r+1}]"
    reduce_read(a)
    for r in range(4):
        a(f"v_cvt_pk_bf16_f32 v{144+2*r}, v{128+r}, v{132+r}")
        a(f"v_cvt_pk_bf16_f32 v{145+2*r}, v{136+r}, v{140+r}")
    a("v_lshlrev_b32 v18, 16, v18")
    a("v_mov_b32 v19, v18")
    for i in range(8):
        a(f"v_lshlrev_b32 v{160+2*i}, 16, v{144+i}")
        a(f"v_and_b32 v{161+2*i}, 0xffff0000, v{144+i}")
    for r in range(0, 16, 2): a(f"v_pk_add_f32 {P(160,r)}, {P(160,r)}, v[18:19]")
    for i in range(8): a(f"v_cvt_pk_bf16_f32 v{144+i}, v{160+2*i}, v{161+2*i}")
    for i in range(8):
        a(f"v_lshlrev_b32 v{160+2*i}, 16, v{144+i}")
        a(f"v_and_b32 v{161+2*i}, 0xffff0000, v{144+i}")
        a(f"v_lshlrev_b32 v{176+2*i}, 16, v{20+i}")
        a(f"v_and_b32 v{177+2*i}, 0xffff0000, v{20+i}")
    for r in range(0, 16, 2): a(f"v_pk_add_f32 {P(160,r)}, {P(160,r)}, {P(176,r)}")
    for i in range(8): a(f"v_cvt_pk_bf16_f32 v{144+i}, v{160+2*i}, v{161+2*i}")
    for r in range(4):
        a(f"buffer_store_dwordx2 v[{144+2*r}:{145+2*r}], v16, s[{SRD_OUT}:{SRD_OUT+3}], s70 offen offset:{16*r}")

D0_G1, D0_G2 = 6, 6
NPRE = 14
TOUCH = True
SJROT = 0
TOUCHREV = False
REMAP = False
ALIGN = True
CODEPF = True
def gen_fused(a):
    kernel_header(a, KNAME)
    stamp_begin(a)
    if DBGST is not None or DIAG_THR: a("s_memrealtime s[98:99]")
    a("s_cmp_ge_u32 s2, 256")
    a("s_cbranch_scc1 L_exit")
    if REMAP:
        a("s_and_b32 s4, s2, 7"); a("s_lshl_b32 s4, s4, 5"); a("s_lshr_b32 s2, s2, 3"); a("s_or_b32 s2, s2, s4")
    prologue(a)
    ln1(a)
    st(a, "LN1 done (stores issued)", 250)
    a("s_and_b32 s60, s2, 3")
    a("s_lshl_b32 s60, s60, 6")
    arrive(a, 8, 60, lo_only=True)
    st(a, "B1 arrived", 250)
    a("s_waitcnt vmcnt(2)")
    bulk(a, "P2")
    kgen(a)
    st(a, "Kgen done", 250)
    ring_base_sel(a, 25600, 18432, 2, 125440)
    woff_init(a, 1, S_FJ)
    conv_u_writes(a)
    conv_main(a)
    st(a, "conv epilogue done (stores issued)")
    lw, lw2 = newlbl("ws"), newlbl("ws")
    a(f"s_cmp_lt_u32 s{S_WAVE}, 2")
    a(f"s_cbranch_scc1 {lw}")
    a("s_waitcnt vmcnt(0)")
    a(f"s_branch {lw2}")
    a.label(lw)
    a("s_waitcnt vmcnt(4)")
    lq = newlbl("pq")
    a(f"s_cmp_lg_u32 s{S_WAVE}, 0")
    a(f"s_cbranch_scc1 {lw2}")
    a("v_cmp_gt_u32 vcc, 32, v51")
    a(f"s_cbranch_vccz {lw2}")
    a(f"s_mov_b32 s60, {SYNC_OFF + 8*128}")
    poll(a, 6, 60, 8, 7, 32)
    a.label(lw2)
    tr_to_acc(a, 1, range(9), 0)
    a("s_waitcnt lgkmcnt(0)")
    a("s_barrier")
    lw4 = newlbl("w2a")
    a(f"s_cmp_lg_u32 s{S_WAVE}, 0")
    a(f"s_cbranch_scc1 {lw4}")
    a("s_and_b32 s60, s2, 7")
    a("s_lshl_b32 s60, s60, 7")
    a(f"s_add_u32 s60, s60, {SYNC_OFF}")
    a("v_mov_b32 v13, s60")
    a("v_mov_b32 v14, 1")
    a("s_mov_b64 s[62:63], exec")
    a("s_mov_b64 exec, 1")
    a(f"global_atomic_add v13, v14, s[6:7] sc1")
    a("s_mov_b64 exec, s[62:63]")
    a.label(lw4)
    ring_base_sel(a, 0, 34816, 3, 125440)
    dma_issue(a, 1, 10, 0)
    st(a, "w1 DMA B issued")
    ln2_loads(a)
    st(a, "YA ready")
    def trgrp(sidx, slot, va=246, vb=247, rho=512):
        o = slot * 2048
        return [f"ds_read_b64_tr_b16 a[{8*sidx}:{8*sidx+1}], v{va} offset:{o}", f"ds_read_b64_tr_b16 a[{8*sidx+2}:{8*sidx+3}], v{va} offset:{o+rho}",
                f"ds_read_b64_tr_b16 a[{8*sidx+4}:{8*sidx+5}], v{vb} offset:{o}", f"ds_read_b64_tr_b16 a[{8*sidx+6}:{8*sidx+7}], v{vb} offset:{o+rho}"]
    grp = [trgrp(9 + i, i) for i in range(6)]
    d1 = dma_groups(1, 7, 10)
    d2 = dma_groups(1, 6, 0)
    d2[0] = ["s_waitcnt lgkmcnt(0)"] + d2[0]
    with_bg(a, lambda: ln2_compute(a), grp + d1 + d2, skip=6, stride=9, after="ds_read_b32 v47", before="BGSTOP")
    st(a, "LN2 done (stores issued)")
    for i in range(15, 26):
        for l in trgrp(i, i - 9): a(l)
        if i % 3 == 2: a("s_waitcnt lgkmcnt(4)")
    for i in range(26, 32):
        for l in trgrp(i, i - 26): a(l)
        if i % 3 == 2: a("s_waitcnt lgkmcnt(4)")
    gemm_lane_consts(a)
    dma_setup(a, 2)
    a("s_waitcnt lgkmcnt(0)")
    a("s_barrier")
    ring_base(a, 28672, RED_BYTES)
    woff_init(a, 2, S_SJ)
    dma_issue(a, 2, NPRE, 0)
    st(a, "w2 DMA A issued")
    a("s_cmp_ge_u32 s2, 224")
    a("s_cbranch_scc1 L_skipG1")
    a(f"s_mul_i32 s71, s{S_WAVE}, {32*16384}")
    a(f"s_lshl_b32 s60, s{S_T1}, 10")
    a("s_add_u32 s71, s71, s60")
    a("v_lshlrev_b32 v15, 13, v2")
    a("v_add_u32 v15, 1020, v15")
    probe_spin(a, SRD_HN, 15, 71)
    st(a, "HN probe ok")
    epi1_loads(a)
    a("s_waitcnt lgkmcnt(0)")
    main_loop2(a, 1, SRD_HN, 71, D0_G1)
    st(a, "G1 main done")
    def g1_tail():
        reduce_write(a)
        a("s_waitcnt lgkmcnt(0)")
        a("s_barrier")
        epi1(a)
    tr_to_acc(a, 2, range(NPRE), 0)
    a("s_waitcnt lgkmcnt(0)")
    a("s_barrier")
    with_bg(a, g1_tail, dma_groups(2, 14, 0), skip=2, stride=7)
    st(a, "epi1 done (stores issued)")
    dma_issue(a, 2, 28 - NPRE - 14, 14) if 28 - NPRE - 14 > 0 else None
    a("s_branch L_stage2")
    a.label("L_skipG1")
    a("s_waitcnt vmcnt(0) lgkmcnt(0)")
    tr_to_acc(a, 2, range(NPRE), 0)
    a("s_waitcnt lgkmcnt(0)")
    dma_issue(a, 2, 28 - NPRE, 0)
    a.label("L_stage2")
    a("s_waitcnt vmcnt(0)")
    tr_to_acc(a, 2, range(NPRE, 28), 0)
    a(f"s_mul_i32 s71, s{S_WAVE}, {28*16384}")
    a(f"s_lshl_b32 s60, s{S_T2}, 10")
    a("s_add_u32 s71, s71, s60")
    a("v_min_u32 v15, 55, v2")
    a("v_lshlrev_b32 v15, 13, v15")
    a("v_add_u32 v15, 1020, v15")
    st(a, "w2 staged")
    probe_spin(a, SRD_G2, 15, 71)
    st(a, "G probe ok")
    epi2_loads(a)
    a("s_waitcnt lgkmcnt(0)")
    main_loop2(a, 2, SRD_G2, 71, D0_G2)
    st(a, "G2 main done")
    a("s_barrier")
    reduce_write(a)
    a("s_waitcnt lgkmcnt(0)")
    a("s_barrier")
    epi2(a)
    a("s_waitcnt vmcnt(0)") if STAMPON() else None
    st(a, "end", final=True)
    if DIAG_THR:
        a("s_cmp_lg_u32 s2, 0")
        a("s_cbranch_scc1 L_exit")
        a("s_waitcnt vmcnt(0)")
        a("s_memrealtime s[96:97]")
        a("s_waitcnt lgkmcnt(0)")
        a("s_sub_u32 s94, s96, s98")
        a(f"s_cmp_lt_u32 s94, {DIAG_THR}")
        a("s_cbranch_scc1 L_exit")
        a("s_add_u32 s95, s96, 6000")
        a.label("L_diag")
        a("s_memrealtime s[96:97]")
        a("s_waitcnt lgkmcnt(0)")
        a("s_sub_u32 s94, s95, s96")
        a("s_cmp_gt_i32 s94, 0")
        a("s_cbranch_scc1 L_diag")
    a.label("L_exit")
    a("s_endpgm")
    for l in RETRY: a.lines.append(l)
    a.label("L_code_end")
    a("s_endpgm")
    return kernel_desc(KNAME, 512, 100, accum=256)

def touch_setup(a):
    a("s_and_b32 s60, s2, 7")
    a("s_lshr_b32 s60, s60, 1")
    a("s_lshr_b32 s61, s2, 3")
    a(f"s_and_b32 s62, s{S_WAVE}, 1")
    a("s_lshl_b32 s62, s62, 9")
    a("s_lshl_b32 s63, s61, 6")
    a(f"v_add_u32 v{V_TW1}, s63, v2")
    a(f"v_mul_u32_u24 v{V_TW1}, 3584, v{V_TW1}")
    a("s_mul_i32 s63, s60, 896")
    a("s_add_u32 s63, s63, s62")
    a(f"v_add_u32 v{V_TW1}, s63, v{V_TW1}")
    a("s_mul_i32 s79, s2, 28672")
    a(f"s_and_b32 s61, s{S_WAVE}, 1")
    a("s_mul_i32 s61, s61, 14336")
    a("s_add_u32 s79, s79, s61")

BULK = {"P0": ["T0"], "P1": ["T1"], "P2": ["F0", "F1", "T2"], "P3": ["F2", "F3", "T3", "C0"], "P5": ["F4", "F5", "C1"], "P6": ["C2", "C3"],
        "c0": ["C4"], "c1": ["C5"], "c2": ["C6"], "c10": ["S0", "S1", "S2"], "c11": ["S3", "S4"], "c12": ["S5", "S6", "S7"], "c13": ["S8", "S9"], "c14": ["S10", "S11"], "c15": ["S12", "S13"]}
HIQ = []
def hi_younger(tag):
    idx = max(i for i, t in enumerate(HIQ) if t == tag)
    return len(HIQ) - 1 - idx
def bulk(a, slot):
    ops = BULK.get(slot, [])
    if not ops: return
    for op in ops:
        if op[0] == "F":
            prefill_op(a, int(op[1:])); HIQ.append(op)
    ops = [o for o in ops if o[0] != "F"]
    if not TOUCH: ops = [o for o in ops if o[0] != "T"]
    if not ops: return
    l = newlbl("bk")
    a(f"s_cmp_lt_u32 s{S_WAVE}, 2")
    a(f"s_cbranch_scc1 {l}")
    for op in ops:
        k = int(op[1:])
        if op[0] == "T":
            a(f"buffer_load_dword a199, v{V_TW1}, s[{SRD_W1}:{SRD_W1+3}], 0 offen offset:{128*k}"); HIQ.append(op)
        elif op[0] == "C":
            a("v_lshlrev_b32 v255, 4, v2")
            for i in (2 * k, 2 * k + 1):
                a(f"buffer_load_dwordx4 a[{A_CP+4*i}:{A_CP+4*i+3}], v255, s[{SRD_W2}:{SRD_W2+3}], s79 offen offset:{(i%4)*1024}")
                if i % 4 == 3: a("s_add_u32 s79, s79, 4096")
                HIQ.append("C")
        else:
            if k == 0:
                a(f"s_waitcnt vmcnt({hi_younger('C')})")
                w2copy_dst(a)
            for x in w2copy_store(a, k): a(x)
            HIQ.append("S")
    a.label(l)

A_CP = 200
def w2copy_dst(a):
    a("v_lshrrev_b32 v245, 3, v2")
    a(f"s_mov_b32 s74, {W2R_TILE}")
    a("v_mul_lo_u32 v245, v245, s74")
    a(f"v_and_b32 v{V_TW2}, 7, v2")
    a(f"v_lshl_add_u32 v{V_TW2}, v{V_TW2}, 4, v245")

def w2copy_store(a, i):
    return [f"s_and_b32 s74, s{S_WAVE}, 1",
            "s_mul_i32 s74, s74, 14",
            f"s_add_u32 s74, s74, {i}",
            "s_and_b32 s75, s74, 3",
            f"s_mul_i32 s75, s75, {8*W2R_TILE}",
            "s_lshr_b32 s74, s74, 2",
            "s_lshl_b32 s74, s74, 7",
            "s_add_u32 s75, s75, s74",
            "s_mul_i32 s74, s2, 896",
            "s_add_u32 s75, s75, s74",
            f"buffer_store_dwordx4 a[{A_CP+4*i}:{A_CP+4*i+3}], v{V_TW2}, s[{SRD_W2R}:{SRD_W2R+3}], s75 offen sc1"]

def build(path):
    a = Asm()
    hdr = open("cdna_kernels/" + NAME + ".s.ref").read().split("; Override launch geometry")[0]
    txt = hdr + f"; @launch grid=(256,1,1) block=(256,1,1) lds={LDS_TOTAL}\n" + '.amdgcn_target "amdgcn-amd-amdhsa--gfx950"\n'
    d = gen_fused(a)
    body = a.finalize()
    if ALIGN:
        import asmlib
        body, np_, nn_ = asmlib.align8(body)
        print("align8: promoted", np_, "nops", nn_)
    txt += body + d
    open(path, "w").write(txt)
    open(path + ".names", "w").write("".join(f"{k} {v}\n" for k, v in ST_NAMES.items()))

if __name__ == "__main__":
    import sys, common
    if "--stamp" in sys.argv:
        common.STAMP = True; sys.argv.remove("--stamp")
    if "--notouch" in sys.argv: TOUCH = False
    if "--remap" in sys.argv: REMAP = True
    for x in sys.argv:
        if x.startswith("--bulk="): BULK = eval(x[7:])
        if x.startswith("--thr="): DIAG_THR = int(x[6:])
        if x.startswith("--d0="): D0_G1 = D0_G2 = int(x[5:])
    if "--sjrot" in sys.argv: SJROT = 2
    if "--touchrev" in sys.argv: TOUCHREV = True
    if "--noalign" in sys.argv: ALIGN = False
    if "--nocodepf" in sys.argv: CODEPF = False
    if "--dbgst" in sys.argv:
        DBGST = ["LN1 done (stores issued)", "B1 arrived", "Kgen done", "B1 passed", "conv start (U in LDS)", "conv main done", "B2 arrived", "B2 passed",
                 "LN2 done (stores issued)", "B3 passed", "G1 main done", "B4 arrived", "B4 passed", "G2 main done", "end"]
    build(sys.argv[1])
```

```python
from common import *
from k1 import cmul, wave_max, G_ROW, H_BASE, FT_BASE, FT_DUMMY
import struct

KNAME = NAME + "_kernel"
KG_CH = 27984 + 5888
KC_BASE = 2 * KG_CH
KC_STRIDE = 4160
KCH = 4 * KC_STRIDE
U_BASE = KC_BASE + 2 * KCH
U_CH = 95 * 80
LDS_TOTAL = 163840
FT_ZERO = 2060
RED_BYTES = 49152
D_RING = 8
S_WAVE, S_Q0 = 10, 11
SRD_X, SRD_U2, SRD_YA, SRD_H, SRD_HN, SRD_G2, SRD_W1, SRD_W2, SRD_OUT = 12, 16, 20, 24, 28, 32, 36, 40, 44
SRD_W2R = 80
S_B1, S_B2 = 48, 50
S_SCALE, S_DSK = 52, 53
S_T1, S_FJ, S_T2, S_SJ = 54, 55, 56, 57
S_WOFF, S_RING = 58, 59
SM, SR = 84, 86
C_B2, C_B3, C_B4 = 0, 8, 16
KIDX = 0
S_TB = 5
VX = 224
V_KROW, V_KA, V_KB, V_KSC, V_KDST = 232, 233, 234, 235, 239
V_CA, V_CB = 248, 249
V_PW, V_PR, V_US = 252, 253, 254
V_TW1, V_TW2 = 1, 30
PL = 116224
PL1 = PL2 = 0
YB = 16384

ST_NAMES = {}
DIAG_THR = 0
DBGST = None
_st = [2]
def st(a, name, vt=60, final=False):
    if DBGST is not None:
        if name in DBGST:
            k = DBGST.index(name) + 1
            l = newlbl("ds")
            a("s_memrealtime s[96:97]")
            a(f"s_or_b32 s94, s2, s{S_WAVE}")
            a("s_cmp_lg_u32 s94, 0")
            a("s_waitcnt lgkmcnt(0)")
            a(f"s_cbranch_scc1 {l}")
            a("s_sub_u32 s96, s96, s98")
            a(f"v_mov_b32 v{vt}, {4*k}")
            a(f"v_mov_b32 v{vt+1}, s96")
            a(f"global_store_dword v{vt}, v{vt+1}, s[8:9]")
            a.label(l)
        return
    slot = 1 if final else _st[0]
    if not final: _st[0] += 1
    ST_NAMES[slot] = name
    stamp(a, KIDX, slot, 6, vt)

def evalE(a, D, v, zr, zi, t, conj=False):
    bits = struct.unpack('<I', struct.pack('<f', float(v)))[0]
    a(f"s_mov_b32 s78, {hex(bits)}")
    a(f"v_mul_f32 v{t}, s78, v{zr}")
    a(f"v_mul_f32 v{t+1}, s78, v{zi}")
    a(f"v_exp_f32 v{t}, v{t}")
    a(f"v_rndne_f32 v{t+2}, v{t+1}")
    a(f"v_sub_f32 v{t+1}, v{t+1}, v{t+2}")
    a(f"v_cos_f32 v{D}, v{t+1}")
    a(f"v_sin_f32 v{D+1}, v{t+1}")
    a(f"v_mul_f32 v{D}, v{D}, v{t}")
    if conj: a(f"v_mul_f32 v{D+1}, -v{D+1}, v{t}")
    else: a(f"v_mul_f32 v{D+1}, v{D+1}, v{t}")

def pos2chan(a, sd, sq, t):
    a(f"s_and_b32 s{sd}, s{sq}, 0x1c0")
    a(f"s_and_b32 s{t}, s{sq}, 7")
    a(f"s_lshl_b32 s{t}, s{t}, 3")
    a(f"s_or_b32 s{sd}, s{sd}, s{t}")
    a(f"s_lshr_b32 s{t}, s{sq}, 3")
    a(f"s_and_b32 s{t}, s{t}, 7")
    a(f"s_or_b32 s{sd}, s{sd}, s{t}")

_lbl = [0]
def newlbl(p):
    _lbl[0] += 1
    return f"L_{p}{_lbl[0]}"

def arrive(a, base_sgpr_pair, off_sgpr, lo_only=False):
    if lo_only:
        l0 = newlbl("ad")
        a(f"s_cmp_ge_u32 s{S_WAVE}, 2")
        a(f"s_cbranch_scc1 {l0}")
        a("s_waitcnt vmcnt(0)")
        a.label(l0)
    else:
        a("s_waitcnt vmcnt(0)")
    a("s_barrier")
    l = newlbl("arr")
    a(f"s_cmp_lg_u32 s{S_WAVE}, 0")
    a(f"s_cbranch_scc1 {l}")
    a(f"v_mov_b32 v13, s{off_sgpr}")
    a("v_mov_b32 v14, 1")
    a("s_mov_b64 s[62:63], exec")
    a("s_mov_b64 exec, 1")
    a(f"global_atomic_add v13, v14, s[{base_sgpr_pair}:{base_sgpr_pair+1}] sc1")
    a("s_mov_b64 exec, s[62:63]")
    a.label(l)

def poll(a, base_sgpr_pair, off_sgpr, n, stride_log2, target):
    l = newlbl("poll")
    a(f"v_and_b32 v13, {n-1}, v2")
    a(f"v_lshlrev_b32 v13, {stride_log2}, v13")
    a(f"v_add_u32 v13, s{off_sgpr}, v13")
    a("s_mov_b32 s61, 0")
    a.label(l)
    a(f"global_load_dword v14, v13, s[{base_sgpr_pair}:{base_sgpr_pair+1}] sc1")
    a("s_waitcnt vmcnt(0)")
    a(f"v_cmp_gt_u32 vcc, {target}, v14")
    a("s_add_u32 s61, s61, 1")
    a(f"s_cbranch_vccz {l}_done")
    a("s_cmp_lt_u32 s61, 0x40000")
    a(f"s_cbranch_scc1 {l}")
    a.label(l + "_done")

def poll_wg(a, base_sgpr_pair, off_sgpr, n, stride_log2, target):
    l = newlbl("pw")
    a(f"s_cmp_lg_u32 s{S_WAVE}, 0")
    a(f"s_cbranch_scc1 {l}")
    poll(a, base_sgpr_pair, off_sgpr, n, stride_log2, target)
    a.label(l)
    a("s_barrier")

def prologue(a):
    a("s_load_dwordx16 s[64:79], s[0:1], 0")
    a("s_load_dwordx2 s[88:89], s[0:1], 64")
    a("s_load_dwordx4 s[80:83], s[0:1], 80")
    a("s_load_dwordx4 s[84:87], s[0:1], 96")
    a("s_load_dwordx4 s[60:63], s[0:1], 112")
    a("s_load_dwordx2 s[6:7], s[0:1], 128")
    a("v_lshrrev_b32 v1, 6, v0")
    a("v_and_b32 v2, 63, v0")
    a(f"v_readfirstlane_b32 s{S_WAVE}, v1")
    a("s_and_b32 s54, s2, 7")
    a("s_lshl_b32 s54, s54, 5")
    a("s_lshr_b32 s55, s2, 3")
    a(f"s_add_u32 s{S_TB}, s54, s55")
    a(f"s_lshl_b32 s{S_Q0}, s{S_TB}, 1")
    a(f"s_lshr_b32 s55, s{S_WAVE}, 1")
    a(f"s_add_u32 s56, s{S_Q0}, s55")
    pos2chan(a, 57, 56, 58)
    a("v_lshlrev_b32 v3, 4, v2")
    a(f"s_lshl_b32 s58, s{S_TB}, 13")
    a(f"s_lshl_b32 s59, s{S_WAVE}, 11")
    a("s_add_u32 s59, s59, s58")
    a(f"s_and_b32 s54, s{S_WAVE}, 1")
    a("s_lshl_b32 s54, s54, 7")
    a("s_lshl_b32 s55, s57, 8")
    a("s_add_u32 s54, s54, s55")
    a("v_lshl_add_u32 v12, v2, 1, s54")
    a("v_xor_b32 v13, 128, v12")
    a("s_waitcnt lgkmcnt(0)")
    stamp(a, KIDX, 0, 6, 250, first=True)
    srd(a, SRD_X, 64, 65, 0, 0x200000)
    a(f"buffer_load_dwordx4 v[{VX}:{VX+3}], v3, s[{SRD_X}:{SRD_X+3}], s59 offen")
    a(f"buffer_load_dwordx4 v[{VX+4}:{VX+7}], v3, s[{SRD_X}:{SRD_X+3}], s59 offen offset:1024")
    a("global_load_ushort v200, v12, s[66:67]")
    a("global_load_ushort v201, v12, s[68:69]")
    a("global_load_ushort v202, v12, s[70:71]")
    a("global_load_ushort v203, v12, s[72:73]")
    a("global_load_ushort v204, v12, s[74:75]")
    a("global_load_ushort v205, v12, s[76:77]")
    a("global_load_ushort v206, v13, s[70:71]")
    a("global_load_ushort v207, v13, s[72:73]")
    a("global_load_ushort v208, v13, s[74:75]")
    a("global_load_ushort v209, v13, s[76:77]")
    a("s_lshl_b32 s54, s57, 1")
    a("s_and_b32 s54, s54, 0xfffffffc")
    a("s_load_dword s52, s[78:79], s54")
    a("s_load_dword s53, s[88:89], s54")
    a("s_and_b32 s91, s57, 1")
    a(f"s_mov_b32 s8, s62"); a("s_mov_b32 s9, s63")
    srd(a, SRD_OUT, 60, 61, 0, 0x200000)
    srd(a, SRD_U2, 6, 7, U2_OFF, U2_SZ)
    srd(a, SRD_YA, 6, 7, YA_OFF, YA_SZ)
    srd(a, SRD_H, 6, 7, H_OFF, H_SZ)
    srd(a, SRD_HN, 6, 7, HN_OFF, HN_SZ)
    srd(a, SRD_G2, 6, 7, G2_OFF, G2_SZ)
    srd(a, SRD_W1, 80, 81, 0, 2048 * 3584)
    srd(a, SRD_W2, 84, 85, 0, 2048 * 3584)
    a(f"s_mov_b32 s{S_B1}, s82"); a(f"s_mov_b32 s{S_B1+1}, s83")
    a(f"s_mov_b32 s{S_B2}, s86"); a(f"s_mov_b32 s{S_B2+1}, s87")
    srd(a, SRD_W2R, 6, 7, W2R_OFF, W2R_SZ)
    l = newlbl("z")
    a(f"s_or_b32 s54, s2, s{S_WAVE}")
    a("s_cmp_lg_u32 s54, 0")
    a(f"s_cbranch_scc1 {l}")
    a("v_lshlrev_b32 v14, 7, v2")
    a(f"v_add_u32 v14, {SYNC_OFF}, v14")
    a("v_mov_b32 v15, 0")
    a("global_store_dword v14, v15, s[6:7] sc1")
    a.label(l)
    if CODEPF:
        l = newlbl("cpf")
        a(f"s_cmp_lg_u32 s{S_WAVE}, 3")
        a(f"s_cbranch_scc1 {l}")
        a("s_getpc_b64 s[54:55]")
        a.label("L_pcbase")
        a("v_lshlrev_b32 v14, 7, v2")
        a("s_mov_b32 s56, L_code_end-L_pcbase")
        for k in range(5):
            a("v_min_u32 v15, s56, v14")
            a(f"global_load_dword a198, v15, s[54:55]")
            if k < 4: a("v_add_u32 v14, 8192, v14")
        a.label(l)
    touch_setup(a)
    bulk(a, "P0")
    precompute(a)
    a("s_cmp_eq_u32 s91, 1")
    a("s_cselect_b32 s60, 0, 16")
    a("s_waitcnt lgkmcnt(0)")
    a("s_lshl_b32 s52, s52, s60"); a("s_and_b32 s52, s52, 0xffff0000")
    a("s_lshl_b32 s53, s53, s60"); a("s_and_b32 s53, s53, 0xffff0000")

V_ONES = 216
def prefill_op(a, k):
    if k == 0:
        for r in range(V_ONES, V_ONES + 4): a(f"v_mov_b32 v{r}, -1")
    D = f"v[{V_ONES}:{V_ONES+3}]"
    if k < 4:
        a(f"s_lshl_b32 s74, s{S_TB}, 13")
        if k % 2: a("s_add_u32 s74, s74, 4096")
        sr = SRD_YA if k < 2 else SRD_HN
        a(f"buffer_store_dwordx4 {D}, v{V_US}, s[{sr}:{sr+3}], s74 offen sc1")
    else:
        a(f"s_lshl_b32 s74, s{S_FJ}, 16")
        a(f"s_lshl_b32 s75, s{S_WAVE}, 13")
        a("s_add_u32 s74, s74, s75")
        a(f"s_lshl_b32 s75, s{S_T1}, 10")
        a("s_add_u32 s74, s74, s75")
        if k == 5: a("s_add_u32 s74, s74, 32768")
        a("v_lshlrev_b32 v220, 4, v2")
        a(f"buffer_store_dwordx4 {D}, v220, s[{SRD_G2}:{SRD_G2+3}], s74 offen sc1")

def precompute(a):
    a("v_lshrrev_b32 v4, 3, v2")
    a("v_mul_u32_u24 v4, 72, v4")
    a("v_and_b32 v5, 7, v2")
    a("v_add_u32 v4, v4, v5")
    a(f"s_mul_i32 s54, s{S_WAVE}, 576")
    a("v_add_u32 v4, s54, v4")
    a(f"v_lshlrev_b32 v{V_PW}, 2, v4")
    a(f"v_add_u32 v{V_PW}, {PL}, v{V_PW}")
    a(f"s_mul_i32 s54, s{S_WAVE}, 72")
    a("v_add_u32 v4, s54, v2")
    a(f"v_lshlrev_b32 v{V_PR}, 2, v4")
    a(f"v_add_u32 v{V_PR}, {PL}, v{V_PR}")
    a(f"v_lshlrev_b32 v{V_US}, 4, v0")
    a(f"s_lshr_b32 s60, s{S_WAVE}, 1")
    a(f"s_mul_i32 s60, s60, {KG_CH}")
    a(f"s_and_b32 s62, s{S_WAVE}, 1")
    a("s_lshl_b32 s61, s62, 8")
    a("s_add_u32 s61, s61, s60")
    a(f"v_lshl_add_u32 v{V_KROW}, v2, 2, s61")
    a("v_and_b32 v7, 15, v2")
    a("v_lshrrev_b32 v8, 4, v2")
    a(f"v_mul_u32_u24 v9, {G_ROW}, v7")
    a("v_lshl_add_u32 v9, v8, 4, v9")
    a(f"s_mul_i32 s63, s62, {16*G_ROW}")
    a("s_add_u32 s63, s63, s60")
    a(f"v_add_u32 v{V_KA}, s63, v9")
    a(f"s_add_u32 s63, s60, {H_BASE}")
    a(f"v_add_u32 v{V_KB}, s63, v9")
    a("v_lshlrev_b32 v16, 3, v7")
    a(f"s_add_u32 s63, s60, {FT_BASE}")
    a(f"s_movk_i32 s54, {FT_DUMMY}")
    a("v_cmp_eq_u32 s[56:57], 1, v8")
    a("v_cmp_eq_u32 s[58:59], 2, v8")
    a("v_cmp_eq_u32 vcc, 3, v8")
    for r in range(4):
        m0_q2 = 256 + 2 * r
        m0_q3 = 512 + 4 * (r & 1) + 256 * (r >> 1)
        m1_q0 = 1024 + 256 * r
        m1_q1 = 2048 if r == 0 else FT_DUMMY
        R = V_KSC + r
        a("s_cmp_eq_u32 s62, 0")
        a(f"s_cselect_b32 s55, {r}, {m1_q0}")
        a(f"v_mov_b32 v{R}, s55")
        a(f"s_cselect_b32 s55, {4+r}, {m1_q1}")
        a("v_mov_b32 v18, s55")
        a(f"v_cndmask_b32 v{R}, v{R}, v18, s[56:57]")
        a(f"s_cselect_b32 s55, {m0_q2}, s54")
        a("v_mov_b32 v18, s55")
        a(f"v_cndmask_b32 v{R}, v{R}, v18, s[58:59]")
        a(f"s_cselect_b32 s55, {m0_q3}, s54")
        a("v_mov_b32 v18, s55")
        a(f"v_cndmask_b32 v{R}, v{R}, v18, vcc")
        a(f"v_add_u32 v{R}, v{R}, v16")
        a(f"v_lshrrev_b32 v18, 4, v{R}")
        a(f"v_lshlrev_b32 v18, 2, v18")
        a(f"v_lshl_add_u32 v{R}, v{R}, 1, v18")
        a(f"v_add_u32 v{R}, s63, v{R}")
    a("s_lshl_b32 s55, s62, 6")
    a("v_add_u32 v19, s55, v2")
    a("v_lshlrev_b32 v100, 5, v19")
    a("v_sub_u32 v100, 4094, v100")
    NE = 19
    for e in range(NE):
        a(f"v_subrev_u32 v{104+e}, {2*e}, v100")
        a(f"v_cvt_f32_u32 v{104+e}, v{104+e}")
    for e in range(0, NE + 1, 2):
        e2 = min(e + 1, NE - 1)
        a(f"v_cvt_pk_bf16_f32 v{124+e//2}, v{104+e}, v{104+e2}")
    for e in range(NE):
        if e % 2 == 0: a(f"v_lshlrev_b32 v{104+e}, 16, v{124+e//2}")
        else: a(f"v_and_b32 v{104+e}, 0xffff0000, v{124+e//2}")
    for e in range(NE): a(f"v_cvt_u32_f32 v{104+e}, v{104+e}")
    for e in range(16, NE): a(f"v_min_u32 v{104+e}, {2*FT_ZERO}, v{104+e}")
    for e in range(NE):
        a(f"v_lshrrev_b32 v18, 5, v{104+e}")
        a(f"v_lshl_add_u32 v{104+e}, v18, 2, v{104+e}")
        a(f"v_add_u32 v{104+e}, s63, v{104+e}")
    a(f"s_lshr_b32 s55, s{S_WAVE}, 1")
    a(f"s_mul_i32 s55, s55, {KCH}")
    a(f"s_add_u32 s55, s55, {KC_BASE}")
    a("v_lshlrev_b32 v19, 5, v19")
    a(f"v_add_u32 v{V_KDST}, s55, v19")
    bulk(a, "P1")
    a(f"s_lshr_b32 s60, s{S_WAVE}, 1")
    a(f"s_and_b32 s61, s{S_WAVE}, 1")
    a("v_and_b32 v52, 31, v2")
    a("v_lshrrev_b32 v53, 5, v2")
    a("v_and_b32 v54, 3, v52")
    a("v_sub_u32 v54, 3, v54")
    a(f"v_mul_u32_u24 v54, {KC_STRIDE}, v54")
    a("v_lshrrev_b32 v55, 2, v52")
    a("v_lshlrev_b32 v55, 3, v55")
    a("v_sub_u32 v54, v54, v55")
    a("v_lshl_add_u32 v54, v53, 4, v54")
    a(f"s_mul_i32 s62, s60, {KCH}")
    a("s_lshl_b32 s63, s61, 6")
    a("s_sub_u32 s62, s62, s63")
    a(f"s_add_u32 s62, s62, {KC_BASE + 2*2044 - 2048 - 64*30}")
    a(f"v_add_u32 v{V_CA}, s62, v54")
    a("v_mul_u32_u24 v55, 80, v52")
    a("v_lshl_add_u32 v55, v53, 4, v55")
    a(f"s_mul_i32 s62, s60, {U_CH}")
    a("s_mul_i32 s63, s61, 80")
    a("s_sub_u32 s62, s62, s63")
    a(f"s_add_u32 s62, s62, {U_BASE + 80*(31-30)}")
    a(f"v_add_u32 v{V_CB}, s62, v55")
    tile_coords(a, 1, S_T1, S_FJ)
    tile_coords(a, 2, S_T2, S_SJ)
    dma_setup(a, 1)

def planes_out(a, D, plane_base, srd_dst, T, lo_only=False):
    for c in range(8):
        a(f"ds_write_b32 v{V_PW}, v{D+c} offset:{plane_base + 32*c}")
    a("s_waitcnt lgkmcnt(0)")
    a("s_barrier")
    a(f"s_lshl_b32 s60, s{S_TB}, 13")
    if not lo_only:
        a(f"v_add_u32 v{T+8}, 1152, v{V_PR}")
        a(f"ds_read2st64_b32 v[{T}:{T+1}], v{V_PR} offset0:0 offset1:9")
        a(f"ds_read2st64_b32 v[{T+2}:{T+3}], v{V_PR} offset0:18 offset1:27")
        a(f"ds_read2st64_b32 v[{T+4}:{T+5}], v{T+8} offset0:0 offset1:9")
        a(f"ds_read2st64_b32 v[{T+6}:{T+7}], v{T+8} offset0:18 offset1:27")
        a("s_add_u32 s61, s60, 4096")
        a("s_waitcnt lgkmcnt(2)")
        a(f"buffer_store_dwordx4 v[{T}:{T+3}], v{V_US}, s[{srd_dst}:{srd_dst+3}], s60 offen sc1")
        a("s_waitcnt lgkmcnt(0)")
        a(f"buffer_store_dwordx4 v[{T+4}:{T+7}], v{V_US}, s[{srd_dst}:{srd_dst+3}], s61 offen sc1")
    else:
        l = newlbl("po")
        a(f"s_cmp_ge_u32 s{S_WAVE}, 2")
        a(f"s_cbranch_scc1 {l}")
        for k in range(4):
            a(f"v_add_u32 v{T+16}, {576*k}, v{V_PR}")
            a(f"ds_read2st64_b32 v[{T+4*k}:{T+4*k+1}], v{T+16} offset0:0 offset1:9")
            a(f"ds_read2st64_b32 v[{T+4*k+2}:{T+4*k+3}], v{T+16} offset0:18 offset1:27")
        for k in range(4):
            a(f"s_waitcnt lgkmcnt({2*(3-k)})")
            a(f"buffer_store_dwordx4 v[{T+4*k}:{T+4*k+3}], v{V_US}, s[{srd_dst}:{srd_dst+3}], s60 offen sc1")
            if k < 3: a("s_add_u32 s60, s60, 2048")
        a.label(l)

def unit_addr(a, vd, vt):
    a(f"v_lshrrev_b32 v{vd}, 3, v2")
    a(f"v_lshlrev_b32 v{vd}, 10, v{vd}")
    a(f"v_and_b32 v{vt}, 7, v2")
    a(f"v_lshl_add_u32 v{vd}, v{vt}, 4, v{vd}")

def ln1(a):
    a(f"s_mov_b32 s90, {INV512}")
    a(f"s_mov_b32 s91, {EPS}")
    a("s_waitcnt vmcnt(10)")
    unpack_pairs(a, 16, VX, VX + 4)
    pair_sums(a, 16, 8, 32, 34, 36)
    reduce4(a, 32, 33, 34, 35)
    ln_stats(a, 32, 33, 36, 37, SM, SR)
    ln_apply(a, 16, 8, SM, SR, 40)
    unpack_packed(a, 16, 8, 40)
    for c in range(8):
        a(f"v_cvt_pk_f16_f32 v{40+c}, v{16+2*c}, v{17+2*c}")
    planes_out(a, 40, PL1, SRD_U2, 48, lo_only=True)

def kgen(a):
    a(f"s_lshr_b32 s60, s{S_WAVE}, 1")
    a(f"s_mul_i32 s60, s60, {KG_CH}")
    a(f"s_mov_b32 s66, {LOG2E}")
    a(f"s_mov_b32 s67, {LOG2E_LO}")
    a(f"s_mov_b32 s68, {LN2}")
    a(f"s_mov_b32 s69, {INV2PI}")
    a("v_mov_b32 v20, s52")
    a("v_mul_f32 v21, s66, v20")
    a("v_fma_f32 v22, v20, s66, -v21")
    a("v_fmac_f32 v22, s67, v20")
    a("v_exp_f32 v21, v21")
    a("v_mul_f32 v22, s68, v22")
    a("v_fmac_f32 v21, v21, v22")
    bf16_round(a, 21, 21)
    for i in range(10): a(f"v_lshlrev_b32 v{10+i}, 16, v{200+i}")
    a("v_mul_f32 v10, v21, v10")
    a("v_mul_f32 v11, v21, v11")
    a("v_mul_f32 v10, s66, v10")
    a("v_mul_f32 v11, s69, v11")
    for (b, c0, out) in ((12, 14, 24), (16, 18, 26)):
        a(f"v_mul_f32 v{b}, v21, v{b}")
        a(f"v_mul_f32 v{b+1}, v21, v{b+1}")
        a(f"v_mul_f32 v{out}, v{c0}, v{b}")
        a(f"v_mul_f32 v{out+1}, v{c0}, v{b+1}")
        a(f"v_fma_f32 v{out}, -v{c0+1}, v{b+1}, v{out}")
        a(f"v_fmac_f32 v{out+1}, v{c0+1}, v{b}")
    a("v_max3_f32 v28, abs(v24), abs(v25), abs(v26)")
    a("v_max_f32 v28, v28, abs(v27)")
    W1, W256, W512, W1024, W8, W128 = 32, 34, 36, 38, 80, 50
    evalE(a, W1, 1, 10, 11, 40)
    wave_max(a, 28, 29)
    evalE(a, W256, 256, 10, 11, 44)
    a("v_frexp_exp_i32_f32 v29, v28")
    a("v_sub_u32 v30, 0, v29")
    a("v_ldexp_f32 v48, v24, v30")
    a("v_ldexp_f32 v49, v25, v30")
    a("v_mov_b32 v31, 1.0")
    a("v_ldexp_f32 v31, v31, v29")
    evalE(a, W8, 8, 10, 11, 40, conj=True)
    a(f"v_readfirstlane_b32 s{S_SCALE}, v31")
    evalE(a, 84, 128, 10, 11, 44, conj=True)
    cmul(a, W512, W256, W256)
    cmul(a, W1024, W512, W512)
    st(a, "kg: setup done", 250)
    bulk(a, "P3")
    g = lambda i: 48 + 2 * i
    cnt = [0]
    def emit(off, reg):
        t = 96 + (cnt[0] % 8); cnt[0] += 1
        a(f"v_cvt_pk_f16_f32 v{t}, v{reg}, v{reg+1}")
        a(f"ds_write_b32 v{V_KROW}, v{t} offset:{off}")
    grow = lambda r, reg: emit(r * G_ROW, reg)
    hrow = lambda r, reg: emit(H_BASE + r * G_ROW, reg)
    a("v_mov_b32 v82, 1.0"); a("v_mov_b32 v83, 0")
    HA, HB = [82, 86], [84, 88]
    hstate = [0]
    def hstep():
        i = hstate[0]
        if i >= 16: return
        ca, na = HA[i % 2], HA[(i + 1) % 2]
        cb, nb = HB[i % 2], HB[(i + 1) % 2]
        if i < 15:
            cmul(a, na, ca, W8); cmul(a, nb, cb, W8)
        hrow(i, ca); hrow(16 + i, cb)
        hstate[0] += 1
    grow(0, g(0))
    cmul(a, 64, g(0), W1024); cmul(a, 66, g(0), W512); cmul(a, g(1), g(0), W1)
    hstep()
    grow(16, 64); grow(12, 66)
    cmul(a, 68, 64, W256); cmul(a, 70, 66, W256); cmul(a, g(2), g(1), W1); cmul(a, 72, g(0), W256)
    hstep(); hstep()
    grow(1, g(1)); grow(17, 68); grow(14, 70)
    cmul(a, 64, 68, W256); cmul(a, g(3), g(2), W1); cmul(a, 74, g(2), W256)
    hstep(); hstep()
    bulk(a, "P4")
    grow(2, g(2)); grow(8, 72)
    cmul(a, 68, 64, W256); cmul(a, g(4), g(3), W1)
    hstep(); hstep()
    grow(18, 64); grow(3, g(3)); grow(9, 74)
    cmul(a, 64, 68, W256); cmul(a, g(5), g(4), W1); cmul(a, 66, g(4), W512); cmul(a, 72, g(4), W256)
    hstep(); hstep()
    grow(19, 68); grow(4, g(4))
    cmul(a, g(6), g(5), W1); cmul(a, 70, 66, W256)
    hstep(); hstep()
    grow(20, 64); grow(5, g(5)); grow(13, 66); grow(10, 72)
    cmul(a, g(7), g(6), W1); cmul(a, 74, g(6), W256)
    hstep(); hstep()
    grow(6, g(6)); grow(15, 70)
    hstep(); hstep()
    grow(7, g(7)); grow(11, 74)
    while hstate[0] < 16: hstep()
    NE = 19
    a(f"s_add_u32 s63, s60, {FT_BASE}")
    st(a, "kg: chains done", 250)
    lp0 = newlbl("pb0")
    a(f"s_cmp_lg_u32 s{S_WAVE}, 0")
    a(f"s_cbranch_scc1 {lp0}")
    a("v_and_b32 v98, 3, v2")
    a("v_lshlrev_b32 v98, 6, v98")
    a("global_load_dword v99, v98, s[8:9] sc1")
    a.label(lp0)
    bulk(a, "P5")
    a("v_mov_b32 v18, 0")
    a(f"v_mov_b32 v101, s63")
    a(f"ds_write_b16 v101, v18 offset:{2*FT_ZERO + 4*(FT_ZERO >> 4)}")
    a("s_waitcnt lgkmcnt(0)")
    a("s_barrier")
    for ks in range(8):
        a(f"ds_read_b128 v[{128+12*ks}:{131+12*ks}], v{V_KA} offset:{ks*64}")
        a(f"ds_read_b128 v[{132+12*ks}:{135+12*ks}], v{V_KB} offset:{ks*64}")
        a(f"ds_read_b128 v[{136+12*ks}:{139+12*ks}], v{V_KB} offset:{ks*64 + 16*G_ROW}")
        if ks >= 3:
            k = ks - 3
            a("s_waitcnt lgkmcnt(9)")
            cc0 = "0" if k == 0 else "v[20:23]"; cc1 = "0" if k == 0 else "v[24:27]"
            a(f"v_mfma_f32_16x16x32_f16 v[20:23], v[{128+12*k}:{131+12*k}], v[{132+12*k}:{135+12*k}], {cc0}")
            a(f"v_mfma_f32_16x16x32_f16 v[24:27], v[{128+12*k}:{131+12*k}], v[{136+12*k}:{139+12*k}], {cc1}")
    for k in range(5, 8):
        a(f"s_waitcnt lgkmcnt({3*(7-k)})")
        a(f"v_mfma_f32_16x16x32_f16 v[20:23], v[{128+12*k}:{131+12*k}], v[{132+12*k}:{135+12*k}], v[20:23]")
        a(f"v_mfma_f32_16x16x32_f16 v[24:27], v[{128+12*k}:{131+12*k}], v[{136+12*k}:{139+12*k}], v[24:27]")
    for nt in range(2):
        A = 20 + 4 * nt
        a(f"v_cvt_pk_f16_f32 v{28+2*nt}, v{A}, v{A+1}")
        a(f"v_cvt_pk_f16_f32 v{29+2*nt}, v{A+2}, v{A+3}")
        a(f"ds_write_b16 v{V_KSC}, v{28+2*nt} offset:{288*nt}")
        a(f"ds_write_b16_d16_hi v{V_KSC+1}, v{28+2*nt} offset:{288*nt}")
        a(f"ds_write_b16 v{V_KSC+2}, v{29+2*nt} offset:{288*nt}")
        a(f"ds_write_b16_d16_hi v{V_KSC+3}, v{29+2*nt} offset:{288*nt}")
    st(a, "kg: mfma done", 250)
    lp = newlbl("pb1")
    a(f"s_cmp_lg_u32 s{S_WAVE}, 0")
    a(f"s_cbranch_scc1 {lp}")
    a("s_waitcnt vmcnt(2)")
    a("v_cmp_gt_u32 vcc, 64, v99")
    a(f"s_cbranch_vccz {lp}_ok")
    a("s_mov_b32 s62, 0")
    poll(a, 8, 62, 4, 6, 64)
    a.label(lp + "_ok")
    conv_u_loads(a)
    a.label(lp)
    st(a, "B1 passed (wave 0)", 250)
    for r in range(40, 44): a(f"v_mov_b32 v{r}, 0")
    a("v_lshlrev_b32 v5, 4, v0")
    a("v_cmp_gt_u32 vcc, 155, v0")
    a("s_and_saveexec_b64 s[62:63], vcc")
    a(f"v_add_u32 v44, {U_BASE}, v5")
    a(f"ds_write_b128 v44, v[40:43]")
    a(f"ds_write_b128 v44, v[40:43] offset:{U_CH}")
    a("s_mov_b64 exec, s[62:63]")
    a("v_lshrrev_b32 v44, 2, v0")
    a(f"v_mul_u32_u24 v44, {KC_STRIDE}, v44")
    a("v_and_b32 v45, 3, v0")
    a("v_lshl_add_u32 v44, v45, 4, v44")
    a(f"v_add_u32 v44, {KC_BASE + 4096}, v44")
    a("v_cmp_gt_u32 vcc, 32, v0")
    a("s_and_saveexec_b64 s[62:63], vcc")
    a("ds_write_b128 v44, v[40:43]")
    a("s_mov_b64 exec, s[62:63]")
    a("s_waitcnt lgkmcnt(0)")
    a("s_barrier")
    st(a, "kg: scatter+barrier done", 250)
    bulk(a, "P6")
    for e in range(NE): a(f"ds_read_u16 v{128+e}, v{104+e}")
    a("s_waitcnt lgkmcnt(0)")
    for i in range(9):
        a(f"v_lshl_or_b32 v{161+i}, v{129+2*i}, 16, v{128+2*i}")
    for i in range(8):
        a(f"v_mov_b32 v{152+i}, v{161+i}")
    for i in range(9):
        a(f"v_lshl_or_b32 v{181+i}, v{130+2*i}, 16, v{129+2*i}")
    for i in range(8):
        a(f"v_mov_b32 v{172+i}, v{181+i}")
    for (sig, R) in ((0, 152), (1, 172), (2, 162), (3, 182)):
        a(f"ds_write_b128 v{V_KDST}, v[{R}:{R+3}] offset:{sig*KC_STRIDE}")
        a(f"ds_write_b128 v{V_KDST}, v[{R+4}:{R+7}] offset:{sig*KC_STRIDE+16}")

def conv_u_loads(a):
    a("v_lshlrev_b32 v4, 13, v2")
    a(f"s_lshl_b32 s61, s{S_Q0}, 4")
    for r in range(4):
        a(f"buffer_load_dwordx4 a[{8*r}:{8*r+3}], v4, s[{SRD_U2}:{SRD_U2+3}], s61 offen sc1")
        a(f"buffer_load_dwordx4 a[{8*r+4}:{8*r+7}], v4, s[{SRD_U2}:{SRD_U2+3}], s61 offen offset:16 sc1")
        if r < 3: a(f"s_add_u32 s61, s61, {64*8192}")

def conv_u_writes(a):
    l, l1 = newlbl("cw"), newlbl("cw")
    a(f"s_cmp_lg_u32 s{S_WAVE}, 0")
    a(f"s_cbranch_scc1 {l1}")
    a("v_lshrrev_b32 v5, 2, v2")
    a("v_mul_u32_u24 v5, 80, v5")
    a("v_and_b32 v6, 3, v2")
    a("v_lshl_add_u32 v5, v6, 4, v5")
    a(f"v_add_u32 v5, {U_BASE + 31*80}, v5")
    for r in range(4):
        a(f"s_waitcnt vmcnt({2*(3-r)})")
        a(f"ds_write_b128 v5, a[{8*r}:{8*r+3}] offset:{r*16*80}")
        a(f"ds_write_b128 v5, a[{8*r+4}:{8*r+7}] offset:{U_CH + r*16*80}")
    a(f"s_branch {l}")
    a.label(l1)
    a(f"s_cmp_lg_u32 s{S_WAVE}, 1")
    a(f"s_cbranch_scc1 {l}")
    a("s_waitcnt vmcnt(0)")
    a.label(l)

def conv_main(a):
    a(f"s_lshr_b32 s60, s{S_WAVE}, 1")
    a(f"s_and_b32 s61, s{S_WAVE}, 1")
    a("v_and_b32 v52, 31, v2")
    a("v_lshrrev_b32 v53, 5, v2")
    a(f"v_mov_b32 v54, v{V_CA}")
    a(f"v_mov_b32 v55, v{V_CB}")
    lh = newlbl("ph")
    a(f"s_cmp_lt_u32 s{S_WAVE}, 2")
    a(f"s_cbranch_scc1 {lh}")
    a(f"s_waitcnt vmcnt({hi_younger('F5')})")
    a.label(lh)
    a("s_waitcnt lgkmcnt(0)")
    a("s_barrier")
    lpa = newlbl("pa")
    a(f"s_cmp_lg_u32 s{S_WAVE}, 0")
    a(f"s_cbranch_scc1 {lpa}")
    a("s_and_b32 s62, s2, 7")
    a("s_lshl_b32 s62, s62, 7")
    a(f"s_add_u32 s62, s62, {SYNC_OFF + 8*128}")
    a("v_mov_b32 v13, s62")
    a("v_mov_b32 v14, 1")
    a("s_mov_b64 s[62:63], exec")
    a("s_mov_b64 exec, 1")
    a(f"global_atomic_add v13, v14, s[6:7] sc1")
    a("s_mov_b64 exec, s[62:63]")
    a.label(lpa)
    st(a, "conv start (U in LDS)")
    X, Y = 96, 128
    def load_list(step, R):
        kk = 30 - 2 * step
        oa = 64 * kk; ob = 80 * kk
        return [
            f"ds_read_b64 v[{R+0}:{R+1}], v54 offset:{oa+2048}",
            f"ds_read_b64 v[{R+2}:{R+3}], v54 offset:{oa+2048+8}",
            f"ds_read_b128 v[{R+16}:{R+19}], v55 offset:{ob}",
            f"ds_read_b128 v[{R+24}:{R+27}], v55 offset:{ob+2560}",
            f"ds_read_b64 v[{R+4}:{R+5}], v54 offset:{oa+2048+32}",
            f"ds_read_b64 v[{R+6}:{R+7}], v54 offset:{oa+2048+40}",
            f"ds_read_b128 v[{R+20}:{R+23}], v55 offset:{ob+32}",
            f"ds_read_b128 v[{R+28}:{R+31}], v55 offset:{ob+2560+32}",
            f"ds_read_b64 v[{R+8}:{R+9}], v54 offset:{oa}",
            f"ds_read_b64 v[{R+10}:{R+11}], v54 offset:{oa+8}",
            f"ds_read_b64 v[{R+12}:{R+13}], v54 offset:{oa+32}",
            f"ds_read_b64 v[{R+14}:{R+15}], v54 offset:{oa+40}"]
    def mfma_list(R, first):
        c0 = "0" if first else "v[64:79]"; c1 = "0" if first else "v[80:95]"
        return [
            f"v_mfma_f32_32x32x16_f16 v[64:79], v[{R+0}:{R+3}], v[{R+16}:{R+19}], {c0}",
            f"v_mfma_f32_32x32x16_f16 v[80:95], v[{R+0}:{R+3}], v[{R+24}:{R+27}], {c1}",
            f"v_mfma_f32_32x32x16_f16 v[64:79], v[{R+4}:{R+7}], v[{R+20}:{R+23}], v[64:79]",
            f"v_mfma_f32_32x32x16_f16 v[80:95], v[{R+4}:{R+7}], v[{R+28}:{R+31}], v[80:95]",
            f"v_mfma_f32_32x32x16_f16 v[80:95], v[{R+8}:{R+11}], v[{R+16}:{R+19}], v[80:95]",
            f"v_mfma_f32_32x32x16_f16 v[80:95], v[{R+12}:{R+15}], v[{R+20}:{R+23}], v[80:95]"]
    bg = dma_groups(1, 9, 0)
    for l in load_list(0, X): a(l)
    for step in range(16):
        bulk(a, f"c{step}")
        for _ in range(2 if (step % 8) in (1, 5) else 1):
            if bg and step >= 0:
                for l in bg.pop(0): a(l)
                HIQ.append("D")
        R = X if step % 2 == 0 else Y
        N = Y if step % 2 == 0 else X
        M = mfma_list(R, step == 0)
        Ls = load_list(step + 1, N) if step < 15 else []
        need_upto = [3, 4, 7, 8, 10, 12]
        issued_next = 0
        for i in range(6):
            a(f"s_waitcnt lgkmcnt({min((12 - need_upto[i]) + issued_next, 15)})")
            a(M[i])
            for l in Ls[2*i:2*i+2]: a(l); issued_next += 1
    for grp in bg:
        for l in grp: a(l)
        HIQ.append("D")
    st(a, "conv main done")
    lpf = newlbl("pf")
    a(f"s_cmp_lg_u32 s{S_WAVE}, 0")
    a(f"s_cbranch_scc1 {lpf}")
    a("v_and_b32 v50, 7, v2")
    a("v_lshlrev_b32 v50, 7, v50")
    a(f"v_add_u32 v50, {SYNC_OFF + 8*128}, v50")
    a("global_load_dword v51, v50, s[6:7] sc1")
    a.label(lpf)
    a("v_lshlrev_b32 v56, 4, v2")
    a(f"s_lshl_b32 s62, s{S_WAVE}, 12")
    a("v_add_u32 v57, s62, v56")
    a(f"s_xor_b32 s63, s{S_WAVE}, 1")
    a("s_lshl_b32 s63, s63, 12")
    a("v_add_u32 v58, s63, v56")
    l1, l2 = newlbl("cp"), newlbl("cr")
    a("s_cmp_eq_u32 s61, 0")
    a(f"s_cbranch_scc0 {l1}")
    a("s_nop 7"); a("s_nop 7")
    for g in range(4): a(f"ds_write_b128 v57, v[{80+4*g}:{83+4*g}] offset:{g*1024}")
    a(f"s_branch {l2}")
    a.label(l1)
    a("s_nop 7"); a("s_nop 7")
    for g in range(4): a(f"ds_write_b128 v57, v[{64+4*g}:{67+4*g}] offset:{g*1024}")
    for r in range(16): a(f"v_mov_b32 v{64+r}, v{80+r}")
    a.label(l2)
    a("s_lshl_b32 s62, s61, 5")
    a("v_add_u32 v59, s62, v52")
    a("v_mul_u32_u24 v60, 80, v59")
    a("v_lshl_add_u32 v60, v53, 3, v60")
    a(f"s_mul_i32 s62, s60, {U_CH}")
    a(f"s_add_u32 s62, s62, {U_BASE + 31*80}")
    a("v_add_u32 v60, s62, v60")
    for g in range(4): a(f"ds_read_b64 v[{112+2*g}:{113+2*g}], v60 offset:{g*16}")
    a("s_waitcnt lgkmcnt(0)")
    a("s_barrier")
    for g in range(4): a(f"ds_read_b128 v[{96+4*g}:{99+4*g}], v58 offset:{g*1024}")
    for g in range(4):
        a(f"v_cvt_f32_f16 v{120+4*g}, v{112+2*g}")
        a(f"v_cvt_f32_f16_sdwa v{121+4*g}, v{112+2*g} dst_sel:DWORD dst_unused:UNUSED_PAD src0_sel:WORD_1")
        a(f"v_cvt_f32_f16 v{122+4*g}, v{113+2*g}")
        a(f"v_cvt_f32_f16_sdwa v{123+4*g}, v{113+2*g} dst_sel:DWORD dst_unused:UNUSED_PAD src0_sel:WORD_1")
    for r in range(16): a(f"v_mul_f32 v{120+r}, s{S_DSK}, v{120+r}")
    for r in range(0, 16, 2): a(f"v_cvt_pk_bf16_f32 v{136+r//2}, v{120+r}, v{121+r}")
    for r in range(0, 16, 2):
        a(f"v_lshlrev_b32 v{120+r}, 16, v{136+r//2}")
        a(f"v_and_b32 v{121+r}, 0xffff0000, v{136+r//2}")
    a("s_waitcnt lgkmcnt(0)")
    for r in range(0, 16, 2): a(f"v_pk_add_f32 v[{64+r}:{65+r}], v[{64+r}:{65+r}], v[{96+r}:{97+r}]")
    for r in range(16): a(f"v_mul_f32 v{64+r}, s{S_SCALE}, v{64+r}")
    for r in range(0, 16, 2): a(f"v_cvt_pk_bf16_f32 v{136+r//2}, v{64+r}, v{65+r}")
    for r in range(0, 16, 2):
        a(f"v_lshlrev_b32 v{64+r}, 16, v{136+r//2}")
        a(f"v_and_b32 v{65+r}, 0xffff0000, v{136+r//2}")
    for r in range(0, 16, 2): a(f"v_pk_add_f32 v[{64+r}:{65+r}], v[{64+r}:{65+r}], v[{120+r}:{121+r}]")
    for r in range(0, 16, 2): a(f"v_cvt_pk_bf16_f32 v{136+r//2}, v{64+r}, v{65+r}")
    for g in (0, 2):
        A0, A1, B0, B1 = 136 + 2 * g, 137 + 2 * g, 138 + 2 * g, 139 + 2 * g
        a(f"v_permlane32_swap_b32 v{A0}, v{B0}")
        a(f"v_permlane32_swap_b32 v{A1}, v{B1}")
    a("v_mul_u32_u24 v61, 144, v59")
    a("v_lshl_add_u32 v61, v53, 5, v61")
    a("s_lshl_b32 s62, s60, 4")
    a(f"s_add_u32 s62, s62, {YB}")
    a("v_add_u32 v61, s62, v61")
    a("ds_write_b128 v61, v[136:139]")
    a("ds_write_b128 v61, v[140:143] offset:64")
    a("v_lshrrev_b32 v62, 3, v0")
    a("v_mul_u32_u24 v62, 144, v62")
    a("v_and_b32 v63, 7, v0")
    a("v_lshl_add_u32 v62, v63, 4, v62")
    a("s_waitcnt lgkmcnt(0)")
    a("s_barrier")
    ly = newlbl("yo")
    a(f"s_cmp_ge_u32 s{S_WAVE}, 2")
    a(f"s_cbranch_scc1 {ly}")
    for k in range(4):
        a(f"ds_read_b128 v[{96+4*k}:{99+4*k}], v62 offset:{YB + 16*144*k}")
    a(f"s_lshl_b32 s62, s{S_TB}, 13")
    for k in range(4):
        a(f"s_waitcnt lgkmcnt({3-k})")
        a(f"buffer_store_dwordx4 v[{96+4*k}:{99+4*k}], v{V_US}, s[{SRD_YA}:{SRD_YA+3}], s62 offen sc1")
        if k < 3: a("s_add_u32 s62, s62, 2048")
    a.label(ly)

def ln2_addr(a):
    a("v_lshrrev_b32 v4, 1, v0")
    a("v_lshlrev_b32 v4, 13, v4")
    a("v_and_b32 v5, 1, v0")
    a("v_lshl_add_u32 v4, v5, 4, v4")
    a(f"s_lshl_b32 s72, s{S_TB}, 5")
    a("s_add_u32 s73, s72, 0x100000")

def ln2_issue(a):
    a(f"buffer_load_dwordx4 v[40:43], v4, s[{SRD_YA}:{SRD_YA+3}], s72 offen sc1")
    a(f"buffer_load_dwordx4 v[44:47], v4, s[{SRD_YA}:{SRD_YA+3}], s73 offen sc1")

def ln2_loads(a, first_wait):
    l = newlbl("ys")
    a("s_mov_b32 s61, 0")
    a(f"s_waitcnt vmcnt({first_wait})")
    a(f"s_branch {l}_c")
    a.label(l)
    ln2_issue(a)
    a("s_add_u32 s61, s61, 1")
    a("s_waitcnt vmcnt(0)")
    a.label(l + "_c")
    for x in check8(40, 12): a(x)
    a(f"s_cbranch_vccz {l}_ok")
    a(f"s_cmp_lt_u32 s61, {SPIN_MAX}")
    a(f"s_cbranch_scc1 {l}")
    a.label(l + "_ok")
    a("s_waitcnt vmcnt(0)")

def ln2_compute(a):
    a(f"s_mov_b32 s90, {INV512}")
    a(f"s_mov_b32 s91, {EPS}")
    a("s_mov_b32 s92, 0x05040100")
    a("s_mov_b32 s93, 0x07060302")
    a(f"v_mov_b32 v48, v{V_PR}")
    a(f"v_add_u32 v49, 1152, v{V_PR}")
    a("ds_write2st64_b32 v48, v40, v41 offset0:0 offset1:9")
    a("ds_write2st64_b32 v48, v42, v43 offset0:18 offset1:27")
    a("ds_write2st64_b32 v49, v44, v45 offset0:0 offset1:9")
    a("ds_write2st64_b32 v49, v46, v47 offset0:18 offset1:27")
    unpack_pairs(a, 16, VX, VX + 4)
    a("s_waitcnt lgkmcnt(0)")
    a("s_barrier")
    lw5 = newlbl("w2q")
    a(f"s_cmp_lg_u32 s{S_WAVE}, 0")
    a(f"s_cbranch_scc1 {lw5}")
    a("v_and_b32 v14, 7, v2")
    a("v_lshlrev_b32 v14, 7, v14")
    a(f"v_add_u32 v14, {SYNC_OFF}, v14")
    a("global_load_dword v15, v14, s[6:7] sc1")
    a.label(lw5)
    for c in range(8):
        a(f"ds_read_b32 v{40+c}, v{V_PW} offset:{PL2 + 32*c}")
    a("v_lshlrev_b32 v3, 4, v2")
    a(f"s_lshl_b32 s64, s{S_TB}, 13")
    a(f"s_lshl_b32 s65, s{S_WAVE}, 11")
    a("s_add_u32 s64, s64, s65")
    a("s_waitcnt lgkmcnt(0)")
    for c in range(8):
        a(f"v_lshlrev_b32 v{48+2*c}, 16, v{40+c}")
        a(f"v_and_b32 v{49+2*c}, 0xffff0000, v{40+c}")
    for c in range(8):
        a(f"v_pk_add_f32 v[{16+2*c}:{17+2*c}], v[{16+2*c}:{17+2*c}], v[{48+2*c}:{49+2*c}]")
    for c in range(8):
        a(f"v_cvt_pk_bf16_f32 v{40+c}, v{16+2*c}, v{17+2*c}")
    unpack_packed(a, 16, 8, 40)
    for i in range(4):
        a(f"v_perm_b32 v{4+i}, v{41+2*i}, v{40+2*i}, s92")
        a(f"v_perm_b32 v{8+i}, v{41+2*i}, v{40+2*i}, s93")
    a(f"buffer_store_dwordx4 v[4:7], v3, s[{SRD_H}:{SRD_H+3}], s64 offen sc1")
    a(f"buffer_store_dwordx4 v[8:11], v3, s[{SRD_H}:{SRD_H+3}], s64 offen offset:1024 sc1")
    pair_sums(a, 16, 8, 32, 34, 36)
    reduce4(a, 32, 33, 34, 35)
    ln_stats(a, 32, 33, 36, 37, SM, SR)
    ln_apply(a, 16, 8, SM, SR, 40)
    unpack_packed(a, 16, 8, 40)
    pair_sums(a, 16, 8, 32, 34, 36)
    reduce4(a, 32, 33, 34, 35)
    ln_stats(a, 32, 33, 36, 37, SM, SR)
    ln_apply(a, 16, 8, SM, SR, 40)
    lw3 = newlbl("w2p")
    a("; BGSTOP")
    a("s_waitcnt vmcnt(0)")
    a(f"s_cmp_lg_u32 s{S_WAVE}, 0")
    a(f"s_cbranch_scc1 {lw3}")
    if NOCOPY: a(f"s_branch {lw3}")
    a("v_cmp_gt_u32 vcc, 32, v15")
    a(f"s_cbranch_vccz {lw3}")
    a(f"s_mov_b32 s60, {SYNC_OFF}")
    poll(a, 6, 60, 8, 7, 32)
    a.label(lw3)
    a("s_barrier")
    planes_out(a, 40, PL2, SRD_HN, 48)

def tile_coords(a, which, sT, sC):
    a("s_and_b32 s60, s2, 7")
    a("s_lshr_b32 s61, s2, 3")
    a(f"s_and_b32 s{sT}, s60, 1")
    a(f"s_lshl_b32 s{sT}, s{sT}, 2")
    a("s_and_b32 s62, s61, 3")
    a(f"s_add_u32 s{sT}, s{sT}, s62")
    a(f"s_lshr_b32 s{sC}, s60, 1")
    a(f"s_mul_i32 s{sC}, s{sC}, {7 if which == 1 else 8}")
    a("s_lshr_b32 s62, s61, 2")
    if which == 2 and SJROT:
        a(f"s_add_u32 s62, s62, {SJROT}"); a("s_and_b32 s62, s62, 7")
    a(f"s_add_u32 s{sC}, s{sC}, s62")

VD, VTA, VTB = 240, 241, 242
def dma_setup(a, which):
    WROW = 3584 if which == 1 else (4096 if NOCOPY else 128)
    a(f"v_lshrrev_b32 v{VD}, 3, v2")
    a(f"v_mul_u32_u24 v{VD}, {WROW}, v{VD}")
    a("v_and_b32 v243, 7, v2")
    a("v_lshrrev_b32 v244, 2, v2")
    a("v_and_b32 v244, 4, v244")
    a("v_xor_b32 v243, v243, v244")
    a(f"v_lshl_add_u32 v{VD}, v243, 4, v{VD}")
    a("v_bfe_u32 v243, v2, 2, 2")
    a("v_and_b32 v244, 3, v2")
    a(f"v_bfe_u32 v{VTA}, v2, 4, 1")
    a(f"v_lshlrev_b32 v{VTA}, 1, v{VTA}")
    a("v_lshrrev_b32 v245, 1, v244")
    a(f"v_add_u32 v{VTA}, v{VTA}, v245")
    a("v_lshrrev_b32 v245, 1, v243")
    a("v_lshlrev_b32 v245, 2, v245")
    a(f"v_xor_b32 v{VTA}, v{VTA}, v245")
    a(f"v_lshlrev_b32 v{VTA}, 4, v{VTA}")
    a("v_and_b32 v245, 1, v244")
    a(f"v_lshl_add_u32 v{VTA}, v245, 3, v{VTA}")
    a("v_lshrrev_b32 v245, 5, v2")
    a(f"v_lshlrev_b32 v245, {3 if which == 1 else 2}, v245")
    a("v_add_u32 v245, v245, v243")
    a(f"v_lshl_add_u32 v{VTA}, v245, 7, v{VTA}")
    a(f"v_xor_b32 v{VTB}, 64, v{VTA}")

def ring_base_sel(a, lo_base, per_wave, split, hi_base):
    a(f"s_mul_i32 s{S_RING}, s{S_WAVE}, {per_wave}")
    a(f"s_cmp_lt_u32 s{S_WAVE}, {split}")
    a(f"s_mov_b32 s60, {lo_base}")
    a(f"s_cselect_b32 s60, s60, {hi_base - split*per_wave}")
    a(f"s_add_u32 s{S_RING}, s{S_RING}, s60")
    a(f"s_lshr_b32 s60, s{S_WAVE}, 1")
    a("s_lshl_b32 s60, s60, 6")
    a(f"v_xor_b32 v246, s60, v{VTA}")
    a(f"v_xor_b32 v247, 64, v246")
    a(f"v_add_u32 v246, s{S_RING}, v246")
    a(f"v_add_u32 v247, s{S_RING}, v247")

def ring_base(a, per_wave, base):
    a(f"s_mul_i32 s{S_RING}, s{S_WAVE}, {per_wave}")
    if base: a(f"s_add_u32 s{S_RING}, s{S_RING}, {base}")
    a(f"s_lshr_b32 s60, s{S_WAVE}, 1")
    a("s_lshl_b32 s60, s60, 6")
    a(f"v_xor_b32 v246, s60, v{VTA}")
    a(f"v_xor_b32 v247, 64, v246")
    a(f"v_add_u32 v246, s{S_RING}, v246")
    a(f"v_add_u32 v247, s{S_RING}, v247")

S_WA, S_WB = 76, 77
def dma_groups(which, n, slot0):
    WROW = 3584 if which == 1 else (4096 if NOCOPY else 128)
    srdw = SRD_W1 if which == 1 else (SRD_W2 if NOCOPY else SRD_W2R)
    sc = "" if (which == 1 or NOCOPY) else " sc1"
    g = []
    for i in range(n):
        g.append([f"s_add_u32 m0, s{S_RING}, {(slot0+i)*2048}",
                  f"buffer_load_dwordx4 v{VD}, s[{srdw}:{srdw+3}], s{S_WA} offen{sc} lds",
                  f"s_add_u32 s{S_WA}, s{S_WA}, {16*WROW}"])
        g.append([f"s_add_u32 m0, s{S_RING}, {(slot0+i)*2048+1024}",
                  f"buffer_load_dwordx4 v{VD}, s[{srdw}:{srdw+3}], s{S_WB} offen{sc} lds",
                  f"s_add_u32 s{S_WB}, s{S_WB}, {16*WROW}"])
    return g

def dma_issue(a, which, n, slot0):
    for grp in dma_groups(which, n, slot0):
        for l in grp: a(l)

SCC_READ = ('s_cbranch_scc', 's_cselect', 's_addc', 's_subb', 's_cmov')
SCC_WRITE = ('s_cmp', 's_add_', 's_sub_', 's_and_', 's_or_', 's_xor_', 's_lshl', 's_lshr', 's_bitcmp', 's_min', 's_max', 's_ashr', 's_not', 's_bfe')
def scc_safe(lines, i):
    for l in lines[i:]:
        op = l.split()[0]
        if op.startswith(SCC_READ): return False
        if op.startswith(SCC_WRITE) or op.endswith(':') or op in ('s_branch', 's_endpgm', 's_barrier'): return True
    return True

def with_bg(a, fg, groups, skip=0, stride=20, after=None, before=None):
    i0 = len(a.lines)
    fg()
    body = a.lines[i0:]
    del a.lines[i0:]
    start = skip
    if after is not None:
        start = next(k for k, l in enumerate(body) if after in l) + 1 + skip
    out = []; gi = 0; nxt = start
    stop = False
    for k, l in enumerate(body):
        if before is not None and not stop and before in l:
            stop = True
            while gi < len(groups):
                out += groups[gi]; gi += 1
        if not stop and gi < len(groups) and k >= nxt and scc_safe(body, k) and not l.endswith(':'):
            out += groups[gi]; gi += 1; nxt = k + stride
        out.append(l)
    while gi < len(groups):
        out += groups[gi]; gi += 1
    a.lines += out

def tr_to_acc(a, which, steps, slot0):
    RHO = 512 if which == 1 else 1024
    for i, s in enumerate(steps):
        o = (slot0 + i) * 2048
        a(f"ds_read_b64_tr_b16 a[{8*s}:{8*s+1}], v246 offset:{o}")
        a(f"ds_read_b64_tr_b16 a[{8*s+2}:{8*s+3}], v246 offset:{o+RHO}")
        a(f"ds_read_b64_tr_b16 a[{8*s+4}:{8*s+5}], v247 offset:{o}")
        a(f"ds_read_b64_tr_b16 a[{8*s+6}:{8*s+7}], v247 offset:{o+RHO}")
        if i % 3 == 2: a("s_waitcnt lgkmcnt(4)")

def woff_init(a, which, sC):
    WROW = 3584 if which == 1 else (4096 if NOCOPY else 128)
    if which == 1:
        a(f"s_mul_i32 s{S_WA}, s{S_WAVE}, {32*16*3584}")
        a(f"s_lshl_b32 s60, s{sC}, 7")
    elif NOCOPY:
        a(f"s_mul_i32 s{S_WA}, s{S_WAVE}, {28*16*4096}")
        a(f"s_lshl_b32 s60, s{sC}, 7")
    else:
        a(f"s_mul_i32 s{S_WA}, s{S_WAVE}, {28*16*128}")
        a(f"s_mul_i32 s60, s{sC}, {W2R_TILE}")
    a(f"s_add_u32 s{S_WA}, s{S_WA}, s60")
    a(f"s_add_u32 s{S_WB}, s{S_WA}, {8*WROW}")

def gemm_lane_consts(a):
    a("v_lshrrev_b32 v6, 5, v2")
    a("v_and_b32 v7, 31, v2")
    a("v_lshlrev_b32 v10, 13, v6")
    a("v_lshl_add_u32 v10, v7, 4, v10")
    a(f"s_and_b32 s60, s{S_WAVE}, 1")
    a("s_lshl_b32 s60, s60, 9")
    a("v_xor_b32 v8, s60, v10")
    a("v_xor_b32 v9, 512, v8")

def main_loop(a, which, srda, soff, D0):
    NK = 32 if which == 1 else 28
    DR = 14
    ab = lambda s: 128 + 8 * (s % DR)
    issued = [0]
    def issue():
        s = issued[0]
        if s >= NK: return []
        R = ab(s); issued[0] += 1
        return [f"buffer_load_dwordx4 v[{R}:{R+3}], v8, s[{srda}:{srda+3}], s{soff} offen sc1",
                f"buffer_load_dwordx4 v[{R+4}:{R+7}], v9, s[{srda}:{srda+3}], s{soff} offen sc1\ns_add_u32 s{soff}, s{soff}, 16384"]
    for s in range(D0):
        for l in issue(): a(l)
    for s in range(NK):
        a(f"s_waitcnt vmcnt({2*(issued[0] - 1 - s)})")
        nxt = issue() if (issued[0] - s) < DR else []
        R = ab(s); k = 0
        for wt in range(2):
            for at in range(2):
                acc = 64 + 32 * wt + 16 * at
                wq = f"a[{8*s+4*wt}:{8*s+4*wt+3}]"; aq = f"v[{R+4*at}:{R+4*at+3}]"
                cc = "0" if s == 0 else f"v[{acc}:{acc+15}]"
                if which == 1: a(f"v_mfma_f32_32x32x16_bf16 v[{acc}:{acc+15}], {wq}, {aq}, {cc}")
                else: a(f"v_mfma_f32_32x32x16_bf16 v[{acc}:{acc+15}], {aq}, {wq}, {cc}")
                if k == 0 and nxt: a(nxt[0])
                if k == 2 and nxt: a(nxt[1])
                k += 1

def check8(R, T):
    return [f"v_max3_u32 v{T}, v{R}, v{R+1}, v{R+2}", f"v_max3_u32 v{T}, v{T}, v{R+3}, v{R+4}", f"v_max3_u32 v{T}, v{T}, v{R+5}, v{R+6}",
            f"v_max_u32 v{T}, v{T}, v{R+7}", f"v_cmp_eq_u32 vcc, -1, v{T}"]

SPIN_MAX = 0x20000
def probe_spin(a, srd_, vaddr, soff_sgpr, first_wait=None):
    l = newlbl("pr")
    a("s_mov_b32 s61, 0")
    if first_wait is not None:
        a(f"s_waitcnt vmcnt({first_wait})")
        a("v_cmp_eq_u32 vcc, -1, v14")
        a(f"s_cbranch_vccz {l}_ok")
    a.label(l)
    a(f"buffer_load_dword v14, v{vaddr}, s[{srd_}:{srd_+3}], s{soff_sgpr} offen sc1")
    a("s_add_u32 s61, s61, 1")
    a("s_waitcnt vmcnt(0)")
    a("v_cmp_eq_u32 vcc, -1, v14")
    a(f"s_cbranch_vccz {l}_ok")
    a(f"s_cmp_lt_u32 s61, {SPIN_MAX}")
    a(f"s_cbranch_scc1 {l}")
    a.label(l + "_ok")

RETRY = []
def main_loop2(a, which, srda, sbase, D0):
    NK = 32 if which == 1 else 28
    DR = 14
    ab = lambda s: 128 + 8 * (s % DR)
    a(f"s_mov_b32 s73, s{sbase}")
    issued = [0]
    def issue():
        s = issued[0]
        if s >= NK: return []
        R = ab(s); issued[0] += 1
        return [f"buffer_load_dwordx4 v[{R}:{R+3}], v8, s[{srda}:{srda+3}], s73 offen sc1",
                f"buffer_load_dwordx4 v[{R+4}:{R+7}], v9, s[{srda}:{srda+3}], s73 offen sc1\ns_add_u32 s73, s73, 16384"]
    def retry(t):
        lr, lb = newlbl("rt"), newlbl("rb")
        R = ab(t)
        blk = [lr + ":", "s_mov_b32 s61, 0", f"s_add_u32 s62, s{sbase}, {t*16384}", lr + "_l:",
               f"buffer_load_dwordx4 v[{R}:{R+3}], v8, s[{srda}:{srda+3}], s62 offen sc1",
               f"buffer_load_dwordx4 v[{R+4}:{R+7}], v9, s[{srda}:{srda+3}], s62 offen sc1",
               "s_add_u32 s61, s61, 1", "s_waitcnt vmcnt(0)"] + check8(R, 12) + \
              [f"s_cbranch_vccz {lb}", f"s_cmp_lt_u32 s61, {SPIN_MAX}", f"s_cbranch_scc1 {lr}_l", f"s_branch {lb}"]
        RETRY.extend(blk)
        return lr, lb
    for s in range(D0):
        for l in issue(): a(l)
    a(f"s_waitcnt vmcnt({2*(issued[0] - 1)})")
    for l in check8(ab(0), 12): a(l)
    lr, lb = retry(0)
    a(f"s_cbranch_vccnz {lr}")
    a.label(lb)
    for s in range(NK):
        nxt = issue() if (issued[0] - s) < DR and (issued[0] - s) <= D0 else []
        R = ab(s); k = 0
        for wt in range(2):
            for at in range(2):
                acc = 64 + 32 * wt + 16 * at
                wq = f"a[{8*s+4*wt}:{8*s+4*wt+3}]"; aq = f"v[{R+4*at}:{R+4*at+3}]"
                cc = "0" if s == 0 else f"v[{acc}:{acc+15}]"
                if which == 1: a(f"v_mfma_f32_32x32x16_bf16 v[{acc}:{acc+15}], {wq}, {aq}, {cc}")
                else: a(f"v_mfma_f32_32x32x16_bf16 v[{acc}:{acc+15}], {aq}, {wq}, {cc}")
                if k == 0 and nxt: a(nxt[0])
                if k == 1:
                    if nxt: a(nxt[1])
                    if s + 1 < NK:
                        a(f"s_waitcnt vmcnt({2*(issued[0] - 1 - (s + 1))})")
                        for l in check8(ab(s + 1), 12): a(l)
                k += 1
        if s + 1 < NK:
            lr, lb = retry(s + 1)
            a("s_nop 2")
            a(f"s_cbranch_vccnz {lr}")
            a.label(lb)

def reduce_write(a):
    a("v_lshlrev_b32 v13, 4, v2")
    for j in (1, 2, 3):
        wt, at = j >> 1, j & 1
        acc = 64 + 32 * wt + 16 * at
        a(f"s_xor_b32 s60, s{S_WAVE}, {j}")
        a(f"s_mul_i32 s60, s60, {3*4096}")
        a(f"s_add_u32 s60, s60, {(j-1)*4096}")
        a(f"v_add_u32 v14, s60, v13")
        for g in range(4):
            a(f"ds_write_b128 v14, v[{acc+4*g}:{acc+4*g+3}] offset:{g*1024}")

def reduce_read(a):
    a(f"s_mul_i32 s60, s{S_WAVE}, {3*4096}")
    a("v_add_u32 v14, s60, v13")
    for j in range(3):
        for g in range(4):
            a(f"ds_read_b128 v[{128+16*j+4*g}:{131+16*j+4*g}], v14 offset:{j*4096+g*1024}")
    P = lambda b, r: f"v[{b+r}:{b+r+1}]"
    a("s_waitcnt lgkmcnt(8)")
    for r in range(0, 16, 2): a(f"v_pk_add_f32 {P(64,r)}, {P(64,r)}, {P(128,r)}")
    a("s_waitcnt lgkmcnt(0)")
    for r in range(0, 16, 2): a(f"v_pk_add_f32 {P(144,r)}, {P(144,r)}, {P(160,r)}")
    for r in range(0, 16, 2): a(f"v_pk_add_f32 {P(128,r)}, {P(64,r)}, {P(144,r)}")

def gelu16(a, X, T):
    a("s_mov_b32 s66, 0x3d372713")
    a("s_mov_b32 s67, 0x3d372713")
    kk = -2.0 * 1.4426950408889634 * 0.7978845608028654
    kb = hex(struct.unpack('<I', struct.pack('<f', kk))[0])
    a(f"s_mov_b32 s68, {kb}"); a(f"s_mov_b32 s69, {kb}")
    P = lambda b, r: f"v[{b+r}:{b+r+1}]"
    for r in range(0, 16, 2): a(f"v_pk_mul_f32 {P(T,r)}, {P(X,r)}, {P(X,r)}")
    for r in range(0, 16, 2): a(f"v_pk_mul_f32 {P(T,r)}, {P(T,r)}, s[66:67]")
    for r in range(0, 16, 2): a(f"v_pk_fma_f32 {P(T,r)}, {P(T,r)}, {P(X,r)}, {P(X,r)}")
    for r in range(0, 16, 2): a(f"v_pk_mul_f32 {P(T,r)}, {P(T,r)}, s[68:69]")
    for r in range(16): a(f"v_exp_f32 v{T+r}, v{T+r}")
    for r in range(16): a(f"v_add_f32 v{T+r}, 1.0, v{T+r}")
    for r in range(16): a(f"v_rcp_f32 v{T+r}, v{T+r}")
    for r in range(0, 16, 2): a(f"v_pk_mul_f32 {P(X,r)}, {P(X,r)}, {P(T,r)}")

def epi1_loads(a):
    a(f"s_lshr_b32 s61, s{S_WAVE}, 1")
    a(f"s_lshl_b32 s72, s{S_FJ}, 6")
    a("s_lshl_b32 s64, s61, 5")
    a("s_add_u32 s72, s72, s64")
    a("s_lshl_b32 s64, s72, 1")
    a("v_lshlrev_b32 v15, 3, v6")
    a("v_add_u32 v15, s64, v15")
    for g in range(4):
        a(f"global_load_dwordx2 v[{20+2*g}:{21+2*g}], v15, s[{S_B1}:{S_B1+1}] offset:{16*g}")

def epi1(a):
    P = lambda b, r: f"v[{b+r}:{b+r+1}]"
    reduce_read(a)
    for r in range(0, 16, 2): a(f"v_cvt_pk_bf16_f32 v{144+r//2}, v{128+r}, v{129+r}")
    for r in range(0, 16, 2):
        a(f"v_lshlrev_b32 v{128+r}, 16, v{144+r//2}")
        a(f"v_and_b32 v{129+r}, 0xffff0000, v{144+r//2}")
    for g in range(4):
        a(f"v_lshlrev_b32 v{160+4*g}, 16, v{20+2*g}")
        a(f"v_and_b32 v{161+4*g}, 0xffff0000, v{20+2*g}")
        a(f"v_lshlrev_b32 v{162+4*g}, 16, v{21+2*g}")
        a(f"v_and_b32 v{163+4*g}, 0xffff0000, v{21+2*g}")
    for r in range(0, 16, 2): a(f"v_pk_add_f32 {P(128,r)}, {P(128,r)}, {P(160,r)}")
    for r in range(0, 16, 2): a(f"v_cvt_pk_bf16_f32 v{144+r//2}, v{128+r}, v{129+r}")
    for r in range(0, 16, 2):
        a(f"v_lshlrev_b32 v{128+r}, 16, v{144+r//2}")
        a(f"v_and_b32 v{129+r}, 0xffff0000, v{144+r//2}")
    gelu16(a, 128, 160)
    for r in range(0, 16, 2): a(f"v_cvt_pk_bf16_f32 v{144+r//2}, v{128+r}, v{129+r}")
    a("s_lshr_b32 s64, s72, 4")
    a("s_lshl_b32 s64, s64, 14")
    a(f"s_lshl_b32 s65, s{S_T1}, 10")
    a("s_add_u32 s64, s64, s65")
    a(f"s_and_b32 s62, s{S_WAVE}, 1")
    a("s_lshl_b32 s65, s62, 9")
    a("s_add_u32 s64, s64, s65")
    a(f"buffer_store_dwordx4 v[144:147], v10, s[{SRD_G2}:{SRD_G2+3}], s64 offen sc1")
    a("s_add_u32 s64, s64, 16384")
    a(f"buffer_store_dwordx4 v[148:151], v10, s[{SRD_G2}:{SRD_G2+3}], s64 offen sc1")

def epi2_loads(a):
    a(f"s_lshr_b32 s61, s{S_WAVE}, 1")
    a(f"s_and_b32 s62, s{S_WAVE}, 1")
    a(f"s_lshl_b32 s63, s{S_SJ}, 6")
    a("s_lshl_b32 s64, s61, 5")
    a("s_add_u32 s63, s63, s64")
    a("v_add_u32 v15, s63, v7")
    a("v_lshlrev_b32 v16, 10, v15")
    a("v_lshl_add_u32 v16, v6, 6, v16")
    a(f"s_lshl_b32 s70, s{S_T2}, 7")
    a("s_lshl_b32 s64, s62, 3")
    a("s_add_u32 s70, s70, s64")
    for r in range(4):
        a(f"buffer_load_dwordx2 v[{20+2*r}:{21+2*r}], v16, s[{SRD_H}:{SRD_H+3}], s70 offen offset:{16*r} sc1")
    a("v_lshlrev_b32 v17, 1, v15")
    a(f"global_load_ushort v18, v17, s[{S_B2}:{S_B2+1}]")

def epi2(a):
    P = lambda b, r: f"v[{b+r}:{b+r+1}]"
    reduce_read(a)
    for r in range(4):
        a(f"v_cvt_pk_bf16_f32 v{144+2*r}, v{128+r}, v{132+r}")
        a(f"v_cvt_pk_bf16_f32 v{145+2*r}, v{136+r}, v{140+r}")
    a("v_lshlrev_b32 v18, 16, v18")
    a("v_mov_b32 v19, v18")
    for i in range(8):
        a(f"v_lshlrev_b32 v{160+2*i}, 16, v{144+i}")
        a(f"v_and_b32 v{161+2*i}, 0xffff0000, v{144+i}")
    for r in range(0, 16, 2): a(f"v_pk_add_f32 {P(160,r)}, {P(160,r)}, v[18:19]")
    for i in range(8): a(f"v_cvt_pk_bf16_f32 v{144+i}, v{160+2*i}, v{161+2*i}")
    for i in range(8):
        a(f"v_lshlrev_b32 v{160+2*i}, 16, v{144+i}")
        a(f"v_and_b32 v{161+2*i}, 0xffff0000, v{144+i}")
        a(f"v_lshlrev_b32 v{176+2*i}, 16, v{20+i}")
        a(f"v_and_b32 v{177+2*i}, 0xffff0000, v{20+i}")
    for r in range(0, 16, 2): a(f"v_pk_add_f32 {P(160,r)}, {P(160,r)}, {P(176,r)}")
    for i in range(8): a(f"v_cvt_pk_bf16_f32 v{144+i}, v{160+2*i}, v{161+2*i}")
    for r in range(4):
        a(f"buffer_store_dwordx2 v[{144+2*r}:{145+2*r}], v16, s[{SRD_OUT}:{SRD_OUT+3}], s70 offen offset:{16*r}")

D0_G1, D0_G2 = 6, 6
NPRE = 14
NOCOPY = False
RETOUCH = True
TOUCH = True
SJROT = 0
TOUCHREV = False
REMAP = False
ALIGN = True
CODEPF = True
def gen_fused(a):
    kernel_header(a, KNAME)
    stamp_begin(a)
    if DBGST is not None or DIAG_THR: a("s_memrealtime s[98:99]")
    a("s_cmp_ge_u32 s2, 256")
    a("s_cbranch_scc1 L_exit")
    if REMAP:
        a("s_and_b32 s4, s2, 7"); a("s_lshl_b32 s4, s4, 5"); a("s_lshr_b32 s2, s2, 3"); a("s_or_b32 s2, s2, s4")
    prologue(a)
    ln1(a)
    st(a, "LN1 done (stores issued)", 250)
    a("s_and_b32 s60, s2, 3")
    a("s_lshl_b32 s60, s60, 6")
    arrive(a, 8, 60, lo_only=True)
    st(a, "B1 arrived", 250)
    a("s_waitcnt vmcnt(2)")
    bulk(a, "P2")
    kgen(a)
    st(a, "Kgen done", 250)
    ring_base_sel(a, 25600, 18432, 2, 125440)
    woff_init(a, 1, S_FJ)
    bulk(a, "P7")
    conv_u_writes(a)
    conv_main(a)
    st(a, "conv epilogue done (stores issued)")
    lw, lw2 = newlbl("ws"), newlbl("ws")
    a(f"s_cmp_lt_u32 s{S_WAVE}, 2")
    a(f"s_cbranch_scc1 {lw}")
    a("s_waitcnt vmcnt(0)")
    a(f"s_branch {lw2}")
    a.label(lw)
    a("s_waitcnt vmcnt(4)")
    lq = newlbl("pq")
    a(f"s_cmp_lg_u32 s{S_WAVE}, 0")
    a(f"s_cbranch_scc1 {lw2}")
    a("v_cmp_gt_u32 vcc, 32, v51")
    a(f"s_cbranch_vccz {lw2}")
    a(f"s_mov_b32 s60, {SYNC_OFF + 8*128}")
    poll(a, 6, 60, 8, 7, 32)
    a.label(lw2)
    tr_to_acc(a, 1, range(9), 0)
    a("s_waitcnt lgkmcnt(0)")
    a("s_barrier")
    lw4 = newlbl("w2a")
    if NOCOPY: a(f"s_branch {lw4}")
    a(f"s_cmp_lg_u32 s{S_WAVE}, 0")
    a(f"s_cbranch_scc1 {lw4}")
    a("s_and_b32 s60, s2, 7")
    a("s_lshl_b32 s60, s60, 7")
    a(f"s_add_u32 s60, s60, {SYNC_OFF}")
    a("v_mov_b32 v13, s60")
    a("v_mov_b32 v14, 1")
    a("s_mov_b64 s[62:63], exec")
    a("s_mov_b64 exec, 1")
    a(f"global_atomic_add v13, v14, s[6:7] sc1")
    a("s_mov_b64 exec, s[62:63]")
    a.label(lw4)
    ring_base_sel(a, 0, 34816, 3, 125440)
    ln2_addr(a)
    dma_issue(a, 1, 4, 0)
    ln2_issue(a)
    dma_issue(a, 1, 6, 4)
    st(a, "w1 DMA B issued")
    ln2_loads(a, 12)
    st(a, "YA ready")
    def trgrp(sidx, slot, va=246, vb=247, rho=512):
        o = slot * 2048
        return [f"ds_read_b64_tr_b16 a[{8*sidx}:{8*sidx+1}], v{va} offset:{o}", f"ds_read_b64_tr_b16 a[{8*sidx+2}:{8*sidx+3}], v{va} offset:{o+rho}",
                f"ds_read_b64_tr_b16 a[{8*sidx+4}:{8*sidx+5}], v{vb} offset:{o}", f"ds_read_b64_tr_b16 a[{8*sidx+6}:{8*sidx+7}], v{vb} offset:{o+rho}"]
    grp = [trgrp(9 + i, i) for i in range(6)]
    d1 = dma_groups(1, 7, 10)
    d2 = dma_groups(1, 6, 0)
    d2[0] = ["s_waitcnt lgkmcnt(0)"] + d2[0]
    with_bg(a, lambda: ln2_compute(a), grp + d1 + d2, skip=6, stride=9, after="ds_read_b32 v47", before="BGSTOP")
    st(a, "LN2 done (stores issued)")
    for i in range(15, 26):
        for l in trgrp(i, i - 9): a(l)
        if i % 3 == 2: a("s_waitcnt lgkmcnt(4)")
    for i in range(26, 32):
        for l in trgrp(i, i - 26): a(l)
        if i % 3 == 2: a("s_waitcnt lgkmcnt(4)")
    gemm_lane_consts(a)
    dma_setup(a, 2)
    a("s_waitcnt lgkmcnt(0)")
    a("s_barrier")
    ring_base(a, 28672, RED_BYTES)
    woff_init(a, 2, S_SJ)
    dma_issue(a, 2, NPRE - 5, 0)
    a(f"s_mul_i32 s71, s{S_WAVE}, {32*16384}")
    a(f"s_lshl_b32 s60, s{S_T1}, 10")
    a("s_add_u32 s71, s71, s60")
    a("v_lshlrev_b32 v15, 13, v2")
    a("v_add_u32 v15, 1020, v15")
    a(f"buffer_load_dword v14, v15, s[{SRD_HN}:{SRD_HN+3}], s71 offen sc1")
    dma_issue(a, 2, 5, NPRE - 5)
    if NOCOPY and RETOUCH:
        a(f"s_mul_i32 s60, s{S_WAVE}, 448")
        a(f"s_and_b32 s61, s{S_T2}, 3")
        a("s_mul_i32 s61, s61, 56")
        a("s_add_u32 s60, s60, s61")
        a("s_add_u32 s60, s60, 224")
        a("v_min_u32 v13, 55, v2")
        a("v_add_u32 v13, s60, v13")
        a("v_lshlrev_b32 v13, 12, v13")
        a(f"s_lshl_b32 s60, s{S_SJ}, 7")
        a(f"buffer_load_dword v11, v13, s[{SRD_W2}:{SRD_W2+3}], s60 offen")
    st(a, "w2 DMA A issued")
    a("s_cmp_ge_u32 s2, 224")
    a("s_cbranch_scc1 L_skipG1")
    probe_spin(a, SRD_HN, 15, 71, first_wait=(11 if (NOCOPY and RETOUCH) else 10))
    st(a, "HN probe ok")
    epi1_loads(a)
    a("s_waitcnt lgkmcnt(0)")
    main_loop2(a, 1, SRD_HN, 71, D0_G1)
    st(a, "G1 main done")
    def g1_tail():
        reduce_write(a)
        a("s_waitcnt lgkmcnt(0)")
        a("s_barrier")
        epi1(a)
    tr_to_acc(a, 2, range(NPRE), 0)
    a("s_waitcnt lgkmcnt(0)")
    a("s_barrier")
    with_bg(a, g1_tail, dma_groups(2, 14, 0), skip=2, stride=7)
    st(a, "epi1 done (stores issued)")
    dma_issue(a, 2, 28 - NPRE - 14, 14) if 28 - NPRE - 14 > 0 else None
    a("s_branch L_stage2")
    a.label("L_skipG1")
    a("s_waitcnt vmcnt(0) lgkmcnt(0)")
    tr_to_acc(a, 2, range(NPRE), 0)
    a("s_waitcnt lgkmcnt(0)")
    dma_issue(a, 2, 28 - NPRE, 0)
    a.label("L_stage2")
    a(f"s_mul_i32 s71, s{S_WAVE}, {28*16384}")
    a(f"s_lshl_b32 s60, s{S_T2}, 10")
    a("s_add_u32 s71, s71, s60")
    a("v_min_u32 v15, 55, v2")
    a("v_lshlrev_b32 v15, 13, v15")
    a("v_add_u32 v15, 1020, v15")
    a("s_waitcnt vmcnt(0)")
    a(f"buffer_load_dword v14, v15, s[{SRD_G2}:{SRD_G2+3}], s71 offen sc1")
    tr_to_acc(a, 2, range(NPRE, 28), 0)
    st(a, "w2 staged")
    probe_spin(a, SRD_G2, 15, 71, first_wait=0)
    st(a, "G probe ok")
    epi2_loads(a)
    a("s_waitcnt lgkmcnt(0)")
    main_loop2(a, 2, SRD_G2, 71, D0_G2)
    st(a, "G2 main done")
    a("s_barrier")
    reduce_write(a)
    a("s_waitcnt lgkmcnt(0)")
    a("s_barrier")
    epi2(a)
    a("s_waitcnt vmcnt(0)") if STAMPON() else None
    st(a, "end", final=True)
    if DIAG_THR:
        a("s_cmp_lg_u32 s2, 0")
        a("s_cbranch_scc1 L_exit")
        a("s_waitcnt vmcnt(0)")
        a("s_memrealtime s[96:97]")
        a("s_waitcnt lgkmcnt(0)")
        a("s_sub_u32 s94, s96, s98")
        a(f"s_cmp_lt_u32 s94, {DIAG_THR}")
        a("s_cbranch_scc1 L_exit")
        a("s_add_u32 s95, s96, 6000")
        a.label("L_diag")
        a("s_memrealtime s[96:97]")
        a("s_waitcnt lgkmcnt(0)")
        a("s_sub_u32 s94, s95, s96")
        a("s_cmp_gt_i32 s94, 0")
        a("s_cbranch_scc1 L_diag")
    a.label("L_exit")
    a("s_endpgm")
    for l in RETRY: a.lines.append(l)
    a.label("L_code_end")
    a("s_endpgm")
    return kernel_desc(KNAME, 512, 100, accum=256)

def touch_setup(a):
    a("s_and_b32 s60, s2, 7")
    a("s_lshr_b32 s60, s60, 1")
    a("s_lshr_b32 s61, s2, 3")
    a(f"s_and_b32 s62, s{S_WAVE}, 1")
    a("s_lshl_b32 s62, s62, 9")
    a("s_lshl_b32 s63, s61, 6")
    a(f"v_add_u32 v{V_TW1}, s63, v2")
    a(f"v_mul_u32_u24 v{V_TW1}, 3584, v{V_TW1}")
    a("s_mul_i32 s63, s60, 896")
    a("s_add_u32 s63, s63, s62")
    a(f"v_add_u32 v{V_TW1}, s63, v{V_TW1}")
    a("s_mul_i32 s79, s2, 28672")
    a(f"s_and_b32 s61, s{S_WAVE}, 1")
    a("s_mul_i32 s61, s61, 14336")
    a("s_add_u32 s79, s79, s61")

BULK = {"P0": ["T0"], "P1": ["T1", "C0"], "P2": ["F0", "F1", "T2", "C1"], "P3": ["F2", "F3", "T3", "C2"], "P4": ["C3", "C4"], "P5": ["F4", "F5", "C5", "C6"],
        "P7": [f"S{i}" for i in range(14)]}
HIQ = []
def hi_younger(tag):
    idx = max(i for i, t in enumerate(HIQ) if t == tag)
    return len(HIQ) - 1 - idx
def bulk(a, slot):
    ops = BULK.get(slot, [])
    if not ops: return
    for op in ops:
        if op[0] == "F":
            prefill_op(a, int(op[1:])); HIQ.append(op)
    ops = [o for o in ops if o[0] != "F"]
    if not TOUCH: ops = [o for o in ops if o[0] != "T"]
    if not ops: return
    l = newlbl("bk")
    a(f"s_cmp_lt_u32 s{S_WAVE}, 2")
    a(f"s_cbranch_scc1 {l}")
    for op in ops:
        k = int(op[1:])
        if op[0] == "T":
            a(f"buffer_load_dword a199, v{V_TW1}, s[{SRD_W1}:{SRD_W1+3}], 0 offen offset:{128*k}"); HIQ.append(op)
        elif op[0] == "U":
            if k == 0:
                a("s_and_b32 s74, s2, 7"); a("s_lshr_b32 s74, s74, 1"); a("s_lshl_b32 s74, s74, 10")
                a(f"s_and_b32 s75, s{S_WAVE}, 1"); a("s_lshl_b32 s75, s75, 9"); a("s_add_u32 s74, s74, s75")
                a("s_lshr_b32 s75, s2, 3"); a("s_mul_i32 s75, s75, 56")
                a(f"v_min_u32 v{V_TW2}, 55, v2"); a(f"v_add_u32 v{V_TW2}, s75, v{V_TW2}"); a(f"v_lshlrev_b32 v{V_TW2}, 12, v{V_TW2}"); a(f"v_add_u32 v{V_TW2}, s74, v{V_TW2}")
            a(f"buffer_load_dword a199, v{V_TW2}, s[{SRD_W2}:{SRD_W2+3}], 0 offen offset:{128*k}"); HIQ.append(op)
        elif op[0] == "C":
            a("v_lshlrev_b32 v255, 4, v2")
            for i in (2 * k, 2 * k + 1):
                a(f"buffer_load_dwordx4 a[{A_CP+4*i}:{A_CP+4*i+3}], v255, s[{SRD_W2}:{SRD_W2+3}], s79 offen offset:{(i%4)*1024}")
                if i % 4 == 3: a("s_add_u32 s79, s79, 4096")
                HIQ.append("C")
        else:
            if k == 0:
                a(f"s_waitcnt vmcnt({hi_younger('C')})")
                w2copy_dst(a)
            for x in w2copy_store(a, k): a(x)
            HIQ.append("S")
    a.label(l)

A_CP = 200
def w2copy_dst(a):
    a("v_lshrrev_b32 v245, 3, v2")
    a(f"s_mov_b32 s74, {W2R_TILE}")
    a("v_mul_lo_u32 v245, v245, s74")
    a(f"v_and_b32 v{V_TW2}, 7, v2")
    a(f"v_lshl_add_u32 v{V_TW2}, v{V_TW2}, 4, v245")
    a(f"s_and_b32 s69, s{S_WAVE}, 1")
    a("s_mul_i32 s68, s2, 896")

def w2copy_store(a, i):
    off = lambda m: (m % 4) * 8 * W2R_TILE + (m // 4) * 128
    return [f"s_mov_b32 s74, {off(14 + i) - off(i)}",
            f"s_mul_i32 s74, s74, s69",
            f"s_add_u32 s74, s74, s68",
            f"s_add_u32 s74, s74, {off(i)}",
            f"buffer_store_dwordx4 a[{A_CP+4*i}:{A_CP+4*i+3}], v{V_TW2}, s[{SRD_W2R}:{SRD_W2R+3}], s74 offen sc1"]

def build(path):
    a = Asm()
    hdr = open("cdna_kernels/" + NAME + ".s.ref").read().split("; Override launch geometry")[0]
    txt = hdr + f"; @launch grid=(256,1,1) block=(256,1,1) lds={LDS_TOTAL}\n" + '.amdgcn_target "amdgcn-amd-amdhsa--gfx950"\n'
    d = gen_fused(a)
    body = a.finalize()
    if ALIGN:
        import asmlib
        body, np_, nn_ = asmlib.align8(body)
        print("align8: promoted", np_, "nops", nn_)
    txt += body + d
    open(path, "w").write(txt)
    open(path + ".names", "w").write("".join(f"{k} {v}\n" for k, v in ST_NAMES.items()))

if __name__ == "__main__":
    import sys, common
    if "--stamp" in sys.argv:
        common.STAMP = True; sys.argv.remove("--stamp")
    if "--notouch" in sys.argv: TOUCH = False
    if "--remap" in sys.argv: REMAP = True
    for x in sys.argv:
        if x.startswith("--bulk="): BULK = eval(x[7:])
        if x.startswith("--thr="): DIAG_THR = int(x[6:])
        if x == "--nocopy":
            NOCOPY = True
            BULK = {"P0": ["T0"], "P1": ["T1"], "P2": ["F0", "F1", "T2"], "P3": ["F2", "F3", "T3"], "P5": ["F4", "F5"], "c4": ["U0"], "c7": ["U1"], "c10": ["U2"], "c13": ["U3"]}
        if x.startswith("--d0="): D0_G1 = D0_G2 = int(x[5:])
    if "--sjrot" in sys.argv: SJROT = 2
    if "--touchrev" in sys.argv: TOUCHREV = True
    if "--noalign" in sys.argv: ALIGN = False
    if "--nocodepf" in sys.argv: CODEPF = False
    if "--dbgst" in sys.argv:
        DBGST = ["LN1 done (stores issued)", "B1 arrived", "Kgen done", "B1 passed", "conv start (U in LDS)", "conv main done", "B2 arrived", "B2 passed",
                 "LN2 done (stores issued)", "B3 passed", "G1 main done", "B4 arrived", "B4 passed", "G2 main done", "end"]
    build(sys.argv[1])
```

```python
from common import *
from k1 import cmul, wave_max, G_ROW, H_BASE, FT_BASE, FT_DUMMY
import struct

KNAME = NAME + "_kernel"
KG_CH = 27984
FT_AREA = 2 * KG_CH
KC_BASE = 0
KC_STRIDE = 4160
KCH = 4 * KC_STRIDE
U_BASE = KC_BASE + 2 * KCH
U_CH = 95 * 80
LDS_TOTAL = 163840
FT_ZERO = 2060
RED_BYTES = 49152
D_RING = 8
S_WAVE, S_Q0 = 10, 11
SRD_X, SRD_U2, SRD_YA, SRD_H, SRD_HN, SRD_G2, SRD_W1, SRD_W2, SRD_OUT = 12, 16, 20, 24, 28, 32, 36, 40, 44
SRD_W2R = 80
S_B1, S_B2 = 48, 50
S_SCALE, S_DSK = 52, 53
S_T1, S_FJ, S_T2, S_SJ = 54, 55, 56, 57
S_WOFF, S_RING = 58, 59
SM, SR = 84, 86
C_B2, C_B3, C_B4 = 0, 8, 16
KIDX = 0
S_TB = 5
VX = 224
V_KROW, V_KA, V_KB, V_KSC, V_KDST = 232, 233, 234, 235, 239
V_CA, V_CB = 248, 249
V_PW, V_PR, V_US = 252, 253, 254
V_TW1, V_TW2 = 1, 30
PL = 67744
RING_A = 76960
RED_CONV = 48640
PL1 = PL2 = 0
YB = 16384

ST_NAMES = {}
DIAG_THR = 0
DBGST = None
_st = [2]
def st(a, name, vt=60, final=False):
    if DBGST is not None:
        if name in DBGST:
            k = DBGST.index(name) + 1
            l = newlbl("ds")
            a("s_memrealtime s[96:97]")
            a(f"s_or_b32 s94, s2, s{S_WAVE}")
            a("s_cmp_lg_u32 s94, 0")
            a("s_waitcnt lgkmcnt(0)")
            a(f"s_cbranch_scc1 {l}")
            a("s_sub_u32 s96, s96, s98")
            a(f"v_mov_b32 v{vt}, {4*k}")
            a(f"v_mov_b32 v{vt+1}, s96")
            a(f"global_store_dword v{vt}, v{vt+1}, s[8:9]")
            a.label(l)
        return
    slot = 1 if final else _st[0]
    if not final: _st[0] += 1
    ST_NAMES[slot] = name
    stamp(a, KIDX, slot, 6, vt)

def evalE(a, D, v, zr, zi, t, conj=False):
    bits = struct.unpack('<I', struct.pack('<f', float(v)))[0]
    a(f"s_mov_b32 s78, {hex(bits)}")
    a(f"v_mul_f32 v{t}, s78, v{zr}")
    a(f"v_mul_f32 v{t+1}, s78, v{zi}")
    a(f"v_exp_f32 v{t}, v{t}")
    a(f"v_rndne_f32 v{t+2}, v{t+1}")
    a(f"v_sub_f32 v{t+1}, v{t+1}, v{t+2}")
    a(f"v_cos_f32 v{D}, v{t+1}")
    a(f"v_sin_f32 v{D+1}, v{t+1}")
    a(f"v_mul_f32 v{D}, v{D}, v{t}")
    if conj: a(f"v_mul_f32 v{D+1}, -v{D+1}, v{t}")
    else: a(f"v_mul_f32 v{D+1}, v{D+1}, v{t}")

def pos2chan(a, sd, sq, t):
    a(f"s_and_b32 s{sd}, s{sq}, 0x1c0")
    a(f"s_and_b32 s{t}, s{sq}, 7")
    a(f"s_lshl_b32 s{t}, s{t}, 3")
    a(f"s_or_b32 s{sd}, s{sd}, s{t}")
    a(f"s_lshr_b32 s{t}, s{sq}, 3")
    a(f"s_and_b32 s{t}, s{t}, 7")
    a(f"s_or_b32 s{sd}, s{sd}, s{t}")

_lbl = [0]
def newlbl(p):
    _lbl[0] += 1
    return f"L_{p}{_lbl[0]}"

def arrive(a, base_sgpr_pair, off_sgpr, lo_only=False):
    if lo_only:
        l0 = newlbl("ad")
        a(f"s_cmp_ge_u32 s{S_WAVE}, 2")
        a(f"s_cbranch_scc1 {l0}")
        a("s_waitcnt vmcnt(0)")
        a.label(l0)
    else:
        a("s_waitcnt vmcnt(0)")
    a("s_barrier")
    l = newlbl("arr")
    a(f"s_cmp_lg_u32 s{S_WAVE}, 0")
    a(f"s_cbranch_scc1 {l}")
    a(f"v_mov_b32 v13, s{off_sgpr}")
    a("v_mov_b32 v14, 1")
    a("s_mov_b64 s[62:63], exec")
    a("s_mov_b64 exec, 1")
    a(f"global_atomic_add v13, v14, s[{base_sgpr_pair}:{base_sgpr_pair+1}] sc1")
    a("s_mov_b64 exec, s[62:63]")
    a.label(l)

def poll(a, base_sgpr_pair, off_sgpr, n, stride_log2, target):
    l = newlbl("poll")
    a(f"v_and_b32 v13, {n-1}, v2")
    a(f"v_lshlrev_b32 v13, {stride_log2}, v13")
    a(f"v_add_u32 v13, s{off_sgpr}, v13")
    a("s_mov_b32 s61, 0")
    a.label(l)
    a(f"global_load_dword v14, v13, s[{base_sgpr_pair}:{base_sgpr_pair+1}] sc1")
    a("s_waitcnt vmcnt(0)")
    a(f"v_cmp_gt_u32 vcc, {target}, v14")
    a("s_add_u32 s61, s61, 1")
    a(f"s_cbranch_vccz {l}_done")
    a("s_cmp_lt_u32 s61, 0x40000")
    a(f"s_cbranch_scc1 {l}")
    a.label(l + "_done")

def poll_wg(a, base_sgpr_pair, off_sgpr, n, stride_log2, target):
    l = newlbl("pw")
    a(f"s_cmp_lg_u32 s{S_WAVE}, 0")
    a(f"s_cbranch_scc1 {l}")
    poll(a, base_sgpr_pair, off_sgpr, n, stride_log2, target)
    a.label(l)
    a("s_barrier")

def prologue(a):
    a("s_load_dwordx16 s[64:79], s[0:1], 0")
    a("s_load_dwordx2 s[88:89], s[0:1], 64")
    a("s_load_dwordx4 s[80:83], s[0:1], 80")
    a("s_load_dwordx4 s[84:87], s[0:1], 96")
    a("s_load_dwordx4 s[60:63], s[0:1], 112")
    a("s_load_dwordx2 s[6:7], s[0:1], 128")
    a("v_lshrrev_b32 v1, 6, v0")
    a("v_and_b32 v2, 63, v0")
    a(f"v_readfirstlane_b32 s{S_WAVE}, v1")
    a("s_and_b32 s54, s2, 7")
    a("s_lshl_b32 s54, s54, 5")
    a("s_lshr_b32 s55, s2, 3")
    a(f"s_add_u32 s{S_TB}, s54, s55")
    a(f"s_lshl_b32 s{S_Q0}, s{S_TB}, 1")
    a(f"s_lshr_b32 s55, s{S_WAVE}, 1")
    a(f"s_add_u32 s56, s{S_Q0}, s55")
    pos2chan(a, 57, 56, 58)
    a("v_lshlrev_b32 v3, 4, v2")
    a(f"s_lshl_b32 s58, s{S_TB}, 13")
    a(f"s_lshl_b32 s59, s{S_WAVE}, 11")
    a("s_add_u32 s59, s59, s58")
    a(f"s_and_b32 s54, s{S_WAVE}, 1")
    a("s_lshl_b32 s54, s54, 7")
    a("s_lshl_b32 s55, s57, 8")
    a("s_add_u32 s54, s54, s55")
    a("v_lshl_add_u32 v12, v2, 1, s54")
    a("v_xor_b32 v13, 128, v12")
    a("s_waitcnt lgkmcnt(0)")
    stamp(a, KIDX, 0, 6, 250, first=True)
    srd(a, SRD_X, 64, 65, 0, 0x200000)
    a(f"buffer_load_dwordx4 v[{VX}:{VX+3}], v3, s[{SRD_X}:{SRD_X+3}], s59 offen")
    a(f"buffer_load_dwordx4 v[{VX+4}:{VX+7}], v3, s[{SRD_X}:{SRD_X+3}], s59 offen offset:1024")
    a("global_load_ushort v200, v12, s[66:67]")
    a("global_load_ushort v201, v12, s[68:69]")
    a("global_load_ushort v202, v12, s[70:71]")
    a("global_load_ushort v203, v12, s[72:73]")
    a("global_load_ushort v204, v12, s[74:75]")
    a("global_load_ushort v205, v12, s[76:77]")
    a("global_load_ushort v206, v13, s[70:71]")
    a("global_load_ushort v207, v13, s[72:73]")
    a("global_load_ushort v208, v13, s[74:75]")
    a("global_load_ushort v209, v13, s[76:77]")
    a("s_lshl_b32 s54, s57, 1")
    a("s_and_b32 s54, s54, 0xfffffffc")
    a("s_load_dword s52, s[78:79], s54")
    a("s_load_dword s53, s[88:89], s54")
    a("s_and_b32 s91, s57, 1")
    a(f"s_mov_b32 s8, s62"); a("s_mov_b32 s9, s63")
    srd(a, SRD_OUT, 60, 61, 0, 0x200000)
    srd(a, SRD_U2, 6, 7, U2_OFF, U2_SZ)
    srd(a, SRD_YA, 6, 7, YA_OFF, YA_SZ)
    srd(a, SRD_H, 6, 7, H_OFF, H_SZ)
    srd(a, SRD_HN, 6, 7, HN_OFF, HN_SZ)
    srd(a, SRD_G2, 6, 7, G2_OFF, G2_SZ)
    srd(a, SRD_W1, 80, 81, 0, 2048 * 3584)
    srd(a, SRD_W2, 84, 85, 0, 2048 * 3584)
    a(f"s_mov_b32 s{S_B1}, s82"); a(f"s_mov_b32 s{S_B1+1}, s83")
    a(f"s_mov_b32 s{S_B2}, s86"); a(f"s_mov_b32 s{S_B2+1}, s87")
    srd(a, SRD_W2R, 6, 7, W2R_OFF, W2R_SZ)
    l = newlbl("z")
    a(f"s_or_b32 s54, s2, s{S_WAVE}")
    a("s_cmp_lg_u32 s54, 0")
    a(f"s_cbranch_scc1 {l}")
    a("v_lshlrev_b32 v14, 7, v2")
    a(f"v_add_u32 v14, {SYNC_OFF}, v14")
    a("v_mov_b32 v15, 0")
    a("global_store_dword v14, v15, s[6:7] sc1")
    a.label(l)
    if CODEPF:
        l = newlbl("cpf")
        a(f"s_cmp_lg_u32 s{S_WAVE}, 3")
        a(f"s_cbranch_scc1 {l}")
        a("s_getpc_b64 s[54:55]")
        a.label("L_pcbase")
        a("v_lshlrev_b32 v14, 7, v2")
        a("s_mov_b32 s56, L_code_end-L_pcbase")
        for k in range(5):
            a("v_min_u32 v15, s56, v14")
            a(f"global_load_dword a198, v15, s[54:55]")
            if k < 4: a("v_add_u32 v14, 8192, v14")
        a.label(l)
    touch_setup(a)
    bulk(a, "P0")
    precompute(a)
    a("s_cmp_eq_u32 s91, 1")
    a("s_cselect_b32 s60, 0, 16")
    a("s_waitcnt lgkmcnt(0)")
    a("s_lshl_b32 s52, s52, s60"); a("s_and_b32 s52, s52, 0xffff0000")
    a("s_lshl_b32 s53, s53, s60"); a("s_and_b32 s53, s53, 0xffff0000")

V_ONES = 216
def prefill_op(a, k):
    if k == 0:
        for r in range(V_ONES, V_ONES + 4): a(f"v_mov_b32 v{r}, -1")
    D = f"v[{V_ONES}:{V_ONES+3}]"
    if k < 4:
        a(f"s_lshl_b32 s74, s{S_TB}, 13")
        if k % 2: a("s_add_u32 s74, s74, 4096")
        sr = SRD_YA if k < 2 else SRD_HN
        a(f"buffer_store_dwordx4 {D}, v{V_US}, s[{sr}:{sr+3}], s74 offen sc1")
    else:
        a(f"s_lshl_b32 s74, s{S_FJ}, 16")
        a(f"s_lshl_b32 s75, s{S_WAVE}, 13")
        a("s_add_u32 s74, s74, s75")
        a(f"s_lshl_b32 s75, s{S_T1}, 10")
        a("s_add_u32 s74, s74, s75")
        if k == 5: a("s_add_u32 s74, s74, 32768")
        a("v_lshlrev_b32 v220, 4, v2")
        a(f"buffer_store_dwordx4 {D}, v220, s[{SRD_G2}:{SRD_G2+3}], s74 offen sc1")

def precompute(a):
    a("v_lshrrev_b32 v4, 3, v2")
    a("v_mul_u32_u24 v4, 72, v4")
    a("v_and_b32 v5, 7, v2")
    a("v_add_u32 v4, v4, v5")
    a(f"s_mul_i32 s54, s{S_WAVE}, 576")
    a("v_add_u32 v4, s54, v4")
    a(f"v_lshlrev_b32 v{V_PW}, 2, v4")
    a(f"v_add_u32 v{V_PW}, {PL}, v{V_PW}")
    a(f"s_mul_i32 s54, s{S_WAVE}, 72")
    a("v_add_u32 v4, s54, v2")
    a(f"v_lshlrev_b32 v{V_PR}, 2, v4")
    a(f"v_add_u32 v{V_PR}, {PL}, v{V_PR}")
    a(f"v_lshlrev_b32 v{V_US}, 4, v0")
    a(f"s_lshr_b32 s60, s{S_WAVE}, 1")
    a(f"s_mul_i32 s60, s60, {KG_CH}")
    a(f"s_and_b32 s62, s{S_WAVE}, 1")
    a("s_lshl_b32 s61, s62, 8")
    a("s_add_u32 s61, s61, s60")
    a(f"v_lshl_add_u32 v{V_KROW}, v2, 2, s61")
    a("v_and_b32 v7, 15, v2")
    a("v_lshrrev_b32 v8, 4, v2")
    a(f"v_mul_u32_u24 v9, {G_ROW}, v7")
    a("v_lshl_add_u32 v9, v8, 4, v9")
    a(f"s_mul_i32 s63, s62, {16*G_ROW}")
    a("s_add_u32 s63, s63, s60")
    a(f"v_add_u32 v{V_KA}, s63, v9")
    a(f"s_add_u32 s63, s60, {H_BASE}")
    a(f"v_add_u32 v{V_KB}, s63, v9")
    a("v_lshlrev_b32 v16, 3, v7")
    a(f"s_lshr_b32 s63, s{S_WAVE}, 1")
    a("s_mul_i32 s63, s63, 5888")
    a(f"s_add_u32 s63, s63, {FT_AREA}")
    a(f"s_movk_i32 s54, {FT_DUMMY}")
    a("v_cmp_eq_u32 s[56:57], 1, v8")
    a("v_cmp_eq_u32 s[58:59], 2, v8")
    a("v_cmp_eq_u32 vcc, 3, v8")
    for r in range(4):
        m0_q2 = 256 + 2 * r
        m0_q3 = 512 + 4 * (r & 1) + 256 * (r >> 1)
        m1_q0 = 1024 + 256 * r
        m1_q1 = 2048 if r == 0 else FT_DUMMY
        R = V_KSC + r
        a("s_cmp_eq_u32 s62, 0")
        a(f"s_cselect_b32 s55, {r}, {m1_q0}")
        a(f"v_mov_b32 v{R}, s55")
        a(f"s_cselect_b32 s55, {4+r}, {m1_q1}")
        a("v_mov_b32 v18, s55")
        a(f"v_cndmask_b32 v{R}, v{R}, v18, s[56:57]")
        a(f"s_cselect_b32 s55, {m0_q2}, s54")
        a("v_mov_b32 v18, s55")
        a(f"v_cndmask_b32 v{R}, v{R}, v18, s[58:59]")
        a(f"s_cselect_b32 s55, {m0_q3}, s54")
        a("v_mov_b32 v18, s55")
        a(f"v_cndmask_b32 v{R}, v{R}, v18, vcc")
        a(f"v_add_u32 v{R}, v{R}, v16")
        a(f"v_lshrrev_b32 v18, 4, v{R}")
        a(f"v_lshlrev_b32 v18, 2, v18")
        a(f"v_lshl_add_u32 v{R}, v{R}, 1, v18")
        a(f"v_add_u32 v{R}, s63, v{R}")
    a("s_lshl_b32 s55, s62, 6")
    a("v_add_u32 v19, s55, v2")
    a("v_lshlrev_b32 v100, 5, v19")
    a("v_sub_u32 v100, 4094, v100")
    NE = 19
    for e in range(NE):
        a(f"v_subrev_u32 v{104+e}, {2*e}, v100")
        a(f"v_cvt_f32_u32 v{104+e}, v{104+e}")
    for e in range(0, NE + 1, 2):
        e2 = min(e + 1, NE - 1)
        a(f"v_cvt_pk_bf16_f32 v{124+e//2}, v{104+e}, v{104+e2}")
    for e in range(NE):
        if e % 2 == 0: a(f"v_lshlrev_b32 v{104+e}, 16, v{124+e//2}")
        else: a(f"v_and_b32 v{104+e}, 0xffff0000, v{124+e//2}")
    for e in range(NE): a(f"v_cvt_u32_f32 v{104+e}, v{104+e}")
    for e in range(16, NE): a(f"v_min_u32 v{104+e}, {2*FT_ZERO}, v{104+e}")
    for e in range(NE):
        a(f"v_lshrrev_b32 v18, 5, v{104+e}")
        a(f"v_lshl_add_u32 v{104+e}, v18, 2, v{104+e}")
        a(f"v_add_u32 v{104+e}, s63, v{104+e}")
    a(f"s_lshr_b32 s55, s{S_WAVE}, 1")
    a(f"s_mul_i32 s55, s55, {KCH}")
    a(f"s_add_u32 s55, s55, {KC_BASE}")
    a("v_lshlrev_b32 v19, 5, v19")
    a(f"v_add_u32 v{V_KDST}, s55, v19")
    bulk(a, "P1")
    a(f"s_lshr_b32 s60, s{S_WAVE}, 1")
    a(f"s_and_b32 s61, s{S_WAVE}, 1")
    a("v_and_b32 v52, 31, v2")
    a("v_lshrrev_b32 v53, 5, v2")
    a("v_and_b32 v54, 3, v52")
    a("v_sub_u32 v54, 3, v54")
    a(f"v_mul_u32_u24 v54, {KC_STRIDE}, v54")
    a("v_lshrrev_b32 v55, 2, v52")
    a("v_lshlrev_b32 v55, 3, v55")
    a("v_sub_u32 v54, v54, v55")
    a("v_lshl_add_u32 v54, v53, 4, v54")
    a(f"s_mul_i32 s62, s60, {KCH}")
    a("s_lshl_b32 s63, s61, 6")
    a("s_sub_u32 s62, s62, s63")
    a(f"s_add_u32 s62, s62, {KC_BASE + 2*2044 - 2048 - 64*30}")
    a(f"v_add_u32 v{V_CA}, s62, v54")
    a("v_mul_u32_u24 v55, 80, v52")
    a("v_lshl_add_u32 v55, v53, 4, v55")
    a(f"s_mul_i32 s62, s60, {U_CH}")
    a("s_mul_i32 s63, s61, 80")
    a("s_sub_u32 s62, s62, s63")
    a(f"s_add_u32 s62, s62, {U_BASE + 80*(31-30)}")
    a(f"v_add_u32 v{V_CB}, s62, v55")
    tile_coords(a, 1, S_T1, S_FJ)
    tile_coords(a, 2, S_T2, S_SJ)
    dma_setup(a, 1)

def planes_out(a, D, plane_base, srd_dst, T, lo_only=False):
    for c in range(8):
        a(f"ds_write_b32 v{V_PW}, v{D+c} offset:{plane_base + 32*c}")
    a("s_waitcnt lgkmcnt(0)")
    a("s_barrier")
    a(f"s_lshl_b32 s60, s{S_TB}, 13")
    if not lo_only:
        a(f"v_add_u32 v{T+8}, 1152, v{V_PR}")
        a(f"ds_read2st64_b32 v[{T}:{T+1}], v{V_PR} offset0:0 offset1:9")
        a(f"ds_read2st64_b32 v[{T+2}:{T+3}], v{V_PR} offset0:18 offset1:27")
        a(f"ds_read2st64_b32 v[{T+4}:{T+5}], v{T+8} offset0:0 offset1:9")
        a(f"ds_read2st64_b32 v[{T+6}:{T+7}], v{T+8} offset0:18 offset1:27")
        a("s_add_u32 s61, s60, 4096")
        a("s_waitcnt lgkmcnt(2)")
        a(f"buffer_store_dwordx4 v[{T}:{T+3}], v{V_US}, s[{srd_dst}:{srd_dst+3}], s60 offen sc1")
        a("s_waitcnt lgkmcnt(0)")
        a(f"buffer_store_dwordx4 v[{T+4}:{T+7}], v{V_US}, s[{srd_dst}:{srd_dst+3}], s61 offen sc1")
    else:
        l = newlbl("po")
        a(f"s_cmp_ge_u32 s{S_WAVE}, 2")
        a(f"s_cbranch_scc1 {l}")
        for k in range(4):
            a(f"v_add_u32 v{T+16}, {576*k}, v{V_PR}")
            a(f"ds_read2st64_b32 v[{T+4*k}:{T+4*k+1}], v{T+16} offset0:0 offset1:9")
            a(f"ds_read2st64_b32 v[{T+4*k+2}:{T+4*k+3}], v{T+16} offset0:18 offset1:27")
        for k in range(4):
            a(f"s_waitcnt lgkmcnt({2*(3-k)})")
            a(f"buffer_store_dwordx4 v[{T+4*k}:{T+4*k+3}], v{V_US}, s[{srd_dst}:{srd_dst+3}], s60 offen sc1")
            if k < 3: a("s_add_u32 s60, s60, 2048")
        a.label(l)

def unit_addr(a, vd, vt):
    a(f"v_lshrrev_b32 v{vd}, 3, v2")
    a(f"v_lshlrev_b32 v{vd}, 10, v{vd}")
    a(f"v_and_b32 v{vt}, 7, v2")
    a(f"v_lshl_add_u32 v{vd}, v{vt}, 4, v{vd}")

def ln1(a):
    a(f"s_mov_b32 s90, {INV512}")
    a(f"s_mov_b32 s91, {EPS}")
    a("s_waitcnt vmcnt(10)")
    unpack_pairs(a, 16, VX, VX + 4)
    pair_sums(a, 16, 8, 32, 34, 36)
    reduce4(a, 32, 33, 34, 35)
    ln_stats(a, 32, 33, 36, 37, SM, SR)
    ln_apply(a, 16, 8, SM, SR, 40)
    unpack_packed(a, 16, 8, 40)
    for c in range(8):
        a(f"v_cvt_pk_f16_f32 v{40+c}, v{16+2*c}, v{17+2*c}")
    planes_out(a, 40, PL1, SRD_U2, 48, lo_only=True)

def kgen(a):
    a(f"s_lshr_b32 s60, s{S_WAVE}, 1")
    a(f"s_mul_i32 s60, s60, {KG_CH}")
    a(f"s_mov_b32 s66, {LOG2E}")
    a(f"s_mov_b32 s67, {LOG2E_LO}")
    a(f"s_mov_b32 s68, {LN2}")
    a(f"s_mov_b32 s69, {INV2PI}")
    a("v_mov_b32 v20, s52")
    a("v_mul_f32 v21, s66, v20")
    a("v_fma_f32 v22, v20, s66, -v21")
    a("v_fmac_f32 v22, s67, v20")
    a("v_exp_f32 v21, v21")
    a("v_mul_f32 v22, s68, v22")
    a("v_fmac_f32 v21, v21, v22")
    bf16_round(a, 21, 21)
    for i in range(10): a(f"v_lshlrev_b32 v{10+i}, 16, v{200+i}")
    a("v_mul_f32 v10, v21, v10")
    a("v_mul_f32 v11, v21, v11")
    a("v_mul_f32 v10, s66, v10")
    a("v_mul_f32 v11, s69, v11")
    for (b, c0, out) in ((12, 14, 24), (16, 18, 26)):
        a(f"v_mul_f32 v{b}, v21, v{b}")
        a(f"v_mul_f32 v{b+1}, v21, v{b+1}")
        a(f"v_mul_f32 v{out}, v{c0}, v{b}")
        a(f"v_mul_f32 v{out+1}, v{c0}, v{b+1}")
        a(f"v_fma_f32 v{out}, -v{c0+1}, v{b+1}, v{out}")
        a(f"v_fmac_f32 v{out+1}, v{c0+1}, v{b}")
    a("v_max3_f32 v28, abs(v24), abs(v25), abs(v26)")
    a("v_max_f32 v28, v28, abs(v27)")
    W1, W256, W512, W1024, W8, W128 = 32, 34, 36, 38, 80, 50
    evalE(a, W1, 1, 10, 11, 40)
    wave_max(a, 28, 29)
    evalE(a, W256, 256, 10, 11, 44)
    a("v_frexp_exp_i32_f32 v29, v28")
    a("v_sub_u32 v30, 0, v29")
    a("v_ldexp_f32 v48, v24, v30")
    a("v_ldexp_f32 v49, v25, v30")
    a("v_mov_b32 v31, 1.0")
    a("v_ldexp_f32 v31, v31, v29")
    evalE(a, W8, 8, 10, 11, 40, conj=True)
    a(f"v_readfirstlane_b32 s{S_SCALE}, v31")
    evalE(a, 84, 128, 10, 11, 44, conj=True)
    cmul(a, W512, W256, W256)
    cmul(a, W1024, W512, W512)
    st(a, "kg: setup done", 250)
    bulk(a, "P3")
    g = lambda i: 48 + 2 * i
    cnt = [0]
    def emit(off, reg):
        t = 96 + (cnt[0] % 8); cnt[0] += 1
        a(f"v_cvt_pk_f16_f32 v{t}, v{reg}, v{reg+1}")
        a(f"ds_write_b32 v{V_KROW}, v{t} offset:{off}")
    grow = lambda r, reg: emit(r * G_ROW, reg)
    hrow = lambda r, reg: emit(H_BASE + r * G_ROW, reg)
    a("v_mov_b32 v82, 1.0"); a("v_mov_b32 v83, 0")
    HA, HB = [82, 86], [84, 88]
    hstate = [0]
    def hstep():
        i = hstate[0]
        if i >= 16: return
        ca, na = HA[i % 2], HA[(i + 1) % 2]
        cb, nb = HB[i % 2], HB[(i + 1) % 2]
        if i < 15:
            cmul(a, na, ca, W8); cmul(a, nb, cb, W8)
        hrow(i, ca); hrow(16 + i, cb)
        hstate[0] += 1
    grow(0, g(0))
    cmul(a, 64, g(0), W1024); cmul(a, 66, g(0), W512); cmul(a, g(1), g(0), W1)
    hstep()
    grow(16, 64); grow(12, 66)
    cmul(a, 68, 64, W256); cmul(a, 70, 66, W256); cmul(a, g(2), g(1), W1); cmul(a, 72, g(0), W256)
    hstep(); hstep()
    grow(1, g(1)); grow(17, 68); grow(14, 70)
    cmul(a, 64, 68, W256); cmul(a, g(3), g(2), W1); cmul(a, 74, g(2), W256)
    hstep(); hstep()
    bulk(a, "P4")
    grow(2, g(2)); grow(8, 72)
    cmul(a, 68, 64, W256); cmul(a, g(4), g(3), W1)
    hstep(); hstep()
    grow(18, 64); grow(3, g(3)); grow(9, 74)
    cmul(a, 64, 68, W256); cmul(a, g(5), g(4), W1); cmul(a, 66, g(4), W512); cmul(a, 72, g(4), W256)
    hstep(); hstep()
    grow(19, 68); grow(4, g(4))
    cmul(a, g(6), g(5), W1); cmul(a, 70, 66, W256)
    hstep(); hstep()
    grow(20, 64); grow(5, g(5)); grow(13, 66); grow(10, 72)
    cmul(a, g(7), g(6), W1); cmul(a, 74, g(6), W256)
    hstep(); hstep()
    grow(6, g(6)); grow(15, 70)
    hstep(); hstep()
    grow(7, g(7)); grow(11, 74)
    while hstate[0] < 16: hstep()
    NE = 19
    a(f"s_lshr_b32 s63, s{S_WAVE}, 1")
    a("s_mul_i32 s63, s63, 5888")
    a(f"s_add_u32 s63, s63, {FT_AREA}")
    st(a, "kg: chains done", 250)
    lp0 = newlbl("pb0")
    a(f"s_cmp_lg_u32 s{S_WAVE}, 0")
    a(f"s_cbranch_scc1 {lp0}")
    a("v_and_b32 v98, 3, v2")
    a("v_lshlrev_b32 v98, 6, v98")
    a("global_load_dword v99, v98, s[8:9] sc1")
    a.label(lp0)
    bulk(a, "P5")
    a("v_mov_b32 v18, 0")
    a(f"v_mov_b32 v101, s63")
    a(f"ds_write_b16 v101, v18 offset:{2*FT_ZERO + 4*(FT_ZERO >> 4)}")
    a("s_waitcnt lgkmcnt(0)")
    a("s_barrier")
    for ks in range(8):
        a(f"ds_read_b128 v[{128+12*ks}:{131+12*ks}], v{V_KA} offset:{ks*64}")
        a(f"ds_read_b128 v[{132+12*ks}:{135+12*ks}], v{V_KB} offset:{ks*64}")
        a(f"ds_read_b128 v[{136+12*ks}:{139+12*ks}], v{V_KB} offset:{ks*64 + 16*G_ROW}")
        if ks >= 3:
            k = ks - 3
            a("s_waitcnt lgkmcnt(9)")
            cc0 = "0" if k == 0 else "v[20:23]"; cc1 = "0" if k == 0 else "v[24:27]"
            a(f"v_mfma_f32_16x16x32_f16 v[20:23], v[{128+12*k}:{131+12*k}], v[{132+12*k}:{135+12*k}], {cc0}")
            a(f"v_mfma_f32_16x16x32_f16 v[24:27], v[{128+12*k}:{131+12*k}], v[{136+12*k}:{139+12*k}], {cc1}")
    for k in range(5, 8):
        a(f"s_waitcnt lgkmcnt({3*(7-k)})")
        a(f"v_mfma_f32_16x16x32_f16 v[20:23], v[{128+12*k}:{131+12*k}], v[{132+12*k}:{135+12*k}], v[20:23]")
        a(f"v_mfma_f32_16x16x32_f16 v[24:27], v[{128+12*k}:{131+12*k}], v[{136+12*k}:{139+12*k}], v[24:27]")
    for nt in range(2):
        A = 20 + 4 * nt
        a(f"v_cvt_pk_f16_f32 v{28+2*nt}, v{A}, v{A+1}")
        a(f"v_cvt_pk_f16_f32 v{29+2*nt}, v{A+2}, v{A+3}")
        a(f"ds_write_b16 v{V_KSC}, v{28+2*nt} offset:{288*nt}")
        a(f"ds_write_b16_d16_hi v{V_KSC+1}, v{28+2*nt} offset:{288*nt}")
        a(f"ds_write_b16 v{V_KSC+2}, v{29+2*nt} offset:{288*nt}")
        a(f"ds_write_b16_d16_hi v{V_KSC+3}, v{29+2*nt} offset:{288*nt}")
    st(a, "kg: mfma done", 250)
    lp = newlbl("pb1")
    a(f"s_cmp_lg_u32 s{S_WAVE}, 0")
    a(f"s_cbranch_scc1 {lp}")
    a("s_waitcnt vmcnt(2)")
    a("v_cmp_gt_u32 vcc, 64, v99")
    a(f"s_cbranch_vccz {lp}_ok")
    a("s_mov_b32 s62, 0")
    poll(a, 8, 62, 4, 6, 64)
    a.label(lp + "_ok")
    conv_u_loads(a)
    a.label(lp)
    st(a, "B1 passed (wave 0)", 250)
    a("s_waitcnt lgkmcnt(0)")
    a("s_barrier")
    st(a, "kg: scatter+barrier done", 250)
    bulk(a, "P6")
    a("; KGBG")
    for e in range(NE): a(f"ds_read_u16 v{128+e}, v{104+e}")
    for r in range(40, 44): a(f"v_mov_b32 v{r}, 0")
    a("v_lshlrev_b32 v5, 4, v0")
    a("v_cmp_gt_u32 vcc, 155, v0")
    a("s_and_saveexec_b64 s[62:63], vcc")
    a(f"v_add_u32 v44, {U_BASE}, v5")
    a(f"ds_write_b128 v44, v[40:43]")
    a(f"ds_write_b128 v44, v[40:43] offset:{U_CH}")
    a("s_mov_b64 exec, s[62:63]")
    a("v_lshrrev_b32 v44, 2, v0")
    a(f"v_mul_u32_u24 v44, {KC_STRIDE}, v44")
    a("v_and_b32 v45, 3, v0")
    a("v_lshl_add_u32 v44, v45, 4, v44")
    a(f"v_add_u32 v44, {KC_BASE + 4096}, v44")
    a("v_cmp_gt_u32 vcc, 32, v0")
    a("s_and_saveexec_b64 s[62:63], vcc")
    a("ds_write_b128 v44, v[40:43]")
    a("s_mov_b64 exec, s[62:63]")

    a("s_waitcnt lgkmcnt(0)")
    for i in range(9):
        a(f"v_lshl_or_b32 v{161+i}, v{129+2*i}, 16, v{128+2*i}")
    for i in range(8):
        a(f"v_mov_b32 v{152+i}, v{161+i}")
    for i in range(9):
        a(f"v_lshl_or_b32 v{181+i}, v{130+2*i}, 16, v{129+2*i}")
    for i in range(8):
        a(f"v_mov_b32 v{172+i}, v{181+i}")
    for (sig, R) in ((0, 152), (1, 172), (2, 162), (3, 182)):
        a(f"ds_write_b128 v{V_KDST}, v[{R}:{R+3}] offset:{sig*KC_STRIDE}")
        a(f"ds_write_b128 v{V_KDST}, v[{R+4}:{R+7}] offset:{sig*KC_STRIDE+16}")

def conv_u_loads(a):
    a("v_lshlrev_b32 v4, 13, v2")
    a(f"s_lshl_b32 s61, s{S_Q0}, 4")
    for r in range(4):
        a(f"buffer_load_dwordx4 a[{8*r}:{8*r+3}], v4, s[{SRD_U2}:{SRD_U2+3}], s61 offen sc1")
        a(f"buffer_load_dwordx4 a[{8*r+4}:{8*r+7}], v4, s[{SRD_U2}:{SRD_U2+3}], s61 offen offset:16 sc1")
        if r < 3: a(f"s_add_u32 s61, s61, {64*8192}")

def conv_u_writes(a, ny=0):
    l, l1 = newlbl("cw"), newlbl("cw")
    a(f"s_cmp_lg_u32 s{S_WAVE}, 0")
    a(f"s_cbranch_scc1 {l1}")
    a("v_lshrrev_b32 v5, 2, v2")
    a("v_mul_u32_u24 v5, 80, v5")
    a("v_and_b32 v6, 3, v2")
    a("v_lshl_add_u32 v5, v6, 4, v5")
    a(f"v_add_u32 v5, {U_BASE + 31*80}, v5")
    for r in range(4):
        a(f"s_waitcnt vmcnt({2*(3-r) + ny})")
        a(f"ds_write_b128 v5, a[{8*r}:{8*r+3}] offset:{r*16*80}")
        a(f"ds_write_b128 v5, a[{8*r+4}:{8*r+7}] offset:{U_CH + r*16*80}")
    a(f"s_branch {l}")
    a.label(l1)
    a(f"s_cmp_lg_u32 s{S_WAVE}, 1")
    a(f"s_cbranch_scc1 {l}")
    a("s_waitcnt vmcnt(0)")
    a.label(l)

def conv_main(a):
    a(f"s_lshr_b32 s60, s{S_WAVE}, 1")
    a(f"s_and_b32 s61, s{S_WAVE}, 1")
    a("v_and_b32 v52, 31, v2")
    a("v_lshrrev_b32 v53, 5, v2")
    a(f"v_mov_b32 v54, v{V_CA}")
    a(f"v_mov_b32 v55, v{V_CB}")
    lh = newlbl("ph")
    a(f"s_cmp_lt_u32 s{S_WAVE}, 2")
    a(f"s_cbranch_scc1 {lh}")
    a(f"s_waitcnt vmcnt({hi_younger('F5')})")
    a.label(lh)
    a("s_waitcnt lgkmcnt(0)")
    a("s_barrier")
    lpa = newlbl("pa")
    a(f"s_cmp_lg_u32 s{S_WAVE}, 0")
    a(f"s_cbranch_scc1 {lpa}")
    a("s_and_b32 s62, s2, 7")
    a("s_lshl_b32 s62, s62, 7")
    a(f"s_add_u32 s62, s62, {SYNC_OFF + 8*128}")
    a("v_mov_b32 v13, s62")
    a("v_mov_b32 v14, 1")
    a("s_mov_b64 s[62:63], exec")
    a("s_mov_b64 exec, 1")
    a(f"global_atomic_add v13, v14, s[6:7] sc1")
    a("s_mov_b64 exec, s[62:63]")
    a.label(lpa)
    st(a, "conv start (U in LDS)")
    X, Y = 96, 128
    def load_list(step, R):
        kk = 30 - 2 * step
        oa = 64 * kk; ob = 80 * kk
        return [
            f"ds_read_b64 v[{R+0}:{R+1}], v54 offset:{oa+2048}",
            f"ds_read_b64 v[{R+2}:{R+3}], v54 offset:{oa+2048+8}",
            f"ds_read_b128 v[{R+16}:{R+19}], v55 offset:{ob}",
            f"ds_read_b128 v[{R+24}:{R+27}], v55 offset:{ob+2560}",
            f"ds_read_b64 v[{R+4}:{R+5}], v54 offset:{oa+2048+32}",
            f"ds_read_b64 v[{R+6}:{R+7}], v54 offset:{oa+2048+40}",
            f"ds_read_b128 v[{R+20}:{R+23}], v55 offset:{ob+32}",
            f"ds_read_b128 v[{R+28}:{R+31}], v55 offset:{ob+2560+32}",
            f"ds_read_b64 v[{R+8}:{R+9}], v54 offset:{oa}",
            f"ds_read_b64 v[{R+10}:{R+11}], v54 offset:{oa+8}",
            f"ds_read_b64 v[{R+12}:{R+13}], v54 offset:{oa+32}",
            f"ds_read_b64 v[{R+14}:{R+15}], v54 offset:{oa+40}"]
    def mfma_list(R, first):
        c0 = "0" if first else "v[64:79]"; c1 = "0" if first else "v[80:95]"
        return [
            f"v_mfma_f32_32x32x16_f16 v[64:79], v[{R+0}:{R+3}], v[{R+16}:{R+19}], {c0}",
            f"v_mfma_f32_32x32x16_f16 v[80:95], v[{R+0}:{R+3}], v[{R+24}:{R+27}], {c1}",
            f"v_mfma_f32_32x32x16_f16 v[64:79], v[{R+4}:{R+7}], v[{R+20}:{R+23}], v[64:79]",
            f"v_mfma_f32_32x32x16_f16 v[80:95], v[{R+4}:{R+7}], v[{R+28}:{R+31}], v[80:95]",
            f"v_mfma_f32_32x32x16_f16 v[80:95], v[{R+8}:{R+11}], v[{R+16}:{R+19}], v[80:95]",
            f"v_mfma_f32_32x32x16_f16 v[80:95], v[{R+12}:{R+15}], v[{R+20}:{R+23}], v[80:95]"]
    a("s_lshl_b32 s62, s61, 5")
    a("v_add_u32 v59, s62, v52")
    a("v_mul_u32_u24 v60, 80, v59")
    a("v_lshl_add_u32 v60, v53, 3, v60")
    a(f"s_mul_i32 s62, s60, {U_CH}")
    a(f"s_add_u32 s62, s62, {U_BASE + 31*80}")
    a("v_add_u32 v60, s62, v60")
    for g in range(4): a(f"ds_read_b64 v[{160+2*g}:{161+2*g}], v60 offset:{g*16}")
    sh = []
    for g in range(4):
        sh += [f"v_cvt_f32_f16 v{168+4*g}, v{160+2*g}", f"v_cvt_f32_f16_sdwa v{169+4*g}, v{160+2*g} dst_sel:DWORD dst_unused:UNUSED_PAD src0_sel:WORD_1",
               f"v_cvt_f32_f16 v{170+4*g}, v{161+2*g}", f"v_cvt_f32_f16_sdwa v{171+4*g}, v{161+2*g} dst_sel:DWORD dst_unused:UNUSED_PAD src0_sel:WORD_1"]
    sh += [f"v_mul_f32 v{168+r}, s{S_DSK}, v{168+r}" for r in range(16)]
    sh += [f"v_cvt_pk_bf16_f32 v{184+r//2}, v{168+r}, v{169+r}" for r in range(0, 16, 2)]
    for r in range(0, 16, 2):
        sh += [f"v_lshlrev_b32 v{168+r}, 16, v{184+r//2}", f"v_and_b32 v{169+r}, 0xffff0000, v{184+r//2}"]
    bg = dma_groups(1, 10, 0)
    bg_late = []
    if NOBGCONV: bg_late, bg = bg, []
    for l in load_list(0, X): a(l)
    for step in range(16):
        bulk(a, f"c{step}")
        for _ in range(2 if (step % 4) == 1 else 1):
            if bg and step >= 0:
                for l in bg.pop(0): a(l)
                HIQ.append("D")
        R = X if step % 2 == 0 else Y
        N = Y if step % 2 == 0 else X
        M = mfma_list(R, step == 0)
        Ls = load_list(step + 1, N) if step < 15 else []
        need_upto = [3, 4, 7, 8, 10, 12]
        issued_next = 0
        for i in range(6):
            a(f"s_waitcnt lgkmcnt({min((12 - need_upto[i]) + issued_next, 15)})")
            a(M[i])
            for l in Ls[2*i:2*i+2]: a(l); issued_next += 1
            if step >= 1 and sh: a(sh.pop(0))
    for grp in bg:
        for l in grp: a(l)
        HIQ.append("D")
    st(a, "conv main done")
    for grp in bg_late:
        for l in grp: a(l)
    lpf = newlbl("pf")
    a(f"s_cmp_lg_u32 s{S_WAVE}, 0")
    a(f"s_cbranch_scc1 {lpf}")
    a("v_and_b32 v50, 7, v2")
    a("v_lshlrev_b32 v50, 7, v50")
    a(f"v_add_u32 v50, {SYNC_OFF + 8*128}, v50")
    a("global_load_dword v51, v50, s[6:7] sc1")
    a.label(lpf)
    a("v_lshlrev_b32 v56, 4, v2")
    a(f"v_add_u32 v56, {RED_CONV}, v56")
    a(f"s_lshl_b32 s62, s{S_WAVE}, 12")
    a("v_add_u32 v57, s62, v56")
    a(f"s_xor_b32 s63, s{S_WAVE}, 1")
    a("s_lshl_b32 s63, s63, 12")
    a("v_add_u32 v58, s63, v56")
    l1, l2 = newlbl("cp"), newlbl("cr")
    a("s_cmp_eq_u32 s61, 0")
    a(f"s_cbranch_scc0 {l1}")
    a("s_nop 7"); a("s_nop 7")
    for g in range(4): a(f"ds_write_b128 v57, v[{80+4*g}:{83+4*g}] offset:{g*1024}")
    a(f"s_branch {l2}")
    a.label(l1)
    a("s_nop 7"); a("s_nop 7")
    for g in range(4): a(f"ds_write_b128 v57, v[{64+4*g}:{67+4*g}] offset:{g*1024}")
    for r in range(16): a(f"v_mov_b32 v{64+r}, v{80+r}")
    a.label(l2)
    a("s_waitcnt lgkmcnt(0)")
    a("s_barrier")
    for g in range(4): a(f"ds_read_b128 v[{96+4*g}:{99+4*g}], v58 offset:{g*1024}")
    a("s_waitcnt lgkmcnt(0)")
    for r in range(0, 16, 2): a(f"v_pk_add_f32 v[{64+r}:{65+r}], v[{64+r}:{65+r}], v[{96+r}:{97+r}]")
    for r in range(0, 16, 2): a(f"v_pk_mul_f32 v[{64+r}:{65+r}], v[{64+r}:{65+r}], s[{S_SCALE}:{S_SCALE+1}] op_sel_hi:[1,0]")
    for r in range(0, 16, 2): a(f"v_cvt_pk_bf16_f32 v{136+r//2}, v{64+r}, v{65+r}")
    for r in range(0, 16, 2):
        a(f"v_lshlrev_b32 v{64+r}, 16, v{136+r//2}")
        a(f"v_and_b32 v{65+r}, 0xffff0000, v{136+r//2}")
    for r in range(0, 16, 2): a(f"v_pk_add_f32 v[{64+r}:{65+r}], v[{64+r}:{65+r}], v[{168+r}:{169+r}]")
    for r in range(0, 16, 2): a(f"v_cvt_pk_bf16_f32 v{136+r//2}, v{64+r}, v{65+r}")
    for g in (0, 2):
        A0, A1, B0, B1 = 136 + 2 * g, 137 + 2 * g, 138 + 2 * g, 139 + 2 * g
        a(f"v_permlane32_swap_b32 v{A0}, v{B0}")
        a(f"v_permlane32_swap_b32 v{A1}, v{B1}")
    a("v_mul_u32_u24 v61, 144, v59")
    a("v_lshl_add_u32 v61, v53, 5, v61")
    a("s_lshl_b32 s62, s60, 4")
    a(f"s_add_u32 s62, s62, {YB}")
    a("v_add_u32 v61, s62, v61")
    a("ds_write_b128 v61, v[136:139]")
    a("ds_write_b128 v61, v[140:143] offset:64")
    a("v_lshrrev_b32 v62, 3, v0")
    a("v_mul_u32_u24 v62, 144, v62")
    a("v_and_b32 v63, 7, v0")
    a("v_lshl_add_u32 v62, v63, 4, v62")
    a("s_waitcnt lgkmcnt(0)")
    a("s_barrier")
    ly = newlbl("yo")
    a(f"s_cmp_ge_u32 s{S_WAVE}, 2")
    a(f"s_cbranch_scc1 {ly}")
    for k in range(4):
        a(f"ds_read_b128 v[{96+4*k}:{99+4*k}], v62 offset:{YB + 16*144*k}")
    a(f"s_lshl_b32 s62, s{S_TB}, 13")
    for k in range(4):
        a(f"s_waitcnt lgkmcnt({3-k})")
        a(f"buffer_store_dwordx4 v[{96+4*k}:{99+4*k}], v{V_US}, s[{SRD_YA}:{SRD_YA+3}], s62 offen sc1")
        if k < 3: a("s_add_u32 s62, s62, 2048")
    a.label(ly)

def ln2_addr(a):
    a("v_lshrrev_b32 v4, 1, v0")
    a("v_lshlrev_b32 v4, 13, v4")
    a("v_and_b32 v5, 1, v0")
    a("v_lshl_add_u32 v4, v5, 4, v4")
    a(f"s_lshl_b32 s72, s{S_TB}, 5")
    a("s_add_u32 s73, s72, 0x100000")

def ln2_issue(a):
    a(f"buffer_load_dwordx4 v[40:43], v4, s[{SRD_YA}:{SRD_YA+3}], s72 offen sc1")
    a(f"buffer_load_dwordx4 v[44:47], v4, s[{SRD_YA}:{SRD_YA+3}], s73 offen sc1")

def ln2_loads(a, first_wait):
    l = newlbl("ys")
    a("s_mov_b32 s61, 0")
    a(f"s_waitcnt vmcnt({first_wait})")
    a(f"s_branch {l}_c")
    a.label(l)
    ln2_issue(a)
    a("s_add_u32 s61, s61, 1")
    a("s_waitcnt vmcnt(0)")
    a.label(l + "_c")
    for x in check8(40, 12): a(x)
    a(f"s_cbranch_vccz {l}_ok")
    a(f"s_cmp_lt_u32 s61, {SPIN_MAX}")
    a(f"s_cbranch_scc1 {l}")
    a.label(l + "_ok")
    a("s_waitcnt vmcnt(0)")

def ln2_planes_in(a):
    a(f"v_mov_b32 v48, v{V_PR}")
    a(f"v_add_u32 v49, 1152, v{V_PR}")
    a("ds_write2st64_b32 v48, v40, v41 offset0:0 offset1:9")
    a("ds_write2st64_b32 v48, v42, v43 offset0:18 offset1:27")
    a("ds_write2st64_b32 v49, v44, v45 offset0:0 offset1:9")
    a("ds_write2st64_b32 v49, v46, v47 offset0:18 offset1:27")

def ln2_compute(a):
    for c in range(8):
        a(f"ds_read_b32 v{40+c}, v{V_PW} offset:{32*c}")
    a(f"s_mov_b32 s90, {INV512}")
    a(f"s_mov_b32 s91, {EPS}")
    a("s_mov_b32 s92, 0x05040100")
    a("s_mov_b32 s93, 0x07060302")
    unpack_pairs(a, 16, VX, VX + 4)
    a("v_lshlrev_b32 v3, 4, v2")
    a(f"s_lshl_b32 s64, s{S_TB}, 13")
    a(f"s_lshl_b32 s65, s{S_WAVE}, 11")
    a("s_add_u32 s64, s64, s65")
    a("s_waitcnt lgkmcnt(0)")
    for c in range(8):
        a(f"v_lshlrev_b32 v{48+2*c}, 16, v{40+c}")
        a(f"v_and_b32 v{49+2*c}, 0xffff0000, v{40+c}")
    for c in range(8):
        a(f"v_pk_add_f32 v[{16+2*c}:{17+2*c}], v[{16+2*c}:{17+2*c}], v[{48+2*c}:{49+2*c}]")
    for c in range(8):
        a(f"v_cvt_pk_bf16_f32 v{40+c}, v{16+2*c}, v{17+2*c}")
    unpack_packed(a, 16, 8, 40)
    for i in range(4):
        a(f"v_perm_b32 v{4+i}, v{41+2*i}, v{40+2*i}, s92")
        a(f"v_perm_b32 v{8+i}, v{41+2*i}, v{40+2*i}, s93")
    a(f"buffer_store_dwordx4 v[4:7], v3, s[{SRD_H}:{SRD_H+3}], s64 offen sc1")
    a(f"buffer_store_dwordx4 v[8:11], v3, s[{SRD_H}:{SRD_H+3}], s64 offen offset:1024 sc1")
    pair_sums(a, 16, 8, 32, 34, 36)
    reduce4(a, 32, 33, 34, 35)
    ln_stats(a, 32, 33, 36, 37, SM, SR)
    ln_apply(a, 16, 8, SM, SR, 40)
    unpack_packed(a, 16, 8, 40)
    pair_sums(a, 16, 8, 32, 34, 36)
    reduce4(a, 32, 33, 34, 35)
    ln_stats(a, 32, 33, 36, 37, SM, SR)
    ln_apply(a, 16, 8, SM, SR, 40)
    a("; BGSTOP")
    a("s_waitcnt vmcnt(0)")
    a("s_barrier")
    planes_out(a, 40, PL2, SRD_HN, 48)

def tile_coords(a, which, sT, sC):
    a("s_and_b32 s60, s2, 7")
    a("s_lshr_b32 s61, s2, 3")
    a(f"s_and_b32 s{sT}, s60, 1")
    a(f"s_lshl_b32 s{sT}, s{sT}, 2")
    a("s_and_b32 s62, s61, 3")
    a(f"s_add_u32 s{sT}, s{sT}, s62")
    a(f"s_lshr_b32 s{sC}, s60, 1")
    a(f"s_mul_i32 s{sC}, s{sC}, {7 if which == 1 else 8}")
    a("s_lshr_b32 s62, s61, 2")
    if which == 2 and SJROT:
        a(f"s_add_u32 s62, s62, {SJROT}"); a("s_and_b32 s62, s62, 7")
    a(f"s_add_u32 s{sC}, s{sC}, s62")

VD, VTA, VTB = 240, 241, 242
def dma_setup(a, which):
    WROW = 3584 if which == 1 else (4096 if NOCOPY else 128)
    a(f"v_lshrrev_b32 v{VD}, 3, v2")
    a(f"v_mul_u32_u24 v{VD}, {WROW}, v{VD}")
    a("v_and_b32 v243, 7, v2")
    a("v_lshrrev_b32 v244, 2, v2")
    a("v_and_b32 v244, 4, v244")
    a("v_xor_b32 v243, v243, v244")
    a(f"v_lshl_add_u32 v{VD}, v243, 4, v{VD}")
    a("v_bfe_u32 v243, v2, 2, 2")
    a("v_and_b32 v244, 3, v2")
    a(f"v_bfe_u32 v{VTA}, v2, 4, 1")
    a(f"v_lshlrev_b32 v{VTA}, 1, v{VTA}")
    a("v_lshrrev_b32 v245, 1, v244")
    a(f"v_add_u32 v{VTA}, v{VTA}, v245")
    a("v_lshrrev_b32 v245, 1, v243")
    a("v_lshlrev_b32 v245, 2, v245")
    a(f"v_xor_b32 v{VTA}, v{VTA}, v245")
    a(f"v_lshlrev_b32 v{VTA}, 4, v{VTA}")
    a("v_and_b32 v245, 1, v244")
    a(f"v_lshl_add_u32 v{VTA}, v245, 3, v{VTA}")
    a("v_lshrrev_b32 v245, 5, v2")
    a(f"v_lshlrev_b32 v245, {3 if which == 1 else 2}, v245")
    a("v_add_u32 v245, v245, v243")
    a(f"v_lshl_add_u32 v{VTA}, v245, 7, v{VTA}")
    a(f"v_xor_b32 v{VTB}, 64, v{VTA}")

def ring_base_sel(a, lo_base, per_wave, split, hi_base):
    a(f"s_mul_i32 s{S_RING}, s{S_WAVE}, {per_wave}")
    a(f"s_cmp_lt_u32 s{S_WAVE}, {split}")
    a(f"s_mov_b32 s60, {lo_base}")
    a(f"s_cselect_b32 s60, s60, {hi_base - split*per_wave}")
    a(f"s_add_u32 s{S_RING}, s{S_RING}, s60")
    a(f"s_lshr_b32 s60, s{S_WAVE}, 1")
    a("s_lshl_b32 s60, s60, 6")
    a(f"v_xor_b32 v246, s60, v{VTA}")
    a(f"v_xor_b32 v247, 64, v246")
    a(f"v_add_u32 v246, s{S_RING}, v246")
    a(f"v_add_u32 v247, s{S_RING}, v247")

def ring_base(a, per_wave, base):
    a(f"s_mul_i32 s{S_RING}, s{S_WAVE}, {per_wave}")
    if base: a(f"s_add_u32 s{S_RING}, s{S_RING}, {base}")
    a(f"s_lshr_b32 s60, s{S_WAVE}, 1")
    a("s_lshl_b32 s60, s60, 6")
    a(f"v_xor_b32 v246, s60, v{VTA}")
    a(f"v_xor_b32 v247, 64, v246")
    a(f"v_add_u32 v246, s{S_RING}, v246")
    a(f"v_add_u32 v247, s{S_RING}, v247")

S_WA, S_WB = 76, 77
def dma_groups(which, n, slot0):
    WROW = 3584 if which == 1 else (4096 if NOCOPY else 128)
    srdw = SRD_W1 if which == 1 else (SRD_W2 if NOCOPY else SRD_W2R)
    sc = "" if (which == 1 or NOCOPY) else " sc1"
    g = []
    for i in range(n):
        g.append([f"s_add_u32 m0, s{S_RING}, {(slot0+i)*2048}",
                  f"buffer_load_dwordx4 v{VD}, s[{srdw}:{srdw+3}], s{S_WA} offen{sc} lds",
                  f"s_add_u32 s{S_WA}, s{S_WA}, {16*WROW}"])
        g.append([f"s_add_u32 m0, s{S_RING}, {(slot0+i)*2048+1024}",
                  f"buffer_load_dwordx4 v{VD}, s[{srdw}:{srdw+3}], s{S_WB} offen{sc} lds",
                  f"s_add_u32 s{S_WB}, s{S_WB}, {16*WROW}"])
    return g

def dma_issue(a, which, n, slot0):
    for grp in dma_groups(which, n, slot0):
        for l in grp: a(l)

SCC_READ = ('s_cbranch_scc', 's_cselect', 's_addc', 's_subb', 's_cmov')
SCC_WRITE = ('s_cmp', 's_add_', 's_sub_', 's_and_', 's_or_', 's_xor_', 's_lshl', 's_lshr', 's_bitcmp', 's_min', 's_max', 's_ashr', 's_not', 's_bfe')
def scc_safe(lines, i):
    for l in lines[i:]:
        op = l.split()[0]
        if op.startswith(SCC_READ): return False
        if op.startswith(SCC_WRITE) or op.endswith(':') or op in ('s_branch', 's_endpgm', 's_barrier'): return True
    return True

def with_bg(a, fg, groups, skip=0, stride=20, after=None, before=None):
    i0 = len(a.lines)
    fg()
    body = a.lines[i0:]
    del a.lines[i0:]
    start = skip
    if after is not None:
        start = next(k for k, l in enumerate(body) if after in l) + 1 + skip
    out = []; gi = 0; nxt = start
    stop = False
    cond_until = None
    masked = False
    labels_in = {x[:-1] for x in body if x.endswith(':')}
    for k, l in enumerate(body):
        if cond_until is not None and l == cond_until + ':': cond_until = None
        in_cond = cond_until is not None or masked
        cond_until_next = None
        if cond_until is None and l.startswith(('s_cbranch', 's_branch')) and l.split()[1] in labels_in and (l.split()[1] + ':') in body[k:]:
            cond_until_next = l.split()[1]
        if before is not None and not stop and before in l:
            stop = True
            while gi < len(groups):
                out += groups[gi]; gi += 1
        if not stop and not in_cond and gi < len(groups) and k >= nxt and scc_safe(body, k) and not l.endswith(':') and not l.startswith('s_and_saveexec'):
            out += groups[gi]; gi += 1; nxt = k + stride
        out.append(l)
        if cond_until_next is not None: cond_until = cond_until_next
        if l.startswith('s_and_saveexec'): masked = True
        if l.startswith('s_mov_b64 exec'): masked = False
    while gi < len(groups):
        out += groups[gi]; gi += 1
    a.lines += out

def tr_to_acc(a, which, steps, slot0):
    RHO = 512 if which == 1 else 1024
    for i, s in enumerate(steps):
        o = (slot0 + i) * 2048
        a(f"ds_read_b64_tr_b16 a[{8*s}:{8*s+1}], v246 offset:{o}")
        a(f"ds_read_b64_tr_b16 a[{8*s+2}:{8*s+3}], v246 offset:{o+RHO}")
        a(f"ds_read_b64_tr_b16 a[{8*s+4}:{8*s+5}], v247 offset:{o}")
        a(f"ds_read_b64_tr_b16 a[{8*s+6}:{8*s+7}], v247 offset:{o+RHO}")
        if i % 3 == 2: a("s_waitcnt lgkmcnt(4)")

def woff_init(a, which, sC):
    WROW = 3584 if which == 1 else (4096 if NOCOPY else 128)
    if which == 1:
        a(f"s_mul_i32 s{S_WA}, s{S_WAVE}, {32*16*3584}")
        a(f"s_lshl_b32 s60, s{sC}, 7")
    elif NOCOPY:
        a(f"s_mul_i32 s{S_WA}, s{S_WAVE}, {28*16*4096}")
        a(f"s_lshl_b32 s60, s{sC}, 7")
    else:
        a(f"s_mul_i32 s{S_WA}, s{S_WAVE}, {28*16*128}")
        a(f"s_mul_i32 s60, s{sC}, {W2R_TILE}")
    a(f"s_add_u32 s{S_WA}, s{S_WA}, s60")
    a(f"s_add_u32 s{S_WB}, s{S_WA}, {8*WROW}")

def gemm_lane_consts(a):
    a("v_lshrrev_b32 v6, 5, v2")
    a("v_and_b32 v7, 31, v2")
    a("v_lshlrev_b32 v10, 13, v6")
    a("v_lshl_add_u32 v10, v7, 4, v10")
    a(f"s_and_b32 s60, s{S_WAVE}, 1")
    a("s_lshl_b32 s60, s60, 9")
    a("v_xor_b32 v8, s60, v10")
    a("v_xor_b32 v9, 512, v8")

def main_loop(a, which, srda, soff, D0):
    NK = 32 if which == 1 else 28
    DR = 14
    ab = lambda s: 128 + 8 * (s % DR)
    issued = [0]
    def issue():
        s = issued[0]
        if s >= NK: return []
        R = ab(s); issued[0] += 1
        return [f"buffer_load_dwordx4 v[{R}:{R+3}], v8, s[{srda}:{srda+3}], s{soff} offen sc1",
                f"buffer_load_dwordx4 v[{R+4}:{R+7}], v9, s[{srda}:{srda+3}], s{soff} offen sc1\ns_add_u32 s{soff}, s{soff}, 16384"]
    for s in range(D0):
        for l in issue(): a(l)
    for s in range(NK):
        a(f"s_waitcnt vmcnt({2*(issued[0] - 1 - s)})")
        nxt = issue() if (issued[0] - s) < DR else []
        R = ab(s); k = 0
        for wt in range(2):
            for at in range(2):
                acc = 64 + 32 * wt + 16 * at
                wq = f"a[{8*s+4*wt}:{8*s+4*wt+3}]"; aq = f"v[{R+4*at}:{R+4*at+3}]"
                cc = "0" if s == 0 else f"v[{acc}:{acc+15}]"
                if which == 1: a(f"v_mfma_f32_32x32x16_bf16 v[{acc}:{acc+15}], {wq}, {aq}, {cc}")
                else: a(f"v_mfma_f32_32x32x16_bf16 v[{acc}:{acc+15}], {aq}, {wq}, {cc}")
                if k == 0 and nxt: a(nxt[0])
                if k == 2 and nxt: a(nxt[1])
                k += 1

def check8(R, T):
    return [f"v_max3_u32 v{T}, v{R}, v{R+1}, v{R+2}", f"v_max3_u32 v{T}, v{T}, v{R+3}, v{R+4}", f"v_max3_u32 v{T}, v{T}, v{R+5}, v{R+6}",
            f"v_max_u32 v{T}, v{T}, v{R+7}", f"v_cmp_eq_u32 vcc, -1, v{T}"]

SPIN_MAX = 0x20000
def probe_spin(a, srd_, vaddr, soff_sgpr, first_wait=None):
    l = newlbl("pr")
    a("s_mov_b32 s61, 0")
    if first_wait is not None:
        a(f"s_waitcnt vmcnt({first_wait})")
        a("v_cmp_eq_u32 vcc, -1, v14")
        a(f"s_cbranch_vccz {l}_ok")
    a.label(l)
    a(f"buffer_load_dword v14, v{vaddr}, s[{srd_}:{srd_+3}], s{soff_sgpr} offen sc1")
    a("s_add_u32 s61, s61, 1")
    a("s_waitcnt vmcnt(0)")
    a("v_cmp_eq_u32 vcc, -1, v14")
    a(f"s_cbranch_vccz {l}_ok")
    a(f"s_cmp_lt_u32 s61, {SPIN_MAX}")
    a(f"s_cbranch_scc1 {l}")
    a.label(l + "_ok")

RETRY = []
def main_loop2(a, which, srda, sbase, D0, shadow=()):
    NK = 32 if which == 1 else 28
    DR = 14
    ab = lambda s: 128 + 8 * (s % DR)
    a(f"s_mov_b32 s73, s{sbase}")
    issued = [0]
    def issue():
        s = issued[0]
        if s >= NK: return []
        R = ab(s); issued[0] += 1
        return [f"buffer_load_dwordx4 v[{R}:{R+3}], v8, s[{srda}:{srda+3}], s73 offen sc1",
                f"buffer_load_dwordx4 v[{R+4}:{R+7}], v9, s[{srda}:{srda+3}], s73 offen sc1\ns_add_u32 s73, s73, 16384"]
    def retry(t):
        lr, lb = newlbl("rt"), newlbl("rb")
        R = ab(t)
        blk = [lr + ":", "s_mov_b32 s61, 0", f"s_add_u32 s62, s{sbase}, {t*16384}", lr + "_l:",
               f"buffer_load_dwordx4 v[{R}:{R+3}], v8, s[{srda}:{srda+3}], s62 offen sc1",
               f"buffer_load_dwordx4 v[{R+4}:{R+7}], v9, s[{srda}:{srda+3}], s62 offen sc1",
               "s_add_u32 s61, s61, 1", "s_waitcnt vmcnt(0)"] + check8(R, 12) + \
              [f"s_cbranch_vccz {lb}", f"s_cmp_lt_u32 s61, {SPIN_MAX}", f"s_cbranch_scc1 {lr}_l", f"s_branch {lb}"]
        RETRY.extend(blk)
        return lr, lb
    for s in range(D0):
        for l in issue(): a(l)
    a(f"s_waitcnt vmcnt({2*(issued[0] - 1)})")
    for l in check8(ab(0), 12): a(l)
    lr, lb = retry(0)
    a(f"s_cbranch_vccnz {lr}")
    a.label(lb)
    for s in range(NK):
        nxt = issue() if (issued[0] - s) < DR and (issued[0] - s) <= D0 else []
        R = ab(s); k = 0
        for wt in range(2):
            for at in range(2):
                acc = 64 + 32 * wt + 16 * at
                wq = f"a[{8*s+4*wt}:{8*s+4*wt+3}]"; aq = f"v[{R+4*at}:{R+4*at+3}]"
                cc = "0" if s == 0 else f"v[{acc}:{acc+15}]"
                if which == 1: a(f"v_mfma_f32_32x32x16_bf16 v[{acc}:{acc+15}], {wq}, {aq}, {cc}")
                else: a(f"v_mfma_f32_32x32x16_bf16 v[{acc}:{acc+15}], {aq}, {wq}, {cc}")
                if k == 0 and nxt: a(nxt[0])
                if k == 1:
                    if nxt: a(nxt[1])
                    if s + 1 < NK:
                        a(f"s_waitcnt vmcnt({2*(issued[0] - 1 - (s + 1))})")
                        for l in check8(ab(s + 1), 12): a(l)
                k += 1
        if s >= 2 and shadow:
            for l in shadow[:4]: a(l)
            shadow = shadow[4:]
        if s + 1 < NK:
            lr, lb = retry(s + 1)
            a("s_nop 2")
            a(f"s_cbranch_vccnz {lr}")
            a.label(lb)

def reduce_write(a):
    a("v_lshlrev_b32 v13, 4, v2")
    for j in (1, 2, 3):
        wt, at = j >> 1, j & 1
        acc = 64 + 32 * wt + 16 * at
        a(f"s_xor_b32 s60, s{S_WAVE}, {j}")
        a(f"s_mul_i32 s60, s60, {3*4096}")
        a(f"s_add_u32 s60, s60, {(j-1)*4096}")
        a(f"v_add_u32 v14, s60, v13")
        for g in range(4):
            a(f"ds_write_b128 v14, v[{acc+4*g}:{acc+4*g+3}] offset:{g*1024}")

def reduce_read(a):
    a(f"s_mul_i32 s60, s{S_WAVE}, {3*4096}")
    a("v_add_u32 v14, s60, v13")
    for j in range(3):
        for g in range(4):
            a(f"ds_read_b128 v[{128+16*j+4*g}:{131+16*j+4*g}], v14 offset:{j*4096+g*1024}")
    P = lambda b, r: f"v[{b+r}:{b+r+1}]"
    a("s_waitcnt lgkmcnt(8)")
    for r in range(0, 16, 2): a(f"v_pk_add_f32 {P(64,r)}, {P(64,r)}, {P(128,r)}")
    a("s_waitcnt lgkmcnt(0)")
    for r in range(0, 16, 2): a(f"v_pk_add_f32 {P(144,r)}, {P(144,r)}, {P(160,r)}")
    for r in range(0, 16, 2): a(f"v_pk_add_f32 {P(128,r)}, {P(64,r)}, {P(144,r)}")

def gelu16(a, X, T):
    a("s_mov_b32 s66, 0x3d372713")
    a("s_mov_b32 s67, 0x3d372713")
    kk = -2.0 * 1.4426950408889634 * 0.7978845608028654
    kb = hex(struct.unpack('<I', struct.pack('<f', kk))[0])
    a(f"s_mov_b32 s68, {kb}"); a(f"s_mov_b32 s69, {kb}")
    P = lambda b, r: f"v[{b+r}:{b+r+1}]"
    for r in range(0, 16, 2): a(f"v_pk_mul_f32 {P(T,r)}, {P(X,r)}, {P(X,r)}")
    for r in range(0, 16, 2): a(f"v_pk_mul_f32 {P(T,r)}, {P(T,r)}, s[66:67]")
    for r in range(0, 16, 2): a(f"v_pk_fma_f32 {P(T,r)}, {P(T,r)}, {P(X,r)}, {P(X,r)}")
    for r in range(0, 16, 2): a(f"v_pk_mul_f32 {P(T,r)}, {P(T,r)}, s[68:69]")
    for r in range(16): a(f"v_exp_f32 v{T+r}, v{T+r}")
    for r in range(16): a(f"v_add_f32 v{T+r}, 1.0, v{T+r}")
    for r in range(16): a(f"v_rcp_f32 v{T+r}, v{T+r}")
    for r in range(0, 16, 2): a(f"v_pk_mul_f32 {P(X,r)}, {P(X,r)}, {P(T,r)}")

def epi1_loads(a):
    a(f"s_lshr_b32 s61, s{S_WAVE}, 1")
    a(f"s_lshl_b32 s72, s{S_FJ}, 6")
    a("s_lshl_b32 s64, s61, 5")
    a("s_add_u32 s72, s72, s64")
    a("s_lshl_b32 s64, s72, 1")
    a("v_lshlrev_b32 v15, 3, v6")
    a("v_add_u32 v15, s64, v15")
    for g in range(4):
        a(f"global_load_dwordx2 v[{20+2*g}:{21+2*g}], v15, s[{S_B1}:{S_B1+1}] offset:{16*g}")

def epi1_shadow():
    l = []
    for g in range(4):
        l += [f"v_lshlrev_b32 v{28+4*g}, 16, v{20+2*g}", f"v_and_b32 v{29+4*g}, 0xffff0000, v{20+2*g}",
              f"v_lshlrev_b32 v{30+4*g}, 16, v{21+2*g}", f"v_and_b32 v{31+4*g}, 0xffff0000, v{21+2*g}"]
    return l

def epi1(a):
    P = lambda b, r: f"v[{b+r}:{b+r+1}]"
    a("s_lshr_b32 s64, s72, 4")
    a("s_lshl_b32 s64, s64, 14")
    a(f"s_lshl_b32 s65, s{S_T1}, 10")
    a("s_add_u32 s64, s64, s65")
    a(f"s_and_b32 s62, s{S_WAVE}, 1")
    a("s_lshl_b32 s65, s62, 9")
    a("s_add_u32 s64, s64, s65")
    a("s_add_u32 s65, s64, 16384")
    reduce_read(a)
    for r in range(0, 16, 2): a(f"v_cvt_pk_bf16_f32 v{144+r//2}, v{128+r}, v{129+r}")
    for r in range(0, 16, 2):
        a(f"v_lshlrev_b32 v{128+r}, 16, v{144+r//2}")
        a(f"v_and_b32 v{129+r}, 0xffff0000, v{144+r//2}")
    for r in range(0, 16, 2): a(f"v_pk_add_f32 {P(128,r)}, {P(128,r)}, {P(28,r)}")
    for r in range(0, 16, 2): a(f"v_cvt_pk_bf16_f32 v{144+r//2}, v{128+r}, v{129+r}")
    for r in range(0, 16, 2):
        a(f"v_lshlrev_b32 v{128+r}, 16, v{144+r//2}")
        a(f"v_and_b32 v{129+r}, 0xffff0000, v{144+r//2}")
    gelu16(a, 128, 160)
    for r in range(0, 16, 2): a(f"v_cvt_pk_bf16_f32 v{144+r//2}, v{128+r}, v{129+r}")
    a("; GSTORE")
    a(f"buffer_store_dwordx4 v[144:147], v10, s[{SRD_G2}:{SRD_G2+3}], s64 offen sc1")
    a(f"buffer_store_dwordx4 v[148:151], v10, s[{SRD_G2}:{SRD_G2+3}], s65 offen sc1")

def epi2_loads(a):
    a(f"s_lshr_b32 s61, s{S_WAVE}, 1")
    a(f"s_and_b32 s62, s{S_WAVE}, 1")
    a(f"s_lshl_b32 s63, s{S_SJ}, 6")
    a("s_lshl_b32 s64, s61, 5")
    a("s_add_u32 s63, s63, s64")
    a("v_add_u32 v15, s63, v7")
    a("v_lshlrev_b32 v16, 10, v15")
    a("v_lshl_add_u32 v16, v6, 6, v16")
    a(f"s_lshl_b32 s70, s{S_T2}, 7")
    a("s_lshl_b32 s64, s62, 3")
    a("s_add_u32 s70, s70, s64")
    for r in range(4):
        a(f"buffer_load_dwordx2 v[{20+2*r}:{21+2*r}], v16, s[{SRD_H}:{SRD_H+3}], s70 offen offset:{16*r} sc1")
    a("v_lshlrev_b32 v17, 1, v15")
    a(f"global_load_ushort v18, v17, s[{S_B2}:{S_B2+1}]")

def epi2_shadow():
    l = ["v_lshlrev_b32 v18, 16, v18", "v_mov_b32 v19, v18"]
    for i in range(8):
        l += [f"v_lshlrev_b32 v{28+2*i}, 16, v{20+i}", f"v_and_b32 v{29+2*i}, 0xffff0000, v{20+i}"]
    return l

def epi2(a):
    P = lambda b, r: f"v[{b+r}:{b+r+1}]"
    reduce_read(a)
    for r in range(4):
        a(f"v_cvt_pk_bf16_f32 v{144+2*r}, v{128+r}, v{132+r}")
        a(f"v_cvt_pk_bf16_f32 v{145+2*r}, v{136+r}, v{140+r}")
    for i in range(8):
        a(f"v_lshlrev_b32 v{160+2*i}, 16, v{144+i}")
        a(f"v_and_b32 v{161+2*i}, 0xffff0000, v{144+i}")
    for r in range(0, 16, 2): a(f"v_pk_add_f32 {P(160,r)}, {P(160,r)}, v[18:19]")
    for i in range(8): a(f"v_cvt_pk_bf16_f32 v{144+i}, v{160+2*i}, v{161+2*i}")
    for i in range(8):
        a(f"v_lshlrev_b32 v{160+2*i}, 16, v{144+i}")
        a(f"v_and_b32 v{161+2*i}, 0xffff0000, v{144+i}")
    for r in range(0, 16, 2): a(f"v_pk_add_f32 {P(160,r)}, {P(160,r)}, {P(28,r)}")
    for i in range(8): a(f"v_cvt_pk_bf16_f32 v{144+i}, v{160+2*i}, v{161+2*i}")
    for r in range(4):
        a(f"buffer_store_dwordx2 v[{144+2*r}:{145+2*r}], v16, s[{SRD_OUT}:{SRD_OUT+3}], s70 offen offset:{16*r}")

D0_G1, D0_G2 = 6, 6
NPRE = 14
NOCOPY = True
RETOUCH = True
NOBGCONV = False
TOUCH = True
SJROT = 0
TOUCHREV = False
REMAP = False
ALIGN = True
CODEPF = True
def gen_fused(a):
    kernel_header(a, KNAME)
    stamp_begin(a)
    if DBGST is not None or DIAG_THR: a("s_memrealtime s[98:99]")
    a("s_cmp_ge_u32 s2, 256")
    a("s_cbranch_scc1 L_exit")
    if REMAP:
        a("s_and_b32 s4, s2, 7"); a("s_lshl_b32 s4, s4, 5"); a("s_lshr_b32 s2, s2, 3"); a("s_or_b32 s2, s2, s4")
    prologue(a)
    ln1(a)
    st(a, "LN1 done (stores issued)", 250)
    a("s_and_b32 s60, s2, 3")
    a("s_lshl_b32 s60, s60, 6")
    arrive(a, 8, 60, lo_only=True)
    st(a, "B1 arrived", 250)
    a("s_waitcnt vmcnt(2)")
    bulk(a, "P2")
    kgen(a)
    st(a, "Kgen done", 250)
    ring_base(a, 20480, RING_A)
    woff_init(a, 1, S_FJ)
    conv_u_writes(a, 0)
    conv_main(a)
    st(a, "conv epilogue done (stores issued)")
    lw, lw2 = newlbl("ws"), newlbl("ws")
    a(f"s_cmp_lt_u32 s{S_WAVE}, 2")
    a(f"s_cbranch_scc1 {lw}")
    a("s_waitcnt vmcnt(0)")
    a(f"s_branch {lw2}")
    a.label(lw)
    a("s_waitcnt vmcnt(4)")
    lq = newlbl("pq")
    a(f"s_cmp_lg_u32 s{S_WAVE}, 0")
    a(f"s_cbranch_scc1 {lw2}")
    a("v_cmp_gt_u32 vcc, 32, v51")
    a(f"s_cbranch_vccz {lw2}")
    a(f"s_mov_b32 s60, {SYNC_OFF + 8*128}")
    poll(a, 6, 60, 8, 7, 32)
    a.label(lw2)
    tr_to_acc(a, 1, range(0, 10), 0)
    a("s_waitcnt lgkmcnt(0)")
    a("s_barrier")
    ring_base(a, 28672, 25600)
    ln2_addr(a)
    dma_issue(a, 1, 8, 0)
    ln2_issue(a)
    dma_issue(a, 1, 6, 8)
    st(a, "w1 DMA B issued")
    ln2_loads(a, 12)
    st(a, "YA ready")
    a(f"v_subrev_u32 v{V_PW}, {PL}, v{V_PW}")
    a(f"v_subrev_u32 v{V_PR}, {PL}, v{V_PR}")
    ln2_planes_in(a)
    a("s_waitcnt lgkmcnt(0)")
    a("s_barrier")
    def trgrp(sidx, slot, va=246, vb=247, rho=512):
        o = slot * 2048
        return [f"ds_read_b64_tr_b16 a[{8*sidx}:{8*sidx+1}], v{va} offset:{o}", f"ds_read_b64_tr_b16 a[{8*sidx+2}:{8*sidx+3}], v{va} offset:{o+rho}",
                f"ds_read_b64_tr_b16 a[{8*sidx+4}:{8*sidx+5}], v{vb} offset:{o}", f"ds_read_b64_tr_b16 a[{8*sidx+6}:{8*sidx+7}], v{vb} offset:{o+rho}"]
    grp = [trgrp(10 + i, i) for i in range(8)]
    d2 = dma_groups(1, 8, 0)
    d2[0] = ["s_waitcnt lgkmcnt(0)"] + d2[0]
    grp2 = [trgrp(18 + i, 8 + i) for i in range(6)]
    mix = list(grp)
    k2 = 0
    for i, g_ in enumerate(d2):
        mix.append(g_)
        if i % 2 == 1 and k2 < len(grp2): mix.append(grp2[k2]); k2 += 1
    mix += grp2[k2:]
    with_bg(a, lambda: ln2_compute(a), mix, skip=14, stride=8, before="BGSTOP")
    st(a, "LN2 done (stores issued)")
    for i in range(24, 32):
        for l in trgrp(i, i - 24): a(l)
        if i % 3 == 2: a("s_waitcnt lgkmcnt(4)")
    a(f"s_mul_i32 s71, s{S_WAVE}, {32*16384}")
    a(f"s_lshl_b32 s60, s{S_T1}, 10")
    a("s_add_u32 s71, s71, s60")
    a("v_lshlrev_b32 v15, 13, v2")
    a("v_add_u32 v15, 1020, v15")
    gemm_lane_consts(a)
    dma_setup(a, 2)
    a("s_waitcnt lgkmcnt(0)")
    a("s_barrier")
    ring_base(a, 28672, RED_BYTES)
    woff_init(a, 2, S_SJ)
    dma_issue(a, 2, NPRE - 5, 0)
    a(f"buffer_load_dword v14, v15, s[{SRD_HN}:{SRD_HN+3}], s71 offen sc1")
    dma_issue(a, 2, 5, NPRE - 5)
    if NOCOPY and RETOUCH:
        a(f"s_mul_i32 s60, s{S_WAVE}, 448")
        a(f"s_and_b32 s61, s{S_T2}, 3")
        a("s_mul_i32 s61, s61, 56")
        a("s_add_u32 s60, s60, s61")
        a("s_add_u32 s60, s60, 224")
        a("v_min_u32 v13, 55, v2")
        a("v_add_u32 v13, s60, v13")
        a("v_lshlrev_b32 v13, 12, v13")
        a(f"s_lshl_b32 s60, s{S_SJ}, 7")
        a(f"buffer_load_dword v11, v13, s[{SRD_W2}:{SRD_W2+3}], s60 offen")
    st(a, "w2 DMA A issued")
    a("s_cmp_ge_u32 s2, 224")
    a("s_cbranch_scc1 L_skipG1")
    probe_spin(a, SRD_HN, 15, 71, first_wait=(11 if (NOCOPY and RETOUCH) else 10))
    st(a, "HN probe ok")
    epi1_loads(a)
    a("s_waitcnt lgkmcnt(0)")
    a("s_barrier")
    main_loop2(a, 1, SRD_HN, 71, D0_G1, shadow=epi1_shadow())
    st(a, "G1 main done")
    reduce_write(a)
    tr_to_acc(a, 2, range(NPRE), 0)
    a("s_waitcnt lgkmcnt(0)")
    a("s_barrier")
    g = dma_groups(2, 14, 0)
    with_bg(a, lambda: epi1(a), g[:8], skip=30, stride=14, before="GSTORE")
    for grp in g[8:]:
        for l in grp: a(l)
    st(a, "epi1 done (stores issued)")
    dma_issue(a, 2, 28 - NPRE - 14, 14) if 28 - NPRE - 14 > 0 else None
    a("s_branch L_stage2")
    a.label("L_skipG1")
    a("s_waitcnt vmcnt(0) lgkmcnt(0)")
    tr_to_acc(a, 2, range(NPRE), 0)
    a("s_waitcnt lgkmcnt(0)")
    dma_issue(a, 2, 28 - NPRE, 0)
    a.label("L_stage2")
    a(f"s_mul_i32 s71, s{S_WAVE}, {28*16384}")
    a(f"s_lshl_b32 s60, s{S_T2}, 10")
    a("s_add_u32 s71, s71, s60")
    a("v_min_u32 v15, 55, v2")
    a("v_lshlrev_b32 v15, 13, v15")
    a("v_add_u32 v15, 1020, v15")
    a("s_waitcnt vmcnt(0)")
    a(f"buffer_load_dword v14, v15, s[{SRD_G2}:{SRD_G2+3}], s71 offen sc1")
    tr_to_acc(a, 2, range(NPRE, 28), 0)
    st(a, "w2 staged")
    probe_spin(a, SRD_G2, 15, 71, first_wait=0)
    st(a, "G probe ok")
    epi2_loads(a)
    a("s_waitcnt lgkmcnt(0)")
    a("s_barrier")
    main_loop2(a, 2, SRD_G2, 71, D0_G2, shadow=epi2_shadow())
    st(a, "G2 main done")
    reduce_write(a)
    a("s_waitcnt lgkmcnt(0)")
    a("s_barrier")
    epi2(a)
    a("s_waitcnt vmcnt(0)") if STAMPON() else None
    st(a, "end", final=True)
    if DIAG_THR:
        a("s_cmp_lg_u32 s2, 0")
        a("s_cbranch_scc1 L_exit")
        a("s_waitcnt vmcnt(0)")
        a("s_memrealtime s[96:97]")
        a("s_waitcnt lgkmcnt(0)")
        a("s_sub_u32 s94, s96, s98")
        a(f"s_cmp_lt_u32 s94, {DIAG_THR}")
        a("s_cbranch_scc1 L_exit")
        a("s_add_u32 s95, s96, 6000")
        a.label("L_diag")
        a("s_memrealtime s[96:97]")
        a("s_waitcnt lgkmcnt(0)")
        a("s_sub_u32 s94, s95, s96")
        a("s_cmp_gt_i32 s94, 0")
        a("s_cbranch_scc1 L_diag")
    a.label("L_exit")
    a("s_endpgm")
    for l in RETRY: a.lines.append(l)
    a.label("L_code_end")
    a("s_endpgm")
    return kernel_desc(KNAME, 512, 100, accum=256)

def touch_setup(a):
    a("s_and_b32 s60, s2, 7")
    a("s_lshr_b32 s60, s60, 1")
    a("s_lshr_b32 s61, s2, 3")
    a(f"s_and_b32 s62, s{S_WAVE}, 1")
    a("s_lshl_b32 s62, s62, 9")
    a("s_lshl_b32 s63, s61, 6")
    a(f"v_add_u32 v{V_TW1}, s63, v2")
    a(f"v_mul_u32_u24 v{V_TW1}, 3584, v{V_TW1}")
    a("s_mul_i32 s63, s60, 896")
    a("s_add_u32 s63, s63, s62")
    a(f"v_add_u32 v{V_TW1}, s63, v{V_TW1}")
    a("s_mul_i32 s79, s2, 28672")
    a(f"s_and_b32 s61, s{S_WAVE}, 1")
    a("s_mul_i32 s61, s61, 14336")
    a("s_add_u32 s79, s79, s61")

BULK = {"P0": ["T0"], "P1": ["T1"], "P2": ["F0", "F1", "T2"], "P3": ["F2", "F3", "T3"], "P5": ["F4", "F5"], "c4": ["U0"], "c7": ["U1"], "c10": ["U2"], "c13": ["U3"]}
HIQ = []
def hi_younger(tag):
    idx = max(i for i, t in enumerate(HIQ) if t == tag)
    return len(HIQ) - 1 - idx
def bulk(a, slot):
    ops = BULK.get(slot, [])
    if not ops: return
    for op in ops:
        if op[0] == "F":
            prefill_op(a, int(op[1:])); HIQ.append(op)
    ops = [o for o in ops if o[0] != "F"]
    if not TOUCH: ops = [o for o in ops if o[0] != "T"]
    if not ops: return
    l = newlbl("bk")
    a(f"s_cmp_lt_u32 s{S_WAVE}, 2")
    a(f"s_cbranch_scc1 {l}")
    for op in ops:
        k = int(op[1:])
        if op[0] == "T":
            a(f"buffer_load_dword a199, v{V_TW1}, s[{SRD_W1}:{SRD_W1+3}], 0 offen offset:{128*k}"); HIQ.append(op)
        elif op[0] == "U":
            if k == 0:
                a("s_and_b32 s74, s2, 7"); a("s_lshr_b32 s74, s74, 1"); a("s_lshl_b32 s74, s74, 10")
                a(f"s_and_b32 s75, s{S_WAVE}, 1"); a("s_lshl_b32 s75, s75, 9"); a("s_add_u32 s74, s74, s75")
                a("s_lshr_b32 s75, s2, 3"); a("s_mul_i32 s75, s75, 56")
                a(f"v_min_u32 v{V_TW2}, 55, v2"); a(f"v_add_u32 v{V_TW2}, s75, v{V_TW2}"); a(f"v_lshlrev_b32 v{V_TW2}, 12, v{V_TW2}"); a(f"v_add_u32 v{V_TW2}, s74, v{V_TW2}")
            a(f"buffer_load_dword a199, v{V_TW2}, s[{SRD_W2}:{SRD_W2+3}], 0 offen offset:{128*k}"); HIQ.append(op)
        elif op[0] == "C":
            a("v_lshlrev_b32 v255, 4, v2")
            for i in (2 * k, 2 * k + 1):
                a(f"buffer_load_dwordx4 a[{A_CP+4*i}:{A_CP+4*i+3}], v255, s[{SRD_W2}:{SRD_W2+3}], s79 offen offset:{(i%4)*1024}")
                if i % 4 == 3: a("s_add_u32 s79, s79, 4096")
                HIQ.append("C")
        else:
            if k == 0:
                a(f"s_waitcnt vmcnt({hi_younger('C')})")
                w2copy_dst(a)
            for x in w2copy_store(a, k): a(x)
            HIQ.append("S")
    a.label(l)

A_CP = 200
def w2copy_dst(a):
    a("v_lshrrev_b32 v245, 3, v2")
    a(f"s_mov_b32 s74, {W2R_TILE}")
    a("v_mul_lo_u32 v245, v245, s74")
    a(f"v_and_b32 v{V_TW2}, 7, v2")
    a(f"v_lshl_add_u32 v{V_TW2}, v{V_TW2}, 4, v245")
    a(f"s_and_b32 s69, s{S_WAVE}, 1")
    a("s_mul_i32 s68, s2, 896")

def w2copy_store(a, i):
    off = lambda m: (m % 4) * 8 * W2R_TILE + (m // 4) * 128
    return [f"s_mov_b32 s74, {off(14 + i) - off(i)}",
            f"s_mul_i32 s74, s74, s69",
            f"s_add_u32 s74, s74, s68",
            f"s_add_u32 s74, s74, {off(i)}",
            f"buffer_store_dwordx4 a[{A_CP+4*i}:{A_CP+4*i+3}], v{V_TW2}, s[{SRD_W2R}:{SRD_W2R+3}], s74 offen sc1"]

def build(path):
    a = Asm()
    hdr = open("cdna_kernels/" + NAME + ".s.ref").read().split("; Override launch geometry")[0]
    txt = hdr + f"; @launch grid=(256,1,1) block=(256,1,1) lds={LDS_TOTAL}\n" + '.amdgcn_target "amdgcn-amd-amdhsa--gfx950"\n'
    d = gen_fused(a)
    body = a.finalize()
    if ALIGN:
        import asmlib
        body, np_, nn_ = asmlib.align8(body)
        print("align8: promoted", np_, "nops", nn_)
    txt += body + d
    open(path, "w").write(txt)
    open(path + ".names", "w").write("".join(f"{k} {v}\n" for k, v in ST_NAMES.items()))

if __name__ == "__main__":
    import sys, common
    if "--stamp" in sys.argv:
        common.STAMP = True; sys.argv.remove("--stamp")
    if "--notouch" in sys.argv: TOUCH = False
    if "--remap" in sys.argv: REMAP = True
    for x in sys.argv:
        if x.startswith("--bulk="): BULK = eval(x[7:])
        if x.startswith("--thr="): DIAG_THR = int(x[6:])
        if x == "--nobgconv": NOBGCONV = True
        if x == "--nocopy":
            NOCOPY = True
            BULK = {"P0": ["T0"], "P1": ["T1"], "P2": ["F0", "F1", "T2"], "P3": ["F2", "F3", "T3"], "P5": ["F4", "F5"], "c4": ["U0"], "c7": ["U1"], "c10": ["U2"], "c13": ["U3"]}
        if x.startswith("--d0="): D0_G1 = D0_G2 = int(x[5:])
    if "--sjrot" in sys.argv: SJROT = 2
    if "--touchrev" in sys.argv: TOUCHREV = True
    if "--noalign" in sys.argv: ALIGN = False
    if "--nocodepf" in sys.argv: CODEPF = False
    if "--dbgst" in sys.argv:
        DBGST = ["LN1 done (stores issued)", "B1 arrived", "Kgen done", "B1 passed", "conv start (U in LDS)", "conv main done", "B2 arrived", "B2 passed",
                 "LN2 done (stores issued)", "B3 passed", "G1 main done", "B4 arrived", "B4 passed", "G2 main done", "end"]
    build(sys.argv[1])
```

```python
from common import *
from k1 import cmul, wave_max, G_ROW, H_BASE, FT_BASE, FT_DUMMY
import struct

KNAME = NAME + "_kernel"
KG_CH = 27984
FT_AREA = 2 * KG_CH
KC_BASE = 0
KC_STRIDE = 4160
KCH = 4 * KC_STRIDE
U_BASE = KC_BASE + 2 * KCH
U_CH = 95 * 80
LDS_TOTAL = 163840
FT_ZERO = 2060
RED_BYTES = 49152
D_RING = 8
S_WAVE, S_Q0 = 10, 11
SRD_X, SRD_U2, SRD_YA, SRD_H, SRD_HN, SRD_G2, SRD_W1, SRD_W2, SRD_OUT = 12, 16, 20, 24, 28, 32, 36, 40, 44
SRD_W2R = 80
S_B1, S_B2 = 48, 50
S_SCALE, S_DSK = 52, 53
S_T1, S_FJ, S_T2, S_SJ = 54, 55, 56, 57
S_WOFF, S_RING = 58, 59
SM, SR = 84, 86
C_B2, C_B3, C_B4 = 0, 8, 16
KIDX = 0
S_TB = 5
VX = 224
V_KROW, V_KA, V_KB, V_KSC, V_KDST = 232, 233, 234, 235, 239
V_CA, V_CB = 248, 249
V_PW, V_PR, V_US = 252, 253, 254
V_TW1, V_TW2 = 1, 30
PL = 67744
RING_A = 76960
RED_CONV = 48640
PL1 = PL2 = 0
YB = 16384

ST_NAMES = {}
DIAG_THR = 0
DBGST = None
_st = [2]
def st(a, name, vt=60, final=False):
    if DBGST is not None:
        if name in DBGST:
            k = DBGST.index(name) + 1
            l = newlbl("ds")
            a("s_memrealtime s[96:97]")
            a(f"s_or_b32 s94, s2, s{S_WAVE}")
            a("s_cmp_lg_u32 s94, 0")
            a("s_waitcnt lgkmcnt(0)")
            a(f"s_cbranch_scc1 {l}")
            a("s_sub_u32 s96, s96, s98")
            a(f"v_mov_b32 v{vt}, {4*k}")
            a(f"v_mov_b32 v{vt+1}, s96")
            a(f"global_store_dword v{vt}, v{vt+1}, s[8:9]")
            a.label(l)
        return
    slot = 1 if final else _st[0]
    if not final: _st[0] += 1
    ST_NAMES[slot] = name
    stamp(a, KIDX, slot, 6, vt)

def evalE(a, D, v, zr, zi, t, conj=False):
    bits = struct.unpack('<I', struct.pack('<f', float(v)))[0]
    a(f"s_mov_b32 s78, {hex(bits)}")
    a(f"v_mul_f32 v{t}, s78, v{zr}")
    a(f"v_mul_f32 v{t+1}, s78, v{zi}")
    a(f"v_exp_f32 v{t}, v{t}")
    a(f"v_rndne_f32 v{t+2}, v{t+1}")
    a(f"v_sub_f32 v{t+1}, v{t+1}, v{t+2}")
    a(f"v_cos_f32 v{D}, v{t+1}")
    a(f"v_sin_f32 v{D+1}, v{t+1}")
    a(f"v_mul_f32 v{D}, v{D}, v{t}")
    if conj: a(f"v_mul_f32 v{D+1}, -v{D+1}, v{t}")
    else: a(f"v_mul_f32 v{D+1}, v{D+1}, v{t}")

def pos2chan(a, sd, sq, t):
    a(f"s_and_b32 s{sd}, s{sq}, 0x1c0")
    a(f"s_and_b32 s{t}, s{sq}, 7")
    a(f"s_lshl_b32 s{t}, s{t}, 3")
    a(f"s_or_b32 s{sd}, s{sd}, s{t}")
    a(f"s_lshr_b32 s{t}, s{sq}, 3")
    a(f"s_and_b32 s{t}, s{t}, 7")
    a(f"s_or_b32 s{sd}, s{sd}, s{t}")

_lbl = [0]
def newlbl(p):
    _lbl[0] += 1
    return f"L_{p}{_lbl[0]}"

def arrive(a, base_sgpr_pair, off_sgpr, lo_only=False):
    if lo_only:
        l0 = newlbl("ad")
        a(f"s_cmp_ge_u32 s{S_WAVE}, 2")
        a(f"s_cbranch_scc1 {l0}")
        a("s_waitcnt vmcnt(0)")
        a.label(l0)
    else:
        a("s_waitcnt vmcnt(0)")
    a("s_barrier")
    l = newlbl("arr")
    a(f"s_cmp_lg_u32 s{S_WAVE}, 0")
    a(f"s_cbranch_scc1 {l}")
    a(f"v_mov_b32 v13, s{off_sgpr}")
    a("v_mov_b32 v14, 1")
    a("s_mov_b64 s[62:63], exec")
    a("s_mov_b64 exec, 1")
    a(f"global_atomic_add v13, v14, s[{base_sgpr_pair}:{base_sgpr_pair+1}] sc1")
    a("s_mov_b64 exec, s[62:63]")
    a.label(l)

def poll(a, base_sgpr_pair, off_sgpr, n, stride_log2, target):
    l = newlbl("poll")
    a(f"v_and_b32 v13, {n-1}, v2")
    a(f"v_lshlrev_b32 v13, {stride_log2}, v13")
    a(f"v_add_u32 v13, s{off_sgpr}, v13")
    a("s_mov_b32 s61, 0")
    a.label(l)
    a(f"global_load_dword v14, v13, s[{base_sgpr_pair}:{base_sgpr_pair+1}] sc1")
    a("s_waitcnt vmcnt(0)")
    a(f"v_cmp_gt_u32 vcc, {target}, v14")
    a("s_add_u32 s61, s61, 1")
    a(f"s_cbranch_vccz {l}_done")
    a("s_cmp_lt_u32 s61, 0x40000")
    a(f"s_cbranch_scc1 {l}")
    a.label(l + "_done")

def poll_wg(a, base_sgpr_pair, off_sgpr, n, stride_log2, target):
    l = newlbl("pw")
    a(f"s_cmp_lg_u32 s{S_WAVE}, 0")
    a(f"s_cbranch_scc1 {l}")
    poll(a, base_sgpr_pair, off_sgpr, n, stride_log2, target)
    a.label(l)
    a("s_barrier")

def prologue(a):
    a("s_load_dwordx16 s[64:79], s[0:1], 0")
    a("s_load_dwordx2 s[88:89], s[0:1], 64")
    a("s_load_dwordx4 s[80:83], s[0:1], 80")
    a("s_load_dwordx4 s[84:87], s[0:1], 96")
    a("s_load_dwordx4 s[60:63], s[0:1], 112")
    a("s_load_dwordx2 s[6:7], s[0:1], 128")
    a("v_lshrrev_b32 v1, 6, v0")
    a("v_and_b32 v2, 63, v0")
    a(f"v_readfirstlane_b32 s{S_WAVE}, v1")
    a("s_and_b32 s54, s2, 7")
    a("s_lshl_b32 s54, s54, 5")
    a("s_lshr_b32 s55, s2, 3")
    a(f"s_add_u32 s{S_TB}, s54, s55")
    a(f"s_lshl_b32 s{S_Q0}, s{S_TB}, 1")
    a(f"s_lshr_b32 s55, s{S_WAVE}, 1")
    a(f"s_add_u32 s56, s{S_Q0}, s55")
    pos2chan(a, 57, 56, 58)
    a("v_lshlrev_b32 v3, 4, v2")
    a(f"s_lshl_b32 s58, s{S_TB}, 13")
    a(f"s_lshl_b32 s59, s{S_WAVE}, 11")
    a("s_add_u32 s59, s59, s58")
    a(f"s_and_b32 s54, s{S_WAVE}, 1")
    a("s_lshl_b32 s54, s54, 7")
    a("s_lshl_b32 s55, s57, 8")
    a("s_add_u32 s54, s54, s55")
    a("v_lshl_add_u32 v12, v2, 1, s54")
    a("v_xor_b32 v13, 128, v12")
    a("s_waitcnt lgkmcnt(0)")
    stamp(a, KIDX, 0, 6, 250, first=True)
    srd(a, SRD_X, 64, 65, 0, 0x200000)
    a(f"buffer_load_dwordx4 v[{VX}:{VX+3}], v3, s[{SRD_X}:{SRD_X+3}], s59 offen")
    a(f"buffer_load_dwordx4 v[{VX+4}:{VX+7}], v3, s[{SRD_X}:{SRD_X+3}], s59 offen offset:1024")
    a("global_load_ushort v200, v12, s[66:67]")
    a("global_load_ushort v201, v12, s[68:69]")
    a("global_load_ushort v202, v12, s[70:71]")
    a("global_load_ushort v203, v12, s[72:73]")
    a("global_load_ushort v204, v12, s[74:75]")
    a("global_load_ushort v205, v12, s[76:77]")
    a("global_load_ushort v206, v13, s[70:71]")
    a("global_load_ushort v207, v13, s[72:73]")
    a("global_load_ushort v208, v13, s[74:75]")
    a("global_load_ushort v209, v13, s[76:77]")
    a("s_lshl_b32 s54, s57, 1")
    a("s_and_b32 s54, s54, 0xfffffffc")
    a("s_load_dword s52, s[78:79], s54")
    a("s_load_dword s53, s[88:89], s54")
    a("s_and_b32 s91, s57, 1")
    a(f"s_mov_b32 s8, s62"); a("s_mov_b32 s9, s63")
    srd(a, SRD_OUT, 60, 61, 0, 0x200000)
    srd(a, SRD_U2, 6, 7, U2_OFF, U2_SZ)
    srd(a, SRD_YA, 6, 7, YA_OFF, YA_SZ)
    srd(a, SRD_H, 6, 7, H_OFF, H_SZ)
    srd(a, SRD_HN, 6, 7, HN_OFF, HN_SZ)
    srd(a, SRD_G2, 6, 7, G2_OFF, G2_SZ)
    srd(a, SRD_W1, 80, 81, 0, 2048 * 3584)
    srd(a, SRD_W2, 84, 85, 0, 2048 * 3584)
    a(f"s_mov_b32 s{S_B1}, s82"); a(f"s_mov_b32 s{S_B1+1}, s83")
    a(f"s_mov_b32 s{S_B2}, s86"); a(f"s_mov_b32 s{S_B2+1}, s87")
    srd(a, SRD_W2R, 6, 7, W2R_OFF, W2R_SZ)
    l = newlbl("z")
    a(f"s_or_b32 s54, s2, s{S_WAVE}")
    a("s_cmp_lg_u32 s54, 0")
    a(f"s_cbranch_scc1 {l}")
    a("v_lshlrev_b32 v14, 7, v2")
    a(f"v_add_u32 v14, {SYNC_OFF}, v14")
    a("v_mov_b32 v15, 0")
    a("global_store_dword v14, v15, s[6:7] sc1")
    a.label(l)
    if CODEPF:
        l = newlbl("cpf")
        a(f"s_cmp_lg_u32 s{S_WAVE}, 3")
        a(f"s_cbranch_scc1 {l}")
        a("s_getpc_b64 s[54:55]")
        a.label("L_pcbase")
        a("v_lshlrev_b32 v14, 7, v2")
        a("s_mov_b32 s56, L_code_end-L_pcbase")
        for k in range(5):
            a("v_min_u32 v15, s56, v14")
            a(f"global_load_dword a198, v15, s[54:55]")
            if k < 4: a("v_add_u32 v14, 8192, v14")
        a.label(l)
    touch_setup(a)
    bulk(a, "P0")
    precompute(a)
    a("s_cmp_eq_u32 s91, 1")
    a("s_cselect_b32 s60, 0, 16")
    a("s_waitcnt lgkmcnt(0)")
    a("s_lshl_b32 s52, s52, s60"); a("s_and_b32 s52, s52, 0xffff0000")
    a("s_lshl_b32 s53, s53, s60"); a("s_and_b32 s53, s53, 0xffff0000")

V_ONES = 216
def prefill_op(a, k):
    if k == 0:
        for r in range(V_ONES, V_ONES + 4): a(f"v_mov_b32 v{r}, -1")
    D = f"v[{V_ONES}:{V_ONES+3}]"
    if k < 4:
        a(f"s_lshl_b32 s74, s{S_TB}, 13")
        if k % 2: a("s_add_u32 s74, s74, 4096")
        sr = SRD_YA if k < 2 else SRD_HN
        a(f"buffer_store_dwordx4 {D}, v{V_US}, s[{sr}:{sr+3}], s74 offen sc1")
    else:
        a(f"s_lshl_b32 s74, s{S_FJ}, 16")
        a(f"s_lshl_b32 s75, s{S_WAVE}, 13")
        a("s_add_u32 s74, s74, s75")
        a(f"s_lshl_b32 s75, s{S_T1}, 10")
        a("s_add_u32 s74, s74, s75")
        if k == 5: a("s_add_u32 s74, s74, 32768")
        a("v_lshlrev_b32 v220, 4, v2")
        a(f"buffer_store_dwordx4 {D}, v220, s[{SRD_G2}:{SRD_G2+3}], s74 offen sc1")

def precompute(a):
    a("v_lshrrev_b32 v4, 3, v2")
    a("v_mul_u32_u24 v4, 72, v4")
    a("v_and_b32 v5, 7, v2")
    a("v_add_u32 v4, v4, v5")
    a(f"s_mul_i32 s54, s{S_WAVE}, 576")
    a("v_add_u32 v4, s54, v4")
    a(f"v_lshlrev_b32 v{V_PW}, 2, v4")
    a(f"v_add_u32 v{V_PW}, {PL}, v{V_PW}")
    a(f"s_mul_i32 s54, s{S_WAVE}, 72")
    a("v_add_u32 v4, s54, v2")
    a(f"v_lshlrev_b32 v{V_PR}, 2, v4")
    a(f"v_add_u32 v{V_PR}, {PL}, v{V_PR}")
    a(f"v_lshlrev_b32 v{V_US}, 4, v0")
    a(f"s_lshr_b32 s60, s{S_WAVE}, 1")
    a(f"s_mul_i32 s60, s60, {KG_CH}")
    a(f"s_and_b32 s62, s{S_WAVE}, 1")
    a("s_lshl_b32 s61, s62, 8")
    a("s_add_u32 s61, s61, s60")
    a(f"v_lshl_add_u32 v{V_KROW}, v2, 2, s61")
    a("v_and_b32 v7, 15, v2")
    a("v_lshrrev_b32 v8, 4, v2")
    a(f"v_mul_u32_u24 v9, {G_ROW}, v7")
    a("v_lshl_add_u32 v9, v8, 4, v9")
    a(f"s_mul_i32 s63, s62, {16*G_ROW}")
    a("s_add_u32 s63, s63, s60")
    a(f"v_add_u32 v{V_KA}, s63, v9")
    a(f"s_add_u32 s63, s60, {H_BASE}")
    a(f"v_add_u32 v{V_KB}, s63, v9")
    a("v_lshlrev_b32 v16, 3, v7")
    a(f"s_lshr_b32 s63, s{S_WAVE}, 1")
    a("s_mul_i32 s63, s63, 5888")
    a(f"s_add_u32 s63, s63, {FT_AREA}")
    a(f"s_movk_i32 s54, {FT_DUMMY}")
    a("v_cmp_eq_u32 s[56:57], 1, v8")
    a("v_cmp_eq_u32 s[58:59], 2, v8")
    a("v_cmp_eq_u32 vcc, 3, v8")
    for r in range(4):
        m0_q2 = 256 + 2 * r
        m0_q3 = 512 + 4 * (r & 1) + 256 * (r >> 1)
        m1_q0 = 1024 + 256 * r
        m1_q1 = 2048 if r == 0 else FT_DUMMY
        R = V_KSC + r
        a("s_cmp_eq_u32 s62, 0")
        a(f"s_cselect_b32 s55, {r}, {m1_q0}")
        a(f"v_mov_b32 v{R}, s55")
        a(f"s_cselect_b32 s55, {4+r}, {m1_q1}")
        a("v_mov_b32 v18, s55")
        a(f"v_cndmask_b32 v{R}, v{R}, v18, s[56:57]")
        a(f"s_cselect_b32 s55, {m0_q2}, s54")
        a("v_mov_b32 v18, s55")
        a(f"v_cndmask_b32 v{R}, v{R}, v18, s[58:59]")
        a(f"s_cselect_b32 s55, {m0_q3}, s54")
        a("v_mov_b32 v18, s55")
        a(f"v_cndmask_b32 v{R}, v{R}, v18, vcc")
        a(f"v_add_u32 v{R}, v{R}, v16")
        a(f"v_lshrrev_b32 v18, 4, v{R}")
        a(f"v_lshlrev_b32 v18, 2, v18")
        a(f"v_lshl_add_u32 v{R}, v{R}, 1, v18")
        a(f"v_add_u32 v{R}, s63, v{R}")
    a("s_lshl_b32 s55, s62, 6")
    a("v_add_u32 v19, s55, v2")
    a("v_lshlrev_b32 v100, 5, v19")
    a("v_sub_u32 v100, 4094, v100")
    NE = 19
    for e in range(NE):
        a(f"v_subrev_u32 v{104+e}, {2*e}, v100")
        a(f"v_cvt_f32_u32 v{104+e}, v{104+e}")
    for e in range(0, NE + 1, 2):
        e2 = min(e + 1, NE - 1)
        a(f"v_cvt_pk_bf16_f32 v{124+e//2}, v{104+e}, v{104+e2}")
    for e in range(NE):
        if e % 2 == 0: a(f"v_lshlrev_b32 v{104+e}, 16, v{124+e//2}")
        else: a(f"v_and_b32 v{104+e}, 0xffff0000, v{124+e//2}")
    for e in range(NE): a(f"v_cvt_u32_f32 v{104+e}, v{104+e}")
    for e in range(16, NE): a(f"v_min_u32 v{104+e}, {2*FT_ZERO}, v{104+e}")
    for e in range(NE):
        a(f"v_lshrrev_b32 v18, 5, v{104+e}")
        a(f"v_lshl_add_u32 v{104+e}, v18, 2, v{104+e}")
        a(f"v_add_u32 v{104+e}, s63, v{104+e}")
    a(f"s_lshr_b32 s55, s{S_WAVE}, 1")
    a(f"s_mul_i32 s55, s55, {KCH}")
    a(f"s_add_u32 s55, s55, {KC_BASE}")
    a("v_lshlrev_b32 v19, 5, v19")
    a(f"v_add_u32 v{V_KDST}, s55, v19")
    bulk(a, "P1")
    a(f"s_lshr_b32 s60, s{S_WAVE}, 1")
    a(f"s_and_b32 s61, s{S_WAVE}, 1")
    a("v_and_b32 v52, 31, v2")
    a("v_lshrrev_b32 v53, 5, v2")
    a("v_and_b32 v54, 3, v52")
    a("v_sub_u32 v54, 3, v54")
    a(f"v_mul_u32_u24 v54, {KC_STRIDE}, v54")
    a("v_lshrrev_b32 v55, 2, v52")
    a("v_lshlrev_b32 v55, 3, v55")
    a("v_sub_u32 v54, v54, v55")
    a("v_lshl_add_u32 v54, v53, 4, v54")
    a(f"s_mul_i32 s62, s60, {KCH}")
    a("s_lshl_b32 s63, s61, 6")
    a("s_sub_u32 s62, s62, s63")
    a(f"s_add_u32 s62, s62, {KC_BASE + 2*2044 - 2048 - 64*30}")
    a(f"v_add_u32 v{V_CA}, s62, v54")
    a("v_mul_u32_u24 v55, 80, v52")
    a("v_lshl_add_u32 v55, v53, 4, v55")
    a(f"s_mul_i32 s62, s60, {U_CH}")
    a("s_mul_i32 s63, s61, 80")
    a("s_sub_u32 s62, s62, s63")
    a(f"s_add_u32 s62, s62, {U_BASE + 80*(31-30)}")
    a(f"v_add_u32 v{V_CB}, s62, v55")
    tile_coords(a, 1, S_T1, S_FJ)
    tile_coords(a, 2, S_T2, S_SJ)
    dma_setup(a, 1)

def planes_out(a, D, plane_base, srd_dst, T, lo_only=False):
    for c in range(8):
        a(f"ds_write_b32 v{V_PW}, v{D+c} offset:{plane_base + 32*c}")
    a("s_waitcnt lgkmcnt(0)")
    a("s_barrier")
    a(f"s_lshl_b32 s60, s{S_TB}, 13")
    if not lo_only:
        a(f"v_add_u32 v{T+8}, 1152, v{V_PR}")
        a(f"ds_read2st64_b32 v[{T}:{T+1}], v{V_PR} offset0:0 offset1:9")
        a(f"ds_read2st64_b32 v[{T+2}:{T+3}], v{V_PR} offset0:18 offset1:27")
        a(f"ds_read2st64_b32 v[{T+4}:{T+5}], v{T+8} offset0:0 offset1:9")
        a(f"ds_read2st64_b32 v[{T+6}:{T+7}], v{T+8} offset0:18 offset1:27")
        a("s_add_u32 s61, s60, 4096")
        a("s_waitcnt lgkmcnt(2)")
        a(f"buffer_store_dwordx4 v[{T}:{T+3}], v{V_US}, s[{srd_dst}:{srd_dst+3}], s60 offen sc1")
        a("s_waitcnt lgkmcnt(0)")
        a(f"buffer_store_dwordx4 v[{T+4}:{T+7}], v{V_US}, s[{srd_dst}:{srd_dst+3}], s61 offen sc1")
    else:
        l = newlbl("po")
        a(f"s_cmp_ge_u32 s{S_WAVE}, 2")
        a(f"s_cbranch_scc1 {l}")
        for k in range(4):
            a(f"v_add_u32 v{T+16}, {576*k}, v{V_PR}")
            a(f"ds_read2st64_b32 v[{T+4*k}:{T+4*k+1}], v{T+16} offset0:0 offset1:9")
            a(f"ds_read2st64_b32 v[{T+4*k+2}:{T+4*k+3}], v{T+16} offset0:18 offset1:27")
        for k in range(4):
            a(f"s_waitcnt lgkmcnt({2*(3-k)})")
            a(f"buffer_store_dwordx4 v[{T+4*k}:{T+4*k+3}], v{V_US}, s[{srd_dst}:{srd_dst+3}], s60 offen sc1")
            if k < 3: a("s_add_u32 s60, s60, 2048")
        a.label(l)

def unit_addr(a, vd, vt):
    a(f"v_lshrrev_b32 v{vd}, 3, v2")
    a(f"v_lshlrev_b32 v{vd}, 10, v{vd}")
    a(f"v_and_b32 v{vt}, 7, v2")
    a(f"v_lshl_add_u32 v{vd}, v{vt}, 4, v{vd}")

def ln1(a):
    a(f"s_mov_b32 s90, {INV512}")
    a(f"s_mov_b32 s91, {EPS}")
    a("s_waitcnt vmcnt(10)")
    unpack_pairs(a, 16, VX, VX + 4)
    pair_sums(a, 16, 8, 32, 34, 36)
    reduce4(a, 32, 33, 34, 35)
    ln_stats(a, 32, 33, 36, 37, SM, SR)
    ln_apply(a, 16, 8, SM, SR, 40)
    unpack_packed(a, 16, 8, 40)
    for c in range(8):
        a(f"v_cvt_pk_f16_f32 v{40+c}, v{16+2*c}, v{17+2*c}")
    planes_out(a, 40, PL1, SRD_U2, 48, lo_only=True)

def kgen(a):
    a(f"s_lshr_b32 s60, s{S_WAVE}, 1")
    a(f"s_mul_i32 s60, s60, {KG_CH}")
    a(f"s_mov_b32 s66, {LOG2E}")
    a(f"s_mov_b32 s67, {LOG2E_LO}")
    a(f"s_mov_b32 s68, {LN2}")
    a(f"s_mov_b32 s69, {INV2PI}")
    a("v_mov_b32 v20, s52")
    a("v_mul_f32 v21, s66, v20")
    a("v_fma_f32 v22, v20, s66, -v21")
    a("v_fmac_f32 v22, s67, v20")
    a("v_exp_f32 v21, v21")
    a("v_mul_f32 v22, s68, v22")
    a("v_fmac_f32 v21, v21, v22")
    bf16_round(a, 21, 21)
    for i in range(10): a(f"v_lshlrev_b32 v{10+i}, 16, v{200+i}")
    a("v_mul_f32 v10, v21, v10")
    a("v_mul_f32 v11, v21, v11")
    a("v_mul_f32 v10, s66, v10")
    a("v_mul_f32 v11, s69, v11")
    for (b, c0, out) in ((12, 14, 24), (16, 18, 26)):
        a(f"v_mul_f32 v{b}, v21, v{b}")
        a(f"v_mul_f32 v{b+1}, v21, v{b+1}")
        a(f"v_mul_f32 v{out}, v{c0}, v{b}")
        a(f"v_mul_f32 v{out+1}, v{c0}, v{b+1}")
        a(f"v_fma_f32 v{out}, -v{c0+1}, v{b+1}, v{out}")
        a(f"v_fmac_f32 v{out+1}, v{c0+1}, v{b}")
    a("v_max3_f32 v28, abs(v24), abs(v25), abs(v26)")
    a("v_max_f32 v28, v28, abs(v27)")
    W1, W256, W512, W1024, W8, W128 = 32, 34, 36, 38, 80, 50
    evalE(a, W1, 1, 10, 11, 40)
    wave_max(a, 28, 29)
    evalE(a, W256, 256, 10, 11, 44)
    a("v_frexp_exp_i32_f32 v29, v28")
    a("v_sub_u32 v30, 0, v29")
    a("v_ldexp_f32 v48, v24, v30")
    a("v_ldexp_f32 v49, v25, v30")
    a("v_mov_b32 v31, 1.0")
    a("v_ldexp_f32 v31, v31, v29")
    evalE(a, W8, 8, 10, 11, 40, conj=True)
    a(f"v_readfirstlane_b32 s{S_SCALE}, v31")
    evalE(a, 84, 128, 10, 11, 44, conj=True)
    cmul(a, W512, W256, W256)
    cmul(a, W1024, W512, W512)
    st(a, "kg: setup done", 250)
    bulk(a, "P3")
    g = lambda i: 48 + 2 * i
    cnt = [0]
    def emit(off, reg):
        t = 96 + (cnt[0] % 8); cnt[0] += 1
        a(f"v_cvt_pk_f16_f32 v{t}, v{reg}, v{reg+1}")
        a(f"ds_write_b32 v{V_KROW}, v{t} offset:{off}")
    grow = lambda r, reg: emit(r * G_ROW, reg)
    hrow = lambda r, reg: emit(H_BASE + r * G_ROW, reg)
    a("v_mov_b32 v82, 1.0"); a("v_mov_b32 v83, 0")
    HA, HB = [82, 86], [84, 88]
    G = lambda r: r * G_ROW
    Hh = lambda r: H_BASE + r * G_ROW
    gops = [("e", G(0), g(0)),
            ("c", 64, g(0), W1024), ("c", 66, g(0), W512), ("c", g(1), g(0), W1), ("e", G(16), 64), ("e", G(12), 66),
            ("c", 68, 64, W256), ("c", 70, 66, W256), ("e", G(1), g(1)), ("c", g(2), g(1), W1), ("c", 72, g(0), W256), ("e", G(17), 68), ("e", G(14), 70),
            ("c", 64, 68, W256), ("e", G(2), g(2)), ("c", g(3), g(2), W1), ("c", 74, g(2), W256), ("e", G(8), 72), ("e", G(18), 64),
            ("c", 68, 64, W256), ("e", G(3), g(3)), ("c", g(4), g(3), W1), ("e", G(9), 74), ("e", G(19), 68),
            ("c", 64, 68, W256), ("e", G(4), g(4)), ("c", g(5), g(4), W1), ("c", 66, g(4), W512), ("c", 72, g(4), W256), ("e", G(20), 64),
            ("e", G(5), g(5)), ("c", g(6), g(5), W1), ("e", G(13), 66), ("c", 70, 66, W256), ("e", G(10), 72),
            ("e", G(6), g(6)), ("c", g(7), g(6), W1), ("c", 74, g(6), W256), ("e", G(15), 70), ("e", G(7), g(7)), ("e", G(11), 74)]
    hops = []
    for i in range(16):
        ca, na = HA[i % 2], HA[(i + 1) % 2]
        cb, nb = HB[i % 2], HB[(i + 1) % 2]
        if i < 15: hops += [("c", na, ca, W8), ("e", Hh(i), ca), ("c", nb, cb, W8), ("e", Hh(16 + i), cb)]
        else: hops += [("e", Hh(i), ca), ("e", Hh(16 + i), cb)]
    seq = []
    gi = hi = 0
    last = "e"
    while gi < len(gops) or hi < len(hops):
        want = "c" if last == "e" else "e"
        cand = []
        if hi < len(hops) and hops[hi][0] == want: cand.append("h")
        if gi < len(gops) and gops[gi][0] == want: cand.append("g")
        if not cand:
            cand = (["h"] if hi < len(hops) else []) + (["g"] if gi < len(gops) else [])
        if len(cand) == 2: pick = "g" if gi / len(gops) <= hi / len(hops) else "h"
        else: pick = cand[0]
        op = gops[gi] if pick == "g" else hops[hi]
        if pick == "g": gi += 1
        else: hi += 1
        seq.append(op); last = op[0]
    for n_, op in enumerate(seq):
        if n_ == len(seq) // 3: bulk(a, "P4")
        if op[0] == "c": cmul(a, op[1], op[2], op[3])
        else: emit(op[1], op[2])
    NE = 19
    a(f"s_lshr_b32 s63, s{S_WAVE}, 1")
    a("s_mul_i32 s63, s63, 5888")
    a(f"s_add_u32 s63, s63, {FT_AREA}")
    st(a, "kg: chains done", 250)
    lp0 = newlbl("pb0")
    a(f"s_cmp_lg_u32 s{S_WAVE}, 0")
    a(f"s_cbranch_scc1 {lp0}")
    a("v_and_b32 v98, 3, v2")
    a("v_lshlrev_b32 v98, 6, v98")
    a("global_load_dword v99, v98, s[8:9] sc1")
    a.label(lp0)
    bulk(a, "P5")
    a("v_mov_b32 v18, 0")
    a(f"v_mov_b32 v101, s63")
    a(f"ds_write_b16 v101, v18 offset:{2*FT_ZERO + 4*(FT_ZERO >> 4)}")
    a("s_waitcnt lgkmcnt(0)")
    a("s_barrier")
    for ks in range(8):
        a(f"ds_read_b128 v[{128+12*ks}:{131+12*ks}], v{V_KA} offset:{ks*64}")
        a(f"ds_read_b128 v[{132+12*ks}:{135+12*ks}], v{V_KB} offset:{ks*64}")
        a(f"ds_read_b128 v[{136+12*ks}:{139+12*ks}], v{V_KB} offset:{ks*64 + 16*G_ROW}")
        if ks >= 3:
            k = ks - 3
            a("s_waitcnt lgkmcnt(9)")
            cc0 = "0" if k == 0 else "v[20:23]"; cc1 = "0" if k == 0 else "v[24:27]"
            a(f"v_mfma_f32_16x16x32_f16 v[20:23], v[{128+12*k}:{131+12*k}], v[{132+12*k}:{135+12*k}], {cc0}")
            a(f"v_mfma_f32_16x16x32_f16 v[24:27], v[{128+12*k}:{131+12*k}], v[{136+12*k}:{139+12*k}], {cc1}")
    for k in range(5, 8):
        a(f"s_waitcnt lgkmcnt({3*(7-k)})")
        a(f"v_mfma_f32_16x16x32_f16 v[20:23], v[{128+12*k}:{131+12*k}], v[{132+12*k}:{135+12*k}], v[20:23]")
        a(f"v_mfma_f32_16x16x32_f16 v[24:27], v[{128+12*k}:{131+12*k}], v[{136+12*k}:{139+12*k}], v[24:27]")
    for nt in range(2):
        A = 20 + 4 * nt
        a(f"v_cvt_pk_f16_f32 v{28+2*nt}, v{A}, v{A+1}")
        a(f"v_cvt_pk_f16_f32 v{29+2*nt}, v{A+2}, v{A+3}")
        a(f"ds_write_b16 v{V_KSC}, v{28+2*nt} offset:{288*nt}")
        a(f"ds_write_b16_d16_hi v{V_KSC+1}, v{28+2*nt} offset:{288*nt}")
        a(f"ds_write_b16 v{V_KSC+2}, v{29+2*nt} offset:{288*nt}")
        a(f"ds_write_b16_d16_hi v{V_KSC+3}, v{29+2*nt} offset:{288*nt}")
    st(a, "kg: mfma done", 250)
    lp = newlbl("pb1")
    a(f"s_cmp_lg_u32 s{S_WAVE}, 0")
    a(f"s_cbranch_scc1 {lp}")
    a("s_waitcnt vmcnt(2)")
    a("v_cmp_gt_u32 vcc, 64, v99")
    a(f"s_cbranch_vccz {lp}_ok")
    a("s_mov_b32 s62, 0")
    poll(a, 8, 62, 4, 6, 64)
    a.label(lp + "_ok")
    conv_u_loads(a)
    a.label(lp)
    st(a, "B1 passed (wave 0)", 250)
    a("s_waitcnt lgkmcnt(0)")
    a("s_barrier")
    st(a, "kg: scatter+barrier done", 250)
    bulk(a, "P6")
    a("; KGBG")
    for e in range(NE): a(f"ds_read_u16 v{128+e}, v{104+e}")
    for r in range(40, 44): a(f"v_mov_b32 v{r}, 0")
    a("v_lshlrev_b32 v5, 4, v0")
    a("v_cmp_gt_u32 vcc, 155, v0")
    a("s_and_saveexec_b64 s[62:63], vcc")
    a(f"v_add_u32 v44, {U_BASE}, v5")
    a(f"ds_write_b128 v44, v[40:43]")
    a(f"ds_write_b128 v44, v[40:43] offset:{U_CH}")
    a("s_mov_b64 exec, s[62:63]")
    a("v_lshrrev_b32 v44, 2, v0")
    a(f"v_mul_u32_u24 v44, {KC_STRIDE}, v44")
    a("v_and_b32 v45, 3, v0")
    a("v_lshl_add_u32 v44, v45, 4, v44")
    a(f"v_add_u32 v44, {KC_BASE + 4096}, v44")
    a("v_cmp_gt_u32 vcc, 32, v0")
    a("s_and_saveexec_b64 s[62:63], vcc")
    a("ds_write_b128 v44, v[40:43]")
    a("s_mov_b64 exec, s[62:63]")

    a("s_waitcnt lgkmcnt(0)")
    for i in range(9):
        a(f"v_lshl_or_b32 v{161+i}, v{129+2*i}, 16, v{128+2*i}")
    for i in range(8):
        a(f"v_mov_b32 v{152+i}, v{161+i}")
    for i in range(9):
        a(f"v_lshl_or_b32 v{181+i}, v{130+2*i}, 16, v{129+2*i}")
    for i in range(8):
        a(f"v_mov_b32 v{172+i}, v{181+i}")
    for (sig, R) in ((0, 152), (1, 172), (2, 162), (3, 182)):
        a(f"ds_write_b128 v{V_KDST}, v[{R}:{R+3}] offset:{sig*KC_STRIDE}")
        a(f"ds_write_b128 v{V_KDST}, v[{R+4}:{R+7}] offset:{sig*KC_STRIDE+16}")

def conv_u_loads(a):
    a("v_lshlrev_b32 v4, 13, v2")
    a(f"s_lshl_b32 s61, s{S_Q0}, 4")
    for r in range(4):
        a(f"buffer_load_dwordx4 a[{8*r}:{8*r+3}], v4, s[{SRD_U2}:{SRD_U2+3}], s61 offen sc1")
        a(f"buffer_load_dwordx4 a[{8*r+4}:{8*r+7}], v4, s[{SRD_U2}:{SRD_U2+3}], s61 offen offset:16 sc1")
        if r < 3: a(f"s_add_u32 s61, s61, {64*8192}")

def conv_u_writes(a, ny=0):
    l, l1 = newlbl("cw"), newlbl("cw")
    a(f"s_cmp_lg_u32 s{S_WAVE}, 0")
    a(f"s_cbranch_scc1 {l1}")
    a("v_lshrrev_b32 v5, 2, v2")
    a("v_mul_u32_u24 v5, 80, v5")
    a("v_and_b32 v6, 3, v2")
    a("v_lshl_add_u32 v5, v6, 4, v5")
    a(f"v_add_u32 v5, {U_BASE + 31*80}, v5")
    for r in range(4):
        a(f"s_waitcnt vmcnt({2*(3-r) + ny})")
        a(f"ds_write_b128 v5, a[{8*r}:{8*r+3}] offset:{r*16*80}")
        a(f"ds_write_b128 v5, a[{8*r+4}:{8*r+7}] offset:{U_CH + r*16*80}")
    a(f"s_branch {l}")
    a.label(l1)
    a(f"s_cmp_lg_u32 s{S_WAVE}, 1")
    a(f"s_cbranch_scc1 {l}")
    a("s_waitcnt vmcnt(0)")
    a.label(l)

def conv_main(a):
    a(f"s_lshr_b32 s60, s{S_WAVE}, 1")
    a(f"s_and_b32 s61, s{S_WAVE}, 1")
    a("v_and_b32 v52, 31, v2")
    a("v_lshrrev_b32 v53, 5, v2")
    a(f"v_mov_b32 v54, v{V_CA}")
    a(f"v_mov_b32 v55, v{V_CB}")
    lh = newlbl("ph")
    a(f"s_cmp_lt_u32 s{S_WAVE}, 2")
    a(f"s_cbranch_scc1 {lh}")
    a(f"s_waitcnt vmcnt({hi_younger('F5')})")
    a.label(lh)
    a("s_waitcnt lgkmcnt(0)")
    a("s_barrier")
    lpa = newlbl("pa")
    a(f"s_cmp_lg_u32 s{S_WAVE}, 0")
    a(f"s_cbranch_scc1 {lpa}")
    a("s_and_b32 s62, s2, 7")
    a("s_lshl_b32 s62, s62, 7")
    a(f"s_add_u32 s62, s62, {SYNC_OFF + 8*128}")
    a("v_mov_b32 v13, s62")
    a("v_mov_b32 v14, 1")
    a("s_mov_b64 s[62:63], exec")
    a("s_mov_b64 exec, 1")
    a(f"global_atomic_add v13, v14, s[6:7] sc1")
    a("s_mov_b64 exec, s[62:63]")
    a.label(lpa)
    st(a, "conv start (U in LDS)")
    X, Y = 96, 128
    def load_list(step, R):
        kk = 30 - 2 * step
        oa = 64 * kk; ob = 80 * kk
        return [
            f"ds_read_b64 v[{R+0}:{R+1}], v54 offset:{oa+2048}",
            f"ds_read_b64 v[{R+2}:{R+3}], v54 offset:{oa+2048+8}",
            f"ds_read_b128 v[{R+16}:{R+19}], v55 offset:{ob}",
            f"ds_read_b128 v[{R+24}:{R+27}], v55 offset:{ob+2560}",
            f"ds_read_b64 v[{R+4}:{R+5}], v54 offset:{oa+2048+32}",
            f"ds_read_b64 v[{R+6}:{R+7}], v54 offset:{oa+2048+40}",
            f"ds_read_b128 v[{R+20}:{R+23}], v55 offset:{ob+32}",
            f"ds_read_b128 v[{R+28}:{R+31}], v55 offset:{ob+2560+32}",
            f"ds_read_b64 v[{R+8}:{R+9}], v54 offset:{oa}",
            f"ds_read_b64 v[{R+10}:{R+11}], v54 offset:{oa+8}",
            f"ds_read_b64 v[{R+12}:{R+13}], v54 offset:{oa+32}",
            f"ds_read_b64 v[{R+14}:{R+15}], v54 offset:{oa+40}"]
    def mfma_list(R, first):
        c0 = "0" if first else "v[64:79]"; c1 = "0" if first else "v[80:95]"
        return [
            f"v_mfma_f32_32x32x16_f16 v[64:79], v[{R+0}:{R+3}], v[{R+16}:{R+19}], {c0}",
            f"v_mfma_f32_32x32x16_f16 v[80:95], v[{R+0}:{R+3}], v[{R+24}:{R+27}], {c1}",
            f"v_mfma_f32_32x32x16_f16 v[64:79], v[{R+4}:{R+7}], v[{R+20}:{R+23}], v[64:79]",
            f"v_mfma_f32_32x32x16_f16 v[80:95], v[{R+4}:{R+7}], v[{R+28}:{R+31}], v[80:95]",
            f"v_mfma_f32_32x32x16_f16 v[80:95], v[{R+8}:{R+11}], v[{R+16}:{R+19}], v[80:95]",
            f"v_mfma_f32_32x32x16_f16 v[80:95], v[{R+12}:{R+15}], v[{R+20}:{R+23}], v[80:95]"]
    a("s_lshl_b32 s62, s61, 5")
    a("v_add_u32 v59, s62, v52")
    a("v_mul_u32_u24 v60, 80, v59")
    a("v_lshl_add_u32 v60, v53, 3, v60")
    a(f"s_mul_i32 s62, s60, {U_CH}")
    a(f"s_add_u32 s62, s62, {U_BASE + 31*80}")
    a("v_add_u32 v60, s62, v60")
    for g in range(4): a(f"ds_read_b64 v[{160+2*g}:{161+2*g}], v60 offset:{g*16}")
    sh = []
    for g in range(4):
        sh += [f"v_cvt_f32_f16 v{168+4*g}, v{160+2*g}", f"v_cvt_f32_f16_sdwa v{169+4*g}, v{160+2*g} dst_sel:DWORD dst_unused:UNUSED_PAD src0_sel:WORD_1",
               f"v_cvt_f32_f16 v{170+4*g}, v{161+2*g}", f"v_cvt_f32_f16_sdwa v{171+4*g}, v{161+2*g} dst_sel:DWORD dst_unused:UNUSED_PAD src0_sel:WORD_1"]
    sh += [f"v_mul_f32 v{168+r}, s{S_DSK}, v{168+r}" for r in range(16)]
    sh += [f"v_cvt_pk_bf16_f32 v{184+r//2}, v{168+r}, v{169+r}" for r in range(0, 16, 2)]
    for r in range(0, 16, 2):
        sh += [f"v_lshlrev_b32 v{168+r}, 16, v{184+r//2}", f"v_and_b32 v{169+r}, 0xffff0000, v{184+r//2}"]
    bg = dma_groups(1, 10, 0)
    bg_late = []
    if NOBGCONV: bg_late, bg = bg, []
    for l in load_list(0, X): a(l)
    for step in range(16):
        bulk(a, f"c{step}")
        for _ in range(2 if (step % 4) == 1 else 1):
            if bg and step >= 0:
                for l in bg.pop(0): a(l)
                HIQ.append("D")
        R = X if step % 2 == 0 else Y
        N = Y if step % 2 == 0 else X
        M = mfma_list(R, step == 0)
        Ls = load_list(step + 1, N) if step < 15 else []
        need_upto = [3, 4, 7, 8, 10, 12]
        issued_next = 0
        for i in range(6):
            a(f"s_waitcnt lgkmcnt({min((12 - need_upto[i]) + issued_next, 15)})")
            a(M[i])
            for l in Ls[2*i:2*i+2]: a(l); issued_next += 1
            if step >= 1 and sh: a(sh.pop(0))
    for grp in bg:
        for l in grp: a(l)
        HIQ.append("D")
    st(a, "conv main done")
    for grp in bg_late:
        for l in grp: a(l)
    lpf = newlbl("pf")
    a(f"s_cmp_lg_u32 s{S_WAVE}, 0")
    a(f"s_cbranch_scc1 {lpf}")
    a("v_and_b32 v50, 7, v2")
    a("v_lshlrev_b32 v50, 7, v50")
    a(f"v_add_u32 v50, {SYNC_OFF + 8*128}, v50")
    a("global_load_dword v51, v50, s[6:7] sc1")
    a.label(lpf)
    a("v_lshlrev_b32 v56, 4, v2")
    a(f"v_add_u32 v56, {RED_CONV}, v56")
    a(f"s_lshl_b32 s62, s{S_WAVE}, 12")
    a("v_add_u32 v57, s62, v56")
    a(f"s_xor_b32 s63, s{S_WAVE}, 1")
    a("s_lshl_b32 s63, s63, 12")
    a("v_add_u32 v58, s63, v56")
    l1, l2 = newlbl("cp"), newlbl("cr")
    a("s_cmp_eq_u32 s61, 0")
    a(f"s_cbranch_scc0 {l1}")
    a("s_nop 7"); a("s_nop 7")
    for g in range(4): a(f"ds_write_b128 v57, v[{80+4*g}:{83+4*g}] offset:{g*1024}")
    a(f"s_branch {l2}")
    a.label(l1)
    a("s_nop 7"); a("s_nop 7")
    for g in range(4): a(f"ds_write_b128 v57, v[{64+4*g}:{67+4*g}] offset:{g*1024}")
    for r in range(16): a(f"v_mov_b32 v{64+r}, v{80+r}")
    a.label(l2)
    a("s_waitcnt lgkmcnt(0)")
    a("s_barrier")
    for g in range(4): a(f"ds_read_b128 v[{96+4*g}:{99+4*g}], v58 offset:{g*1024}")
    a("s_waitcnt lgkmcnt(0)")
    for r in range(0, 16, 2): a(f"v_pk_add_f32 v[{64+r}:{65+r}], v[{64+r}:{65+r}], v[{96+r}:{97+r}]")
    for r in range(0, 16, 2): a(f"v_pk_mul_f32 v[{64+r}:{65+r}], v[{64+r}:{65+r}], s[{S_SCALE}:{S_SCALE+1}] op_sel_hi:[1,0]")
    for r in range(0, 16, 2): a(f"v_cvt_pk_bf16_f32 v{136+r//2}, v{64+r}, v{65+r}")
    for r in range(0, 16, 2):
        a(f"v_lshlrev_b32 v{64+r}, 16, v{136+r//2}")
        a(f"v_and_b32 v{65+r}, 0xffff0000, v{136+r//2}")
    for r in range(0, 16, 2): a(f"v_pk_add_f32 v[{64+r}:{65+r}], v[{64+r}:{65+r}], v[{168+r}:{169+r}]")
    for r in range(0, 16, 2): a(f"v_cvt_pk_bf16_f32 v{136+r//2}, v{64+r}, v{65+r}")
    for g in (0, 2):
        A0, A1, B0, B1 = 136 + 2 * g, 137 + 2 * g, 138 + 2 * g, 139 + 2 * g
        a(f"v_permlane32_swap_b32 v{A0}, v{B0}")
        a(f"v_permlane32_swap_b32 v{A1}, v{B1}")
    a("v_mul_u32_u24 v61, 144, v59")
    a("v_lshl_add_u32 v61, v53, 5, v61")
    a("s_lshl_b32 s62, s60, 4")
    a(f"s_add_u32 s62, s62, {YB}")
    a("v_add_u32 v61, s62, v61")
    a("ds_write_b128 v61, v[136:139]")
    a("ds_write_b128 v61, v[140:143] offset:64")
    a("v_lshrrev_b32 v62, 3, v0")
    a("v_mul_u32_u24 v62, 144, v62")
    a("v_and_b32 v63, 7, v0")
    a("v_lshl_add_u32 v62, v63, 4, v62")
    a("s_waitcnt lgkmcnt(0)")
    a("s_barrier")
    ly = newlbl("yo")
    a(f"s_cmp_ge_u32 s{S_WAVE}, 2")
    a(f"s_cbranch_scc1 {ly}")
    for k in range(4):
        a(f"ds_read_b128 v[{96+4*k}:{99+4*k}], v62 offset:{YB + 16*144*k}")
    a(f"s_lshl_b32 s62, s{S_TB}, 13")
    for k in range(4):
        a(f"s_waitcnt lgkmcnt({3-k})")
        a(f"buffer_store_dwordx4 v[{96+4*k}:{99+4*k}], v{V_US}, s[{SRD_YA}:{SRD_YA+3}], s62 offen sc1")
        if k < 3: a("s_add_u32 s62, s62, 2048")
    a.label(ly)

def ln2_addr(a):
    a("v_lshrrev_b32 v4, 1, v0")
    a("v_lshlrev_b32 v4, 13, v4")
    a("v_and_b32 v5, 1, v0")
    a("v_lshl_add_u32 v4, v5, 4, v4")
    a(f"s_lshl_b32 s72, s{S_TB}, 5")
    a("s_add_u32 s73, s72, 0x100000")

def ln2_issue(a):
    a(f"buffer_load_dwordx4 v[40:43], v4, s[{SRD_YA}:{SRD_YA+3}], s72 offen sc1")
    a(f"buffer_load_dwordx4 v[44:47], v4, s[{SRD_YA}:{SRD_YA+3}], s73 offen sc1")

def ln2_loads(a, first_wait):
    l = newlbl("ys")
    a("s_mov_b32 s61, 0")
    a(f"s_waitcnt vmcnt({first_wait})")
    a(f"s_branch {l}_c")
    a.label(l)
    ln2_issue(a)
    a("s_add_u32 s61, s61, 1")
    a("s_waitcnt vmcnt(0)")
    a.label(l + "_c")
    for x in check8(40, 12): a(x)
    a(f"s_cbranch_vccz {l}_ok")
    a(f"s_cmp_lt_u32 s61, {SPIN_MAX}")
    a(f"s_cbranch_scc1 {l}")
    a.label(l + "_ok")
    a("s_waitcnt vmcnt(0)")

def ln2_planes_in(a):
    a(f"v_mov_b32 v48, v{V_PR}")
    a(f"v_add_u32 v49, 1152, v{V_PR}")
    a("ds_write2st64_b32 v48, v40, v41 offset0:0 offset1:9")
    a("ds_write2st64_b32 v48, v42, v43 offset0:18 offset1:27")
    a("ds_write2st64_b32 v49, v44, v45 offset0:0 offset1:9")
    a("ds_write2st64_b32 v49, v46, v47 offset0:18 offset1:27")

def ln2_compute(a):
    for c in range(8):
        a(f"ds_read_b32 v{40+c}, v{V_PW} offset:{32*c}")
    a(f"s_mov_b32 s90, {INV512}")
    a(f"s_mov_b32 s91, {EPS}")
    a("s_mov_b32 s92, 0x05040100")
    a("s_mov_b32 s93, 0x07060302")
    unpack_pairs(a, 16, VX, VX + 4)
    a("v_lshlrev_b32 v3, 4, v2")
    a(f"s_lshl_b32 s64, s{S_TB}, 13")
    a(f"s_lshl_b32 s65, s{S_WAVE}, 11")
    a("s_add_u32 s64, s64, s65")
    a("s_waitcnt lgkmcnt(0)")
    for c in range(8):
        a(f"v_lshlrev_b32 v{48+2*c}, 16, v{40+c}")
        a(f"v_and_b32 v{49+2*c}, 0xffff0000, v{40+c}")
    for c in range(8):
        a(f"v_pk_add_f32 v[{16+2*c}:{17+2*c}], v[{16+2*c}:{17+2*c}], v[{48+2*c}:{49+2*c}]")
    for c in range(8):
        a(f"v_cvt_pk_bf16_f32 v{40+c}, v{16+2*c}, v{17+2*c}")
    unpack_packed(a, 16, 8, 40)
    for i in range(4):
        a(f"v_perm_b32 v{4+i}, v{41+2*i}, v{40+2*i}, s92")
        a(f"v_perm_b32 v{8+i}, v{41+2*i}, v{40+2*i}, s93")
    a(f"buffer_store_dwordx4 v[4:7], v3, s[{SRD_H}:{SRD_H+3}], s64 offen sc1")
    a(f"buffer_store_dwordx4 v[8:11], v3, s[{SRD_H}:{SRD_H+3}], s64 offen offset:1024 sc1")
    pair_sums(a, 16, 8, 32, 34, 36)
    reduce4(a, 32, 33, 34, 35)
    ln_stats(a, 32, 33, 36, 37, SM, SR)
    ln_apply(a, 16, 8, SM, SR, 40)
    unpack_packed(a, 16, 8, 40)
    pair_sums(a, 16, 8, 32, 34, 36)
    reduce4(a, 32, 33, 34, 35)
    ln_stats(a, 32, 33, 36, 37, SM, SR)
    ln_apply(a, 16, 8, SM, SR, 40)
    a("; BGSTOP")
    a("s_waitcnt vmcnt(0)")
    a("s_barrier")
    planes_out(a, 40, PL2, SRD_HN, 48)

def tile_coords(a, which, sT, sC):
    a("s_and_b32 s60, s2, 7")
    a("s_lshr_b32 s61, s2, 3")
    a(f"s_and_b32 s{sT}, s60, 1")
    a(f"s_lshl_b32 s{sT}, s{sT}, 2")
    a("s_and_b32 s62, s61, 3")
    a(f"s_add_u32 s{sT}, s{sT}, s62")
    a(f"s_lshr_b32 s{sC}, s60, 1")
    a(f"s_mul_i32 s{sC}, s{sC}, {7 if which == 1 else 8}")
    a("s_lshr_b32 s62, s61, 2")
    if which == 2 and SJROT:
        a(f"s_add_u32 s62, s62, {SJROT}"); a("s_and_b32 s62, s62, 7")
    a(f"s_add_u32 s{sC}, s{sC}, s62")

VD, VTA, VTB = 240, 241, 242
def dma_setup(a, which):
    WROW = 3584 if which == 1 else (4096 if NOCOPY else 128)
    a(f"v_lshrrev_b32 v{VD}, 3, v2")
    a(f"v_mul_u32_u24 v{VD}, {WROW}, v{VD}")
    a("v_and_b32 v243, 7, v2")
    a("v_lshrrev_b32 v244, 2, v2")
    a("v_and_b32 v244, 4, v244")
    a("v_xor_b32 v243, v243, v244")
    a(f"v_lshl_add_u32 v{VD}, v243, 4, v{VD}")
    a("v_bfe_u32 v243, v2, 2, 2")
    a("v_and_b32 v244, 3, v2")
    a(f"v_bfe_u32 v{VTA}, v2, 4, 1")
    a(f"v_lshlrev_b32 v{VTA}, 1, v{VTA}")
    a("v_lshrrev_b32 v245, 1, v244")
    a(f"v_add_u32 v{VTA}, v{VTA}, v245")
    a("v_lshrrev_b32 v245, 1, v243")
    a("v_lshlrev_b32 v245, 2, v245")
    a(f"v_xor_b32 v{VTA}, v{VTA}, v245")
    a(f"v_lshlrev_b32 v{VTA}, 4, v{VTA}")
    a("v_and_b32 v245, 1, v244")
    a(f"v_lshl_add_u32 v{VTA}, v245, 3, v{VTA}")
    a("v_lshrrev_b32 v245, 5, v2")
    a(f"v_lshlrev_b32 v245, {3 if which == 1 else 2}, v245")
    a("v_add_u32 v245, v245, v243")
    a(f"v_lshl_add_u32 v{VTA}, v245, 7, v{VTA}")
    a(f"v_xor_b32 v{VTB}, 64, v{VTA}")

def ring_base_sel(a, lo_base, per_wave, split, hi_base):
    a(f"s_mul_i32 s{S_RING}, s{S_WAVE}, {per_wave}")
    a(f"s_cmp_lt_u32 s{S_WAVE}, {split}")
    a(f"s_mov_b32 s60, {lo_base}")
    a(f"s_cselect_b32 s60, s60, {hi_base - split*per_wave}")
    a(f"s_add_u32 s{S_RING}, s{S_RING}, s60")
    a(f"s_lshr_b32 s60, s{S_WAVE}, 1")
    a("s_lshl_b32 s60, s60, 6")
    a(f"v_xor_b32 v246, s60, v{VTA}")
    a(f"v_xor_b32 v247, 64, v246")
    a(f"v_add_u32 v246, s{S_RING}, v246")
    a(f"v_add_u32 v247, s{S_RING}, v247")

def ring_base(a, per_wave, base):
    a(f"s_mul_i32 s{S_RING}, s{S_WAVE}, {per_wave}")
    if base: a(f"s_add_u32 s{S_RING}, s{S_RING}, {base}")
    a(f"s_lshr_b32 s60, s{S_WAVE}, 1")
    a("s_lshl_b32 s60, s60, 6")
    a(f"v_xor_b32 v246, s60, v{VTA}")
    a(f"v_xor_b32 v247, 64, v246")
    a(f"v_add_u32 v246, s{S_RING}, v246")
    a(f"v_add_u32 v247, s{S_RING}, v247")

S_WA, S_WB = 76, 77
def dma_groups(which, n, slot0):
    WROW = 3584 if which == 1 else (4096 if NOCOPY else 128)
    srdw = SRD_W1 if which == 1 else (SRD_W2 if NOCOPY else SRD_W2R)
    sc = "" if (which == 1 or NOCOPY) else " sc1"
    g = []
    for i in range(n):
        g.append([f"s_add_u32 m0, s{S_RING}, {(slot0+i)*2048}",
                  f"buffer_load_dwordx4 v{VD}, s[{srdw}:{srdw+3}], s{S_WA} offen{sc} lds",
                  f"s_add_u32 s{S_WA}, s{S_WA}, {16*WROW}"])
        g.append([f"s_add_u32 m0, s{S_RING}, {(slot0+i)*2048+1024}",
                  f"buffer_load_dwordx4 v{VD}, s[{srdw}:{srdw+3}], s{S_WB} offen{sc} lds",
                  f"s_add_u32 s{S_WB}, s{S_WB}, {16*WROW}"])
    return g

def dma_issue(a, which, n, slot0):
    for grp in dma_groups(which, n, slot0):
        for l in grp: a(l)

SCC_READ = ('s_cbranch_scc', 's_cselect', 's_addc', 's_subb', 's_cmov')
SCC_WRITE = ('s_cmp', 's_add_', 's_sub_', 's_and_', 's_or_', 's_xor_', 's_lshl', 's_lshr', 's_bitcmp', 's_min', 's_max', 's_ashr', 's_not', 's_bfe')
def scc_safe(lines, i):
    for l in lines[i:]:
        op = l.split()[0]
        if op.startswith(SCC_READ): return False
        if op.startswith(SCC_WRITE) or op.endswith(':') or op in ('s_branch', 's_endpgm', 's_barrier'): return True
    return True

def with_bg(a, fg, groups, skip=0, stride=20, after=None, before=None):
    i0 = len(a.lines)
    fg()
    body = a.lines[i0:]
    del a.lines[i0:]
    start = skip
    if after is not None:
        start = next(k for k, l in enumerate(body) if after in l) + 1 + skip
    out = []; gi = 0; nxt = start
    stop = False
    cond_until = None
    masked = False
    labels_in = {x[:-1] for x in body if x.endswith(':')}
    for k, l in enumerate(body):
        if cond_until is not None and l == cond_until + ':': cond_until = None
        in_cond = cond_until is not None or masked
        cond_until_next = None
        if cond_until is None and l.startswith(('s_cbranch', 's_branch')) and l.split()[1] in labels_in and (l.split()[1] + ':') in body[k:]:
            cond_until_next = l.split()[1]
        if before is not None and not stop and before in l:
            stop = True
            while gi < len(groups):
                out += groups[gi]; gi += 1
        if not stop and not in_cond and gi < len(groups) and k >= nxt and scc_safe(body, k) and not l.endswith(':') and not l.startswith('s_and_saveexec'):
            out += groups[gi]; gi += 1; nxt = k + stride
        out.append(l)
        if cond_until_next is not None: cond_until = cond_until_next
        if l.startswith('s_and_saveexec'): masked = True
        if l.startswith('s_mov_b64 exec'): masked = False
    while gi < len(groups):
        out += groups[gi]; gi += 1
    a.lines += out

def tr_to_acc(a, which, steps, slot0):
    RHO = 512 if which == 1 else 1024
    for i, s in enumerate(steps):
        o = (slot0 + i) * 2048
        a(f"ds_read_b64_tr_b16 a[{8*s}:{8*s+1}], v246 offset:{o}")
        a(f"ds_read_b64_tr_b16 a[{8*s+2}:{8*s+3}], v246 offset:{o+RHO}")
        a(f"ds_read_b64_tr_b16 a[{8*s+4}:{8*s+5}], v247 offset:{o}")
        a(f"ds_read_b64_tr_b16 a[{8*s+6}:{8*s+7}], v247 offset:{o+RHO}")
        if i % 3 == 2: a("s_waitcnt lgkmcnt(4)")

def woff_init(a, which, sC):
    WROW = 3584 if which == 1 else (4096 if NOCOPY else 128)
    if which == 1:
        a(f"s_mul_i32 s{S_WA}, s{S_WAVE}, {32*16*3584}")
        a(f"s_lshl_b32 s60, s{sC}, 7")
    elif NOCOPY:
        a(f"s_mul_i32 s{S_WA}, s{S_WAVE}, {28*16*4096}")
        a(f"s_lshl_b32 s60, s{sC}, 7")
    else:
        a(f"s_mul_i32 s{S_WA}, s{S_WAVE}, {28*16*128}")
        a(f"s_mul_i32 s60, s{sC}, {W2R_TILE}")
    a(f"s_add_u32 s{S_WA}, s{S_WA}, s60")
    a(f"s_add_u32 s{S_WB}, s{S_WA}, {8*WROW}")

def gemm_lane_consts(a):
    a("v_lshrrev_b32 v6, 5, v2")
    a("v_and_b32 v7, 31, v2")
    a("v_lshlrev_b32 v10, 13, v6")
    a("v_lshl_add_u32 v10, v7, 4, v10")
    a(f"s_and_b32 s60, s{S_WAVE}, 1")
    a("s_lshl_b32 s60, s60, 9")
    a("v_xor_b32 v8, s60, v10")
    a("v_xor_b32 v9, 512, v8")

def main_loop(a, which, srda, soff, D0):
    NK = 32 if which == 1 else 28
    DR = 14
    ab = lambda s: 128 + 8 * (s % DR)
    issued = [0]
    def issue():
        s = issued[0]
        if s >= NK: return []
        R = ab(s); issued[0] += 1
        return [f"buffer_load_dwordx4 v[{R}:{R+3}], v8, s[{srda}:{srda+3}], s{soff} offen sc1",
                f"buffer_load_dwordx4 v[{R+4}:{R+7}], v9, s[{srda}:{srda+3}], s{soff} offen sc1\ns_add_u32 s{soff}, s{soff}, 16384"]
    for s in range(D0):
        for l in issue(): a(l)
    for s in range(NK):
        a(f"s_waitcnt vmcnt({2*(issued[0] - 1 - s)})")
        nxt = issue() if (issued[0] - s) < DR else []
        R = ab(s); k = 0
        for wt in range(2):
            for at in range(2):
                acc = 64 + 32 * wt + 16 * at
                wq = f"a[{8*s+4*wt}:{8*s+4*wt+3}]"; aq = f"v[{R+4*at}:{R+4*at+3}]"
                cc = "0" if s == 0 else f"v[{acc}:{acc+15}]"
                if which == 1: a(f"v_mfma_f32_32x32x16_bf16 v[{acc}:{acc+15}], {wq}, {aq}, {cc}")
                else: a(f"v_mfma_f32_32x32x16_bf16 v[{acc}:{acc+15}], {aq}, {wq}, {cc}")
                if k == 0 and nxt: a(nxt[0])
                if k == 2 and nxt: a(nxt[1])
                k += 1

def check8(R, T):
    return [f"v_max3_u32 v{T}, v{R}, v{R+1}, v{R+2}", f"v_max3_u32 v{T}, v{T}, v{R+3}, v{R+4}", f"v_max3_u32 v{T}, v{T}, v{R+5}, v{R+6}",
            f"v_max_u32 v{T}, v{T}, v{R+7}", f"v_cmp_eq_u32 vcc, -1, v{T}"]

SPIN_MAX = 0x20000
def probe_spin(a, srd_, vaddr, soff_sgpr, first_wait=None):
    l = newlbl("pr")
    a("s_mov_b32 s61, 0")
    if first_wait is not None:
        a(f"s_waitcnt vmcnt({first_wait})")
        a("v_cmp_eq_u32 vcc, -1, v14")
        a(f"s_cbranch_vccz {l}_ok")
    a.label(l)
    a(f"buffer_load_dword v14, v{vaddr}, s[{srd_}:{srd_+3}], s{soff_sgpr} offen sc1")
    a("s_add_u32 s61, s61, 1")
    a("s_waitcnt vmcnt(0)")
    a("v_cmp_eq_u32 vcc, -1, v14")
    a(f"s_cbranch_vccz {l}_ok")
    a(f"s_cmp_lt_u32 s61, {SPIN_MAX}")
    a(f"s_cbranch_scc1 {l}")
    a.label(l + "_ok")

RETRY = []
def main_loop2(a, which, srda, sbase, D0, shadow=()):
    NK = 32 if which == 1 else 28
    DR = 14
    ab = lambda s: 128 + 8 * (s % DR)
    a(f"s_mov_b32 s73, s{sbase}")
    issued = [0]
    def issue():
        s = issued[0]
        if s >= NK: return []
        R = ab(s); issued[0] += 1
        return [f"buffer_load_dwordx4 v[{R}:{R+3}], v8, s[{srda}:{srda+3}], s73 offen sc1",
                f"buffer_load_dwordx4 v[{R+4}:{R+7}], v9, s[{srda}:{srda+3}], s73 offen sc1\ns_add_u32 s73, s73, 16384"]
    def retry(t):
        lr, lb = newlbl("rt"), newlbl("rb")
        R = ab(t)
        blk = [lr + ":", "s_mov_b32 s61, 0", f"s_add_u32 s62, s{sbase}, {t*16384}", lr + "_l:",
               f"buffer_load_dwordx4 v[{R}:{R+3}], v8, s[{srda}:{srda+3}], s62 offen sc1",
               f"buffer_load_dwordx4 v[{R+4}:{R+7}], v9, s[{srda}:{srda+3}], s62 offen sc1",
               "s_add_u32 s61, s61, 1", "s_waitcnt vmcnt(0)"] + check8(R, 12) + \
              [f"s_cbranch_vccz {lb}", f"s_cmp_lt_u32 s61, {SPIN_MAX}", f"s_cbranch_scc1 {lr}_l", f"s_branch {lb}"]
        RETRY.extend(blk)
        return lr, lb
    for s in range(D0):
        for l in issue(): a(l)
    a(f"s_waitcnt vmcnt({2*(issued[0] - 1)})")
    for l in check8(ab(0), 12): a(l)
    lr, lb = retry(0)
    a(f"s_cbranch_vccnz {lr}")
    a.label(lb)
    for s in range(NK):
        nxt = issue() if (issued[0] - s) < DR and (issued[0] - s) <= D0 else []
        R = ab(s); k = 0
        for wt in range(2):
            for at in range(2):
                acc = 64 + 32 * wt + 16 * at
                wq = f"a[{8*s+4*wt}:{8*s+4*wt+3}]"; aq = f"v[{R+4*at}:{R+4*at+3}]"
                cc = "0" if s == 0 else f"v[{acc}:{acc+15}]"
                if which == 1: a(f"v_mfma_f32_32x32x16_bf16 v[{acc}:{acc+15}], {wq}, {aq}, {cc}")
                else: a(f"v_mfma_f32_32x32x16_bf16 v[{acc}:{acc+15}], {aq}, {wq}, {cc}")
                if k == 0 and nxt: a(nxt[0])
                if k == 1:
                    if nxt: a(nxt[1])
                    if s + 1 < NK:
                        a(f"s_waitcnt vmcnt({2*(issued[0] - 1 - (s + 1))})")
                        for l in check8(ab(s + 1), 12): a(l)
                k += 1
        if s >= 2 and shadow:
            for l in shadow[:4]: a(l)
            shadow = shadow[4:]
        if s + 1 < NK:
            lr, lb = retry(s + 1)
            a("s_nop 2")
            a(f"s_cbranch_vccnz {lr}")
            a.label(lb)

def reduce_write(a):
    a("v_lshlrev_b32 v13, 4, v2")
    for j in (1, 2, 3):
        wt, at = j >> 1, j & 1
        acc = 64 + 32 * wt + 16 * at
        a(f"s_xor_b32 s60, s{S_WAVE}, {j}")
        a(f"s_mul_i32 s60, s60, {3*4096}")
        a(f"s_add_u32 s60, s60, {(j-1)*4096}")
        a(f"v_add_u32 v14, s60, v13")
        for g in range(4):
            a(f"ds_write_b128 v14, v[{acc+4*g}:{acc+4*g+3}] offset:{g*1024}")

def reduce_read(a):
    a(f"s_mul_i32 s60, s{S_WAVE}, {3*4096}")
    a("v_add_u32 v14, s60, v13")
    for j in range(3):
        for g in range(4):
            a(f"ds_read_b128 v[{128+16*j+4*g}:{131+16*j+4*g}], v14 offset:{j*4096+g*1024}")
    P = lambda b, r: f"v[{b+r}:{b+r+1}]"
    a("s_waitcnt lgkmcnt(8)")
    for r in range(0, 16, 2): a(f"v_pk_add_f32 {P(64,r)}, {P(64,r)}, {P(128,r)}")
    a("s_waitcnt lgkmcnt(0)")
    for r in range(0, 16, 2): a(f"v_pk_add_f32 {P(144,r)}, {P(144,r)}, {P(160,r)}")
    for r in range(0, 16, 2): a(f"v_pk_add_f32 {P(128,r)}, {P(64,r)}, {P(144,r)}")

def gelu16(a, X, T):
    a("s_mov_b32 s66, 0x3d372713")
    a("s_mov_b32 s67, 0x3d372713")
    kk = -2.0 * 1.4426950408889634 * 0.7978845608028654
    kb = hex(struct.unpack('<I', struct.pack('<f', kk))[0])
    a(f"s_mov_b32 s68, {kb}"); a(f"s_mov_b32 s69, {kb}")
    P = lambda b, r: f"v[{b+r}:{b+r+1}]"
    for r in range(0, 16, 2): a(f"v_pk_mul_f32 {P(T,r)}, {P(X,r)}, {P(X,r)}")
    for r in range(0, 16, 2): a(f"v_pk_mul_f32 {P(T,r)}, {P(T,r)}, s[66:67]")
    for r in range(0, 16, 2): a(f"v_pk_fma_f32 {P(T,r)}, {P(T,r)}, {P(X,r)}, {P(X,r)}")
    for r in range(0, 16, 2): a(f"v_pk_mul_f32 {P(T,r)}, {P(T,r)}, s[68:69]")
    for r in range(16): a(f"v_exp_f32 v{T+r}, v{T+r}")
    for r in range(16): a(f"v_add_f32 v{T+r}, 1.0, v{T+r}")
    for r in range(16): a(f"v_rcp_f32 v{T+r}, v{T+r}")
    for r in range(0, 16, 2): a(f"v_pk_mul_f32 {P(X,r)}, {P(X,r)}, {P(T,r)}")

def epi1_loads(a):
    a(f"s_lshr_b32 s61, s{S_WAVE}, 1")
    a(f"s_lshl_b32 s72, s{S_FJ}, 6")
    a("s_lshl_b32 s64, s61, 5")
    a("s_add_u32 s72, s72, s64")
    a("s_lshl_b32 s64, s72, 1")
    a("v_lshlrev_b32 v15, 3, v6")
    a("v_add_u32 v15, s64, v15")
    for g in range(4):
        a(f"global_load_dwordx2 v[{20+2*g}:{21+2*g}], v15, s[{S_B1}:{S_B1+1}] offset:{16*g}")

def epi1_shadow():
    l = []
    for g in range(4):
        l += [f"v_lshlrev_b32 v{28+4*g}, 16, v{20+2*g}", f"v_and_b32 v{29+4*g}, 0xffff0000, v{20+2*g}",
              f"v_lshlrev_b32 v{30+4*g}, 16, v{21+2*g}", f"v_and_b32 v{31+4*g}, 0xffff0000, v{21+2*g}"]
    return l

def epi1(a):
    P = lambda b, r: f"v[{b+r}:{b+r+1}]"
    a("s_lshr_b32 s64, s72, 4")
    a("s_lshl_b32 s64, s64, 14")
    a(f"s_lshl_b32 s65, s{S_T1}, 10")
    a("s_add_u32 s64, s64, s65")
    a(f"s_and_b32 s62, s{S_WAVE}, 1")
    a("s_lshl_b32 s65, s62, 9")
    a("s_add_u32 s64, s64, s65")
    a("s_add_u32 s65, s64, 16384")
    reduce_read(a)
    for r in range(0, 16, 2): a(f"v_cvt_pk_bf16_f32 v{144+r//2}, v{128+r}, v{129+r}")
    for r in range(0, 16, 2):
        a(f"v_lshlrev_b32 v{128+r}, 16, v{144+r//2}")
        a(f"v_and_b32 v{129+r}, 0xffff0000, v{144+r//2}")
    for r in range(0, 16, 2): a(f"v_pk_add_f32 {P(128,r)}, {P(128,r)}, {P(28,r)}")
    for r in range(0, 16, 2): a(f"v_cvt_pk_bf16_f32 v{144+r//2}, v{128+r}, v{129+r}")
    for r in range(0, 16, 2):
        a(f"v_lshlrev_b32 v{128+r}, 16, v{144+r//2}")
        a(f"v_and_b32 v{129+r}, 0xffff0000, v{144+r//2}")
    gelu16(a, 128, 160)
    for r in range(0, 16, 2): a(f"v_cvt_pk_bf16_f32 v{144+r//2}, v{128+r}, v{129+r}")
    a("; GSTORE")
    a(f"buffer_store_dwordx4 v[144:147], v10, s[{SRD_G2}:{SRD_G2+3}], s64 offen sc1")
    a(f"buffer_store_dwordx4 v[148:151], v10, s[{SRD_G2}:{SRD_G2+3}], s65 offen sc1")

OT = 131072
def epi2_loads(a):
    a(f"s_lshr_b32 s61, s{S_WAVE}, 1")
    a(f"s_lshl_b32 s63, s{S_SJ}, 6")
    a("s_lshl_b32 s64, s61, 5")
    a("s_add_u32 s64, s64, s63")
    a("v_add_u32 v15, s64, v7")
    a("v_lshlrev_b32 v17, 1, v15")
    a(f"global_load_ushort v18, v17, s[{S_B2}:{S_B2+1}]")
    a("v_lshrrev_b32 v15, 3, v0")
    a("v_add_u32 v15, s63, v15")
    a("v_lshlrev_b32 v16, 10, v15")
    a("v_and_b32 v15, 7, v0")
    a("v_lshl_add_u32 v16, v15, 4, v16")
    a(f"s_lshl_b32 s70, s{S_T2}, 7")
    a("s_add_u32 s74, s70, 32768")
    a(f"buffer_load_dwordx4 v[20:23], v16, s[{SRD_H}:{SRD_H+3}], s70 offen sc1")
    a(f"buffer_load_dwordx4 v[24:27], v16, s[{SRD_H}:{SRD_H+3}], s74 offen sc1")

def epi2_shadow():
    l = ["v_lshlrev_b32 v18, 16, v18", "v_mov_b32 v19, v18"]
    for i in range(8):
        l += [f"v_lshlrev_b32 v{28+2*i}, 16, v{20+i}", f"v_and_b32 v{29+2*i}, 0xffff0000, v{20+i}"]
    l += [f"s_lshr_b32 s75, s{S_WAVE}, 1", "s_lshl_b32 s75, s75, 5", "v_add_u32 v44, s75, v7", "v_mul_u32_u24 v44, 144, v44", "v_lshl_add_u32 v44, v6, 6, v44",
          f"s_and_b32 s75, s{S_WAVE}, 1", "s_lshl_b32 s75, s75, 3", f"s_add_u32 s75, s75, {OT}", "v_add_u32 v44, s75, v44",
          "v_lshrrev_b32 v45, 3, v0", "v_mul_u32_u24 v45, 144, v45", "v_and_b32 v46, 7, v0", "v_lshl_add_u32 v45, v46, 4, v45", f"v_add_u32 v45, {OT}, v45"]
    return l

def epi2(a):
    P = lambda b, r: f"v[{b+r}:{b+r+1}]"
    reduce_read(a)
    for r in range(4):
        a(f"v_cvt_pk_bf16_f32 v{144+2*r}, v{128+r}, v{132+r}")
        a(f"v_cvt_pk_bf16_f32 v{145+2*r}, v{136+r}, v{140+r}")
    for i in range(8):
        a(f"v_lshlrev_b32 v{160+2*i}, 16, v{144+i}")
        a(f"v_and_b32 v{161+2*i}, 0xffff0000, v{144+i}")
    for r in range(0, 16, 2): a(f"v_pk_add_f32 {P(160,r)}, {P(160,r)}, v[18:19]")
    for i in range(8): a(f"v_cvt_pk_bf16_f32 v{144+i}, v{160+2*i}, v{161+2*i}")
    for r in range(4): a(f"ds_write_b64 v44, v[{144+2*r}:{145+2*r}] offset:{16*r}")
    a("s_waitcnt lgkmcnt(0)")
    a("s_barrier")
    a("ds_read_b128 v[144:147], v45")
    a(f"ds_read_b128 v[148:151], v45 offset:{32*144}")
    a("s_waitcnt lgkmcnt(0)")
    for i in range(8):
        a(f"v_lshlrev_b32 v{160+2*i}, 16, v{144+i}")
        a(f"v_and_b32 v{161+2*i}, 0xffff0000, v{144+i}")
    for r in range(0, 16, 2): a(f"v_pk_add_f32 {P(160,r)}, {P(160,r)}, {P(28,r)}")
    for i in range(8): a(f"v_cvt_pk_bf16_f32 v{144+i}, v{160+2*i}, v{161+2*i}")
    a(f"buffer_store_dwordx4 v[144:147], v16, s[{SRD_OUT}:{SRD_OUT+3}], s70 offen {OUTMOD}")
    a(f"buffer_store_dwordx4 v[148:151], v16, s[{SRD_OUT}:{SRD_OUT+3}], s74 offen {OUTMOD}")

D0_G1, D0_G2 = 5, 5
NPRE = 14
NOCOPY = True
RETOUCH = True
RETOUCH0 = True
OUTMOD = 'sc1'
NOBGCONV = False
TOUCH = True
SJROT = 0
TOUCHREV = False
REMAP = False
ALIGN = True
CODEPF = True
def gen_fused(a):
    kernel_header(a, KNAME)
    stamp_begin(a)
    if DBGST is not None or DIAG_THR: a("s_memrealtime s[98:99]")
    a("s_cmp_ge_u32 s2, 256")
    a("s_cbranch_scc1 L_exit")
    if REMAP:
        a("s_and_b32 s4, s2, 7"); a("s_lshl_b32 s4, s4, 5"); a("s_lshr_b32 s2, s2, 3"); a("s_or_b32 s2, s2, s4")
    prologue(a)
    ln1(a)
    st(a, "LN1 done (stores issued)", 250)
    a("s_and_b32 s60, s2, 3")
    a("s_lshl_b32 s60, s60, 6")
    arrive(a, 8, 60, lo_only=True)
    st(a, "B1 arrived", 250)
    a(f"s_waitcnt vmcnt({min(len(HIQ), 2) if False else len(HIQ)})")
    bulk(a, "P2")
    kgen(a)
    st(a, "Kgen done", 250)
    ring_base(a, 20480, RING_A)
    woff_init(a, 1, S_FJ)
    conv_u_writes(a, 0)
    conv_main(a)
    st(a, "conv epilogue done (stores issued)")
    lw, lw2 = newlbl("ws"), newlbl("ws")
    a(f"s_cmp_lt_u32 s{S_WAVE}, 2")
    a(f"s_cbranch_scc1 {lw}")
    a("s_waitcnt vmcnt(0)")
    a(f"s_branch {lw2}")
    a.label(lw)
    a("s_waitcnt vmcnt(4)")
    lq = newlbl("pq")
    a(f"s_cmp_lg_u32 s{S_WAVE}, 0")
    a(f"s_cbranch_scc1 {lw2}")
    a("v_cmp_gt_u32 vcc, 32, v51")
    a(f"s_cbranch_vccz {lw2}")
    a(f"s_mov_b32 s60, {SYNC_OFF + 8*128}")
    poll(a, 6, 60, 8, 7, 32)
    a.label(lw2)
    tr_to_acc(a, 1, range(0, 10), 0)
    a("s_waitcnt lgkmcnt(0)")
    a("s_barrier")
    ring_base(a, 28672, 25600)
    ln2_addr(a)
    dma_issue(a, 1, 8, 0)
    ln2_issue(a)
    dma_issue(a, 1, 6, 8)
    st(a, "w1 DMA B issued")
    ln2_loads(a, 12)
    st(a, "YA ready")
    if NOCOPY and RETOUCH0:
        a(f"s_mul_i32 s60, s{S_WAVE}, 448")
        a(f"s_and_b32 s61, s{S_T2}, 3")
        a("s_mul_i32 s61, s61, 56")
        a("s_add_u32 s60, s60, s61")
        a("v_min_u32 v13, 55, v2")
        a("v_add_u32 v13, s60, v13")
        a("v_lshlrev_b32 v13, 12, v13")
        a(f"s_lshl_b32 s60, s{S_SJ}, 7")
        a(f"buffer_load_dword a199, v13, s[{SRD_W2}:{SRD_W2+3}], s60 offen")
    a(f"v_subrev_u32 v{V_PW}, {PL}, v{V_PW}")
    a(f"v_subrev_u32 v{V_PR}, {PL}, v{V_PR}")
    ln2_planes_in(a)
    a("s_waitcnt lgkmcnt(0)")
    a("s_barrier")
    def trgrp(sidx, slot, va=246, vb=247, rho=512):
        o = slot * 2048
        return [f"ds_read_b64_tr_b16 a[{8*sidx}:{8*sidx+1}], v{va} offset:{o}", f"ds_read_b64_tr_b16 a[{8*sidx+2}:{8*sidx+3}], v{va} offset:{o+rho}",
                f"ds_read_b64_tr_b16 a[{8*sidx+4}:{8*sidx+5}], v{vb} offset:{o}", f"ds_read_b64_tr_b16 a[{8*sidx+6}:{8*sidx+7}], v{vb} offset:{o+rho}"]
    grp = [trgrp(10 + i, i) for i in range(8)]
    d2 = dma_groups(1, 8, 0)
    d2[0] = ["s_waitcnt lgkmcnt(0)"] + d2[0]
    grp2 = [trgrp(18 + i, 8 + i) for i in range(6)]
    mix = list(grp)
    k2 = 0
    for i, g_ in enumerate(d2):
        mix.append(g_)
        if i % 2 == 1 and k2 < len(grp2): mix.append(grp2[k2]); k2 += 1
    mix += grp2[k2:]
    with_bg(a, lambda: ln2_compute(a), mix, skip=14, stride=8, before="BGSTOP")
    st(a, "LN2 done (stores issued)")
    for i in range(24, 32):
        for l in trgrp(i, i - 24): a(l)
        if i % 3 == 2: a("s_waitcnt lgkmcnt(4)")
    a(f"s_mul_i32 s71, s{S_WAVE}, {32*16384}")
    a(f"s_lshl_b32 s60, s{S_T1}, 10")
    a("s_add_u32 s71, s71, s60")
    a("v_lshlrev_b32 v15, 13, v2")
    a("v_add_u32 v15, 1020, v15")
    gemm_lane_consts(a)
    dma_setup(a, 2)
    a("s_waitcnt lgkmcnt(0)")
    a("s_barrier")
    ring_base(a, 28672, RED_BYTES)
    woff_init(a, 2, S_SJ)
    dma_issue(a, 2, NPRE - 5, 0)
    a(f"buffer_load_dword v14, v15, s[{SRD_HN}:{SRD_HN+3}], s71 offen sc1")
    dma_issue(a, 2, 5, NPRE - 5)
    if NOCOPY and RETOUCH:
        a(f"s_mul_i32 s60, s{S_WAVE}, 448")
        a(f"s_and_b32 s61, s{S_T2}, 3")
        a("s_mul_i32 s61, s61, 56")
        a("s_add_u32 s60, s60, s61")
        a("s_add_u32 s60, s60, 224")
        a("v_min_u32 v13, 55, v2")
        a("v_add_u32 v13, s60, v13")
        a("v_lshlrev_b32 v13, 12, v13")
        a(f"s_lshl_b32 s60, s{S_SJ}, 7")
        a(f"buffer_load_dword v11, v13, s[{SRD_W2}:{SRD_W2+3}], s60 offen")
    st(a, "w2 DMA A issued")
    a("s_cmp_ge_u32 s2, 224")
    a("s_cbranch_scc1 L_skipG1")
    probe_spin(a, SRD_HN, 15, 71, first_wait=(11 if (NOCOPY and RETOUCH) else 10))
    st(a, "HN probe ok")
    epi1_loads(a)
    a("s_waitcnt lgkmcnt(0)")
    a("s_barrier")
    main_loop2(a, 1, SRD_HN, 71, D0_G1, shadow=epi1_shadow())
    st(a, "G1 main done")
    reduce_write(a)
    tr_to_acc(a, 2, range(NPRE), 0)
    a("s_waitcnt lgkmcnt(0)")
    a("s_barrier")
    g = dma_groups(2, 14, 0)
    with_bg(a, lambda: epi1(a), g[:8], skip=30, stride=14, before="GSTORE")
    for grp in g[8:]:
        for l in grp: a(l)
    st(a, "epi1 done (stores issued)")
    dma_issue(a, 2, 28 - NPRE - 14, 14) if 28 - NPRE - 14 > 0 else None
    a("s_branch L_stage2")
    a.label("L_skipG1")
    a("s_waitcnt vmcnt(0) lgkmcnt(0)")
    tr_to_acc(a, 2, range(NPRE), 0)
    a("s_waitcnt lgkmcnt(0)")
    dma_issue(a, 2, 28 - NPRE, 0)
    a.label("L_stage2")
    a(f"s_mul_i32 s71, s{S_WAVE}, {28*16384}")
    a(f"s_lshl_b32 s60, s{S_T2}, 10")
    a("s_add_u32 s71, s71, s60")
    a("v_min_u32 v15, 55, v2")
    a("v_lshlrev_b32 v15, 13, v15")
    a("v_add_u32 v15, 1020, v15")
    a("s_waitcnt vmcnt(0)")
    a(f"buffer_load_dword v14, v15, s[{SRD_G2}:{SRD_G2+3}], s71 offen sc1")
    tr_to_acc(a, 2, range(NPRE, 28), 0)
    st(a, "w2 staged")
    probe_spin(a, SRD_G2, 15, 71, first_wait=0)
    st(a, "G probe ok")
    epi2_loads(a)
    a("s_waitcnt lgkmcnt(0)")
    a("s_barrier")
    main_loop2(a, 2, SRD_G2, 71, D0_G2, shadow=epi2_shadow())
    st(a, "G2 main done")
    reduce_write(a)
    a("s_waitcnt lgkmcnt(0)")
    a("s_barrier")
    epi2(a)
    a("s_waitcnt vmcnt(0)") if STAMPON() else None
    st(a, "end", final=True)
    if DIAG_THR:
        a("s_cmp_lg_u32 s2, 0")
        a("s_cbranch_scc1 L_exit")
        a("s_waitcnt vmcnt(0)")
        a("s_memrealtime s[96:97]")
        a("s_waitcnt lgkmcnt(0)")
        a("s_sub_u32 s94, s96, s98")
        a(f"s_cmp_lt_u32 s94, {DIAG_THR}")
        a("s_cbranch_scc1 L_exit")
        a("s_add_u32 s95, s96, 6000")
        a.label("L_diag")
        a("s_memrealtime s[96:97]")
        a("s_waitcnt lgkmcnt(0)")
        a("s_sub_u32 s94, s95, s96")
        a("s_cmp_gt_i32 s94, 0")
        a("s_cbranch_scc1 L_diag")
    a.label("L_exit")
    a("s_endpgm")
    for l in RETRY: a.lines.append(l)
    a.label("L_code_end")
    a("s_endpgm")
    return kernel_desc(KNAME, 512, 100, accum=256)

def touch_setup(a):
    a("s_and_b32 s60, s2, 7")
    a("s_lshr_b32 s60, s60, 1")
    a("s_lshr_b32 s61, s2, 3")
    a(f"s_and_b32 s62, s{S_WAVE}, 1")
    a("s_lshl_b32 s62, s62, 9")
    a("s_lshl_b32 s63, s61, 6")
    a(f"v_add_u32 v{V_TW1}, s63, v2")
    a(f"v_mul_u32_u24 v{V_TW1}, 3584, v{V_TW1}")
    a("s_mul_i32 s63, s60, 896")
    a("s_add_u32 s63, s63, s62")
    a(f"v_add_u32 v{V_TW1}, s63, v{V_TW1}")
    a("s_mul_i32 s79, s2, 28672")
    a(f"s_and_b32 s61, s{S_WAVE}, 1")
    a("s_mul_i32 s61, s61, 14336")
    a("s_add_u32 s79, s79, s61")

BULK = {"P0": ["T0"], "P1": ["T1"], "P2": ["F0", "F1", "T2"], "P3": ["F2", "F3", "T3"], "P5": ["F4", "F5"], "c4": ["U0"], "c7": ["U1"], "c10": ["U2"], "c13": ["U3"]}
HIQ = []
def hi_younger(tag):
    idx = max(i for i, t in enumerate(HIQ) if t == tag)
    return len(HIQ) - 1 - idx
def bulk(a, slot):
    ops = BULK.get(slot, [])
    if not ops: return
    for op in ops:
        if op[0] == "F":
            prefill_op(a, int(op[1:])); HIQ.append(op)
    ops = [o for o in ops if o[0] != "F"]
    if not TOUCH: ops = [o for o in ops if o[0] != "T"]
    if not ops: return
    l = newlbl("bk")
    a(f"s_cmp_lt_u32 s{S_WAVE}, 2")
    a(f"s_cbranch_scc1 {l}")
    for op in ops:
        k = int(op[1:])
        if op[0] == "T":
            a(f"buffer_load_dword a199, v{V_TW1}, s[{SRD_W1}:{SRD_W1+3}], 0 offen offset:{128*k}"); HIQ.append(op)
        elif op[0] == "U":
            if k == 0:
                a("s_and_b32 s74, s2, 7"); a("s_lshr_b32 s74, s74, 1"); a("s_lshl_b32 s74, s74, 10")
                a(f"s_and_b32 s75, s{S_WAVE}, 1"); a("s_lshl_b32 s75, s75, 9"); a("s_add_u32 s74, s74, s75")
                a("s_lshr_b32 s75, s2, 3"); a("s_mul_i32 s75, s75, 56")
                a(f"v_min_u32 v{V_TW2}, 55, v2"); a(f"v_add_u32 v{V_TW2}, s75, v{V_TW2}"); a(f"v_lshlrev_b32 v{V_TW2}, 12, v{V_TW2}"); a(f"v_add_u32 v{V_TW2}, s74, v{V_TW2}")
            a(f"buffer_load_dword a199, v{V_TW2}, s[{SRD_W2}:{SRD_W2+3}], 0 offen offset:{128*k}"); HIQ.append(op)
        elif op[0] == "C":
            a("v_lshlrev_b32 v255, 4, v2")
            for i in (2 * k, 2 * k + 1):
                a(f"buffer_load_dwordx4 a[{A_CP+4*i}:{A_CP+4*i+3}], v255, s[{SRD_W2}:{SRD_W2+3}], s79 offen offset:{(i%4)*1024}")
                if i % 4 == 3: a("s_add_u32 s79, s79, 4096")
                HIQ.append("C")
        else:
            if k == 0:
                a(f"s_waitcnt vmcnt({hi_younger('C')})")
                w2copy_dst(a)
            for x in w2copy_store(a, k): a(x)
            HIQ.append("S")
    a.label(l)

A_CP = 200
def w2copy_dst(a):
    a("v_lshrrev_b32 v245, 3, v2")
    a(f"s_mov_b32 s74, {W2R_TILE}")
    a("v_mul_lo_u32 v245, v245, s74")
    a(f"v_and_b32 v{V_TW2}, 7, v2")
    a(f"v_lshl_add_u32 v{V_TW2}, v{V_TW2}, 4, v245")
    a(f"s_and_b32 s69, s{S_WAVE}, 1")
    a("s_mul_i32 s68, s2, 896")

def w2copy_store(a, i):
    off = lambda m: (m % 4) * 8 * W2R_TILE + (m // 4) * 128
    return [f"s_mov_b32 s74, {off(14 + i) - off(i)}",
            f"s_mul_i32 s74, s74, s69",
            f"s_add_u32 s74, s74, s68",
            f"s_add_u32 s74, s74, {off(i)}",
            f"buffer_store_dwordx4 a[{A_CP+4*i}:{A_CP+4*i+3}], v{V_TW2}, s[{SRD_W2R}:{SRD_W2R+3}], s74 offen sc1"]

def build(path):
    a = Asm()
    hdr = open("cdna_kernels/" + NAME + ".s.ref").read().split("; Override launch geometry")[0]
    txt = hdr + f"; @launch grid=(256,1,1) block=(256,1,1) lds={LDS_TOTAL}\n" + '.amdgcn_target "amdgcn-amd-amdhsa--gfx950"\n'
    d = gen_fused(a)
    body = a.finalize()
    if ALIGN:
        import asmlib
        body, np_, nn_ = asmlib.align8(body)
        print("align8: promoted", np_, "nops", nn_)
    txt += body + d
    open(path, "w").write(txt)
    open(path + ".names", "w").write("".join(f"{k} {v}\n" for k, v in ST_NAMES.items()))

if __name__ == "__main__":
    import sys, common
    if "--stamp" in sys.argv:
        common.STAMP = True; sys.argv.remove("--stamp")
    if "--notouch" in sys.argv: TOUCH = False
    if "--remap" in sys.argv: REMAP = True
    for x in sys.argv:
        if x.startswith("--bulk="): BULK = eval(x[7:])
        if x.startswith("--thr="): DIAG_THR = int(x[6:])
        if x == "--nobgconv": NOBGCONV = True
        if x == "--nort0": RETOUCH0 = False
        if x.startswith("--outmod="): OUTMOD = x[9:]
        if x == "--nocopy":
            NOCOPY = True
            BULK = {"P0": ["T0"], "P1": ["T1"], "P2": ["F0", "F1", "T2"], "P3": ["F2", "F3", "T3"], "P5": ["F4", "F5"], "c4": ["U0"], "c7": ["U1"], "c10": ["U2"], "c13": ["U3"]}
        if x.startswith("--d0="): D0_G1 = D0_G2 = int(x[5:])
    if "--sjrot" in sys.argv: SJROT = 2
    if "--touchrev" in sys.argv: TOUCHREV = True
    if "--noalign" in sys.argv: ALIGN = False
    if "--nocodepf" in sys.argv: CODEPF = False
    if "--dbgst" in sys.argv:
        DBGST = ["LN1 done (stores issued)", "B1 arrived", "Kgen done", "B1 passed", "conv start (U in LDS)", "conv main done", "B2 arrived", "B2 passed",
                 "LN2 done (stores issued)", "B3 passed", "G1 main done", "B4 arrived", "B4 passed", "G2 main done", "end"]
    build(sys.argv[1])
```

```python
from common import *
from k1 import cmul, wave_max, G_ROW, H_BASE, FT_BASE, FT_DUMMY
import struct

KNAME = NAME + "_kernel"
KG_CH = 27984
FT_AREA = 2 * KG_CH
KC_BASE = 0
KC_STRIDE = 4160
KCH = 4 * KC_STRIDE
U_BASE = KC_BASE + 2 * KCH
U_CH = 95 * 80
LDS_TOTAL = 163840
FT_ZERO = 2060
RED_BYTES = 49152
D_RING = 8
S_WAVE, S_Q0 = 10, 11
SRD_X, SRD_U2, SRD_YA, SRD_H, SRD_HN, SRD_G2, SRD_W1, SRD_W2, SRD_OUT = 12, 16, 20, 24, 28, 32, 36, 40, 44
SRD_W2R = 80
S_B1, S_B2 = 48, 50
S_SCALE, S_DSK = 52, 53
S_T1, S_FJ, S_T2, S_SJ = 54, 55, 56, 57
S_WOFF, S_RING = 58, 59
SM, SR = 84, 86
C_B2, C_B3, C_B4 = 0, 8, 16
KIDX = 0
S_TB = 5
VX = 224
V_KROW, V_KA, V_KB, V_KSC, V_KDST = 232, 233, 234, 235, 239
V_CA, V_CB = 248, 249
V_PW, V_PR, V_US = 252, 253, 254
V_TW1, V_TW2 = 1, 30
PL = 67744
RING_A = 76960
RED_CONV = 48640
PL1 = PL2 = 0
YB = 16384

ST_NAMES = {}
DIAG_THR = 0
DBGST = None
_st = [2]
def st(a, name, vt=60, final=False):
    if DBGST is not None:
        if name in DBGST:
            k = DBGST.index(name) + 1
            l = newlbl("ds")
            a("s_memrealtime s[96:97]")
            a(f"s_or_b32 s94, s2, s{S_WAVE}")
            a("s_cmp_lg_u32 s94, 0")
            a("s_waitcnt lgkmcnt(0)")
            a(f"s_cbranch_scc1 {l}")
            a("s_sub_u32 s96, s96, s98")
            a(f"v_mov_b32 v{vt}, {4*k}")
            a(f"v_mov_b32 v{vt+1}, s96")
            a(f"global_store_dword v{vt}, v{vt+1}, s[8:9]")
            a.label(l)
        return
    slot = 1 if final else _st[0]
    if not final: _st[0] += 1
    ST_NAMES[slot] = name
    stamp(a, KIDX, slot, 6, vt)

def evalE(a, D, v, zr, zi, t, conj=False):
    bits = struct.unpack('<I', struct.pack('<f', float(v)))[0]
    a(f"s_mov_b32 s78, {hex(bits)}")
    a(f"v_mul_f32 v{t}, s78, v{zr}")
    a(f"v_mul_f32 v{t+1}, s78, v{zi}")
    a(f"v_exp_f32 v{t}, v{t}")
    a(f"v_rndne_f32 v{t+2}, v{t+1}")
    a(f"v_sub_f32 v{t+1}, v{t+1}, v{t+2}")
    a(f"v_cos_f32 v{D}, v{t+1}")
    a(f"v_sin_f32 v{D+1}, v{t+1}")
    a(f"v_mul_f32 v{D}, v{D}, v{t}")
    if conj: a(f"v_mul_f32 v{D+1}, -v{D+1}, v{t}")
    else: a(f"v_mul_f32 v{D+1}, v{D+1}, v{t}")

def pos2chan(a, sd, sq, t):
    a(f"s_and_b32 s{sd}, s{sq}, 0x1c0")
    a(f"s_and_b32 s{t}, s{sq}, 7")
    a(f"s_lshl_b32 s{t}, s{t}, 3")
    a(f"s_or_b32 s{sd}, s{sd}, s{t}")
    a(f"s_lshr_b32 s{t}, s{sq}, 3")
    a(f"s_and_b32 s{t}, s{t}, 7")
    a(f"s_or_b32 s{sd}, s{sd}, s{t}")

_lbl = [0]
def newlbl(p):
    _lbl[0] += 1
    return f"L_{p}{_lbl[0]}"

def arrive(a, base_sgpr_pair, off_sgpr, lo_only=False):
    if lo_only:
        l0 = newlbl("ad")
        a(f"s_cmp_ge_u32 s{S_WAVE}, 2")
        a(f"s_cbranch_scc1 {l0}")
        a("s_waitcnt vmcnt(0)")
        a.label(l0)
    else:
        a("s_waitcnt vmcnt(0)")
    a("s_barrier")
    l = newlbl("arr")
    a(f"s_cmp_lg_u32 s{S_WAVE}, 0")
    a(f"s_cbranch_scc1 {l}")
    a(f"v_mov_b32 v13, s{off_sgpr}")
    a("v_mov_b32 v14, 1")
    a("s_mov_b64 s[62:63], exec")
    a("s_mov_b64 exec, 1")
    a(f"global_atomic_add v13, v14, s[{base_sgpr_pair}:{base_sgpr_pair+1}] sc1")
    a("s_mov_b64 exec, s[62:63]")
    a.label(l)

def poll(a, base_sgpr_pair, off_sgpr, n, stride_log2, target):
    l = newlbl("poll")
    a(f"v_and_b32 v13, {n-1}, v2")
    a(f"v_lshlrev_b32 v13, {stride_log2}, v13")
    a(f"v_add_u32 v13, s{off_sgpr}, v13")
    a("s_mov_b32 s61, 0")
    a.label(l)
    a(f"global_load_dword v14, v13, s[{base_sgpr_pair}:{base_sgpr_pair+1}] sc1")
    a("s_waitcnt vmcnt(0)")
    a(f"v_cmp_gt_u32 vcc, {target}, v14")
    a("s_add_u32 s61, s61, 1")
    a(f"s_cbranch_vccz {l}_done")
    a("s_cmp_lt_u32 s61, 0x40000")
    a(f"s_cbranch_scc1 {l}")
    a.label(l + "_done")

def poll_wg(a, base_sgpr_pair, off_sgpr, n, stride_log2, target):
    l = newlbl("pw")
    a(f"s_cmp_lg_u32 s{S_WAVE}, 0")
    a(f"s_cbranch_scc1 {l}")
    poll(a, base_sgpr_pair, off_sgpr, n, stride_log2, target)
    a.label(l)
    a("s_barrier")

def prologue(a):
    a("s_load_dwordx16 s[64:79], s[0:1], 0")
    a("s_load_dwordx2 s[88:89], s[0:1], 64")
    a("s_load_dwordx4 s[80:83], s[0:1], 80")
    a("s_load_dwordx4 s[84:87], s[0:1], 96")
    a("s_load_dwordx4 s[60:63], s[0:1], 112")
    a("s_load_dwordx2 s[6:7], s[0:1], 128")
    a("v_lshrrev_b32 v1, 6, v0")
    a("v_and_b32 v2, 63, v0")
    a(f"v_readfirstlane_b32 s{S_WAVE}, v1")
    a("s_and_b32 s54, s2, 7")
    a("s_lshl_b32 s54, s54, 5")
    a("s_lshr_b32 s55, s2, 3")
    a(f"s_add_u32 s{S_TB}, s54, s55")
    a(f"s_lshl_b32 s{S_Q0}, s{S_TB}, 1")
    a(f"s_lshr_b32 s55, s{S_WAVE}, 1")
    a(f"s_add_u32 s56, s{S_Q0}, s55")
    pos2chan(a, 57, 56, 58)
    a("v_lshlrev_b32 v3, 4, v2")
    a(f"s_lshl_b32 s58, s{S_TB}, 13")
    a(f"s_lshl_b32 s59, s{S_WAVE}, 11")
    a("s_add_u32 s59, s59, s58")
    a(f"s_and_b32 s54, s{S_WAVE}, 1")
    a("s_lshl_b32 s54, s54, 7")
    a("s_lshl_b32 s55, s57, 8")
    a("s_add_u32 s54, s54, s55")
    a("v_lshl_add_u32 v12, v2, 1, s54")
    a("v_xor_b32 v13, 128, v12")
    a("s_waitcnt lgkmcnt(0)")
    stamp(a, KIDX, 0, 6, 250, first=True)
    srd(a, SRD_X, 64, 65, 0, 0x200000)
    a(f"buffer_load_dwordx4 v[{VX}:{VX+3}], v3, s[{SRD_X}:{SRD_X+3}], s59 offen")
    a(f"buffer_load_dwordx4 v[{VX+4}:{VX+7}], v3, s[{SRD_X}:{SRD_X+3}], s59 offen offset:1024")
    a("global_load_ushort v200, v12, s[66:67]")
    a("global_load_ushort v201, v12, s[68:69]")
    a("global_load_ushort v202, v12, s[70:71]")
    a("global_load_ushort v203, v12, s[72:73]")
    a("global_load_ushort v204, v12, s[74:75]")
    a("global_load_ushort v205, v12, s[76:77]")
    a("global_load_ushort v206, v13, s[70:71]")
    a("global_load_ushort v207, v13, s[72:73]")
    a("global_load_ushort v208, v13, s[74:75]")
    a("global_load_ushort v209, v13, s[76:77]")
    a("s_lshl_b32 s54, s57, 1")
    a("s_and_b32 s54, s54, 0xfffffffc")
    a("s_load_dword s52, s[78:79], s54")
    a("s_load_dword s53, s[88:89], s54")
    a("s_and_b32 s91, s57, 1")
    a(f"s_mov_b32 s8, s62"); a("s_mov_b32 s9, s63")
    srd(a, SRD_OUT, 60, 61, 0, 0x200000)
    srd(a, SRD_U2, 6, 7, U2_OFF, U2_SZ)
    srd(a, SRD_YA, 6, 7, YA_OFF, YA_SZ)
    srd(a, SRD_H, 6, 7, H_OFF, H_SZ)
    srd(a, SRD_HN, 6, 7, HN_OFF, HN_SZ)
    srd(a, SRD_G2, 6, 7, G2_OFF, G2_SZ)
    srd(a, SRD_W1, 80, 81, 0, 2048 * 3584)
    srd(a, SRD_W2, 84, 85, 0, 2048 * 3584)
    a(f"s_mov_b32 s{S_B1}, s82"); a(f"s_mov_b32 s{S_B1+1}, s83")
    a(f"s_mov_b32 s{S_B2}, s86"); a(f"s_mov_b32 s{S_B2+1}, s87")
    srd(a, SRD_W2R, 6, 7, W2R_OFF, W2R_SZ)
    l = newlbl("z")
    a(f"s_or_b32 s54, s2, s{S_WAVE}")
    a("s_cmp_lg_u32 s54, 0")
    a(f"s_cbranch_scc1 {l}")
    a("v_lshlrev_b32 v14, 7, v2")
    a(f"v_add_u32 v14, {SYNC_OFF}, v14")
    a("v_mov_b32 v15, 0")
    a("global_store_dword v14, v15, s[6:7] sc1")
    a.label(l)
    if CODEPF:
        l = newlbl("cpf")
        a(f"s_cmp_lg_u32 s{S_WAVE}, 3")
        a(f"s_cbranch_scc1 {l}")
        a("s_getpc_b64 s[54:55]")
        a.label("L_pcbase")
        a("v_lshlrev_b32 v14, 7, v2")
        a("s_mov_b32 s56, L_code_end-L_pcbase")
        for k in range(5):
            a("v_min_u32 v15, s56, v14")
            a(f"global_load_dword a198, v15, s[54:55]")
            if k < 4: a("v_add_u32 v14, 8192, v14")
        a.label(l)
    touch_setup(a)
    bulk(a, "P0")
    precompute(a)
    a("s_cmp_eq_u32 s91, 1")
    a("s_cselect_b32 s60, 0, 16")
    a("s_waitcnt lgkmcnt(0)")
    a("s_lshl_b32 s52, s52, s60"); a("s_and_b32 s52, s52, 0xffff0000")
    a("s_lshl_b32 s53, s53, s60"); a("s_and_b32 s53, s53, 0xffff0000")

V_ONES = 216
def prefill_op(a, k):
    if k == 0:
        for r in range(V_ONES, V_ONES + 4): a(f"v_mov_b32 v{r}, -1")
    D = f"v[{V_ONES}:{V_ONES+3}]"
    if k < 4:
        a(f"s_lshl_b32 s74, s{S_TB}, 13")
        if k % 2: a("s_add_u32 s74, s74, 4096")
        sr = SRD_YA if k < 2 else SRD_HN
        a(f"buffer_store_dwordx4 {D}, v{V_US}, s[{sr}:{sr+3}], s74 offen sc1")
    else:
        a(f"s_lshl_b32 s74, s{S_FJ}, 16")
        a(f"s_lshl_b32 s75, s{S_WAVE}, 13")
        a("s_add_u32 s74, s74, s75")
        a(f"s_lshl_b32 s75, s{S_T1}, 10")
        a("s_add_u32 s74, s74, s75")
        if k == 5: a("s_add_u32 s74, s74, 32768")
        a("v_lshlrev_b32 v220, 4, v2")
        a(f"buffer_store_dwordx4 {D}, v220, s[{SRD_G2}:{SRD_G2+3}], s74 offen sc1")

def precompute(a):
    a("v_lshrrev_b32 v4, 3, v2")
    a("v_mul_u32_u24 v4, 72, v4")
    a("v_and_b32 v5, 7, v2")
    a("v_add_u32 v4, v4, v5")
    a(f"s_mul_i32 s54, s{S_WAVE}, 576")
    a("v_add_u32 v4, s54, v4")
    a(f"v_lshlrev_b32 v{V_PW}, 2, v4")
    a(f"v_add_u32 v{V_PW}, {PL}, v{V_PW}")
    a(f"s_mul_i32 s54, s{S_WAVE}, 72")
    a("v_add_u32 v4, s54, v2")
    a(f"v_lshlrev_b32 v{V_PR}, 2, v4")
    a(f"v_add_u32 v{V_PR}, {PL}, v{V_PR}")
    a(f"v_lshlrev_b32 v{V_US}, 4, v0")
    a(f"s_lshr_b32 s60, s{S_WAVE}, 1")
    a(f"s_mul_i32 s60, s60, {KG_CH}")
    a(f"s_and_b32 s62, s{S_WAVE}, 1")
    a("s_lshl_b32 s61, s62, 8")
    a("s_add_u32 s61, s61, s60")
    a(f"v_lshl_add_u32 v{V_KROW}, v2, 2, s61")
    a("v_and_b32 v7, 15, v2")
    a("v_lshrrev_b32 v8, 4, v2")
    a(f"v_mul_u32_u24 v9, {G_ROW}, v7")
    a("v_lshl_add_u32 v9, v8, 4, v9")
    a(f"s_mul_i32 s63, s62, {16*G_ROW}")
    a("s_add_u32 s63, s63, s60")
    a(f"v_add_u32 v{V_KA}, s63, v9")
    a(f"s_add_u32 s63, s60, {H_BASE}")
    a(f"v_add_u32 v{V_KB}, s63, v9")
    a("v_lshlrev_b32 v16, 3, v7")
    a(f"s_lshr_b32 s63, s{S_WAVE}, 1")
    a("s_mul_i32 s63, s63, 5888")
    a(f"s_add_u32 s63, s63, {FT_AREA}")
    a(f"s_movk_i32 s54, {FT_DUMMY}")
    a("v_cmp_eq_u32 s[56:57], 1, v8")
    a("v_cmp_eq_u32 s[58:59], 2, v8")
    a("v_cmp_eq_u32 vcc, 3, v8")
    for r in range(4):
        m0_q2 = 256 + 2 * r
        m0_q3 = 512 + 4 * (r & 1) + 256 * (r >> 1)
        m1_q0 = 1024 + 256 * r
        m1_q1 = 2048 if r == 0 else FT_DUMMY
        R = V_KSC + r
        a("s_cmp_eq_u32 s62, 0")
        a(f"s_cselect_b32 s55, {r}, {m1_q0}")
        a(f"v_mov_b32 v{R}, s55")
        a(f"s_cselect_b32 s55, {4+r}, {m1_q1}")
        a("v_mov_b32 v18, s55")
        a(f"v_cndmask_b32 v{R}, v{R}, v18, s[56:57]")
        a(f"s_cselect_b32 s55, {m0_q2}, s54")
        a("v_mov_b32 v18, s55")
        a(f"v_cndmask_b32 v{R}, v{R}, v18, s[58:59]")
        a(f"s_cselect_b32 s55, {m0_q3}, s54")
        a("v_mov_b32 v18, s55")
        a(f"v_cndmask_b32 v{R}, v{R}, v18, vcc")
        a(f"v_add_u32 v{R}, v{R}, v16")
        a(f"v_lshrrev_b32 v18, 4, v{R}")
        a(f"v_lshlrev_b32 v18, 2, v18")
        a(f"v_lshl_add_u32 v{R}, v{R}, 1, v18")
        a(f"v_add_u32 v{R}, s63, v{R}")
    a("s_lshl_b32 s55, s62, 6")
    a("v_add_u32 v19, s55, v2")
    a("v_lshlrev_b32 v100, 5, v19")
    a("v_sub_u32 v100, 4094, v100")
    NE = 19
    for e in range(NE):
        a(f"v_subrev_u32 v{104+e}, {2*e}, v100")
        a(f"v_cvt_f32_u32 v{104+e}, v{104+e}")
    for e in range(0, NE + 1, 2):
        e2 = min(e + 1, NE - 1)
        a(f"v_cvt_pk_bf16_f32 v{124+e//2}, v{104+e}, v{104+e2}")
    for e in range(NE):
        if e % 2 == 0: a(f"v_lshlrev_b32 v{104+e}, 16, v{124+e//2}")
        else: a(f"v_and_b32 v{104+e}, 0xffff0000, v{124+e//2}")
    for e in range(NE): a(f"v_cvt_u32_f32 v{104+e}, v{104+e}")
    for e in range(16, NE): a(f"v_min_u32 v{104+e}, {2*FT_ZERO}, v{104+e}")
    for e in range(NE):
        a(f"v_lshrrev_b32 v18, 5, v{104+e}")
        a(f"v_lshl_add_u32 v{104+e}, v18, 2, v{104+e}")
        a(f"v_add_u32 v{104+e}, s63, v{104+e}")
    a(f"s_lshr_b32 s55, s{S_WAVE}, 1")
    a(f"s_mul_i32 s55, s55, {KCH}")
    a(f"s_add_u32 s55, s55, {KC_BASE}")
    a("v_lshlrev_b32 v19, 5, v19")
    a(f"v_add_u32 v{V_KDST}, s55, v19")
    bulk(a, "P1")
    a(f"s_lshr_b32 s60, s{S_WAVE}, 1")
    a(f"s_and_b32 s61, s{S_WAVE}, 1")
    a("v_and_b32 v52, 31, v2")
    a("v_lshrrev_b32 v53, 5, v2")
    a("v_and_b32 v54, 3, v52")
    a("v_sub_u32 v54, 3, v54")
    a(f"v_mul_u32_u24 v54, {KC_STRIDE}, v54")
    a("v_lshrrev_b32 v55, 2, v52")
    a("v_lshlrev_b32 v55, 3, v55")
    a("v_sub_u32 v54, v54, v55")
    a("v_lshl_add_u32 v54, v53, 4, v54")
    a(f"s_mul_i32 s62, s60, {KCH}")
    a("s_lshl_b32 s63, s61, 6")
    a("s_sub_u32 s62, s62, s63")
    a(f"s_add_u32 s62, s62, {KC_BASE + 2*2044 - 2048 - 64*30}")
    a(f"v_add_u32 v{V_CA}, s62, v54")
    a("v_mul_u32_u24 v55, 80, v52")
    a("v_lshl_add_u32 v55, v53, 4, v55")
    a(f"s_mul_i32 s62, s60, {U_CH}")
    a("s_mul_i32 s63, s61, 80")
    a("s_sub_u32 s62, s62, s63")
    a(f"s_add_u32 s62, s62, {U_BASE + 80*(31-30)}")
    a(f"v_add_u32 v{V_CB}, s62, v55")
    tile_coords(a, 1, S_T1, S_FJ)
    tile_coords(a, 2, S_T2, S_SJ)
    dma_setup(a, 1)

def planes_out(a, D, plane_base, srd_dst, T, lo_only=False):
    for c in range(8):
        a(f"ds_write_b32 v{V_PW}, v{D+c} offset:{plane_base + 32*c}")
    a("s_waitcnt lgkmcnt(0)")
    a("s_barrier")
    a(f"s_lshl_b32 s60, s{S_TB}, 13")
    if not lo_only:
        a(f"v_add_u32 v{T+8}, 1152, v{V_PR}")
        a(f"ds_read2st64_b32 v[{T}:{T+1}], v{V_PR} offset0:0 offset1:9")
        a(f"ds_read2st64_b32 v[{T+2}:{T+3}], v{V_PR} offset0:18 offset1:27")
        a(f"ds_read2st64_b32 v[{T+4}:{T+5}], v{T+8} offset0:0 offset1:9")
        a(f"ds_read2st64_b32 v[{T+6}:{T+7}], v{T+8} offset0:18 offset1:27")
        a("s_add_u32 s61, s60, 4096")
        a("s_waitcnt lgkmcnt(2)")
        a(f"buffer_store_dwordx4 v[{T}:{T+3}], v{V_US}, s[{srd_dst}:{srd_dst+3}], s60 offen sc1")
        a("s_waitcnt lgkmcnt(0)")
        a(f"buffer_store_dwordx4 v[{T+4}:{T+7}], v{V_US}, s[{srd_dst}:{srd_dst+3}], s61 offen sc1")
    else:
        l = newlbl("po")
        a(f"s_cmp_ge_u32 s{S_WAVE}, 2")
        a(f"s_cbranch_scc1 {l}")
        for k in range(4):
            a(f"v_add_u32 v{T+16}, {576*k}, v{V_PR}")
            a(f"ds_read2st64_b32 v[{T+4*k}:{T+4*k+1}], v{T+16} offset0:0 offset1:9")
            a(f"ds_read2st64_b32 v[{T+4*k+2}:{T+4*k+3}], v{T+16} offset0:18 offset1:27")
        for k in range(4):
            a(f"s_waitcnt lgkmcnt({2*(3-k)})")
            a(f"buffer_store_dwordx4 v[{T+4*k}:{T+4*k+3}], v{V_US}, s[{srd_dst}:{srd_dst+3}], s60 offen sc1")
            if k < 3: a("s_add_u32 s60, s60, 2048")
        a.label(l)

def unit_addr(a, vd, vt):
    a(f"v_lshrrev_b32 v{vd}, 3, v2")
    a(f"v_lshlrev_b32 v{vd}, 10, v{vd}")
    a(f"v_and_b32 v{vt}, 7, v2")
    a(f"v_lshl_add_u32 v{vd}, v{vt}, 4, v{vd}")

def ln1(a):
    a(f"s_mov_b32 s90, {INV512}")
    a(f"s_mov_b32 s91, {EPS}")
    a("s_waitcnt vmcnt(10)")
    unpack_pairs(a, 16, VX, VX + 4)
    pair_sums(a, 16, 8, 32, 34, 36)
    reduce4(a, 32, 33, 34, 35)
    ln_stats(a, 32, 33, 36, 37, SM, SR)
    ln_apply(a, 16, 8, SM, SR, 40)
    unpack_packed(a, 16, 8, 40)
    for c in range(8):
        a(f"v_cvt_pk_f16_f32 v{40+c}, v{16+2*c}, v{17+2*c}")
    planes_out(a, 40, PL1, SRD_U2, 48, lo_only=True)

def kgen(a):
    a(f"s_lshr_b32 s60, s{S_WAVE}, 1")
    a(f"s_mul_i32 s60, s60, {KG_CH}")
    a(f"s_mov_b32 s66, {LOG2E}")
    a(f"s_mov_b32 s67, {LOG2E_LO}")
    a(f"s_mov_b32 s68, {LN2}")
    a(f"s_mov_b32 s69, {INV2PI}")
    a("v_mov_b32 v20, s52")
    a("v_mul_f32 v21, s66, v20")
    a("v_fma_f32 v22, v20, s66, -v21")
    a("v_fmac_f32 v22, s67, v20")
    a("v_exp_f32 v21, v21")
    a("v_mul_f32 v22, s68, v22")
    a("v_fmac_f32 v21, v21, v22")
    bf16_round(a, 21, 21)
    for i in range(10): a(f"v_lshlrev_b32 v{10+i}, 16, v{200+i}")
    a("v_mul_f32 v10, v21, v10")
    a("v_mul_f32 v11, v21, v11")
    a("v_mul_f32 v10, s66, v10")
    a("v_mul_f32 v11, s69, v11")
    for (b, c0, out) in ((12, 14, 24), (16, 18, 26)):
        a(f"v_mul_f32 v{b}, v21, v{b}")
        a(f"v_mul_f32 v{b+1}, v21, v{b+1}")
        a(f"v_mul_f32 v{out}, v{c0}, v{b}")
        a(f"v_mul_f32 v{out+1}, v{c0}, v{b+1}")
        a(f"v_fma_f32 v{out}, -v{c0+1}, v{b+1}, v{out}")
        a(f"v_fmac_f32 v{out+1}, v{c0+1}, v{b}")
    a("v_max3_f32 v28, abs(v24), abs(v25), abs(v26)")
    a("v_max_f32 v28, v28, abs(v27)")
    W1, W256, W512, W1024, W8, W128 = 32, 34, 36, 38, 80, 50
    evalE(a, W1, 1, 10, 11, 40)
    wave_max(a, 28, 29)
    evalE(a, W256, 256, 10, 11, 44)
    a("v_frexp_exp_i32_f32 v29, v28")
    a("v_sub_u32 v30, 0, v29")
    a("v_ldexp_f32 v48, v24, v30")
    a("v_ldexp_f32 v49, v25, v30")
    a("v_mov_b32 v31, 1.0")
    a("v_ldexp_f32 v31, v31, v29")
    evalE(a, W8, 8, 10, 11, 40, conj=True)
    a(f"v_readfirstlane_b32 s{S_SCALE}, v31")
    evalE(a, 84, 128, 10, 11, 44, conj=True)
    cmul(a, W512, W256, W256)
    cmul(a, W1024, W512, W512)
    st(a, "kg: setup done", 250)
    bulk(a, "P3")
    g = lambda i: 48 + 2 * i
    cnt = [0]
    def emit(off, reg):
        t = 96 + (cnt[0] % 8); cnt[0] += 1
        a(f"v_cvt_pk_f16_f32 v{t}, v{reg}, v{reg+1}")
        a(f"ds_write_b32 v{V_KROW}, v{t} offset:{off}")
    grow = lambda r, reg: emit(r * G_ROW, reg)
    hrow = lambda r, reg: emit(H_BASE + r * G_ROW, reg)
    a("v_mov_b32 v82, 1.0"); a("v_mov_b32 v83, 0")
    HA, HB = [82, 86], [84, 88]
    G = lambda r: r * G_ROW
    Hh = lambda r: H_BASE + r * G_ROW
    gops = [("e", G(0), g(0)),
            ("c", 64, g(0), W1024), ("c", 66, g(0), W512), ("c", g(1), g(0), W1), ("e", G(16), 64), ("e", G(12), 66),
            ("c", 68, 64, W256), ("c", 70, 66, W256), ("e", G(1), g(1)), ("c", g(2), g(1), W1), ("c", 72, g(0), W256), ("e", G(17), 68), ("e", G(14), 70),
            ("c", 64, 68, W256), ("e", G(2), g(2)), ("c", g(3), g(2), W1), ("c", 74, g(2), W256), ("e", G(8), 72), ("e", G(18), 64),
            ("c", 68, 64, W256), ("e", G(3), g(3)), ("c", g(4), g(3), W1), ("e", G(9), 74), ("e", G(19), 68),
            ("c", 64, 68, W256), ("e", G(4), g(4)), ("c", g(5), g(4), W1), ("c", 66, g(4), W512), ("c", 72, g(4), W256), ("e", G(20), 64),
            ("e", G(5), g(5)), ("c", g(6), g(5), W1), ("e", G(13), 66), ("c", 70, 66, W256), ("e", G(10), 72),
            ("e", G(6), g(6)), ("c", g(7), g(6), W1), ("c", 74, g(6), W256), ("e", G(15), 70), ("e", G(7), g(7)), ("e", G(11), 74)]
    hops = []
    for i in range(16):
        ca, na = HA[i % 2], HA[(i + 1) % 2]
        cb, nb = HB[i % 2], HB[(i + 1) % 2]
        if i < 15: hops += [("c", na, ca, W8), ("e", Hh(i), ca), ("c", nb, cb, W8), ("e", Hh(16 + i), cb)]
        else: hops += [("e", Hh(i), ca), ("e", Hh(16 + i), cb)]
    seq = []
    gi = hi = 0
    last = "e"
    while gi < len(gops) or hi < len(hops):
        want = "c" if last == "e" else "e"
        cand = []
        if hi < len(hops) and hops[hi][0] == want: cand.append("h")
        if gi < len(gops) and gops[gi][0] == want: cand.append("g")
        if not cand:
            cand = (["h"] if hi < len(hops) else []) + (["g"] if gi < len(gops) else [])
        if len(cand) == 2: pick = "g" if gi / len(gops) <= hi / len(hops) else "h"
        else: pick = cand[0]
        op = gops[gi] if pick == "g" else hops[hi]
        if pick == "g": gi += 1
        else: hi += 1
        seq.append(op); last = op[0]
    for n_, op in enumerate(seq):
        if n_ == len(seq) // 3: bulk(a, "P4")
        if op[0] == "c": cmul(a, op[1], op[2], op[3])
        else: emit(op[1], op[2])
    NE = 19
    a(f"s_lshr_b32 s63, s{S_WAVE}, 1")
    a("s_mul_i32 s63, s63, 5888")
    a(f"s_add_u32 s63, s63, {FT_AREA}")
    st(a, "kg: chains done", 250)
    lp0 = newlbl("pb0")
    a(f"s_cmp_lg_u32 s{S_WAVE}, 0")
    a(f"s_cbranch_scc1 {lp0}")
    a("v_and_b32 v98, 3, v2")
    a("v_lshlrev_b32 v98, 6, v98")
    a("global_load_dword v99, v98, s[8:9] sc1")
    a.label(lp0)
    bulk(a, "P5")
    a("v_mov_b32 v18, 0")
    a(f"v_mov_b32 v101, s63")
    a(f"ds_write_b16 v101, v18 offset:{2*FT_ZERO + 4*(FT_ZERO >> 4)}")
    a("s_waitcnt lgkmcnt(0)")
    a("s_barrier")
    for ks in range(8):
        a(f"ds_read_b128 v[{128+12*ks}:{131+12*ks}], v{V_KA} offset:{ks*64}")
        a(f"ds_read_b128 v[{132+12*ks}:{135+12*ks}], v{V_KB} offset:{ks*64}")
        a(f"ds_read_b128 v[{136+12*ks}:{139+12*ks}], v{V_KB} offset:{ks*64 + 16*G_ROW}")
        if ks >= 3:
            k = ks - 3
            a("s_waitcnt lgkmcnt(9)")
            cc0 = "0" if k == 0 else "v[20:23]"; cc1 = "0" if k == 0 else "v[24:27]"
            a(f"v_mfma_f32_16x16x32_f16 v[20:23], v[{128+12*k}:{131+12*k}], v[{132+12*k}:{135+12*k}], {cc0}")
            a(f"v_mfma_f32_16x16x32_f16 v[24:27], v[{128+12*k}:{131+12*k}], v[{136+12*k}:{139+12*k}], {cc1}")
    for k in range(5, 8):
        a(f"s_waitcnt lgkmcnt({3*(7-k)})")
        a(f"v_mfma_f32_16x16x32_f16 v[20:23], v[{128+12*k}:{131+12*k}], v[{132+12*k}:{135+12*k}], v[20:23]")
        a(f"v_mfma_f32_16x16x32_f16 v[24:27], v[{128+12*k}:{131+12*k}], v[{136+12*k}:{139+12*k}], v[24:27]")
    for nt in range(2):
        A = 20 + 4 * nt
        a(f"v_cvt_pk_f16_f32 v{28+2*nt}, v{A}, v{A+1}")
        a(f"v_cvt_pk_f16_f32 v{29+2*nt}, v{A+2}, v{A+3}")
        a(f"ds_write_b16 v{V_KSC}, v{28+2*nt} offset:{288*nt}")
        a(f"ds_write_b16_d16_hi v{V_KSC+1}, v{28+2*nt} offset:{288*nt}")
        a(f"ds_write_b16 v{V_KSC+2}, v{29+2*nt} offset:{288*nt}")
        a(f"ds_write_b16_d16_hi v{V_KSC+3}, v{29+2*nt} offset:{288*nt}")
    st(a, "kg: mfma done", 250)
    lp = newlbl("pb1")
    a(f"s_cmp_lg_u32 s{S_WAVE}, 0")
    a(f"s_cbranch_scc1 {lp}")
    a("s_waitcnt vmcnt(2)")
    a("v_cmp_gt_u32 vcc, 64, v99")
    a(f"s_cbranch_vccz {lp}_ok")
    a("s_mov_b32 s62, 0")
    poll(a, 8, 62, 4, 6, 64)
    a.label(lp + "_ok")
    conv_u_loads(a)
    a.label(lp)
    st(a, "B1 passed (wave 0)", 250)
    a("s_waitcnt lgkmcnt(0)")
    a("s_barrier")
    st(a, "kg: scatter+barrier done", 250)
    bulk(a, "P6")
    a("; KGBG")
    for e in range(NE): a(f"ds_read_u16 v{128+e}, v{104+e}")
    for r in range(40, 44): a(f"v_mov_b32 v{r}, 0")
    a("v_lshlrev_b32 v5, 4, v0")
    a("v_cmp_gt_u32 vcc, 155, v0")
    a("s_and_saveexec_b64 s[62:63], vcc")
    a(f"v_add_u32 v44, {U_BASE}, v5")
    a(f"ds_write_b128 v44, v[40:43]")
    a(f"ds_write_b128 v44, v[40:43] offset:{U_CH}")
    a("s_mov_b64 exec, s[62:63]")
    a("v_lshrrev_b32 v44, 2, v0")
    a(f"v_mul_u32_u24 v44, {KC_STRIDE}, v44")
    a("v_and_b32 v45, 3, v0")
    a("v_lshl_add_u32 v44, v45, 4, v44")
    a(f"v_add_u32 v44, {KC_BASE + 4096}, v44")
    a("v_cmp_gt_u32 vcc, 32, v0")
    a("s_and_saveexec_b64 s[62:63], vcc")
    a("ds_write_b128 v44, v[40:43]")
    a("s_mov_b64 exec, s[62:63]")

    a("s_waitcnt lgkmcnt(0)")
    for i in range(9):
        a(f"v_lshl_or_b32 v{161+i}, v{129+2*i}, 16, v{128+2*i}")
    for i in range(8):
        a(f"v_mov_b32 v{152+i}, v{161+i}")
    for i in range(9):
        a(f"v_lshl_or_b32 v{181+i}, v{130+2*i}, 16, v{129+2*i}")
    for i in range(8):
        a(f"v_mov_b32 v{172+i}, v{181+i}")
    for (sig, R) in ((0, 152), (1, 172), (2, 162), (3, 182)):
        a(f"ds_write_b128 v{V_KDST}, v[{R}:{R+3}] offset:{sig*KC_STRIDE}")
        a(f"ds_write_b128 v{V_KDST}, v[{R+4}:{R+7}] offset:{sig*KC_STRIDE+16}")

def conv_u_loads(a):
    a("v_lshlrev_b32 v4, 13, v2")
    a(f"s_lshl_b32 s61, s{S_Q0}, 4")
    for r in range(4):
        a(f"buffer_load_dwordx4 a[{8*r}:{8*r+3}], v4, s[{SRD_U2}:{SRD_U2+3}], s61 offen sc1")
        a(f"buffer_load_dwordx4 a[{8*r+4}:{8*r+7}], v4, s[{SRD_U2}:{SRD_U2+3}], s61 offen offset:16 sc1")
        if r < 3: a(f"s_add_u32 s61, s61, {64*8192}")

def conv_u_writes(a, ny=0):
    l, l1 = newlbl("cw"), newlbl("cw")
    a(f"s_cmp_lg_u32 s{S_WAVE}, 0")
    a(f"s_cbranch_scc1 {l1}")
    a("v_lshrrev_b32 v5, 2, v2")
    a("v_mul_u32_u24 v5, 80, v5")
    a("v_and_b32 v6, 3, v2")
    a("v_lshl_add_u32 v5, v6, 4, v5")
    a(f"v_add_u32 v5, {U_BASE + 31*80}, v5")
    for r in range(4):
        a(f"s_waitcnt vmcnt({2*(3-r) + ny})")
        a(f"ds_write_b128 v5, a[{8*r}:{8*r+3}] offset:{r*16*80}")
        a(f"ds_write_b128 v5, a[{8*r+4}:{8*r+7}] offset:{U_CH + r*16*80}")
    a(f"s_branch {l}")
    a.label(l1)
    a(f"s_cmp_lg_u32 s{S_WAVE}, 1")
    a(f"s_cbranch_scc1 {l}")
    a("s_waitcnt vmcnt(0)")
    a.label(l)

def conv_main(a):
    a(f"s_lshr_b32 s60, s{S_WAVE}, 1")
    a(f"s_and_b32 s61, s{S_WAVE}, 1")
    a("v_and_b32 v52, 31, v2")
    a("v_lshrrev_b32 v53, 5, v2")
    a(f"v_mov_b32 v54, v{V_CA}")
    a(f"v_mov_b32 v55, v{V_CB}")
    lh = newlbl("ph")
    a(f"s_cmp_lt_u32 s{S_WAVE}, 2")
    a(f"s_cbranch_scc1 {lh}")
    a(f"s_waitcnt vmcnt({hi_younger('F5')})")
    a.label(lh)
    a("s_waitcnt lgkmcnt(0)")
    a("s_barrier")
    lpa = newlbl("pa")
    a(f"s_cmp_lg_u32 s{S_WAVE}, 0")
    a(f"s_cbranch_scc1 {lpa}")
    a("s_and_b32 s62, s2, 7")
    a("s_lshl_b32 s62, s62, 7")
    a(f"s_add_u32 s62, s62, {SYNC_OFF + 8*128}")
    a("v_mov_b32 v13, s62")
    a("v_mov_b32 v14, 1")
    a("s_mov_b64 s[62:63], exec")
    a("s_mov_b64 exec, 1")
    a(f"global_atomic_add v13, v14, s[6:7] sc1")
    a("s_mov_b64 exec, s[62:63]")
    a.label(lpa)
    st(a, "conv start (U in LDS)")
    X, Y = 96, 128
    def load_list(step, R):
        kk = 30 - 2 * step
        oa = 64 * kk; ob = 80 * kk
        return [
            f"ds_read_b64 v[{R+0}:{R+1}], v54 offset:{oa+2048}",
            f"ds_read_b64 v[{R+2}:{R+3}], v54 offset:{oa+2048+8}",
            f"ds_read_b128 v[{R+16}:{R+19}], v55 offset:{ob}",
            f"ds_read_b128 v[{R+24}:{R+27}], v55 offset:{ob+2560}",
            f"ds_read_b64 v[{R+4}:{R+5}], v54 offset:{oa+2048+32}",
            f"ds_read_b64 v[{R+6}:{R+7}], v54 offset:{oa+2048+40}",
            f"ds_read_b128 v[{R+20}:{R+23}], v55 offset:{ob+32}",
            f"ds_read_b128 v[{R+28}:{R+31}], v55 offset:{ob+2560+32}",
            f"ds_read_b64 v[{R+8}:{R+9}], v54 offset:{oa}",
            f"ds_read_b64 v[{R+10}:{R+11}], v54 offset:{oa+8}",
            f"ds_read_b64 v[{R+12}:{R+13}], v54 offset:{oa+32}",
            f"ds_read_b64 v[{R+14}:{R+15}], v54 offset:{oa+40}"]
    def mfma_list(R, first):
        c0 = "0" if first else "v[64:79]"; c1 = "0" if first else "v[80:95]"
        return [
            f"v_mfma_f32_32x32x16_f16 v[64:79], v[{R+0}:{R+3}], v[{R+16}:{R+19}], {c0}",
            f"v_mfma_f32_32x32x16_f16 v[80:95], v[{R+0}:{R+3}], v[{R+24}:{R+27}], {c1}",
            f"v_mfma_f32_32x32x16_f16 v[64:79], v[{R+4}:{R+7}], v[{R+20}:{R+23}], v[64:79]",
            f"v_mfma_f32_32x32x16_f16 v[80:95], v[{R+4}:{R+7}], v[{R+28}:{R+31}], v[80:95]",
            f"v_mfma_f32_32x32x16_f16 v[80:95], v[{R+8}:{R+11}], v[{R+16}:{R+19}], v[80:95]",
            f"v_mfma_f32_32x32x16_f16 v[80:95], v[{R+12}:{R+15}], v[{R+20}:{R+23}], v[80:95]"]
    a("s_lshl_b32 s62, s61, 5")
    a("v_add_u32 v59, s62, v52")
    a("v_mul_u32_u24 v60, 80, v59")
    a("v_lshl_add_u32 v60, v53, 3, v60")
    a(f"s_mul_i32 s62, s60, {U_CH}")
    a(f"s_add_u32 s62, s62, {U_BASE + 31*80}")
    a("v_add_u32 v60, s62, v60")
    for g in range(4): a(f"ds_read_b64 v[{160+2*g}:{161+2*g}], v60 offset:{g*16}")
    sh = []
    for g in range(4):
        sh += [f"v_cvt_f32_f16 v{168+4*g}, v{160+2*g}", f"v_cvt_f32_f16_sdwa v{169+4*g}, v{160+2*g} dst_sel:DWORD dst_unused:UNUSED_PAD src0_sel:WORD_1",
               f"v_cvt_f32_f16 v{170+4*g}, v{161+2*g}", f"v_cvt_f32_f16_sdwa v{171+4*g}, v{161+2*g} dst_sel:DWORD dst_unused:UNUSED_PAD src0_sel:WORD_1"]
    sh += [f"v_mul_f32 v{168+r}, s{S_DSK}, v{168+r}" for r in range(16)]
    sh += [f"v_cvt_pk_bf16_f32 v{184+r//2}, v{168+r}, v{169+r}" for r in range(0, 16, 2)]
    for r in range(0, 16, 2):
        sh += [f"v_lshlrev_b32 v{168+r}, 16, v{184+r//2}", f"v_and_b32 v{169+r}, 0xffff0000, v{184+r//2}"]
    bg = dma_groups(1, 10, 0)
    bg_late = []
    if NOBGCONV: bg_late, bg = bg, []
    for l in load_list(0, X): a(l)
    for step in range(16):
        bulk(a, f"c{step}")
        for _ in range(2 if (step % 4) == 1 else 1):
            if bg and step >= 0:
                for l in bg.pop(0): a(l)
                HIQ.append("D")
        R = X if step % 2 == 0 else Y
        N = Y if step % 2 == 0 else X
        M = mfma_list(R, step == 0)
        Ls = load_list(step + 1, N) if step < 15 else []
        need_upto = [3, 4, 7, 8, 10, 12]
        issued_next = 0
        for i in range(6):
            a(f"s_waitcnt lgkmcnt({min((12 - need_upto[i]) + issued_next, 15)})")
            a(M[i])
            for l in Ls[2*i:2*i+2]: a(l); issued_next += 1
            if step >= 1 and sh: a(sh.pop(0))
    for grp in bg:
        for l in grp: a(l)
        HIQ.append("D")
    st(a, "conv main done")
    for grp in bg_late:
        for l in grp: a(l)
    lpf = newlbl("pf")
    a(f"s_cmp_lg_u32 s{S_WAVE}, 0")
    a(f"s_cbranch_scc1 {lpf}")
    a("v_and_b32 v50, 7, v2")
    a("v_lshlrev_b32 v50, 7, v50")
    a(f"v_add_u32 v50, {SYNC_OFF + 8*128}, v50")
    a("global_load_dword v51, v50, s[6:7] sc1")
    a.label(lpf)
    a("v_lshlrev_b32 v56, 4, v2")
    a(f"v_add_u32 v56, {RED_CONV}, v56")
    a(f"s_lshl_b32 s62, s{S_WAVE}, 12")
    a("v_add_u32 v57, s62, v56")
    a(f"s_xor_b32 s63, s{S_WAVE}, 1")
    a("s_lshl_b32 s63, s63, 12")
    a("v_add_u32 v58, s63, v56")
    l1, l2 = newlbl("cp"), newlbl("cr")
    a("s_cmp_eq_u32 s61, 0")
    a(f"s_cbranch_scc0 {l1}")
    a("s_nop 7"); a("s_nop 7")
    for g in range(4): a(f"ds_write_b128 v57, v[{80+4*g}:{83+4*g}] offset:{g*1024}")
    a(f"s_branch {l2}")
    a.label(l1)
    a("s_nop 7"); a("s_nop 7")
    for g in range(4): a(f"ds_write_b128 v57, v[{64+4*g}:{67+4*g}] offset:{g*1024}")
    for r in range(16): a(f"v_mov_b32 v{64+r}, v{80+r}")
    a.label(l2)
    a("s_waitcnt lgkmcnt(0)")
    a("s_barrier")
    for g in range(4): a(f"ds_read_b128 v[{96+4*g}:{99+4*g}], v58 offset:{g*1024}")
    a("s_waitcnt lgkmcnt(0)")
    for r in range(0, 16, 2): a(f"v_pk_add_f32 v[{64+r}:{65+r}], v[{64+r}:{65+r}], v[{96+r}:{97+r}]")
    for r in range(0, 16, 2): a(f"v_pk_mul_f32 v[{64+r}:{65+r}], v[{64+r}:{65+r}], s[{S_SCALE}:{S_SCALE+1}] op_sel_hi:[1,0]")
    for r in range(0, 16, 2): a(f"v_cvt_pk_bf16_f32 v{136+r//2}, v{64+r}, v{65+r}")
    for r in range(0, 16, 2):
        a(f"v_lshlrev_b32 v{64+r}, 16, v{136+r//2}")
        a(f"v_and_b32 v{65+r}, 0xffff0000, v{136+r//2}")
    for r in range(0, 16, 2): a(f"v_pk_add_f32 v[{64+r}:{65+r}], v[{64+r}:{65+r}], v[{168+r}:{169+r}]")
    for r in range(0, 16, 2): a(f"v_cvt_pk_bf16_f32 v{136+r//2}, v{64+r}, v{65+r}")
    for g in (0, 2):
        A0, A1, B0, B1 = 136 + 2 * g, 137 + 2 * g, 138 + 2 * g, 139 + 2 * g
        a(f"v_permlane32_swap_b32 v{A0}, v{B0}")
        a(f"v_permlane32_swap_b32 v{A1}, v{B1}")
    a("v_mul_u32_u24 v61, 144, v59")
    a("v_lshl_add_u32 v61, v53, 5, v61")
    a("s_lshl_b32 s62, s60, 4")
    a(f"s_add_u32 s62, s62, {YB}")
    a("v_add_u32 v61, s62, v61")
    a("ds_write_b128 v61, v[136:139]")
    a("ds_write_b128 v61, v[140:143] offset:64")
    a("v_lshrrev_b32 v62, 3, v0")
    a("v_mul_u32_u24 v62, 144, v62")
    a("v_and_b32 v63, 7, v0")
    a("v_lshl_add_u32 v62, v63, 4, v62")
    a("s_waitcnt lgkmcnt(0)")
    a("s_barrier")
    ly = newlbl("yo")
    a(f"s_cmp_ge_u32 s{S_WAVE}, 2")
    a(f"s_cbranch_scc1 {ly}")
    for k in range(4):
        a(f"ds_read_b128 v[{96+4*k}:{99+4*k}], v62 offset:{YB + 16*144*k}")
    a(f"s_lshl_b32 s62, s{S_TB}, 13")
    for k in range(4):
        a(f"s_waitcnt lgkmcnt({3-k})")
        a(f"buffer_store_dwordx4 v[{96+4*k}:{99+4*k}], v{V_US}, s[{SRD_YA}:{SRD_YA+3}], s62 offen sc1")
        if k < 3: a("s_add_u32 s62, s62, 2048")
    a.label(ly)

def ln2_addr(a):
    a("v_lshrrev_b32 v4, 1, v0")
    a("v_lshlrev_b32 v4, 13, v4")
    a("v_and_b32 v5, 1, v0")
    a("v_lshl_add_u32 v4, v5, 4, v4")
    a(f"s_lshl_b32 s72, s{S_TB}, 5")
    a("s_add_u32 s73, s72, 0x100000")

def ln2_issue(a):
    a(f"buffer_load_dwordx4 v[40:43], v4, s[{SRD_YA}:{SRD_YA+3}], s72 offen sc1")
    a(f"buffer_load_dwordx4 v[44:47], v4, s[{SRD_YA}:{SRD_YA+3}], s73 offen sc1")

def ln2_loads(a, first_wait):
    l = newlbl("ys")
    a("s_mov_b32 s61, 0")
    a(f"s_waitcnt vmcnt({first_wait})")
    a(f"s_branch {l}_c")
    a.label(l)
    ln2_issue(a)
    a("s_add_u32 s61, s61, 1")
    a("s_waitcnt vmcnt(0)")
    a.label(l + "_c")
    for x in check8(40, 12): a(x)
    a(f"s_cbranch_vccz {l}_ok")
    a(f"s_cmp_lt_u32 s61, {SPIN_MAX}")
    a(f"s_cbranch_scc1 {l}")
    a.label(l + "_ok")
    a("s_waitcnt vmcnt(0)")

def ln2_planes_in(a):
    a(f"v_mov_b32 v48, v{V_PR}")
    a(f"v_add_u32 v49, 1152, v{V_PR}")
    a("ds_write2st64_b32 v48, v40, v41 offset0:0 offset1:9")
    a("ds_write2st64_b32 v48, v42, v43 offset0:18 offset1:27")
    a("ds_write2st64_b32 v49, v44, v45 offset0:0 offset1:9")
    a("ds_write2st64_b32 v49, v46, v47 offset0:18 offset1:27")

def ln2_compute(a):
    for c in range(8):
        a(f"ds_read_b32 v{40+c}, v{V_PW} offset:{32*c}")
    a(f"s_mov_b32 s90, {INV512}")
    a(f"s_mov_b32 s91, {EPS}")
    a("s_mov_b32 s92, 0x05040100")
    a("s_mov_b32 s93, 0x07060302")
    unpack_pairs(a, 16, VX, VX + 4)
    a("v_lshlrev_b32 v3, 4, v2")
    a(f"s_lshl_b32 s64, s{S_TB}, 13")
    a(f"s_lshl_b32 s65, s{S_WAVE}, 11")
    a("s_add_u32 s64, s64, s65")
    a("s_waitcnt lgkmcnt(0)")
    for c in range(8):
        a(f"v_lshlrev_b32 v{48+2*c}, 16, v{40+c}")
        a(f"v_and_b32 v{49+2*c}, 0xffff0000, v{40+c}")
    for c in range(8):
        a(f"v_pk_add_f32 v[{16+2*c}:{17+2*c}], v[{16+2*c}:{17+2*c}], v[{48+2*c}:{49+2*c}]")
    for c in range(8):
        a(f"v_cvt_pk_bf16_f32 v{40+c}, v{16+2*c}, v{17+2*c}")
    unpack_packed(a, 16, 8, 40)
    for i in range(4):
        a(f"v_perm_b32 v{4+i}, v{41+2*i}, v{40+2*i}, s92")
        a(f"v_perm_b32 v{8+i}, v{41+2*i}, v{40+2*i}, s93")
    a(f"buffer_store_dwordx4 v[4:7], v3, s[{SRD_H}:{SRD_H+3}], s64 offen sc1")
    a(f"buffer_store_dwordx4 v[8:11], v3, s[{SRD_H}:{SRD_H+3}], s64 offen offset:1024 sc1")
    pair_sums(a, 16, 8, 32, 34, 36)
    reduce4(a, 32, 33, 34, 35)
    ln_stats(a, 32, 33, 36, 37, SM, SR)
    ln_apply(a, 16, 8, SM, SR, 40)
    unpack_packed(a, 16, 8, 40)
    pair_sums(a, 16, 8, 32, 34, 36)
    reduce4(a, 32, 33, 34, 35)
    ln_stats(a, 32, 33, 36, 37, SM, SR)
    ln_apply(a, 16, 8, SM, SR, 40)
    a("; BGSTOP")
    a("s_waitcnt vmcnt(0)")
    a("s_barrier")
    planes_out(a, 40, PL2, SRD_HN, 48)

def tile_coords(a, which, sT, sC):
    a("s_and_b32 s60, s2, 7")
    a("s_lshr_b32 s61, s2, 3")
    a(f"s_and_b32 s{sT}, s60, 1")
    a(f"s_lshl_b32 s{sT}, s{sT}, 2")
    a("s_and_b32 s62, s61, 3")
    a(f"s_add_u32 s{sT}, s{sT}, s62")
    a(f"s_lshr_b32 s{sC}, s60, 1")
    a(f"s_mul_i32 s{sC}, s{sC}, {7 if which == 1 else 8}")
    a("s_lshr_b32 s62, s61, 2")
    if which == 2 and SJROT:
        a(f"s_add_u32 s62, s62, {SJROT}"); a("s_and_b32 s62, s62, 7")
    a(f"s_add_u32 s{sC}, s{sC}, s62")

VD, VTA, VTB = 240, 241, 242
def dma_setup(a, which):
    WROW = 3584 if which == 1 else (4096 if NOCOPY else 128)
    a(f"v_lshrrev_b32 v{VD}, 3, v2")
    a(f"v_mul_u32_u24 v{VD}, {WROW}, v{VD}")
    a("v_and_b32 v243, 7, v2")
    a("v_lshrrev_b32 v244, 2, v2")
    a("v_and_b32 v244, 4, v244")
    a("v_xor_b32 v243, v243, v244")
    a(f"v_lshl_add_u32 v{VD}, v243, 4, v{VD}")
    a("v_bfe_u32 v243, v2, 2, 2")
    a("v_and_b32 v244, 3, v2")
    a(f"v_bfe_u32 v{VTA}, v2, 4, 1")
    a(f"v_lshlrev_b32 v{VTA}, 1, v{VTA}")
    a("v_lshrrev_b32 v245, 1, v244")
    a(f"v_add_u32 v{VTA}, v{VTA}, v245")
    a("v_lshrrev_b32 v245, 1, v243")
    a("v_lshlrev_b32 v245, 2, v245")
    a(f"v_xor_b32 v{VTA}, v{VTA}, v245")
    a(f"v_lshlrev_b32 v{VTA}, 4, v{VTA}")
    a("v_and_b32 v245, 1, v244")
    a(f"v_lshl_add_u32 v{VTA}, v245, 3, v{VTA}")
    a("v_lshrrev_b32 v245, 5, v2")
    a(f"v_lshlrev_b32 v245, {3 if which == 1 else 2}, v245")
    a("v_add_u32 v245, v245, v243")
    a(f"v_lshl_add_u32 v{VTA}, v245, 7, v{VTA}")
    a(f"v_xor_b32 v{VTB}, 64, v{VTA}")

def ring_base_sel(a, lo_base, per_wave, split, hi_base):
    a(f"s_mul_i32 s{S_RING}, s{S_WAVE}, {per_wave}")
    a(f"s_cmp_lt_u32 s{S_WAVE}, {split}")
    a(f"s_mov_b32 s60, {lo_base}")
    a(f"s_cselect_b32 s60, s60, {hi_base - split*per_wave}")
    a(f"s_add_u32 s{S_RING}, s{S_RING}, s60")
    a(f"s_lshr_b32 s60, s{S_WAVE}, 1")
    a("s_lshl_b32 s60, s60, 6")
    a(f"v_xor_b32 v246, s60, v{VTA}")
    a(f"v_xor_b32 v247, 64, v246")
    a(f"v_add_u32 v246, s{S_RING}, v246")
    a(f"v_add_u32 v247, s{S_RING}, v247")

def ring_base(a, per_wave, base):
    a(f"s_mul_i32 s{S_RING}, s{S_WAVE}, {per_wave}")
    if base: a(f"s_add_u32 s{S_RING}, s{S_RING}, {base}")
    a(f"s_lshr_b32 s60, s{S_WAVE}, 1")
    a("s_lshl_b32 s60, s60, 6")
    a(f"v_xor_b32 v246, s60, v{VTA}")
    a(f"v_xor_b32 v247, 64, v246")
    a(f"v_add_u32 v246, s{S_RING}, v246")
    a(f"v_add_u32 v247, s{S_RING}, v247")

S_WA, S_WB = 76, 77
def dma_groups(which, n, slot0):
    WROW = 3584 if which == 1 else (4096 if NOCOPY else 128)
    srdw = SRD_W1 if which == 1 else (SRD_W2 if NOCOPY else SRD_W2R)
    sc = "" if (which == 1 or NOCOPY) else " sc1"
    g = []
    for i in range(n):
        g.append([f"s_add_u32 m0, s{S_RING}, {(slot0+i)*2048}",
                  f"buffer_load_dwordx4 v{VD}, s[{srdw}:{srdw+3}], s{S_WA} offen{sc} lds",
                  f"s_add_u32 s{S_WA}, s{S_WA}, {16*WROW}"])
        g.append([f"s_add_u32 m0, s{S_RING}, {(slot0+i)*2048+1024}",
                  f"buffer_load_dwordx4 v{VD}, s[{srdw}:{srdw+3}], s{S_WB} offen{sc} lds",
                  f"s_add_u32 s{S_WB}, s{S_WB}, {16*WROW}"])
    return g

def dma_issue(a, which, n, slot0):
    for grp in dma_groups(which, n, slot0):
        for l in grp: a(l)

SCC_READ = ('s_cbranch_scc', 's_cselect', 's_addc', 's_subb', 's_cmov')
SCC_WRITE = ('s_cmp', 's_add_', 's_sub_', 's_and_', 's_or_', 's_xor_', 's_lshl', 's_lshr', 's_bitcmp', 's_min', 's_max', 's_ashr', 's_not', 's_bfe')
def scc_safe(lines, i):
    for l in lines[i:]:
        op = l.split()[0]
        if op.startswith(SCC_READ): return False
        if op.startswith(SCC_WRITE) or op.endswith(':') or op in ('s_branch', 's_endpgm', 's_barrier'): return True
    return True

def with_bg(a, fg, groups, skip=0, stride=20, after=None, before=None):
    i0 = len(a.lines)
    fg()
    body = a.lines[i0:]
    del a.lines[i0:]
    start = skip
    if after is not None:
        start = next(k for k, l in enumerate(body) if after in l) + 1 + skip
    out = []; gi = 0; nxt = start
    stop = False
    cond_until = None
    masked = False
    labels_in = {x[:-1] for x in body if x.endswith(':')}
    for k, l in enumerate(body):
        if cond_until is not None and l == cond_until + ':': cond_until = None
        in_cond = cond_until is not None or masked
        cond_until_next = None
        if cond_until is None and l.startswith(('s_cbranch', 's_branch')) and l.split()[1] in labels_in and (l.split()[1] + ':') in body[k:]:
            cond_until_next = l.split()[1]
        if before is not None and not stop and before in l:
            stop = True
            while gi < len(groups):
                out += groups[gi]; gi += 1
        if not stop and not in_cond and gi < len(groups) and k >= nxt and scc_safe(body, k) and not l.endswith(':') and not l.startswith('s_and_saveexec'):
            out += groups[gi]; gi += 1; nxt = k + stride
        out.append(l)
        if cond_until_next is not None: cond_until = cond_until_next
        if l.startswith('s_and_saveexec'): masked = True
        if l.startswith('s_mov_b64 exec'): masked = False
    while gi < len(groups):
        out += groups[gi]; gi += 1
    a.lines += out

def tr_to_acc(a, which, steps, slot0):
    RHO = 512 if which == 1 else 1024
    for i, s in enumerate(steps):
        o = (slot0 + i) * 2048
        a(f"ds_read_b64_tr_b16 a[{8*s}:{8*s+1}], v246 offset:{o}")
        a(f"ds_read_b64_tr_b16 a[{8*s+2}:{8*s+3}], v246 offset:{o+RHO}")
        a(f"ds_read_b64_tr_b16 a[{8*s+4}:{8*s+5}], v247 offset:{o}")
        a(f"ds_read_b64_tr_b16 a[{8*s+6}:{8*s+7}], v247 offset:{o+RHO}")
        if i % 3 == 2: a("s_waitcnt lgkmcnt(4)")

def woff_init(a, which, sC):
    WROW = 3584 if which == 1 else (4096 if NOCOPY else 128)
    if which == 1:
        a(f"s_mul_i32 s{S_WA}, s{S_WAVE}, {32*16*3584}")
        a(f"s_lshl_b32 s60, s{sC}, 7")
    elif NOCOPY:
        a(f"s_mul_i32 s{S_WA}, s{S_WAVE}, {28*16*4096}")
        a(f"s_lshl_b32 s60, s{sC}, 7")
    else:
        a(f"s_mul_i32 s{S_WA}, s{S_WAVE}, {28*16*128}")
        a(f"s_mul_i32 s60, s{sC}, {W2R_TILE}")
    a(f"s_add_u32 s{S_WA}, s{S_WA}, s60")
    a(f"s_add_u32 s{S_WB}, s{S_WA}, {8*WROW}")

def gemm_lane_consts(a):
    a("v_lshrrev_b32 v6, 5, v2")
    a("v_and_b32 v7, 31, v2")
    a("v_lshlrev_b32 v10, 13, v6")
    a("v_lshl_add_u32 v10, v7, 4, v10")
    a(f"s_and_b32 s60, s{S_WAVE}, 1")
    a("s_lshl_b32 s60, s60, 9")
    a("v_xor_b32 v8, s60, v10")
    a("v_xor_b32 v9, 512, v8")

def main_loop(a, which, srda, soff, D0):
    NK = 32 if which == 1 else 28
    DR = 14
    ab = lambda s: 128 + 8 * (s % DR)
    issued = [0]
    def issue():
        s = issued[0]
        if s >= NK: return []
        R = ab(s); issued[0] += 1
        return [f"buffer_load_dwordx4 v[{R}:{R+3}], v8, s[{srda}:{srda+3}], s{soff} offen sc1",
                f"buffer_load_dwordx4 v[{R+4}:{R+7}], v9, s[{srda}:{srda+3}], s{soff} offen sc1\ns_add_u32 s{soff}, s{soff}, 16384"]
    for s in range(D0):
        for l in issue(): a(l)
    for s in range(NK):
        a(f"s_waitcnt vmcnt({2*(issued[0] - 1 - s)})")
        nxt = issue() if (issued[0] - s) < DR else []
        R = ab(s); k = 0
        for wt in range(2):
            for at in range(2):
                acc = 64 + 32 * wt + 16 * at
                wq = f"a[{8*s+4*wt}:{8*s+4*wt+3}]"; aq = f"v[{R+4*at}:{R+4*at+3}]"
                cc = "0" if s == 0 else f"v[{acc}:{acc+15}]"
                if which == 1: a(f"v_mfma_f32_32x32x16_bf16 v[{acc}:{acc+15}], {wq}, {aq}, {cc}")
                else: a(f"v_mfma_f32_32x32x16_bf16 v[{acc}:{acc+15}], {aq}, {wq}, {cc}")
                if k == 0 and nxt: a(nxt[0])
                if k == 2 and nxt: a(nxt[1])
                k += 1

def check8(R, T):
    return [f"v_max3_u32 v{T}, v{R}, v{R+1}, v{R+2}", f"v_max3_u32 v{T}, v{T}, v{R+3}, v{R+4}", f"v_max3_u32 v{T}, v{T}, v{R+5}, v{R+6}",
            f"v_max_u32 v{T}, v{T}, v{R+7}", f"v_cmp_eq_u32 vcc, -1, v{T}"]

SPIN_MAX = 0x20000
def probe_spin(a, srd_, vaddr, soff_sgpr, first_wait=None):
    l = newlbl("pr")
    a("s_mov_b32 s61, 0")
    if first_wait is not None:
        a(f"s_waitcnt vmcnt({first_wait})")
        a("v_cmp_eq_u32 vcc, -1, v14")
        a(f"s_cbranch_vccz {l}_ok")
    a.label(l)
    a(f"buffer_load_dword v14, v{vaddr}, s[{srd_}:{srd_+3}], s{soff_sgpr} offen sc1")
    a("s_add_u32 s61, s61, 1")
    a("s_waitcnt vmcnt(0)")
    a("v_cmp_eq_u32 vcc, -1, v14")
    a(f"s_cbranch_vccz {l}_ok")
    a(f"s_cmp_lt_u32 s61, {SPIN_MAX}")
    a(f"s_cbranch_scc1 {l}")
    a.label(l + "_ok")

RETRY = []
def main_loop2(a, which, srda, sbase, D0, shadow=()):
    NK = 32 if which == 1 else 28
    DR = 14
    ab = lambda s: 128 + 8 * (s % DR)
    a(f"s_mov_b32 s73, s{sbase}")
    issued = [0]
    def issue():
        s = issued[0]
        if s >= NK: return []
        R = ab(s); issued[0] += 1
        return [f"buffer_load_dwordx4 v[{R}:{R+3}], v8, s[{srda}:{srda+3}], s73 offen sc1",
                f"buffer_load_dwordx4 v[{R+4}:{R+7}], v9, s[{srda}:{srda+3}], s73 offen sc1\ns_add_u32 s73, s73, 16384"]
    def retry(t):
        lr, lb = newlbl("rt"), newlbl("rb")
        R = ab(t)
        blk = [lr + ":", "s_mov_b32 s61, 0", f"s_add_u32 s62, s{sbase}, {t*16384}", lr + "_l:",
               f"buffer_load_dwordx4 v[{R}:{R+3}], v8, s[{srda}:{srda+3}], s62 offen sc1",
               f"buffer_load_dwordx4 v[{R+4}:{R+7}], v9, s[{srda}:{srda+3}], s62 offen sc1",
               "s_add_u32 s61, s61, 1", "s_waitcnt vmcnt(0)"] + check8(R, 12) + \
              [f"s_cbranch_vccz {lb}", f"s_cmp_lt_u32 s61, {SPIN_MAX}", f"s_cbranch_scc1 {lr}_l", f"s_branch {lb}"]
        RETRY.extend(blk)
        return lr, lb
    for s in range(D0):
        for l in issue(): a(l)
    a(f"s_waitcnt vmcnt({2*(issued[0] - 1)})")
    for l in check8(ab(0), 12): a(l)
    lr, lb = retry(0)
    a(f"s_cbranch_vccnz {lr}")
    a.label(lb)
    for s in range(NK):
        nxt = issue() if (issued[0] - s) < DR and (issued[0] - s) <= D0 else []
        R = ab(s); k = 0
        for wt in range(2):
            for at in range(2):
                acc = 64 + 32 * wt + 16 * at
                wq = f"a[{8*s+4*wt}:{8*s+4*wt+3}]"; aq = f"v[{R+4*at}:{R+4*at+3}]"
                cc = "0" if s == 0 else f"v[{acc}:{acc+15}]"
                if which == 1: a(f"v_mfma_f32_32x32x16_bf16 v[{acc}:{acc+15}], {wq}, {aq}, {cc}")
                else: a(f"v_mfma_f32_32x32x16_bf16 v[{acc}:{acc+15}], {aq}, {wq}, {cc}")
                if k == 0 and nxt: a(nxt[0])
                if k == 1:
                    if nxt: a(nxt[1])
                    if s + 1 < NK:
                        a(f"s_waitcnt vmcnt({2*(issued[0] - 1 - (s + 1))})")
                        for l in check8(ab(s + 1), 12): a(l)
                k += 1
        if s >= 2 and shadow:
            for l in shadow[:4]: a(l)
            shadow = shadow[4:]
        if s + 1 < NK:
            lr, lb = retry(s + 1)
            a("s_nop 2")
            a(f"s_cbranch_vccnz {lr}")
            a.label(lb)

def reduce_write(a):
    a("v_lshlrev_b32 v13, 4, v2")
    for j in (1, 2, 3):
        wt, at = j >> 1, j & 1
        acc = 64 + 32 * wt + 16 * at
        a(f"s_xor_b32 s60, s{S_WAVE}, {j}")
        a(f"s_mul_i32 s60, s60, {3*4096}")
        a(f"s_add_u32 s60, s60, {(j-1)*4096}")
        a(f"v_add_u32 v14, s60, v13")
        for g in range(4):
            a(f"ds_write_b128 v14, v[{acc+4*g}:{acc+4*g+3}] offset:{g*1024}")

def reduce_read(a):
    a(f"s_mul_i32 s60, s{S_WAVE}, {3*4096}")
    a("v_add_u32 v14, s60, v13")
    for j in range(3):
        for g in range(4):
            a(f"ds_read_b128 v[{128+16*j+4*g}:{131+16*j+4*g}], v14 offset:{j*4096+g*1024}")
    P = lambda b, r: f"v[{b+r}:{b+r+1}]"
    a("s_waitcnt lgkmcnt(8)")
    for r in range(0, 16, 2): a(f"v_pk_add_f32 {P(64,r)}, {P(64,r)}, {P(128,r)}")
    a("s_waitcnt lgkmcnt(0)")
    for r in range(0, 16, 2): a(f"v_pk_add_f32 {P(144,r)}, {P(144,r)}, {P(160,r)}")
    for r in range(0, 16, 2): a(f"v_pk_add_f32 {P(128,r)}, {P(64,r)}, {P(144,r)}")

def gelu16(a, X, T):
    a("s_mov_b32 s66, 0x3d372713")
    a("s_mov_b32 s67, 0x3d372713")
    kk = -2.0 * 1.4426950408889634 * 0.7978845608028654
    kb = hex(struct.unpack('<I', struct.pack('<f', kk))[0])
    a(f"s_mov_b32 s68, {kb}"); a(f"s_mov_b32 s69, {kb}")
    P = lambda b, r: f"v[{b+r}:{b+r+1}]"
    for r in range(0, 16, 2): a(f"v_pk_mul_f32 {P(T,r)}, {P(X,r)}, {P(X,r)}")
    for r in range(0, 16, 2): a(f"v_pk_mul_f32 {P(T,r)}, {P(T,r)}, s[66:67]")
    for r in range(0, 16, 2): a(f"v_pk_fma_f32 {P(T,r)}, {P(T,r)}, {P(X,r)}, {P(X,r)}")
    for r in range(0, 16, 2): a(f"v_pk_mul_f32 {P(T,r)}, {P(T,r)}, s[68:69]")
    for r in range(16): a(f"v_exp_f32 v{T+r}, v{T+r}")
    for r in range(16): a(f"v_add_f32 v{T+r}, 1.0, v{T+r}")
    for r in range(16): a(f"v_rcp_f32 v{T+r}, v{T+r}")
    for r in range(0, 16, 2): a(f"v_pk_mul_f32 {P(X,r)}, {P(X,r)}, {P(T,r)}")

def epi1_loads(a):
    a(f"s_lshr_b32 s61, s{S_WAVE}, 1")
    a(f"s_lshl_b32 s72, s{S_FJ}, 6")
    a("s_lshl_b32 s64, s61, 5")
    a("s_add_u32 s72, s72, s64")
    a("s_lshl_b32 s64, s72, 1")
    a("v_lshlrev_b32 v15, 3, v6")
    a("v_add_u32 v15, s64, v15")
    for g in range(4):
        a(f"global_load_dwordx2 v[{20+2*g}:{21+2*g}], v15, s[{S_B1}:{S_B1+1}] offset:{16*g}")

def epi1_shadow():
    l = []
    for g in range(4):
        l += [f"v_lshlrev_b32 v{28+4*g}, 16, v{20+2*g}", f"v_and_b32 v{29+4*g}, 0xffff0000, v{20+2*g}",
              f"v_lshlrev_b32 v{30+4*g}, 16, v{21+2*g}", f"v_and_b32 v{31+4*g}, 0xffff0000, v{21+2*g}"]
    return l

def epi1(a):
    P = lambda b, r: f"v[{b+r}:{b+r+1}]"
    a("s_lshr_b32 s64, s72, 4")
    a("s_lshl_b32 s64, s64, 14")
    a(f"s_lshl_b32 s65, s{S_T1}, 10")
    a("s_add_u32 s64, s64, s65")
    a(f"s_and_b32 s62, s{S_WAVE}, 1")
    a("s_lshl_b32 s65, s62, 9")
    a("s_add_u32 s64, s64, s65")
    a("s_add_u32 s65, s64, 16384")
    reduce_read(a)
    for r in range(0, 16, 2): a(f"v_cvt_pk_bf16_f32 v{144+r//2}, v{128+r}, v{129+r}")
    for r in range(0, 16, 2):
        a(f"v_lshlrev_b32 v{128+r}, 16, v{144+r//2}")
        a(f"v_and_b32 v{129+r}, 0xffff0000, v{144+r//2}")
    for r in range(0, 16, 2): a(f"v_pk_add_f32 {P(128,r)}, {P(128,r)}, {P(28,r)}")
    for r in range(0, 16, 2): a(f"v_cvt_pk_bf16_f32 v{144+r//2}, v{128+r}, v{129+r}")
    for r in range(0, 16, 2):
        a(f"v_lshlrev_b32 v{128+r}, 16, v{144+r//2}")
        a(f"v_and_b32 v{129+r}, 0xffff0000, v{144+r//2}")
    gelu16(a, 128, 160)
    for r in range(0, 16, 2): a(f"v_cvt_pk_bf16_f32 v{144+r//2}, v{128+r}, v{129+r}")
    a("; GSTORE")
    a(f"buffer_store_dwordx4 v[144:147], v10, s[{SRD_G2}:{SRD_G2+3}], s64 offen sc1")
    a(f"buffer_store_dwordx4 v[148:151], v10, s[{SRD_G2}:{SRD_G2+3}], s65 offen sc1")

OT = 131072
def epi2_loads(a):
    a(f"s_lshr_b32 s61, s{S_WAVE}, 1")
    a(f"s_lshl_b32 s63, s{S_SJ}, 6")
    a("s_lshl_b32 s64, s61, 5")
    a("s_add_u32 s64, s64, s63")
    a("v_add_u32 v15, s64, v7")
    a("v_lshlrev_b32 v17, 1, v15")
    a(f"global_load_ushort v18, v17, s[{S_B2}:{S_B2+1}]")
    a("v_lshrrev_b32 v15, 3, v0")
    a("v_add_u32 v15, s63, v15")
    a("v_lshlrev_b32 v16, 10, v15")
    a("v_and_b32 v15, 7, v0")
    a("v_lshl_add_u32 v16, v15, 4, v16")
    a(f"s_lshl_b32 s70, s{S_T2}, 7")
    a("s_add_u32 s74, s70, 32768")
    a(f"buffer_load_dwordx4 v[20:23], v16, s[{SRD_H}:{SRD_H+3}], s70 offen sc1")
    a(f"buffer_load_dwordx4 v[24:27], v16, s[{SRD_H}:{SRD_H+3}], s74 offen sc1")

def epi2_shadow():
    l = ["v_lshlrev_b32 v18, 16, v18", "v_mov_b32 v19, v18"]
    for i in range(8):
        l += [f"v_lshlrev_b32 v{28+2*i}, 16, v{20+i}", f"v_and_b32 v{29+2*i}, 0xffff0000, v{20+i}"]
    l += [f"s_lshr_b32 s75, s{S_WAVE}, 1", "s_lshl_b32 s75, s75, 5", "v_add_u32 v44, s75, v7", "v_mul_u32_u24 v44, 144, v44", "v_lshl_add_u32 v44, v6, 6, v44",
          f"s_and_b32 s75, s{S_WAVE}, 1", "s_lshl_b32 s75, s75, 3", f"s_add_u32 s75, s75, {OT}", "v_add_u32 v44, s75, v44",
          "v_lshrrev_b32 v45, 3, v0", "v_mul_u32_u24 v45, 144, v45", "v_and_b32 v46, 7, v0", "v_lshl_add_u32 v45, v46, 4, v45", f"v_add_u32 v45, {OT}, v45"]
    return l

def epi2(a):
    P = lambda b, r: f"v[{b+r}:{b+r+1}]"
    reduce_read(a)
    for r in range(4):
        a(f"v_cvt_pk_bf16_f32 v{144+2*r}, v{128+r}, v{132+r}")
        a(f"v_cvt_pk_bf16_f32 v{145+2*r}, v{136+r}, v{140+r}")
    for i in range(8):
        a(f"v_lshlrev_b32 v{160+2*i}, 16, v{144+i}")
        a(f"v_and_b32 v{161+2*i}, 0xffff0000, v{144+i}")
    for r in range(0, 16, 2): a(f"v_pk_add_f32 {P(160,r)}, {P(160,r)}, v[18:19]")
    for i in range(8): a(f"v_cvt_pk_bf16_f32 v{144+i}, v{160+2*i}, v{161+2*i}")
    for r in range(4): a(f"ds_write_b64 v44, v[{144+2*r}:{145+2*r}] offset:{16*r}")
    a("s_waitcnt lgkmcnt(0)")
    a("s_barrier")
    a("ds_read_b128 v[144:147], v45")
    a(f"ds_read_b128 v[148:151], v45 offset:{32*144}")
    a("s_waitcnt lgkmcnt(0)")
    for i in range(8):
        a(f"v_lshlrev_b32 v{160+2*i}, 16, v{144+i}")
        a(f"v_and_b32 v{161+2*i}, 0xffff0000, v{144+i}")
    for r in range(0, 16, 2): a(f"v_pk_add_f32 {P(160,r)}, {P(160,r)}, {P(28,r)}")
    for i in range(8): a(f"v_cvt_pk_bf16_f32 v{144+i}, v{160+2*i}, v{161+2*i}")
    a(f"buffer_store_dwordx4 v[144:147], v16, s[{SRD_OUT}:{SRD_OUT+3}], s70 offen {OUTMOD}")
    a(f"buffer_store_dwordx4 v[148:151], v16, s[{SRD_OUT}:{SRD_OUT+3}], s74 offen {OUTMOD}")

D0_G1, D0_G2 = 5, 5
NPRE = 14
NOCOPY = True
RETOUCH = True
RETOUCH0 = True
OUTMOD = 'sc1'
NOBGCONV = False
TOUCH = True
SJROT = 0
TOUCHREV = False
REMAP = False
ALIGN = True
CODEPF = True
def gen_fused(a):
    kernel_header(a, KNAME)
    stamp_begin(a)
    if DBGST is not None or DIAG_THR: a("s_memrealtime s[98:99]")
    a("s_cmp_ge_u32 s2, 256")
    a("s_cbranch_scc1 L_exit")
    if REMAP:
        a("s_and_b32 s4, s2, 7"); a("s_lshl_b32 s4, s4, 5"); a("s_lshr_b32 s2, s2, 3"); a("s_or_b32 s2, s2, s4")
    prologue(a)
    ln1(a)
    st(a, "LN1 done (stores issued)", 250)
    a("s_and_b32 s60, s2, 3")
    a("s_lshl_b32 s60, s60, 6")
    arrive(a, 8, 60, lo_only=True)
    st(a, "B1 arrived", 250)
    a(f"s_waitcnt vmcnt({min(len(HIQ), 2) if False else len(HIQ)})")
    bulk(a, "P2")
    kgen(a)
    st(a, "Kgen done", 250)
    ring_base(a, 20480, RING_A)
    woff_init(a, 1, S_FJ)
    conv_u_writes(a, 0)
    conv_main(a)
    st(a, "conv epilogue done (stores issued)")
    lw, lw2 = newlbl("ws"), newlbl("ws")
    a(f"s_cmp_lt_u32 s{S_WAVE}, 2")
    a(f"s_cbranch_scc1 {lw}")
    a("s_waitcnt vmcnt(0)")
    a(f"s_branch {lw2}")
    a.label(lw)
    a("s_waitcnt vmcnt(4)")
    lq = newlbl("pq")
    a(f"s_cmp_lg_u32 s{S_WAVE}, 0")
    a(f"s_cbranch_scc1 {lw2}")
    a("v_cmp_gt_u32 vcc, 32, v51")
    a(f"s_cbranch_vccz {lw2}")
    a(f"s_mov_b32 s60, {SYNC_OFF + 8*128}")
    poll(a, 6, 60, 8, 7, 32)
    a.label(lw2)
    tr_to_acc(a, 1, range(0, 10), 0)
    a("s_waitcnt lgkmcnt(0)")
    a("s_barrier")
    ring_base(a, 28672, 25600)
    ln2_addr(a)
    dma_issue(a, 1, 8, 0)
    ln2_issue(a)
    dma_issue(a, 1, 6, 8)
    st(a, "w1 DMA B issued")
    ln2_loads(a, 12)
    st(a, "YA ready")
    if NOCOPY and RETOUCH0:
        a(f"s_mul_i32 s60, s{S_WAVE}, 448")
        a(f"s_and_b32 s61, s{S_T2}, 3")
        a("s_mul_i32 s61, s61, 56")
        a("s_add_u32 s60, s60, s61")
        a("v_min_u32 v13, 55, v2")
        a("v_add_u32 v13, s60, v13")
        a("v_lshlrev_b32 v13, 12, v13")
        a(f"s_lshl_b32 s60, s{S_SJ}, 7")
        a(f"buffer_load_dword a199, v13, s[{SRD_W2}:{SRD_W2+3}], s60 offen")
    a(f"v_subrev_u32 v{V_PW}, {PL}, v{V_PW}")
    a(f"v_subrev_u32 v{V_PR}, {PL}, v{V_PR}")
    ln2_planes_in(a)
    a("s_waitcnt lgkmcnt(0)")
    a("s_barrier")
    def trgrp(sidx, slot, va=246, vb=247, rho=512):
        o = slot * 2048
        return [f"ds_read_b64_tr_b16 a[{8*sidx}:{8*sidx+1}], v{va} offset:{o}", f"ds_read_b64_tr_b16 a[{8*sidx+2}:{8*sidx+3}], v{va} offset:{o+rho}",
                f"ds_read_b64_tr_b16 a[{8*sidx+4}:{8*sidx+5}], v{vb} offset:{o}", f"ds_read_b64_tr_b16 a[{8*sidx+6}:{8*sidx+7}], v{vb} offset:{o+rho}"]
    grp = [trgrp(10 + i, i) for i in range(8)]
    d2 = dma_groups(1, 8, 0)
    d2[0] = ["s_waitcnt lgkmcnt(0)"] + d2[0]
    grp2 = [trgrp(18 + i, 8 + i) for i in range(6)]
    mix = list(grp)
    k2 = 0
    for i, g_ in enumerate(d2):
        mix.append(g_)
        if i % 2 == 1 and k2 < len(grp2): mix.append(grp2[k2]); k2 += 1
    mix += grp2[k2:]
    with_bg(a, lambda: ln2_compute(a), mix, skip=14, stride=8, before="BGSTOP")
    st(a, "LN2 done (stores issued)")
    for i in range(24, 32):
        for l in trgrp(i, i - 24): a(l)
        if i % 3 == 2: a("s_waitcnt lgkmcnt(4)")
    a(f"s_mul_i32 s71, s{S_WAVE}, {32*16384}")
    a(f"s_lshl_b32 s60, s{S_T1}, 10")
    a("s_add_u32 s71, s71, s60")
    a("v_lshlrev_b32 v15, 13, v2")
    a("v_add_u32 v15, 1020, v15")
    gemm_lane_consts(a)
    dma_setup(a, 2)
    a("s_waitcnt lgkmcnt(0)")
    a("s_barrier")
    ring_base(a, 28672, RED_BYTES)
    woff_init(a, 2, S_SJ)
    dma_issue(a, 2, NPRE - 5, 0)
    a(f"buffer_load_dword v14, v15, s[{SRD_HN}:{SRD_HN+3}], s71 offen sc1")
    dma_issue(a, 2, 5, NPRE - 5)
    if NOCOPY and RETOUCH:
        a(f"s_mul_i32 s60, s{S_WAVE}, 448")
        a(f"s_and_b32 s61, s{S_T2}, 3")
        a("s_mul_i32 s61, s61, 56")
        a("s_add_u32 s60, s60, s61")
        a("s_add_u32 s60, s60, 224")
        a("v_min_u32 v13, 55, v2")
        a("v_add_u32 v13, s60, v13")
        a("v_lshlrev_b32 v13, 12, v13")
        a(f"s_lshl_b32 s60, s{S_SJ}, 7")
        a(f"buffer_load_dword v11, v13, s[{SRD_W2}:{SRD_W2+3}], s60 offen")
    st(a, "w2 DMA A issued")
    a("s_cmp_ge_u32 s2, 224")
    a("s_cbranch_scc1 L_skipG1")
    probe_spin(a, SRD_HN, 15, 71, first_wait=(11 if (NOCOPY and RETOUCH) else 10))
    st(a, "HN probe ok")
    epi1_loads(a)
    a("s_waitcnt lgkmcnt(0)")
    a("s_barrier")
    main_loop2(a, 1, SRD_HN, 71, D0_G1, shadow=epi1_shadow())
    st(a, "G1 main done")
    reduce_write(a)
    tr_to_acc(a, 2, range(NPRE), 0)
    a("s_waitcnt lgkmcnt(0)")
    a("s_barrier")
    g = dma_groups(2, 14, 0)
    with_bg(a, lambda: epi1(a), g[:8], skip=30, stride=14, before="GSTORE")
    for grp in g[8:]:
        for l in grp: a(l)
    st(a, "epi1 done (stores issued)")
    dma_issue(a, 2, 28 - NPRE - 14, 14) if 28 - NPRE - 14 > 0 else None
    a("s_branch L_stage2")
    a.label("L_skipG1")
    a("s_waitcnt vmcnt(0) lgkmcnt(0)")
    tr_to_acc(a, 2, range(NPRE), 0)
    a("s_waitcnt lgkmcnt(0)")
    dma_issue(a, 2, 28 - NPRE, 0)
    a.label("L_stage2")
    a(f"s_mul_i32 s71, s{S_WAVE}, {28*16384}")
    a(f"s_lshl_b32 s60, s{S_T2}, 10")
    a("s_add_u32 s71, s71, s60")
    a("v_min_u32 v15, 55, v2")
    a("v_lshlrev_b32 v15, 13, v15")
    a("v_add_u32 v15, 1020, v15")
    a("s_waitcnt vmcnt(0)")
    a(f"buffer_load_dword v14, v15, s[{SRD_G2}:{SRD_G2+3}], s71 offen sc1")
    tr_to_acc(a, 2, range(NPRE, 28), 0)
    st(a, "w2 staged")
    probe_spin(a, SRD_G2, 15, 71, first_wait=0)
    st(a, "G probe ok")
    epi2_loads(a)
    a("s_waitcnt lgkmcnt(0)")
    a("s_barrier")
    main_loop2(a, 2, SRD_G2, 71, D0_G2, shadow=epi2_shadow())
    st(a, "G2 main done")
    reduce_write(a)
    a("s_waitcnt lgkmcnt(0)")
    a("s_barrier")
    epi2(a)
    a("s_waitcnt vmcnt(0)") if STAMPON() else None
    st(a, "end", final=True)
    if DIAG_THR:
        a("s_cmp_lg_u32 s2, 0")
        a("s_cbranch_scc1 L_exit")
        a("s_waitcnt vmcnt(0)")
        a("s_memrealtime s[96:97]")
        a("s_waitcnt lgkmcnt(0)")
        a("s_sub_u32 s94, s96, s98")
        a(f"s_cmp_lt_u32 s94, {DIAG_THR}")
        a("s_cbranch_scc1 L_exit")
        a("s_add_u32 s95, s96, 6000")
        a.label("L_diag")
        a("s_memrealtime s[96:97]")
        a("s_waitcnt lgkmcnt(0)")
        a("s_sub_u32 s94, s95, s96")
        a("s_cmp_gt_i32 s94, 0")
        a("s_cbranch_scc1 L_diag")
    a.label("L_exit")
    a("s_endpgm")
    for l in RETRY: a.lines.append(l)
    a.label("L_code_end")
    a("s_endpgm")
    return kernel_desc(KNAME, 512, 100, accum=256)

def touch_setup(a):
    a("s_and_b32 s60, s2, 7")
    a("s_lshr_b32 s60, s60, 1")
    a("s_lshr_b32 s61, s2, 3")
    a(f"s_and_b32 s62, s{S_WAVE}, 1")
    a("s_lshl_b32 s62, s62, 9")
    a("s_lshl_b32 s63, s61, 6")
    a(f"v_add_u32 v{V_TW1}, s63, v2")
    a(f"v_mul_u32_u24 v{V_TW1}, 3584, v{V_TW1}")
    a("s_mul_i32 s63, s60, 896")
    a("s_add_u32 s63, s63, s62")
    a(f"v_add_u32 v{V_TW1}, s63, v{V_TW1}")
    a("s_mul_i32 s79, s2, 28672")
    a(f"s_and_b32 s61, s{S_WAVE}, 1")
    a("s_mul_i32 s61, s61, 14336")
    a("s_add_u32 s79, s79, s61")

BULK = {"P0": ["T0"], "P1": ["T1"], "P2": ["T2"], "P3": ["F0", "F1", "T3"], "P4": ["F2", "F3"], "P5": ["F4", "F5"], "c4": ["U0"], "c7": ["U1"], "c10": ["U2"], "c13": ["U3"]}
HIQ = []
def hi_younger(tag):
    idx = max(i for i, t in enumerate(HIQ) if t == tag)
    return len(HIQ) - 1 - idx
def bulk(a, slot):
    ops = BULK.get(slot, [])
    if not ops: return
    for op in ops:
        if op[0] == "F":
            prefill_op(a, int(op[1:])); HIQ.append(op)
    ops = [o for o in ops if o[0] != "F"]
    if not TOUCH: ops = [o for o in ops if o[0] != "T"]
    if not ops: return
    l = newlbl("bk")
    a(f"s_cmp_lt_u32 s{S_WAVE}, 2")
    a(f"s_cbranch_scc1 {l}")
    for op in ops:
        k = int(op[1:])
        if op[0] == "T":
            if k == 3:
                l3 = newlbl("t3")
                a(f"s_cmp_eq_u32 s{S_WAVE}, 3"); a(f"s_cbranch_scc0 {l3}")
                a(f"v_readfirstlane_b32 s74, v{V_TW1}"); a(f"v_mov_b32 v{V_TW1}, s74")
                a.label(l3)
            a(f"buffer_load_dword a199, v{V_TW1}, s[{SRD_W1}:{SRD_W1+3}], 0 offen offset:{128*k}"); HIQ.append(op)
        elif op[0] == "U":
            if k == 0:
                a("s_and_b32 s74, s2, 7"); a("s_lshr_b32 s74, s74, 1"); a("s_lshl_b32 s74, s74, 10")
                a(f"s_and_b32 s75, s{S_WAVE}, 1"); a("s_lshl_b32 s75, s75, 9"); a("s_add_u32 s74, s74, s75")
                a("s_lshr_b32 s75, s2, 3"); a("s_mul_i32 s75, s75, 56")
                a(f"v_min_u32 v{V_TW2}, 55, v2"); a(f"v_add_u32 v{V_TW2}, s75, v{V_TW2}"); a(f"v_lshlrev_b32 v{V_TW2}, 12, v{V_TW2}"); a(f"v_add_u32 v{V_TW2}, s74, v{V_TW2}")
            a(f"buffer_load_dword a199, v{V_TW2}, s[{SRD_W2}:{SRD_W2+3}], 0 offen offset:{128*k}"); HIQ.append(op)
        elif op[0] == "C":
            a("v_lshlrev_b32 v255, 4, v2")
            for i in (2 * k, 2 * k + 1):
                a(f"buffer_load_dwordx4 a[{A_CP+4*i}:{A_CP+4*i+3}], v255, s[{SRD_W2}:{SRD_W2+3}], s79 offen offset:{(i%4)*1024}")
                if i % 4 == 3: a("s_add_u32 s79, s79, 4096")
                HIQ.append("C")
        else:
            if k == 0:
                a(f"s_waitcnt vmcnt({hi_younger('C')})")
                w2copy_dst(a)
            for x in w2copy_store(a, k): a(x)
            HIQ.append("S")
    a.label(l)

A_CP = 200
def w2copy_dst(a):
    a("v_lshrrev_b32 v245, 3, v2")
    a(f"s_mov_b32 s74, {W2R_TILE}")
    a("v_mul_lo_u32 v245, v245, s74")
    a(f"v_and_b32 v{V_TW2}, 7, v2")
    a(f"v_lshl_add_u32 v{V_TW2}, v{V_TW2}, 4, v245")
    a(f"s_and_b32 s69, s{S_WAVE}, 1")
    a("s_mul_i32 s68, s2, 896")

def w2copy_store(a, i):
    off = lambda m: (m % 4) * 8 * W2R_TILE + (m // 4) * 128
    return [f"s_mov_b32 s74, {off(14 + i) - off(i)}",
            f"s_mul_i32 s74, s74, s69",
            f"s_add_u32 s74, s74, s68",
            f"s_add_u32 s74, s74, {off(i)}",
            f"buffer_store_dwordx4 a[{A_CP+4*i}:{A_CP+4*i+3}], v{V_TW2}, s[{SRD_W2R}:{SRD_W2R+3}], s74 offen sc1"]

def build(path):
    a = Asm()
    hdr = open("cdna_kernels/" + NAME + ".s.ref").read().split("; Override launch geometry")[0]
    txt = hdr + f"; @launch grid=(256,1,1) block=(256,1,1) lds={LDS_TOTAL}\n" + '.amdgcn_target "amdgcn-amd-amdhsa--gfx950"\n'
    d = gen_fused(a)
    body = a.finalize()
    if ALIGN:
        import asmlib
        body, np_, nn_ = asmlib.align8(body)
        print("align8: promoted", np_, "nops", nn_)
    txt += body + d
    open(path, "w").write(txt)
    open(path + ".names", "w").write("".join(f"{k} {v}\n" for k, v in ST_NAMES.items()))

if __name__ == "__main__":
    import sys, common
    if "--stamp" in sys.argv:
        common.STAMP = True; sys.argv.remove("--stamp")
    if "--notouch" in sys.argv: TOUCH = False
    if "--remap" in sys.argv: REMAP = True
    for x in sys.argv:
        if x.startswith("--bulk="): BULK = eval(x[7:])
        if x.startswith("--thr="): DIAG_THR = int(x[6:])
        if x == "--nobgconv": NOBGCONV = True
        if x == "--nort0": RETOUCH0 = False
        if x.startswith("--outmod="): OUTMOD = x[9:]
        if x == "--nocopy":
            NOCOPY = True
            BULK = {"P0": ["T0"], "P1": ["T1"], "P2": ["T2"], "P3": ["F0", "F1", "T3"], "P4": ["F2", "F3"], "P5": ["F4", "F5"], "c4": ["U0"], "c7": ["U1"], "c10": ["U2"], "c13": ["U3"]}
        if x.startswith("--d0="): D0_G1 = D0_G2 = int(x[5:])
    if "--sjrot" in sys.argv: SJROT = 2
    if "--touchrev" in sys.argv: TOUCHREV = True
    if "--noalign" in sys.argv: ALIGN = False
    if "--nocodepf" in sys.argv: CODEPF = False
    if "--dbgst" in sys.argv:
        DBGST = ["LN1 done (stores issued)", "B1 arrived", "Kgen done", "B1 passed", "conv start (U in LDS)", "conv main done", "B2 arrived", "B2 passed",
                 "LN2 done (stores issued)", "B3 passed", "G1 main done", "B4 arrived", "B4 passed", "G2 main done", "end"]
    build(sys.argv[1])
```

```python
from common import *
from k1 import cmul, wave_max, G_ROW, H_BASE, FT_BASE, FT_DUMMY
import struct

KNAME = NAME + "_kernel"
KG_CH = 27984
FT_AREA = 2 * KG_CH
KC_BASE = 0
KC_STRIDE = 4160
KCH = 4 * KC_STRIDE
U_BASE = KC_BASE + 2 * KCH
U_CH = 95 * 80
LDS_TOTAL = 163840
FT_ZERO = 2060
RED_BYTES = 49152
D_RING = 8
S_WAVE, S_Q0 = 10, 11
SRD_X, SRD_U2, SRD_YA, SRD_H, SRD_HN, SRD_G2, SRD_W1, SRD_W2, SRD_OUT = 12, 16, 20, 24, 28, 32, 36, 40, 44
SRD_W2R = 80
S_B1, S_B2 = 48, 50
S_SCALE, S_DSK = 52, 53
S_T1, S_FJ, S_T2, S_SJ = 54, 55, 56, 57
S_WOFF, S_RING = 58, 59
SM, SR = 84, 86
C_B2, C_B3, C_B4 = 0, 8, 16
KIDX = 0
S_TB = 5
VX = 224
V_KROW, V_KA, V_KB, V_KSC, V_KDST = 232, 233, 234, 235, 239
V_CA, V_CB = 248, 249
V_PW, V_PR, V_US = 252, 253, 254
V_TW1, V_TW2 = 1, 30
PL = 67744
RING_A = 76960
RED_CONV = 48640
PL1 = PL2 = 0
YB = 16384

ST_NAMES = {}
DIAG_THR = 0
DBGST = None
_st = [2]
def st(a, name, vt=60, final=False):
    if DBGST is not None:
        if name in DBGST:
            k = DBGST.index(name) + 1
            l = newlbl("ds")
            a("s_memrealtime s[96:97]")
            a(f"s_or_b32 s94, s2, s{S_WAVE}")
            a("s_cmp_lg_u32 s94, 0")
            a("s_waitcnt lgkmcnt(0)")
            a(f"s_cbranch_scc1 {l}")
            a("s_sub_u32 s96, s96, s98")
            a(f"v_mov_b32 v{vt}, {4*k}")
            a(f"v_mov_b32 v{vt+1}, s96")
            a(f"global_store_dword v{vt}, v{vt+1}, s[8:9]")
            a.label(l)
        return
    slot = 1 if final else _st[0]
    if not final: _st[0] += 1
    ST_NAMES[slot] = name
    stamp(a, KIDX, slot, 6, vt)

def evalE(a, D, v, zr, zi, t, conj=False):
    bits = struct.unpack('<I', struct.pack('<f', float(v)))[0]
    a(f"s_mov_b32 s78, {hex(bits)}")
    a(f"v_mul_f32 v{t}, s78, v{zr}")
    a(f"v_mul_f32 v{t+1}, s78, v{zi}")
    a(f"v_exp_f32 v{t}, v{t}")
    a(f"v_rndne_f32 v{t+2}, v{t+1}")
    a(f"v_sub_f32 v{t+1}, v{t+1}, v{t+2}")
    a(f"v_cos_f32 v{D}, v{t+1}")
    a(f"v_sin_f32 v{D+1}, v{t+1}")
    a(f"v_mul_f32 v{D}, v{D}, v{t}")
    if conj: a(f"v_mul_f32 v{D+1}, -v{D+1}, v{t}")
    else: a(f"v_mul_f32 v{D+1}, v{D+1}, v{t}")

def pos2chan(a, sd, sq, t):
    a(f"s_and_b32 s{sd}, s{sq}, 0x1c0")
    a(f"s_and_b32 s{t}, s{sq}, 7")
    a(f"s_lshl_b32 s{t}, s{t}, 3")
    a(f"s_or_b32 s{sd}, s{sd}, s{t}")
    a(f"s_lshr_b32 s{t}, s{sq}, 3")
    a(f"s_and_b32 s{t}, s{t}, 7")
    a(f"s_or_b32 s{sd}, s{sd}, s{t}")

_lbl = [0]
def newlbl(p):
    _lbl[0] += 1
    return f"L_{p}{_lbl[0]}"

def arrive(a, base_sgpr_pair, off_sgpr, lo_only=False):
    if lo_only:
        l0 = newlbl("ad")
        a(f"s_cmp_ge_u32 s{S_WAVE}, 2")
        a(f"s_cbranch_scc1 {l0}")
        a("s_waitcnt vmcnt(0)")
        a.label(l0)
    else:
        a("s_waitcnt vmcnt(0)")
    a("s_barrier")
    l = newlbl("arr")
    a(f"s_cmp_lg_u32 s{S_WAVE}, 0")
    a(f"s_cbranch_scc1 {l}")
    a(f"v_mov_b32 v13, s{off_sgpr}")
    a("v_mov_b32 v14, 1")
    a("s_mov_b64 s[62:63], exec")
    a("s_mov_b64 exec, 1")
    a(f"global_atomic_add v13, v14, s[{base_sgpr_pair}:{base_sgpr_pair+1}] sc1")
    a("s_mov_b64 exec, s[62:63]")
    a.label(l)

def poll(a, base_sgpr_pair, off_sgpr, n, stride_log2, target):
    l = newlbl("poll")
    a(f"v_and_b32 v13, {n-1}, v2")
    a(f"v_lshlrev_b32 v13, {stride_log2}, v13")
    a(f"v_add_u32 v13, s{off_sgpr}, v13")
    a("s_mov_b32 s61, 0")
    a.label(l)
    a(f"global_load_dword v14, v13, s[{base_sgpr_pair}:{base_sgpr_pair+1}] sc1")
    a("s_waitcnt vmcnt(0)")
    a(f"v_cmp_gt_u32 vcc, {target}, v14")
    a("s_add_u32 s61, s61, 1")
    a(f"s_cbranch_vccz {l}_done")
    a("s_cmp_lt_u32 s61, 0x40000")
    a(f"s_cbranch_scc1 {l}")
    a.label(l + "_done")

def poll_wg(a, base_sgpr_pair, off_sgpr, n, stride_log2, target):
    l = newlbl("pw")
    a(f"s_cmp_lg_u32 s{S_WAVE}, 0")
    a(f"s_cbranch_scc1 {l}")
    poll(a, base_sgpr_pair, off_sgpr, n, stride_log2, target)
    a.label(l)
    a("s_barrier")

def prologue(a):
    a("s_load_dwordx16 s[64:79], s[0:1], 0")
    a("s_load_dwordx2 s[88:89], s[0:1], 64")
    a("s_load_dwordx4 s[80:83], s[0:1], 80")
    a("s_load_dwordx4 s[84:87], s[0:1], 96")
    a("s_load_dwordx4 s[60:63], s[0:1], 112")
    a("s_load_dwordx2 s[6:7], s[0:1], 128")
    a("v_lshrrev_b32 v1, 6, v0")
    a("v_and_b32 v2, 63, v0")
    a(f"v_readfirstlane_b32 s{S_WAVE}, v1")
    a("s_and_b32 s54, s2, 7")
    a("s_lshl_b32 s54, s54, 5")
    a("s_lshr_b32 s55, s2, 3")
    a(f"s_add_u32 s{S_TB}, s54, s55")
    a(f"s_lshl_b32 s{S_Q0}, s{S_TB}, 1")
    a(f"s_lshr_b32 s55, s{S_WAVE}, 1")
    a(f"s_add_u32 s56, s{S_Q0}, s55")
    pos2chan(a, 57, 56, 58)
    a("v_lshlrev_b32 v3, 4, v2")
    a(f"s_lshl_b32 s58, s{S_TB}, 13")
    a(f"s_lshl_b32 s59, s{S_WAVE}, 11")
    a("s_add_u32 s59, s59, s58")
    a(f"s_and_b32 s54, s{S_WAVE}, 1")
    a("s_lshl_b32 s54, s54, 7")
    a("s_lshl_b32 s55, s57, 8")
    a("s_add_u32 s54, s54, s55")
    a("v_lshl_add_u32 v12, v2, 1, s54")
    a("v_xor_b32 v13, 128, v12")
    a("s_waitcnt lgkmcnt(0)")
    stamp(a, KIDX, 0, 6, 250, first=True)
    srd(a, SRD_X, 64, 65, 0, 0x200000)
    a(f"buffer_load_dwordx4 v[{VX}:{VX+3}], v3, s[{SRD_X}:{SRD_X+3}], s59 offen")
    a(f"buffer_load_dwordx4 v[{VX+4}:{VX+7}], v3, s[{SRD_X}:{SRD_X+3}], s59 offen offset:1024")
    a("global_load_ushort v200, v12, s[66:67]")
    a("global_load_ushort v201, v12, s[68:69]")
    a("global_load_ushort v202, v12, s[70:71]")
    a("global_load_ushort v203, v12, s[72:73]")
    a("global_load_ushort v204, v12, s[74:75]")
    a("global_load_ushort v205, v12, s[76:77]")
    a("global_load_ushort v206, v13, s[70:71]")
    a("global_load_ushort v207, v13, s[72:73]")
    a("global_load_ushort v208, v13, s[74:75]")
    a("global_load_ushort v209, v13, s[76:77]")
    a("s_lshl_b32 s54, s57, 1")
    a("s_and_b32 s54, s54, 0xfffffffc")
    a("s_load_dword s52, s[78:79], s54")
    a("s_load_dword s53, s[88:89], s54")
    a("s_and_b32 s91, s57, 1")
    a(f"s_mov_b32 s8, s62"); a("s_mov_b32 s9, s63")
    srd(a, SRD_OUT, 60, 61, 0, 0x200000)
    srd(a, SRD_U2, 6, 7, U2_OFF, U2_SZ)
    srd(a, SRD_YA, 6, 7, YA_OFF, YA_SZ)
    srd(a, SRD_H, 6, 7, H_OFF, H_SZ)
    srd(a, SRD_HN, 6, 7, HN_OFF, HN_SZ)
    srd(a, SRD_G2, 6, 7, G2_OFF, G2_SZ)
    srd(a, SRD_W1, 80, 81, 0, 2048 * 3584)
    srd(a, SRD_W2, 84, 85, 0, 2048 * 3584)
    a(f"s_mov_b32 s{S_B1}, s82"); a(f"s_mov_b32 s{S_B1+1}, s83")
    a(f"s_mov_b32 s{S_B2}, s86"); a(f"s_mov_b32 s{S_B2+1}, s87")
    srd(a, SRD_W2R, 6, 7, W2R_OFF, W2R_SZ)
    l = newlbl("z")
    a(f"s_or_b32 s54, s2, s{S_WAVE}")
    a("s_cmp_lg_u32 s54, 0")
    a(f"s_cbranch_scc1 {l}")
    a("v_lshlrev_b32 v14, 7, v2")
    a(f"v_add_u32 v14, {SYNC_OFF}, v14")
    a("v_mov_b32 v15, 0")
    a("global_store_dword v14, v15, s[6:7] sc1")
    a.label(l)
    if CODEPF:
        l = newlbl("cpf")
        a(f"s_cmp_lg_u32 s{S_WAVE}, 3")
        a(f"s_cbranch_scc1 {l}")
        a("s_getpc_b64 s[54:55]")
        a.label("L_pcbase")
        a("v_lshlrev_b32 v14, 7, v2")
        a("s_mov_b32 s56, L_code_end-L_pcbase")
        for k in range(5):
            a("v_min_u32 v15, s56, v14")
            a(f"global_load_dword a198, v15, s[54:55]")
            if k < 4: a("v_add_u32 v14, 8192, v14")
        a.label(l)
    touch_setup(a)
    bulk(a, "P0")
    precompute(a)
    a("s_cmp_eq_u32 s91, 1")
    a("s_cselect_b32 s60, 0, 16")
    a("s_waitcnt lgkmcnt(0)")
    a("s_lshl_b32 s52, s52, s60"); a("s_and_b32 s52, s52, 0xffff0000")
    a("s_lshl_b32 s53, s53, s60"); a("s_and_b32 s53, s53, 0xffff0000")

V_ONES = 216
def prefill_op(a, k):
    if k == 0:
        for r in range(V_ONES, V_ONES + 4): a(f"v_mov_b32 v{r}, -1")
    D = f"v[{V_ONES}:{V_ONES+3}]"
    if k < 4:
        a(f"s_lshl_b32 s74, s{S_TB}, 13")
        if k % 2: a("s_add_u32 s74, s74, 4096")
        sr = SRD_YA if k < 2 else SRD_HN
        a(f"buffer_store_dwordx4 {D}, v{V_US}, s[{sr}:{sr+3}], s74 offen sc1")
    else:
        a(f"s_lshl_b32 s74, s{S_FJ}, 16")
        a(f"s_lshl_b32 s75, s{S_WAVE}, 13")
        a("s_add_u32 s74, s74, s75")
        a(f"s_lshl_b32 s75, s{S_T1}, 10")
        a("s_add_u32 s74, s74, s75")
        if k == 5: a("s_add_u32 s74, s74, 32768")
        a("v_lshlrev_b32 v220, 4, v2")
        a(f"buffer_store_dwordx4 {D}, v220, s[{SRD_G2}:{SRD_G2+3}], s74 offen sc1")

def precompute(a):
    a("v_lshrrev_b32 v4, 3, v2")
    a("v_mul_u32_u24 v4, 72, v4")
    a("v_and_b32 v5, 7, v2")
    a("v_add_u32 v4, v4, v5")
    a(f"s_mul_i32 s54, s{S_WAVE}, 576")
    a("v_add_u32 v4, s54, v4")
    a(f"v_lshlrev_b32 v{V_PW}, 2, v4")
    a(f"v_add_u32 v{V_PW}, {PL}, v{V_PW}")
    a(f"s_mul_i32 s54, s{S_WAVE}, 72")
    a("v_add_u32 v4, s54, v2")
    a(f"v_lshlrev_b32 v{V_PR}, 2, v4")
    a(f"v_add_u32 v{V_PR}, {PL}, v{V_PR}")
    a(f"v_lshlrev_b32 v{V_US}, 4, v0")
    a(f"s_lshr_b32 s60, s{S_WAVE}, 1")
    a(f"s_mul_i32 s60, s60, {KG_CH}")
    a(f"s_and_b32 s62, s{S_WAVE}, 1")
    a("s_lshl_b32 s61, s62, 8")
    a("s_add_u32 s61, s61, s60")
    a(f"v_lshl_add_u32 v{V_KROW}, v2, 2, s61")
    a("v_and_b32 v7, 15, v2")
    a("v_lshrrev_b32 v8, 4, v2")
    a(f"v_mul_u32_u24 v9, {G_ROW}, v7")
    a("v_lshl_add_u32 v9, v8, 4, v9")
    a(f"s_mul_i32 s63, s62, {16*G_ROW}")
    a("s_add_u32 s63, s63, s60")
    a(f"v_add_u32 v{V_KA}, s63, v9")
    a(f"s_add_u32 s63, s60, {H_BASE}")
    a(f"v_add_u32 v{V_KB}, s63, v9")
    a("v_lshlrev_b32 v16, 3, v7")
    a(f"s_lshr_b32 s63, s{S_WAVE}, 1")
    a("s_mul_i32 s63, s63, 5888")
    a(f"s_add_u32 s63, s63, {FT_AREA}")
    a(f"s_movk_i32 s54, {FT_DUMMY}")
    a("v_cmp_eq_u32 s[56:57], 1, v8")
    a("v_cmp_eq_u32 s[58:59], 2, v8")
    a("v_cmp_eq_u32 vcc, 3, v8")
    for r in range(4):
        m0_q2 = 256 + 2 * r
        m0_q3 = 512 + 4 * (r & 1) + 256 * (r >> 1)
        m1_q0 = 1024 + 256 * r
        m1_q1 = 2048 if r == 0 else FT_DUMMY
        R = V_KSC + r
        a("s_cmp_eq_u32 s62, 0")
        a(f"s_cselect_b32 s55, {r}, {m1_q0}")
        a(f"v_mov_b32 v{R}, s55")
        a(f"s_cselect_b32 s55, {4+r}, {m1_q1}")
        a("v_mov_b32 v18, s55")
        a(f"v_cndmask_b32 v{R}, v{R}, v18, s[56:57]")
        a(f"s_cselect_b32 s55, {m0_q2}, s54")
        a("v_mov_b32 v18, s55")
        a(f"v_cndmask_b32 v{R}, v{R}, v18, s[58:59]")
        a(f"s_cselect_b32 s55, {m0_q3}, s54")
        a("v_mov_b32 v18, s55")
        a(f"v_cndmask_b32 v{R}, v{R}, v18, vcc")
        a(f"v_add_u32 v{R}, v{R}, v16")
        a(f"v_lshrrev_b32 v18, 4, v{R}")
        a(f"v_lshlrev_b32 v18, 2, v18")
        a(f"v_lshl_add_u32 v{R}, v{R}, 1, v18")
        a(f"v_add_u32 v{R}, s63, v{R}")
    a("s_lshl_b32 s55, s62, 6")
    a("v_add_u32 v19, s55, v2")
    a("v_lshlrev_b32 v100, 5, v19")
    a("v_sub_u32 v100, 4094, v100")
    NE = 19
    for e in range(NE):
        a(f"v_subrev_u32 v{104+e}, {2*e}, v100")
        a(f"v_cvt_f32_u32 v{104+e}, v{104+e}")
    for e in range(0, NE + 1, 2):
        e2 = min(e + 1, NE - 1)
        a(f"v_cvt_pk_bf16_f32 v{124+e//2}, v{104+e}, v{104+e2}")
    for e in range(NE):
        if e % 2 == 0: a(f"v_lshlrev_b32 v{104+e}, 16, v{124+e//2}")
        else: a(f"v_and_b32 v{104+e}, 0xffff0000, v{124+e//2}")
    for e in range(NE): a(f"v_cvt_u32_f32 v{104+e}, v{104+e}")
    for e in range(16, NE): a(f"v_min_u32 v{104+e}, {2*FT_ZERO}, v{104+e}")
    for e in range(NE):
        a(f"v_lshrrev_b32 v18, 5, v{104+e}")
        a(f"v_lshl_add_u32 v{104+e}, v18, 2, v{104+e}")
        a(f"v_add_u32 v{104+e}, s63, v{104+e}")
    a(f"s_lshr_b32 s55, s{S_WAVE}, 1")
    a(f"s_mul_i32 s55, s55, {KCH}")
    a(f"s_add_u32 s55, s55, {KC_BASE}")
    a("v_lshlrev_b32 v19, 5, v19")
    a(f"v_add_u32 v{V_KDST}, s55, v19")
    bulk(a, "P1")
    a(f"s_lshr_b32 s60, s{S_WAVE}, 1")
    a(f"s_and_b32 s61, s{S_WAVE}, 1")
    a("v_and_b32 v52, 31, v2")
    a("v_lshrrev_b32 v53, 5, v2")
    a("v_and_b32 v54, 3, v52")
    a("v_sub_u32 v54, 3, v54")
    a(f"v_mul_u32_u24 v54, {KC_STRIDE}, v54")
    a("v_lshrrev_b32 v55, 2, v52")
    a("v_lshlrev_b32 v55, 3, v55")
    a("v_sub_u32 v54, v54, v55")
    a("v_lshl_add_u32 v54, v53, 4, v54")
    a(f"s_mul_i32 s62, s60, {KCH}")
    a("s_lshl_b32 s63, s61, 6")
    a("s_sub_u32 s62, s62, s63")
    a(f"s_add_u32 s62, s62, {KC_BASE + 2*2044 - 2048 - 64*30}")
    a(f"v_add_u32 v{V_CA}, s62, v54")
    a("v_mul_u32_u24 v55, 80, v52")
    a("v_lshl_add_u32 v55, v53, 4, v55")
    a(f"s_mul_i32 s62, s60, {U_CH}")
    a("s_mul_i32 s63, s61, 80")
    a("s_sub_u32 s62, s62, s63")
    a(f"s_add_u32 s62, s62, {U_BASE + 80*(31-30)}")
    a(f"v_add_u32 v{V_CB}, s62, v55")
    tile_coords(a, 1, S_T1, S_FJ)
    tile_coords(a, 2, S_T2, S_SJ)
    dma_setup(a, 1)

def planes_out(a, D, plane_base, srd_dst, T, lo_only=False):
    for c in range(8):
        a(f"ds_write_b32 v{V_PW}, v{D+c} offset:{plane_base + 32*c}")
    a("s_waitcnt lgkmcnt(0)")
    a("s_barrier")
    a(f"s_lshl_b32 s60, s{S_TB}, 13")
    if not lo_only:
        a(f"v_add_u32 v{T+8}, 1152, v{V_PR}")
        a(f"ds_read2st64_b32 v[{T}:{T+1}], v{V_PR} offset0:0 offset1:9")
        a(f"ds_read2st64_b32 v[{T+2}:{T+3}], v{V_PR} offset0:18 offset1:27")
        a(f"ds_read2st64_b32 v[{T+4}:{T+5}], v{T+8} offset0:0 offset1:9")
        a(f"ds_read2st64_b32 v[{T+6}:{T+7}], v{T+8} offset0:18 offset1:27")
        a("s_add_u32 s61, s60, 4096")
        a("s_waitcnt lgkmcnt(2)")
        a(f"buffer_store_dwordx4 v[{T}:{T+3}], v{V_US}, s[{srd_dst}:{srd_dst+3}], s60 offen sc1")
        a("s_waitcnt lgkmcnt(0)")
        a(f"buffer_store_dwordx4 v[{T+4}:{T+7}], v{V_US}, s[{srd_dst}:{srd_dst+3}], s61 offen sc1")
    else:
        l = newlbl("po")
        a(f"s_cmp_ge_u32 s{S_WAVE}, 2")
        a(f"s_cbranch_scc1 {l}")
        for k in range(4):
            a(f"v_add_u32 v{T+16}, {576*k}, v{V_PR}")
            a(f"ds_read2st64_b32 v[{T+4*k}:{T+4*k+1}], v{T+16} offset0:0 offset1:9")
            a(f"ds_read2st64_b32 v[{T+4*k+2}:{T+4*k+3}], v{T+16} offset0:18 offset1:27")
        for k in range(4):
            a(f"s_waitcnt lgkmcnt({2*(3-k)})")
            a(f"buffer_store_dwordx4 v[{T+4*k}:{T+4*k+3}], v{V_US}, s[{srd_dst}:{srd_dst+3}], s60 offen sc1")
            if k < 3: a("s_add_u32 s60, s60, 2048")
        a.label(l)

def unit_addr(a, vd, vt):
    a(f"v_lshrrev_b32 v{vd}, 3, v2")
    a(f"v_lshlrev_b32 v{vd}, 10, v{vd}")
    a(f"v_and_b32 v{vt}, 7, v2")
    a(f"v_lshl_add_u32 v{vd}, v{vt}, 4, v{vd}")

def ln1(a):
    a(f"s_mov_b32 s90, {INV512}")
    a(f"s_mov_b32 s91, {EPS}")
    a("s_waitcnt vmcnt(10)")
    unpack_pairs(a, 16, VX, VX + 4)
    pair_sums(a, 16, 8, 32, 34, 36)
    reduce4(a, 32, 33, 34, 35)
    ln_stats(a, 32, 33, 36, 37, SM, SR)
    ln_apply(a, 16, 8, SM, SR, 40)
    unpack_packed(a, 16, 8, 40)
    for c in range(8):
        a(f"v_cvt_pk_f16_f32 v{40+c}, v{16+2*c}, v{17+2*c}")
    planes_out(a, 40, PL1, SRD_U2, 48, lo_only=True)

def kgen(a):
    a(f"s_lshr_b32 s60, s{S_WAVE}, 1")
    a(f"s_mul_i32 s60, s60, {KG_CH}")
    a(f"s_mov_b32 s66, {LOG2E}")
    a(f"s_mov_b32 s67, {LOG2E_LO}")
    a(f"s_mov_b32 s68, {LN2}")
    a(f"s_mov_b32 s69, {INV2PI}")
    a("v_mov_b32 v20, s52")
    a("v_mul_f32 v21, s66, v20")
    a("v_fma_f32 v22, v20, s66, -v21")
    a("v_fmac_f32 v22, s67, v20")
    a("v_exp_f32 v21, v21")
    a("v_mul_f32 v22, s68, v22")
    a("v_fmac_f32 v21, v21, v22")
    bf16_round(a, 21, 21)
    for i in range(10): a(f"v_lshlrev_b32 v{10+i}, 16, v{200+i}")
    a("v_mul_f32 v10, v21, v10")
    a("v_mul_f32 v11, v21, v11")
    a("v_mul_f32 v10, s66, v10")
    a("v_mul_f32 v11, s69, v11")
    for (b, c0, out) in ((12, 14, 24), (16, 18, 26)):
        a(f"v_mul_f32 v{b}, v21, v{b}")
        a(f"v_mul_f32 v{b+1}, v21, v{b+1}")
        a(f"v_mul_f32 v{out}, v{c0}, v{b}")
        a(f"v_mul_f32 v{out+1}, v{c0}, v{b+1}")
        a(f"v_fma_f32 v{out}, -v{c0+1}, v{b+1}, v{out}")
        a(f"v_fmac_f32 v{out+1}, v{c0+1}, v{b}")
    a("v_max3_f32 v28, abs(v24), abs(v25), abs(v26)")
    a("v_max_f32 v28, v28, abs(v27)")
    W1, W256, W512, W1024, W8, W128 = 32, 34, 36, 38, 80, 50
    evalE(a, W1, 1, 10, 11, 40)
    wave_max(a, 28, 29)
    evalE(a, W256, 256, 10, 11, 44)
    a("v_frexp_exp_i32_f32 v29, v28")
    a("v_sub_u32 v30, 0, v29")
    a("v_ldexp_f32 v48, v24, v30")
    a("v_ldexp_f32 v49, v25, v30")
    a("v_mov_b32 v31, 1.0")
    a("v_ldexp_f32 v31, v31, v29")
    evalE(a, W8, 8, 10, 11, 40, conj=True)
    a(f"v_readfirstlane_b32 s{S_SCALE}, v31")
    evalE(a, 84, 128, 10, 11, 44, conj=True)
    cmul(a, W512, W256, W256)
    cmul(a, W1024, W512, W512)
    st(a, "kg: setup done", 250)
    bulk(a, "P3")
    g = lambda i: 48 + 2 * i
    cnt = [0]
    def emit(off, reg):
        t = 96 + (cnt[0] % 8); cnt[0] += 1
        a(f"v_cvt_pk_f16_f32 v{t}, v{reg}, v{reg+1}")
        a(f"ds_write_b32 v{V_KROW}, v{t} offset:{off}")
    grow = lambda r, reg: emit(r * G_ROW, reg)
    hrow = lambda r, reg: emit(H_BASE + r * G_ROW, reg)
    a("v_mov_b32 v82, 1.0"); a("v_mov_b32 v83, 0")
    HA, HB = [82, 86], [84, 88]
    G = lambda r: r * G_ROW
    Hh = lambda r: H_BASE + r * G_ROW
    gops = [("e", G(0), g(0)),
            ("c", 64, g(0), W1024), ("c", 66, g(0), W512), ("c", g(1), g(0), W1), ("e", G(16), 64), ("e", G(12), 66),
            ("c", 68, 64, W256), ("c", 70, 66, W256), ("e", G(1), g(1)), ("c", g(2), g(1), W1), ("c", 72, g(0), W256), ("e", G(17), 68), ("e", G(14), 70),
            ("c", 64, 68, W256), ("e", G(2), g(2)), ("c", g(3), g(2), W1), ("c", 74, g(2), W256), ("e", G(8), 72), ("e", G(18), 64),
            ("c", 68, 64, W256), ("e", G(3), g(3)), ("c", g(4), g(3), W1), ("e", G(9), 74), ("e", G(19), 68),
            ("c", 64, 68, W256), ("e", G(4), g(4)), ("c", g(5), g(4), W1), ("c", 66, g(4), W512), ("c", 72, g(4), W256), ("e", G(20), 64),
            ("e", G(5), g(5)), ("c", g(6), g(5), W1), ("e", G(13), 66), ("c", 70, 66, W256), ("e", G(10), 72),
            ("e", G(6), g(6)), ("c", g(7), g(6), W1), ("c", 74, g(6), W256), ("e", G(15), 70), ("e", G(7), g(7)), ("e", G(11), 74)]
    hops = []
    for i in range(16):
        ca, na = HA[i % 2], HA[(i + 1) % 2]
        cb, nb = HB[i % 2], HB[(i + 1) % 2]
        if i < 15: hops += [("c", na, ca, W8), ("e", Hh(i), ca), ("c", nb, cb, W8), ("e", Hh(16 + i), cb)]
        else: hops += [("e", Hh(i), ca), ("e", Hh(16 + i), cb)]
    seq = []
    gi = hi = 0
    last = "e"
    while gi < len(gops) or hi < len(hops):
        want = "c" if last == "e" else "e"
        cand = []
        if hi < len(hops) and hops[hi][0] == want: cand.append("h")
        if gi < len(gops) and gops[gi][0] == want: cand.append("g")
        if not cand:
            cand = (["h"] if hi < len(hops) else []) + (["g"] if gi < len(gops) else [])
        if len(cand) == 2: pick = "g" if gi / len(gops) <= hi / len(hops) else "h"
        else: pick = cand[0]
        op = gops[gi] if pick == "g" else hops[hi]
        if pick == "g": gi += 1
        else: hi += 1
        seq.append(op); last = op[0]
    for n_, op in enumerate(seq):
        if n_ == len(seq) // 3: bulk(a, "P4")
        if op[0] == "c": cmul(a, op[1], op[2], op[3])
        else: emit(op[1], op[2])
    NE = 19
    a(f"s_lshr_b32 s63, s{S_WAVE}, 1")
    a("s_mul_i32 s63, s63, 5888")
    a(f"s_add_u32 s63, s63, {FT_AREA}")
    st(a, "kg: chains done", 250)
    lp0 = newlbl("pb0")
    a(f"s_cmp_lg_u32 s{S_WAVE}, 0")
    a(f"s_cbranch_scc1 {lp0}")
    a(f"v_and_b32 v98, {B1N-1}, v2")
    a(f"v_lshlrev_b32 v98, {B1S}, v98")
    a("global_load_dword v99, v98, s[8:9] sc1")
    a.label(lp0)
    bulk(a, "P5")
    a("v_mov_b32 v18, 0")
    a(f"v_mov_b32 v101, s63")
    a(f"ds_write_b16 v101, v18 offset:{2*FT_ZERO + 4*(FT_ZERO >> 4)}")
    a("s_waitcnt lgkmcnt(0)")
    a("s_barrier")
    for ks in range(8):
        a(f"ds_read_b128 v[{128+12*ks}:{131+12*ks}], v{V_KA} offset:{ks*64}")
        a(f"ds_read_b128 v[{132+12*ks}:{135+12*ks}], v{V_KB} offset:{ks*64}")
        a(f"ds_read_b128 v[{136+12*ks}:{139+12*ks}], v{V_KB} offset:{ks*64 + 16*G_ROW}")
        if ks >= 3:
            k = ks - 3
            a("s_waitcnt lgkmcnt(9)")
            cc0 = "0" if k == 0 else "v[20:23]"; cc1 = "0" if k == 0 else "v[24:27]"
            a(f"v_mfma_f32_16x16x32_f16 v[20:23], v[{128+12*k}:{131+12*k}], v[{132+12*k}:{135+12*k}], {cc0}")
            a(f"v_mfma_f32_16x16x32_f16 v[24:27], v[{128+12*k}:{131+12*k}], v[{136+12*k}:{139+12*k}], {cc1}")
    for k in range(5, 8):
        a(f"s_waitcnt lgkmcnt({3*(7-k)})")
        a(f"v_mfma_f32_16x16x32_f16 v[20:23], v[{128+12*k}:{131+12*k}], v[{132+12*k}:{135+12*k}], v[20:23]")
        a(f"v_mfma_f32_16x16x32_f16 v[24:27], v[{128+12*k}:{131+12*k}], v[{136+12*k}:{139+12*k}], v[24:27]")
    for nt in range(2):
        A = 20 + 4 * nt
        a(f"v_cvt_pk_f16_f32 v{28+2*nt}, v{A}, v{A+1}")
        a(f"v_cvt_pk_f16_f32 v{29+2*nt}, v{A+2}, v{A+3}")
        a(f"ds_write_b16 v{V_KSC}, v{28+2*nt} offset:{288*nt}")
        a(f"ds_write_b16_d16_hi v{V_KSC+1}, v{28+2*nt} offset:{288*nt}")
        a(f"ds_write_b16 v{V_KSC+2}, v{29+2*nt} offset:{288*nt}")
        a(f"ds_write_b16_d16_hi v{V_KSC+3}, v{29+2*nt} offset:{288*nt}")
    st(a, "kg: mfma done", 250)
    lp = newlbl("pb1")
    a(f"s_cmp_lg_u32 s{S_WAVE}, 0")
    a(f"s_cbranch_scc1 {lp}")
    a("s_waitcnt vmcnt(2)")
    a(f"v_cmp_gt_u32 vcc, {256//B1N}, v99")
    a(f"s_cbranch_vccz {lp}_ok")
    a("s_mov_b32 s62, 0")
    poll(a, 8, 62, B1N, B1S, 256 // B1N)
    a.label(lp + "_ok")
    conv_u_loads(a)
    a.label(lp)
    st(a, "B1 passed (wave 0)", 250)
    a("s_waitcnt lgkmcnt(0)")
    a("s_barrier")
    st(a, "kg: scatter+barrier done", 250)
    bulk(a, "P6")
    a("; KGBG")
    for e in range(NE): a(f"ds_read_u16 v{128+e}, v{104+e}")
    for r in range(40, 44): a(f"v_mov_b32 v{r}, 0")
    a("v_lshlrev_b32 v5, 4, v0")
    a("v_cmp_gt_u32 vcc, 155, v0")
    a("s_and_saveexec_b64 s[62:63], vcc")
    a(f"v_add_u32 v44, {U_BASE}, v5")
    a(f"ds_write_b128 v44, v[40:43]")
    a(f"ds_write_b128 v44, v[40:43] offset:{U_CH}")
    a("s_mov_b64 exec, s[62:63]")
    a("v_lshrrev_b32 v44, 2, v0")
    a(f"v_mul_u32_u24 v44, {KC_STRIDE}, v44")
    a("v_and_b32 v45, 3, v0")
    a("v_lshl_add_u32 v44, v45, 4, v44")
    a(f"v_add_u32 v44, {KC_BASE + 4096}, v44")
    a("v_cmp_gt_u32 vcc, 32, v0")
    a("s_and_saveexec_b64 s[62:63], vcc")
    a("ds_write_b128 v44, v[40:43]")
    a("s_mov_b64 exec, s[62:63]")

    a("s_waitcnt lgkmcnt(0)")
    for i in range(9):
        a(f"v_lshl_or_b32 v{161+i}, v{129+2*i}, 16, v{128+2*i}")
    for i in range(8):
        a(f"v_mov_b32 v{152+i}, v{161+i}")
    for i in range(9):
        a(f"v_lshl_or_b32 v{181+i}, v{130+2*i}, 16, v{129+2*i}")
    for i in range(8):
        a(f"v_mov_b32 v{172+i}, v{181+i}")
    for (sig, R) in ((0, 152), (1, 172), (2, 162), (3, 182)):
        a(f"ds_write_b128 v{V_KDST}, v[{R}:{R+3}] offset:{sig*KC_STRIDE}")
        a(f"ds_write_b128 v{V_KDST}, v[{R+4}:{R+7}] offset:{sig*KC_STRIDE+16}")

def conv_u_loads(a):
    a("v_lshlrev_b32 v4, 13, v2")
    a(f"s_lshl_b32 s61, s{S_Q0}, 4")
    for r in range(4):
        a(f"buffer_load_dwordx4 a[{8*r}:{8*r+3}], v4, s[{SRD_U2}:{SRD_U2+3}], s61 offen sc1")
        a(f"buffer_load_dwordx4 a[{8*r+4}:{8*r+7}], v4, s[{SRD_U2}:{SRD_U2+3}], s61 offen offset:16 sc1")
        if r < 3: a(f"s_add_u32 s61, s61, {64*8192}")

def conv_u_writes(a, ny=0):
    l, l1 = newlbl("cw"), newlbl("cw")
    a(f"s_cmp_lg_u32 s{S_WAVE}, 0")
    a(f"s_cbranch_scc1 {l1}")
    a("v_lshrrev_b32 v5, 2, v2")
    a("v_mul_u32_u24 v5, 80, v5")
    a("v_and_b32 v6, 3, v2")
    a("v_lshl_add_u32 v5, v6, 4, v5")
    a(f"v_add_u32 v5, {U_BASE + 31*80}, v5")
    for r in range(4):
        a(f"s_waitcnt vmcnt({2*(3-r) + ny})")
        a(f"ds_write_b128 v5, a[{8*r}:{8*r+3}] offset:{r*16*80}")
        a(f"ds_write_b128 v5, a[{8*r+4}:{8*r+7}] offset:{U_CH + r*16*80}")
    a(f"s_branch {l}")
    a.label(l1)
    a(f"s_cmp_lg_u32 s{S_WAVE}, 1")
    a(f"s_cbranch_scc1 {l}")
    a("s_waitcnt vmcnt(0)")
    a.label(l)

def conv_main(a):
    a(f"s_lshr_b32 s60, s{S_WAVE}, 1")
    a(f"s_and_b32 s61, s{S_WAVE}, 1")
    a("v_and_b32 v52, 31, v2")
    a("v_lshrrev_b32 v53, 5, v2")
    a(f"v_mov_b32 v54, v{V_CA}")
    a(f"v_mov_b32 v55, v{V_CB}")
    lh = newlbl("ph")
    a(f"s_cmp_lt_u32 s{S_WAVE}, 2")
    a(f"s_cbranch_scc1 {lh}")
    a(f"s_waitcnt vmcnt({hi_younger('F5')})")
    a.label(lh)
    a("s_waitcnt lgkmcnt(0)")
    a("s_barrier")
    lpa = newlbl("pa")
    a(f"s_cmp_lg_u32 s{S_WAVE}, 0")
    a(f"s_cbranch_scc1 {lpa}")
    a("s_and_b32 s62, s2, 7")
    a("s_lshl_b32 s62, s62, 7")
    a(f"s_add_u32 s62, s62, {SYNC_OFF + 8*128}")
    a("v_mov_b32 v13, s62")
    a("v_mov_b32 v14, 1")
    a("s_mov_b64 s[62:63], exec")
    a("s_mov_b64 exec, 1")
    a(f"global_atomic_add v13, v14, s[6:7] sc1")
    a("s_mov_b64 exec, s[62:63]")
    a.label(lpa)
    st(a, "conv start (U in LDS)")
    X, Y = 96, 128
    def load_list(step, R):
        kk = 30 - 2 * step
        oa = 64 * kk; ob = 80 * kk
        return [
            f"ds_read_b64 v[{R+0}:{R+1}], v54 offset:{oa+2048}",
            f"ds_read_b64 v[{R+2}:{R+3}], v54 offset:{oa+2048+8}",
            f"ds_read_b128 v[{R+16}:{R+19}], v55 offset:{ob}",
            f"ds_read_b128 v[{R+24}:{R+27}], v55 offset:{ob+2560}",
            f"ds_read_b64 v[{R+4}:{R+5}], v54 offset:{oa+2048+32}",
            f"ds_read_b64 v[{R+6}:{R+7}], v54 offset:{oa+2048+40}",
            f"ds_read_b128 v[{R+20}:{R+23}], v55 offset:{ob+32}",
            f"ds_read_b128 v[{R+28}:{R+31}], v55 offset:{ob+2560+32}",
            f"ds_read_b64 v[{R+8}:{R+9}], v54 offset:{oa}",
            f"ds_read_b64 v[{R+10}:{R+11}], v54 offset:{oa+8}",
            f"ds_read_b64 v[{R+12}:{R+13}], v54 offset:{oa+32}",
            f"ds_read_b64 v[{R+14}:{R+15}], v54 offset:{oa+40}"]
    def mfma_list(R, first):
        c0 = "0" if first else "v[64:79]"; c1 = "0" if first else "v[80:95]"
        return [
            f"v_mfma_f32_32x32x16_f16 v[64:79], v[{R+0}:{R+3}], v[{R+16}:{R+19}], {c0}",
            f"v_mfma_f32_32x32x16_f16 v[80:95], v[{R+0}:{R+3}], v[{R+24}:{R+27}], {c1}",
            f"v_mfma_f32_32x32x16_f16 v[64:79], v[{R+4}:{R+7}], v[{R+20}:{R+23}], v[64:79]",
            f"v_mfma_f32_32x32x16_f16 v[80:95], v[{R+4}:{R+7}], v[{R+28}:{R+31}], v[80:95]",
            f"v_mfma_f32_32x32x16_f16 v[80:95], v[{R+8}:{R+11}], v[{R+16}:{R+19}], v[80:95]",
            f"v_mfma_f32_32x32x16_f16 v[80:95], v[{R+12}:{R+15}], v[{R+20}:{R+23}], v[80:95]"]
    a("s_lshl_b32 s62, s61, 5")
    a("v_add_u32 v59, s62, v52")
    a("v_mul_u32_u24 v60, 80, v59")
    a("v_lshl_add_u32 v60, v53, 3, v60")
    a(f"s_mul_i32 s62, s60, {U_CH}")
    a(f"s_add_u32 s62, s62, {U_BASE + 31*80}")
    a("v_add_u32 v60, s62, v60")
    for g in range(4): a(f"ds_read_b64 v[{160+2*g}:{161+2*g}], v60 offset:{g*16}")
    sh = []
    for g in range(4):
        sh += [f"v_cvt_f32_f16 v{168+4*g}, v{160+2*g}", f"v_cvt_f32_f16_sdwa v{169+4*g}, v{160+2*g} dst_sel:DWORD dst_unused:UNUSED_PAD src0_sel:WORD_1",
               f"v_cvt_f32_f16 v{170+4*g}, v{161+2*g}", f"v_cvt_f32_f16_sdwa v{171+4*g}, v{161+2*g} dst_sel:DWORD dst_unused:UNUSED_PAD src0_sel:WORD_1"]
    sh += [f"v_mul_f32 v{168+r}, s{S_DSK}, v{168+r}" for r in range(16)]
    sh += [f"v_cvt_pk_bf16_f32 v{184+r//2}, v{168+r}, v{169+r}" for r in range(0, 16, 2)]
    for r in range(0, 16, 2):
        sh += [f"v_lshlrev_b32 v{168+r}, 16, v{184+r//2}", f"v_and_b32 v{169+r}, 0xffff0000, v{184+r//2}"]
    bg = dma_groups(1, 10, 0)
    bg_late = []
    if NOBGCONV: bg_late, bg = bg, []
    for l in load_list(0, X): a(l)
    for step in range(16):
        bulk(a, f"c{step}")
        for _ in range(2 if (step % 4) == 1 else 1):
            if bg and step >= 0:
                for l in bg.pop(0): a(l)
                HIQ.append("D")
        R = X if step % 2 == 0 else Y
        N = Y if step % 2 == 0 else X
        M = mfma_list(R, step == 0)
        Ls = load_list(step + 1, N) if step < 15 else []
        need_upto = [3, 4, 7, 8, 10, 12]
        issued_next = 0
        for i in range(6):
            a(f"s_waitcnt lgkmcnt({min((12 - need_upto[i]) + issued_next, 15)})")
            a(M[i])
            for l in Ls[2*i:2*i+2]: a(l); issued_next += 1
            if step >= 1 and sh: a(sh.pop(0))
    for grp in bg:
        for l in grp: a(l)
        HIQ.append("D")
    st(a, "conv main done")
    for grp in bg_late:
        for l in grp: a(l)
    lpf = newlbl("pf")
    a(f"s_cmp_lg_u32 s{S_WAVE}, 0")
    a(f"s_cbranch_scc1 {lpf}")
    a("v_and_b32 v50, 7, v2")
    a("v_lshlrev_b32 v50, 7, v50")
    a(f"v_add_u32 v50, {SYNC_OFF + 8*128}, v50")
    a("global_load_dword v51, v50, s[6:7] sc1")
    a.label(lpf)
    a("v_lshlrev_b32 v56, 4, v2")
    a(f"v_add_u32 v56, {RED_CONV}, v56")
    a(f"s_lshl_b32 s62, s{S_WAVE}, 12")
    a("v_add_u32 v57, s62, v56")
    a(f"s_xor_b32 s63, s{S_WAVE}, 1")
    a("s_lshl_b32 s63, s63, 12")
    a("v_add_u32 v58, s63, v56")
    l1, l2 = newlbl("cp"), newlbl("cr")
    a("s_cmp_eq_u32 s61, 0")
    a(f"s_cbranch_scc0 {l1}")
    a("s_nop 7"); a("s_nop 7")
    for g in range(4): a(f"ds_write_b128 v57, v[{80+4*g}:{83+4*g}] offset:{g*1024}")
    a(f"s_branch {l2}")
    a.label(l1)
    a("s_nop 7"); a("s_nop 7")
    for g in range(4): a(f"ds_write_b128 v57, v[{64+4*g}:{67+4*g}] offset:{g*1024}")
    for r in range(16): a(f"v_mov_b32 v{64+r}, v{80+r}")
    a.label(l2)
    a("s_waitcnt lgkmcnt(0)")
    a("s_barrier")
    for g in range(4): a(f"ds_read_b128 v[{96+4*g}:{99+4*g}], v58 offset:{g*1024}")
    a("s_waitcnt lgkmcnt(0)")
    for r in range(0, 16, 2): a(f"v_pk_add_f32 v[{64+r}:{65+r}], v[{64+r}:{65+r}], v[{96+r}:{97+r}]")
    for r in range(0, 16, 2): a(f"v_pk_mul_f32 v[{64+r}:{65+r}], v[{64+r}:{65+r}], s[{S_SCALE}:{S_SCALE+1}] op_sel_hi:[1,0]")
    for r in range(0, 16, 2): a(f"v_cvt_pk_bf16_f32 v{136+r//2}, v{64+r}, v{65+r}")
    for r in range(0, 16, 2):
        a(f"v_lshlrev_b32 v{64+r}, 16, v{136+r//2}")
        a(f"v_and_b32 v{65+r}, 0xffff0000, v{136+r//2}")
    for r in range(0, 16, 2): a(f"v_pk_add_f32 v[{64+r}:{65+r}], v[{64+r}:{65+r}], v[{168+r}:{169+r}]")
    for r in range(0, 16, 2): a(f"v_cvt_pk_bf16_f32 v{136+r//2}, v{64+r}, v{65+r}")
    for g in (0, 2):
        A0, A1, B0, B1 = 136 + 2 * g, 137 + 2 * g, 138 + 2 * g, 139 + 2 * g
        a(f"v_permlane32_swap_b32 v{A0}, v{B0}")
        a(f"v_permlane32_swap_b32 v{A1}, v{B1}")
    a("v_mul_u32_u24 v61, 144, v59")
    a("v_lshl_add_u32 v61, v53, 5, v61")
    a("s_lshl_b32 s62, s60, 4")
    a(f"s_add_u32 s62, s62, {YB}")
    a("v_add_u32 v61, s62, v61")
    a("ds_write_b128 v61, v[136:139]")
    a("ds_write_b128 v61, v[140:143] offset:64")
    a("v_lshrrev_b32 v62, 3, v0")
    a("v_mul_u32_u24 v62, 144, v62")
    a("v_and_b32 v63, 7, v0")
    a("v_lshl_add_u32 v62, v63, 4, v62")
    a("s_waitcnt lgkmcnt(0)")
    a("s_barrier")
    ly = newlbl("yo")
    a(f"s_cmp_ge_u32 s{S_WAVE}, 2")
    a(f"s_cbranch_scc1 {ly}")
    for k in range(4):
        a(f"ds_read_b128 v[{96+4*k}:{99+4*k}], v62 offset:{YB + 16*144*k}")
    a(f"s_lshl_b32 s62, s{S_TB}, 13")
    for k in range(4):
        a(f"s_waitcnt lgkmcnt({3-k})")
        a(f"buffer_store_dwordx4 v[{96+4*k}:{99+4*k}], v{V_US}, s[{SRD_YA}:{SRD_YA+3}], s62 offen sc1")
        if k < 3: a("s_add_u32 s62, s62, 2048")
    a.label(ly)

def ln2_addr(a):
    a("v_lshrrev_b32 v4, 1, v0")
    a("v_lshlrev_b32 v4, 13, v4")
    a("v_and_b32 v5, 1, v0")
    a("v_lshl_add_u32 v4, v5, 4, v4")
    a(f"s_lshl_b32 s72, s{S_TB}, 5")
    a("s_add_u32 s73, s72, 0x100000")

def ln2_issue(a):
    a(f"buffer_load_dwordx4 v[40:43], v4, s[{SRD_YA}:{SRD_YA+3}], s72 offen sc1")
    a(f"buffer_load_dwordx4 v[44:47], v4, s[{SRD_YA}:{SRD_YA+3}], s73 offen sc1")

def ln2_loads(a, first_wait):
    l = newlbl("ys")
    a("s_mov_b32 s61, 0")
    a(f"s_waitcnt vmcnt({first_wait})")
    a(f"s_branch {l}_c")
    a.label(l)
    ln2_issue(a)
    a("s_add_u32 s61, s61, 1")
    a("s_waitcnt vmcnt(0)")
    a.label(l + "_c")
    for x in check8(40, 12): a(x)
    a(f"s_cbranch_vccz {l}_ok")
    a(f"s_cmp_lt_u32 s61, {SPIN_MAX}")
    a(f"s_cbranch_scc1 {l}")
    a.label(l + "_ok")
    a("s_waitcnt vmcnt(0)")

def ln2_planes_in(a):
    a(f"v_mov_b32 v48, v{V_PR}")
    a(f"v_add_u32 v49, 1152, v{V_PR}")
    a("ds_write2st64_b32 v48, v40, v41 offset0:0 offset1:9")
    a("ds_write2st64_b32 v48, v42, v43 offset0:18 offset1:27")
    a("ds_write2st64_b32 v49, v44, v45 offset0:0 offset1:9")
    a("ds_write2st64_b32 v49, v46, v47 offset0:18 offset1:27")

def ln2_compute(a):
    for c in range(8):
        a(f"ds_read_b32 v{40+c}, v{V_PW} offset:{32*c}")
    a(f"s_mov_b32 s90, {INV512}")
    a(f"s_mov_b32 s91, {EPS}")
    a("s_mov_b32 s92, 0x05040100")
    a("s_mov_b32 s93, 0x07060302")
    unpack_pairs(a, 16, VX, VX + 4)
    a("v_lshlrev_b32 v3, 4, v2")
    a(f"s_lshl_b32 s64, s{S_TB}, 13")
    a(f"s_lshl_b32 s65, s{S_WAVE}, 11")
    a("s_add_u32 s64, s64, s65")
    a("s_waitcnt lgkmcnt(0)")
    for c in range(8):
        a(f"v_lshlrev_b32 v{48+2*c}, 16, v{40+c}")
        a(f"v_and_b32 v{49+2*c}, 0xffff0000, v{40+c}")
    for c in range(8):
        a(f"v_pk_add_f32 v[{16+2*c}:{17+2*c}], v[{16+2*c}:{17+2*c}], v[{48+2*c}:{49+2*c}]")
    for c in range(8):
        a(f"v_cvt_pk_bf16_f32 v{40+c}, v{16+2*c}, v{17+2*c}")
    unpack_packed(a, 16, 8, 40)
    for i in range(4):
        a(f"v_perm_b32 v{4+i}, v{41+2*i}, v{40+2*i}, s92")
        a(f"v_perm_b32 v{8+i}, v{41+2*i}, v{40+2*i}, s93")
    a(f"buffer_store_dwordx4 v[4:7], v3, s[{SRD_H}:{SRD_H+3}], s64 offen sc1")
    a(f"buffer_store_dwordx4 v[8:11], v3, s[{SRD_H}:{SRD_H+3}], s64 offen offset:1024 sc1")
    pair_sums(a, 16, 8, 32, 34, 36)
    reduce4(a, 32, 33, 34, 35)
    ln_stats(a, 32, 33, 36, 37, SM, SR)
    ln_apply(a, 16, 8, SM, SR, 40)
    unpack_packed(a, 16, 8, 40)
    pair_sums(a, 16, 8, 32, 34, 36)
    reduce4(a, 32, 33, 34, 35)
    ln_stats(a, 32, 33, 36, 37, SM, SR)
    ln_apply(a, 16, 8, SM, SR, 40)
    a("; BGSTOP")
    a("s_waitcnt vmcnt(0)")
    a("s_barrier")
    planes_out(a, 40, PL2, SRD_HN, 48)

def tile_coords(a, which, sT, sC):
    a("s_and_b32 s60, s2, 7")
    a("s_lshr_b32 s61, s2, 3")
    a(f"s_and_b32 s{sT}, s60, 1")
    a(f"s_lshl_b32 s{sT}, s{sT}, 2")
    a("s_and_b32 s62, s61, 3")
    a(f"s_add_u32 s{sT}, s{sT}, s62")
    a(f"s_lshr_b32 s{sC}, s60, 1")
    a(f"s_mul_i32 s{sC}, s{sC}, {7 if which == 1 else 8}")
    a("s_lshr_b32 s62, s61, 2")
    if which == 2 and SJROT:
        a(f"s_add_u32 s62, s62, {SJROT}"); a("s_and_b32 s62, s62, 7")
    a(f"s_add_u32 s{sC}, s{sC}, s62")

VD, VTA, VTB = 240, 241, 242
def dma_setup(a, which):
    WROW = 3584 if which == 1 else (4096 if NOCOPY else 128)
    a(f"v_lshrrev_b32 v{VD}, 3, v2")
    a(f"v_mul_u32_u24 v{VD}, {WROW}, v{VD}")
    a("v_and_b32 v243, 7, v2")
    a("v_lshrrev_b32 v244, 2, v2")
    a("v_and_b32 v244, 4, v244")
    a("v_xor_b32 v243, v243, v244")
    a(f"v_lshl_add_u32 v{VD}, v243, 4, v{VD}")
    a("v_bfe_u32 v243, v2, 2, 2")
    a("v_and_b32 v244, 3, v2")
    a(f"v_bfe_u32 v{VTA}, v2, 4, 1")
    a(f"v_lshlrev_b32 v{VTA}, 1, v{VTA}")
    a("v_lshrrev_b32 v245, 1, v244")
    a(f"v_add_u32 v{VTA}, v{VTA}, v245")
    a("v_lshrrev_b32 v245, 1, v243")
    a("v_lshlrev_b32 v245, 2, v245")
    a(f"v_xor_b32 v{VTA}, v{VTA}, v245")
    a(f"v_lshlrev_b32 v{VTA}, 4, v{VTA}")
    a("v_and_b32 v245, 1, v244")
    a(f"v_lshl_add_u32 v{VTA}, v245, 3, v{VTA}")
    a("v_lshrrev_b32 v245, 5, v2")
    a(f"v_lshlrev_b32 v245, {3 if which == 1 else 2}, v245")
    a("v_add_u32 v245, v245, v243")
    a(f"v_lshl_add_u32 v{VTA}, v245, 7, v{VTA}")
    a(f"v_xor_b32 v{VTB}, 64, v{VTA}")

def ring_base_sel(a, lo_base, per_wave, split, hi_base):
    a(f"s_mul_i32 s{S_RING}, s{S_WAVE}, {per_wave}")
    a(f"s_cmp_lt_u32 s{S_WAVE}, {split}")
    a(f"s_mov_b32 s60, {lo_base}")
    a(f"s_cselect_b32 s60, s60, {hi_base - split*per_wave}")
    a(f"s_add_u32 s{S_RING}, s{S_RING}, s60")
    a(f"s_lshr_b32 s60, s{S_WAVE}, 1")
    a("s_lshl_b32 s60, s60, 6")
    a(f"v_xor_b32 v246, s60, v{VTA}")
    a(f"v_xor_b32 v247, 64, v246")
    a(f"v_add_u32 v246, s{S_RING}, v246")
    a(f"v_add_u32 v247, s{S_RING}, v247")

def ring_base(a, per_wave, base):
    a(f"s_mul_i32 s{S_RING}, s{S_WAVE}, {per_wave}")
    if base: a(f"s_add_u32 s{S_RING}, s{S_RING}, {base}")
    a(f"s_lshr_b32 s60, s{S_WAVE}, 1")
    a("s_lshl_b32 s60, s60, 6")
    a(f"v_xor_b32 v246, s60, v{VTA}")
    a(f"v_xor_b32 v247, 64, v246")
    a(f"v_add_u32 v246, s{S_RING}, v246")
    a(f"v_add_u32 v247, s{S_RING}, v247")

S_WA, S_WB = 76, 77
def dma_groups(which, n, slot0):
    WROW = 3584 if which == 1 else (4096 if NOCOPY else 128)
    srdw = SRD_W1 if which == 1 else (SRD_W2 if NOCOPY else SRD_W2R)
    sc = "" if (which == 1 or NOCOPY) else " sc1"
    g = []
    for i in range(n):
        g.append([f"s_add_u32 m0, s{S_RING}, {(slot0+i)*2048}",
                  f"buffer_load_dwordx4 v{VD}, s[{srdw}:{srdw+3}], s{S_WA} offen{sc} lds",
                  f"s_add_u32 s{S_WA}, s{S_WA}, {16*WROW}"])
        g.append([f"s_add_u32 m0, s{S_RING}, {(slot0+i)*2048+1024}",
                  f"buffer_load_dwordx4 v{VD}, s[{srdw}:{srdw+3}], s{S_WB} offen{sc} lds",
                  f"s_add_u32 s{S_WB}, s{S_WB}, {16*WROW}"])
    return g

def dma_issue(a, which, n, slot0):
    for grp in dma_groups(which, n, slot0):
        for l in grp: a(l)

SCC_READ = ('s_cbranch_scc', 's_cselect', 's_addc', 's_subb', 's_cmov')
SCC_WRITE = ('s_cmp', 's_add_', 's_sub_', 's_and_', 's_or_', 's_xor_', 's_lshl', 's_lshr', 's_bitcmp', 's_min', 's_max', 's_ashr', 's_not', 's_bfe')
def scc_safe(lines, i):
    for l in lines[i:]:
        op = l.split()[0]
        if op.startswith(SCC_READ): return False
        if op.startswith(SCC_WRITE) or op.endswith(':') or op in ('s_branch', 's_endpgm', 's_barrier'): return True
    return True

def with_bg(a, fg, groups, skip=0, stride=20, after=None, before=None):
    i0 = len(a.lines)
    fg()
    body = a.lines[i0:]
    del a.lines[i0:]
    start = skip
    if after is not None:
        start = next(k for k, l in enumerate(body) if after in l) + 1 + skip
    out = []; gi = 0; nxt = start
    stop = False
    cond_until = None
    masked = False
    labels_in = {x[:-1] for x in body if x.endswith(':')}
    for k, l in enumerate(body):
        if cond_until is not None and l == cond_until + ':': cond_until = None
        in_cond = cond_until is not None or masked
        cond_until_next = None
        if cond_until is None and l.startswith(('s_cbranch', 's_branch')) and l.split()[1] in labels_in and (l.split()[1] + ':') in body[k:]:
            cond_until_next = l.split()[1]
        if before is not None and not stop and before in l:
            stop = True
            while gi < len(groups):
                out += groups[gi]; gi += 1
        if not stop and not in_cond and gi < len(groups) and k >= nxt and scc_safe(body, k) and not l.endswith(':') and not l.startswith('s_and_saveexec'):
            out += groups[gi]; gi += 1; nxt = k + stride
        out.append(l)
        if cond_until_next is not None: cond_until = cond_until_next
        if l.startswith('s_and_saveexec'): masked = True
        if l.startswith('s_mov_b64 exec'): masked = False
    while gi < len(groups):
        out += groups[gi]; gi += 1
    a.lines += out

def tr_to_acc(a, which, steps, slot0):
    RHO = 512 if which == 1 else 1024
    for i, s in enumerate(steps):
        o = (slot0 + i) * 2048
        a(f"ds_read_b64_tr_b16 a[{8*s}:{8*s+1}], v246 offset:{o}")
        a(f"ds_read_b64_tr_b16 a[{8*s+2}:{8*s+3}], v246 offset:{o+RHO}")
        a(f"ds_read_b64_tr_b16 a[{8*s+4}:{8*s+5}], v247 offset:{o}")
        a(f"ds_read_b64_tr_b16 a[{8*s+6}:{8*s+7}], v247 offset:{o+RHO}")
        if i % 3 == 2: a("s_waitcnt lgkmcnt(4)")

def woff_init(a, which, sC):
    WROW = 3584 if which == 1 else (4096 if NOCOPY else 128)
    if which == 1:
        a(f"s_mul_i32 s{S_WA}, s{S_WAVE}, {32*16*3584}")
        a(f"s_lshl_b32 s60, s{sC}, 7")
    elif NOCOPY:
        a(f"s_mul_i32 s{S_WA}, s{S_WAVE}, {28*16*4096}")
        a(f"s_lshl_b32 s60, s{sC}, 7")
    else:
        a(f"s_mul_i32 s{S_WA}, s{S_WAVE}, {28*16*128}")
        a(f"s_mul_i32 s60, s{sC}, {W2R_TILE}")
    a(f"s_add_u32 s{S_WA}, s{S_WA}, s60")
    a(f"s_add_u32 s{S_WB}, s{S_WA}, {8*WROW}")

def gemm_lane_consts(a):
    a("v_lshrrev_b32 v6, 5, v2")
    a("v_and_b32 v7, 31, v2")
    a("v_lshlrev_b32 v10, 13, v6")
    a("v_lshl_add_u32 v10, v7, 4, v10")
    a(f"s_and_b32 s60, s{S_WAVE}, 1")
    a("s_lshl_b32 s60, s60, 9")
    a("v_xor_b32 v8, s60, v10")
    a("v_xor_b32 v9, 512, v8")

def main_loop(a, which, srda, soff, D0):
    NK = 32 if which == 1 else 28
    DR = 14
    ab = lambda s: 128 + 8 * (s % DR)
    issued = [0]
    def issue():
        s = issued[0]
        if s >= NK: return []
        R = ab(s); issued[0] += 1
        return [f"buffer_load_dwordx4 v[{R}:{R+3}], v8, s[{srda}:{srda+3}], s{soff} offen sc1",
                f"buffer_load_dwordx4 v[{R+4}:{R+7}], v9, s[{srda}:{srda+3}], s{soff} offen sc1\ns_add_u32 s{soff}, s{soff}, 16384"]
    for s in range(D0):
        for l in issue(): a(l)
    for s in range(NK):
        a(f"s_waitcnt vmcnt({2*(issued[0] - 1 - s)})")
        nxt = issue() if (issued[0] - s) < DR else []
        R = ab(s); k = 0
        for wt in range(2):
            for at in range(2):
                acc = 64 + 32 * wt + 16 * at
                wq = f"a[{8*s+4*wt}:{8*s+4*wt+3}]"; aq = f"v[{R+4*at}:{R+4*at+3}]"
                cc = "0" if s == 0 else f"v[{acc}:{acc+15}]"
                if which == 1: a(f"v_mfma_f32_32x32x16_bf16 v[{acc}:{acc+15}], {wq}, {aq}, {cc}")
                else: a(f"v_mfma_f32_32x32x16_bf16 v[{acc}:{acc+15}], {aq}, {wq}, {cc}")
                if k == 0 and nxt: a(nxt[0])
                if k == 2 and nxt: a(nxt[1])
                k += 1

def check8(R, T):
    return [f"v_max3_u32 v{T}, v{R}, v{R+1}, v{R+2}", f"v_max3_u32 v{T}, v{T}, v{R+3}, v{R+4}", f"v_max3_u32 v{T}, v{T}, v{R+5}, v{R+6}",
            f"v_max_u32 v{T}, v{T}, v{R+7}", f"v_cmp_eq_u32 vcc, -1, v{T}"]

SPIN_MAX = 0x20000
def probe_spin(a, srd_, vaddr, soff_sgpr, first_wait=None):
    l = newlbl("pr")
    a("s_mov_b32 s61, 0")
    if first_wait is not None:
        a(f"s_waitcnt vmcnt({first_wait})")
        a("v_cmp_eq_u32 vcc, -1, v14")
        a(f"s_cbranch_vccz {l}_ok")
    a.label(l)
    a(f"buffer_load_dword v14, v{vaddr}, s[{srd_}:{srd_+3}], s{soff_sgpr} offen sc1")
    a("s_add_u32 s61, s61, 1")
    a("s_waitcnt vmcnt(0)")
    a("v_cmp_eq_u32 vcc, -1, v14")
    a(f"s_cbranch_vccz {l}_ok")
    a(f"s_cmp_lt_u32 s61, {SPIN_MAX}")
    a(f"s_cbranch_scc1 {l}")
    a.label(l + "_ok")

RETRY = []
def main_loop2(a, which, srda, sbase, D0, shadow=()):
    NK = 32 if which == 1 else 28
    DR = 14
    ab = lambda s: 128 + 8 * (s % DR)
    a(f"s_mov_b32 s73, s{sbase}")
    issued = [0]
    def issue():
        s = issued[0]
        if s >= NK: return []
        R = ab(s); issued[0] += 1
        return [f"buffer_load_dwordx4 v[{R}:{R+3}], v8, s[{srda}:{srda+3}], s73 offen sc1",
                f"buffer_load_dwordx4 v[{R+4}:{R+7}], v9, s[{srda}:{srda+3}], s73 offen sc1\ns_add_u32 s73, s73, 16384"]
    def retry(t):
        lr, lb = newlbl("rt"), newlbl("rb")
        R = ab(t)
        blk = [lr + ":", "s_mov_b32 s61, 0", f"s_add_u32 s62, s{sbase}, {t*16384}", lr + "_l:",
               f"buffer_load_dwordx4 v[{R}:{R+3}], v8, s[{srda}:{srda+3}], s62 offen sc1",
               f"buffer_load_dwordx4 v[{R+4}:{R+7}], v9, s[{srda}:{srda+3}], s62 offen sc1",
               "s_add_u32 s61, s61, 1", "s_waitcnt vmcnt(0)"] + check8(R, 12) + \
              [f"s_cbranch_vccz {lb}", f"s_cmp_lt_u32 s61, {SPIN_MAX}", f"s_cbranch_scc1 {lr}_l", f"s_branch {lb}"]
        RETRY.extend(blk)
        return lr, lb
    for s in range(D0):
        for l in issue(): a(l)
    a(f"s_waitcnt vmcnt({2*(issued[0] - 1)})")
    for l in check8(ab(0), 12): a(l)
    lr, lb = retry(0)
    a(f"s_cbranch_vccnz {lr}")
    a.label(lb)
    for s in range(NK):
        nxt = issue() if (issued[0] - s) < DR and (issued[0] - s) <= D0 else []
        R = ab(s); k = 0
        for wt in range(2):
            for at in range(2):
                acc = 64 + 32 * wt + 16 * at
                wq = f"a[{8*s+4*wt}:{8*s+4*wt+3}]"; aq = f"v[{R+4*at}:{R+4*at+3}]"
                cc = "0" if s == 0 else f"v[{acc}:{acc+15}]"
                if which == 1: a(f"v_mfma_f32_32x32x16_bf16 v[{acc}:{acc+15}], {wq}, {aq}, {cc}")
                else: a(f"v_mfma_f32_32x32x16_bf16 v[{acc}:{acc+15}], {aq}, {wq}, {cc}")
                if k == 0 and nxt: a(nxt[0])
                if k == 1:
                    if nxt: a(nxt[1])
                    if s + 1 < NK:
                        a(f"s_waitcnt vmcnt({2*(issued[0] - 1 - (s + 1))})")
                        for l in check8(ab(s + 1), 12): a(l)
                k += 1
        if s >= 2 and shadow:
            for l in shadow[:4]: a(l)
            shadow = shadow[4:]
        if s + 1 < NK:
            lr, lb = retry(s + 1)
            a("s_nop 2")
            a(f"s_cbranch_vccnz {lr}")
            a.label(lb)

def reduce_write(a):
    a("v_lshlrev_b32 v13, 4, v2")
    for j in (1, 2, 3):
        wt, at = j >> 1, j & 1
        acc = 64 + 32 * wt + 16 * at
        a(f"s_xor_b32 s60, s{S_WAVE}, {j}")
        a(f"s_mul_i32 s60, s60, {3*4096}")
        a(f"s_add_u32 s60, s60, {(j-1)*4096}")
        a(f"v_add_u32 v14, s60, v13")
        for g in range(4):
            a(f"ds_write_b128 v14, v[{acc+4*g}:{acc+4*g+3}] offset:{g*1024}")

def reduce_read(a):
    a(f"s_mul_i32 s60, s{S_WAVE}, {3*4096}")
    a("v_add_u32 v14, s60, v13")
    for j in range(3):
        for g in range(4):
            a(f"ds_read_b128 v[{128+16*j+4*g}:{131+16*j+4*g}], v14 offset:{j*4096+g*1024}")
    P = lambda b, r: f"v[{b+r}:{b+r+1}]"
    a("s_waitcnt lgkmcnt(8)")
    for r in range(0, 16, 2): a(f"v_pk_add_f32 {P(64,r)}, {P(64,r)}, {P(128,r)}")
    a("s_waitcnt lgkmcnt(0)")
    for r in range(0, 16, 2): a(f"v_pk_add_f32 {P(144,r)}, {P(144,r)}, {P(160,r)}")
    for r in range(0, 16, 2): a(f"v_pk_add_f32 {P(128,r)}, {P(64,r)}, {P(144,r)}")

def gelu16(a, X, T):
    a("s_mov_b32 s66, 0x3d372713")
    a("s_mov_b32 s67, 0x3d372713")
    kk = -2.0 * 1.4426950408889634 * 0.7978845608028654
    kb = hex(struct.unpack('<I', struct.pack('<f', kk))[0])
    a(f"s_mov_b32 s68, {kb}"); a(f"s_mov_b32 s69, {kb}")
    P = lambda b, r: f"v[{b+r}:{b+r+1}]"
    for r in range(0, 16, 2): a(f"v_pk_mul_f32 {P(T,r)}, {P(X,r)}, {P(X,r)}")
    for r in range(0, 16, 2): a(f"v_pk_mul_f32 {P(T,r)}, {P(T,r)}, s[66:67]")
    for r in range(0, 16, 2): a(f"v_pk_fma_f32 {P(T,r)}, {P(T,r)}, {P(X,r)}, {P(X,r)}")
    for r in range(0, 16, 2): a(f"v_pk_mul_f32 {P(T,r)}, {P(T,r)}, s[68:69]")
    for r in range(16): a(f"v_exp_f32 v{T+r}, v{T+r}")
    for r in range(16): a(f"v_add_f32 v{T+r}, 1.0, v{T+r}")
    for r in range(16): a(f"v_rcp_f32 v{T+r}, v{T+r}")
    for r in range(0, 16, 2): a(f"v_pk_mul_f32 {P(X,r)}, {P(X,r)}, {P(T,r)}")

def epi1_loads(a):
    a(f"s_lshr_b32 s61, s{S_WAVE}, 1")
    a(f"s_lshl_b32 s72, s{S_FJ}, 6")
    a("s_lshl_b32 s64, s61, 5")
    a("s_add_u32 s72, s72, s64")
    a("s_lshl_b32 s64, s72, 1")
    a("v_lshlrev_b32 v15, 3, v6")
    a("v_add_u32 v15, s64, v15")
    for g in range(4):
        a(f"global_load_dwordx2 v[{20+2*g}:{21+2*g}], v15, s[{S_B1}:{S_B1+1}] offset:{16*g}")

def epi1_shadow():
    l = []
    for g in range(4):
        l += [f"v_lshlrev_b32 v{28+4*g}, 16, v{20+2*g}", f"v_and_b32 v{29+4*g}, 0xffff0000, v{20+2*g}",
              f"v_lshlrev_b32 v{30+4*g}, 16, v{21+2*g}", f"v_and_b32 v{31+4*g}, 0xffff0000, v{21+2*g}"]
    return l

def epi1(a):
    P = lambda b, r: f"v[{b+r}:{b+r+1}]"
    a("s_lshr_b32 s64, s72, 4")
    a("s_lshl_b32 s64, s64, 14")
    a(f"s_lshl_b32 s65, s{S_T1}, 10")
    a("s_add_u32 s64, s64, s65")
    a(f"s_and_b32 s62, s{S_WAVE}, 1")
    a("s_lshl_b32 s65, s62, 9")
    a("s_add_u32 s64, s64, s65")
    a("s_add_u32 s65, s64, 16384")
    reduce_read(a)
    for r in range(0, 16, 2): a(f"v_cvt_pk_bf16_f32 v{144+r//2}, v{128+r}, v{129+r}")
    for r in range(0, 16, 2):
        a(f"v_lshlrev_b32 v{128+r}, 16, v{144+r//2}")
        a(f"v_and_b32 v{129+r}, 0xffff0000, v{144+r//2}")
    for r in range(0, 16, 2): a(f"v_pk_add_f32 {P(128,r)}, {P(128,r)}, {P(28,r)}")
    for r in range(0, 16, 2): a(f"v_cvt_pk_bf16_f32 v{144+r//2}, v{128+r}, v{129+r}")
    for r in range(0, 16, 2):
        a(f"v_lshlrev_b32 v{128+r}, 16, v{144+r//2}")
        a(f"v_and_b32 v{129+r}, 0xffff0000, v{144+r//2}")
    gelu16(a, 128, 160)
    for r in range(0, 16, 2): a(f"v_cvt_pk_bf16_f32 v{144+r//2}, v{128+r}, v{129+r}")
    a("; GSTORE")
    a(f"buffer_store_dwordx4 v[144:147], v10, s[{SRD_G2}:{SRD_G2+3}], s64 offen sc1")
    a(f"buffer_store_dwordx4 v[148:151], v10, s[{SRD_G2}:{SRD_G2+3}], s65 offen sc1")

OT = 131072
def epi2_loads(a):
    a(f"s_lshr_b32 s61, s{S_WAVE}, 1")
    a(f"s_lshl_b32 s63, s{S_SJ}, 6")
    a("s_lshl_b32 s64, s61, 5")
    a("s_add_u32 s64, s64, s63")
    a("v_add_u32 v15, s64, v7")
    a("v_lshlrev_b32 v17, 1, v15")
    a(f"global_load_ushort v18, v17, s[{S_B2}:{S_B2+1}]")
    a("v_lshrrev_b32 v15, 3, v0")
    a("v_add_u32 v15, s63, v15")
    a("v_lshlrev_b32 v16, 10, v15")
    a("v_and_b32 v15, 7, v0")
    a("v_lshl_add_u32 v16, v15, 4, v16")
    a(f"s_lshl_b32 s70, s{S_T2}, 7")
    a("s_add_u32 s74, s70, 32768")
    a(f"buffer_load_dwordx4 v[20:23], v16, s[{SRD_H}:{SRD_H+3}], s70 offen sc1")
    a(f"buffer_load_dwordx4 v[24:27], v16, s[{SRD_H}:{SRD_H+3}], s74 offen sc1")

def epi2_shadow():
    l = ["v_lshlrev_b32 v18, 16, v18", "v_mov_b32 v19, v18"]
    for i in range(8):
        l += [f"v_lshlrev_b32 v{28+2*i}, 16, v{20+i}", f"v_and_b32 v{29+2*i}, 0xffff0000, v{20+i}"]
    l += [f"s_lshr_b32 s75, s{S_WAVE}, 1", "s_lshl_b32 s75, s75, 5", "v_add_u32 v44, s75, v7", "v_mul_u32_u24 v44, 144, v44", "v_lshl_add_u32 v44, v6, 6, v44",
          f"s_and_b32 s75, s{S_WAVE}, 1", "s_lshl_b32 s75, s75, 3", f"s_add_u32 s75, s75, {OT}", "v_add_u32 v44, s75, v44",
          "v_lshrrev_b32 v45, 3, v0", "v_mul_u32_u24 v45, 144, v45", "v_and_b32 v46, 7, v0", "v_lshl_add_u32 v45, v46, 4, v45", f"v_add_u32 v45, {OT}, v45"]
    return l

def epi2(a):
    P = lambda b, r: f"v[{b+r}:{b+r+1}]"
    reduce_read(a)
    for r in range(4):
        a(f"v_cvt_pk_bf16_f32 v{144+2*r}, v{128+r}, v{132+r}")
        a(f"v_cvt_pk_bf16_f32 v{145+2*r}, v{136+r}, v{140+r}")
    for i in range(8):
        a(f"v_lshlrev_b32 v{160+2*i}, 16, v{144+i}")
        a(f"v_and_b32 v{161+2*i}, 0xffff0000, v{144+i}")
    for r in range(0, 16, 2): a(f"v_pk_add_f32 {P(160,r)}, {P(160,r)}, v[18:19]")
    for i in range(8): a(f"v_cvt_pk_bf16_f32 v{144+i}, v{160+2*i}, v{161+2*i}")
    for r in range(4): a(f"ds_write_b64 v44, v[{144+2*r}:{145+2*r}] offset:{16*r}")
    a("s_waitcnt lgkmcnt(0)")
    a("s_barrier")
    a("ds_read_b128 v[144:147], v45")
    a(f"ds_read_b128 v[148:151], v45 offset:{32*144}")
    a("s_waitcnt lgkmcnt(0)")
    for i in range(8):
        a(f"v_lshlrev_b32 v{160+2*i}, 16, v{144+i}")
        a(f"v_and_b32 v{161+2*i}, 0xffff0000, v{144+i}")
    for r in range(0, 16, 2): a(f"v_pk_add_f32 {P(160,r)}, {P(160,r)}, {P(28,r)}")
    for i in range(8): a(f"v_cvt_pk_bf16_f32 v{144+i}, v{160+2*i}, v{161+2*i}")
    a(f"buffer_store_dwordx4 v[144:147], v16, s[{SRD_OUT}:{SRD_OUT+3}], s70 offen {OUTMOD}")
    a(f"buffer_store_dwordx4 v[148:151], v16, s[{SRD_OUT}:{SRD_OUT+3}], s74 offen {OUTMOD}")

D0_G1, D0_G2 = 5, 5
NPRE = 14
NOCOPY = True
RETOUCH = True
RETOUCH0 = True
LN2STRIDE = 8
TAILBG = 8
B1N, B1S = 4, 6
OUTMOD = 'sc1'
NOBGCONV = False
TOUCH = True
SJROT = 0
TOUCHREV = False
REMAP = False
ALIGN = True
CODEPF = True
def gen_fused(a):
    kernel_header(a, KNAME)
    stamp_begin(a)
    if DBGST is not None or DIAG_THR: a("s_memrealtime s[98:99]")
    a("s_cmp_ge_u32 s2, 256")
    a("s_cbranch_scc1 L_exit")
    if REMAP:
        a("s_and_b32 s4, s2, 7"); a("s_lshl_b32 s4, s4, 5"); a("s_lshr_b32 s2, s2, 3"); a("s_or_b32 s2, s2, s4")
    prologue(a)
    ln1(a)
    st(a, "LN1 done (stores issued)", 250)
    a(f"s_and_b32 s60, s2, {B1N-1}")
    a(f"s_lshl_b32 s60, s60, {B1S}")
    arrive(a, 8, 60, lo_only=True)
    st(a, "B1 arrived", 250)
    a(f"s_waitcnt vmcnt({min(len(HIQ), 2) if False else len(HIQ)})")
    bulk(a, "P2")
    kgen(a)
    st(a, "Kgen done", 250)
    ring_base(a, 20480, RING_A)
    woff_init(a, 1, S_FJ)
    conv_u_writes(a, 0)
    conv_main(a)
    st(a, "conv epilogue done (stores issued)")
    lw, lw2 = newlbl("ws"), newlbl("ws")
    a(f"s_cmp_lt_u32 s{S_WAVE}, 2")
    a(f"s_cbranch_scc1 {lw}")
    a("s_waitcnt vmcnt(0)")
    a(f"s_branch {lw2}")
    a.label(lw)
    a("s_waitcnt vmcnt(4)")
    lq = newlbl("pq")
    a(f"s_cmp_lg_u32 s{S_WAVE}, 0")
    a(f"s_cbranch_scc1 {lw2}")
    a("v_cmp_gt_u32 vcc, 32, v51")
    a(f"s_cbranch_vccz {lw2}")
    a(f"s_mov_b32 s60, {SYNC_OFF + 8*128}")
    poll(a, 6, 60, 8, 7, 32)
    a.label(lw2)
    tr_to_acc(a, 1, range(0, 10), 0)
    a("s_waitcnt lgkmcnt(0)")
    a("s_barrier")
    ring_base(a, 28672, 25600)
    ln2_addr(a)
    dma_issue(a, 1, 8, 0)
    ln2_issue(a)
    dma_issue(a, 1, 6, 8)
    st(a, "w1 DMA B issued")
    ln2_loads(a, 12)
    st(a, "YA ready")
    if NOCOPY and RETOUCH0:
        a(f"s_mul_i32 s60, s{S_WAVE}, 448")
        a(f"s_and_b32 s61, s{S_T2}, 3")
        a("s_mul_i32 s61, s61, 56")
        a("s_add_u32 s60, s60, s61")
        a("v_min_u32 v13, 55, v2")
        a("v_add_u32 v13, s60, v13")
        a("v_lshlrev_b32 v13, 12, v13")
        a(f"s_lshl_b32 s60, s{S_SJ}, 7")
        a(f"buffer_load_dword a199, v13, s[{SRD_W2}:{SRD_W2+3}], s60 offen")
    a(f"v_subrev_u32 v{V_PW}, {PL}, v{V_PW}")
    a(f"v_subrev_u32 v{V_PR}, {PL}, v{V_PR}")
    ln2_planes_in(a)
    a("s_waitcnt lgkmcnt(0)")
    a("s_barrier")
    def trgrp(sidx, slot, va=246, vb=247, rho=512):
        o = slot * 2048
        return [f"ds_read_b64_tr_b16 a[{8*sidx}:{8*sidx+1}], v{va} offset:{o}", f"ds_read_b64_tr_b16 a[{8*sidx+2}:{8*sidx+3}], v{va} offset:{o+rho}",
                f"ds_read_b64_tr_b16 a[{8*sidx+4}:{8*sidx+5}], v{vb} offset:{o}", f"ds_read_b64_tr_b16 a[{8*sidx+6}:{8*sidx+7}], v{vb} offset:{o+rho}"]
    grp = [trgrp(10 + i, i) for i in range(8)]
    d2 = dma_groups(1, 8, 0)
    d2[0] = ["s_waitcnt lgkmcnt(0)"] + d2[0]
    grp2 = [trgrp(18 + i, 8 + i) for i in range(6)]
    mix = list(grp)
    k2 = 0
    for i, g_ in enumerate(d2):
        mix.append(g_)
        if i % 2 == 1 and k2 < len(grp2): mix.append(grp2[k2]); k2 += 1
    mix += grp2[k2:]
    with_bg(a, lambda: ln2_compute(a), mix, skip=14, stride=LN2STRIDE, before="BGSTOP")
    st(a, "LN2 done (stores issued)")
    for i in range(24, 32):
        for l in trgrp(i, i - 24): a(l)
        if i % 3 == 2: a("s_waitcnt lgkmcnt(4)")
    a(f"s_mul_i32 s71, s{S_WAVE}, {32*16384}")
    a(f"s_lshl_b32 s60, s{S_T1}, 10")
    a("s_add_u32 s71, s71, s60")
    a("v_lshlrev_b32 v15, 13, v2")
    a("v_add_u32 v15, 1020, v15")
    gemm_lane_consts(a)
    dma_setup(a, 2)
    a("s_waitcnt lgkmcnt(0)")
    a("s_barrier")
    ring_base(a, 28672, RED_BYTES)
    woff_init(a, 2, S_SJ)
    dma_issue(a, 2, NPRE - 5, 0)
    a(f"buffer_load_dword v14, v15, s[{SRD_HN}:{SRD_HN+3}], s71 offen sc1")
    dma_issue(a, 2, 5, NPRE - 5)
    if NOCOPY and RETOUCH:
        a(f"s_mul_i32 s60, s{S_WAVE}, 448")
        a(f"s_and_b32 s61, s{S_T2}, 3")
        a("s_mul_i32 s61, s61, 56")
        a("s_add_u32 s60, s60, s61")
        a("s_add_u32 s60, s60, 224")
        a("v_min_u32 v13, 55, v2")
        a("v_add_u32 v13, s60, v13")
        a("v_lshlrev_b32 v13, 12, v13")
        a(f"s_lshl_b32 s60, s{S_SJ}, 7")
        a(f"buffer_load_dword v11, v13, s[{SRD_W2}:{SRD_W2+3}], s60 offen")
    st(a, "w2 DMA A issued")
    a("s_cmp_ge_u32 s2, 224")
    a("s_cbranch_scc1 L_skipG1")
    probe_spin(a, SRD_HN, 15, 71, first_wait=(11 if (NOCOPY and RETOUCH) else 10))
    st(a, "HN probe ok")
    epi1_loads(a)
    a("s_waitcnt lgkmcnt(0)")
    a("s_barrier")
    main_loop2(a, 1, SRD_HN, 71, D0_G1, shadow=epi1_shadow())
    st(a, "G1 main done")
    reduce_write(a)
    tr_to_acc(a, 2, range(NPRE), 0)
    a("s_waitcnt lgkmcnt(0)")
    a("s_barrier")
    g = dma_groups(2, 14, 0)
    with_bg(a, lambda: epi1(a), g[:TAILBG], skip=30, stride=max(4, 112 // max(TAILBG, 1)), before="GSTORE")
    for grp in g[TAILBG:]:
        for l in grp: a(l)
    st(a, "epi1 done (stores issued)")
    dma_issue(a, 2, 28 - NPRE - 14, 14) if 28 - NPRE - 14 > 0 else None
    a("s_branch L_stage2")
    a.label("L_skipG1")
    a("s_waitcnt vmcnt(0) lgkmcnt(0)")
    tr_to_acc(a, 2, range(NPRE), 0)
    a("s_waitcnt lgkmcnt(0)")
    dma_issue(a, 2, 28 - NPRE, 0)
    a.label("L_stage2")
    a(f"s_mul_i32 s71, s{S_WAVE}, {28*16384}")
    a(f"s_lshl_b32 s60, s{S_T2}, 10")
    a("s_add_u32 s71, s71, s60")
    a("v_min_u32 v15, 55, v2")
    a("v_lshlrev_b32 v15, 13, v15")
    a("v_add_u32 v15, 1020, v15")
    a("s_waitcnt vmcnt(0)")
    a(f"buffer_load_dword v14, v15, s[{SRD_G2}:{SRD_G2+3}], s71 offen sc1")
    tr_to_acc(a, 2, range(NPRE, 28), 0)
    st(a, "w2 staged")
    probe_spin(a, SRD_G2, 15, 71, first_wait=0)
    st(a, "G probe ok")
    epi2_loads(a)
    a("s_waitcnt lgkmcnt(0)")
    a("s_barrier")
    main_loop2(a, 2, SRD_G2, 71, D0_G2, shadow=epi2_shadow())
    st(a, "G2 main done")
    reduce_write(a)
    a("s_waitcnt lgkmcnt(0)")
    a("s_barrier")
    epi2(a)
    a("s_waitcnt vmcnt(0)") if STAMPON() else None
    st(a, "end", final=True)
    if DIAG_THR:
        a("s_cmp_lg_u32 s2, 0")
        a("s_cbranch_scc1 L_exit")
        a("s_waitcnt vmcnt(0)")
        a("s_memrealtime s[96:97]")
        a("s_waitcnt lgkmcnt(0)")
        a("s_sub_u32 s94, s96, s98")
        a(f"s_cmp_lt_u32 s94, {DIAG_THR}")
        a("s_cbranch_scc1 L_exit")
        a("s_add_u32 s95, s96, 6000")
        a.label("L_diag")
        a("s_memrealtime s[96:97]")
        a("s_waitcnt lgkmcnt(0)")
        a("s_sub_u32 s94, s95, s96")
        a("s_cmp_gt_i32 s94, 0")
        a("s_cbranch_scc1 L_diag")
    a.label("L_exit")
    a("s_endpgm")
    for l in RETRY: a.lines.append(l)
    a.label("L_code_end")
    a("s_endpgm")
    return kernel_desc(KNAME, 512, 100, accum=256)

def touch_setup(a):
    a("s_and_b32 s60, s2, 7")
    a("s_lshr_b32 s60, s60, 1")
    a("s_lshr_b32 s61, s2, 3")
    a(f"s_and_b32 s62, s{S_WAVE}, 1")
    a("s_lshl_b32 s62, s62, 9")
    a("s_lshl_b32 s63, s61, 6")
    a(f"v_add_u32 v{V_TW1}, s63, v2")
    a(f"v_mul_u32_u24 v{V_TW1}, 3584, v{V_TW1}")
    a("s_mul_i32 s63, s60, 896")
    a("s_add_u32 s63, s63, s62")
    a(f"v_add_u32 v{V_TW1}, s63, v{V_TW1}")
    a("s_mul_i32 s79, s2, 28672")
    a(f"s_and_b32 s61, s{S_WAVE}, 1")
    a("s_mul_i32 s61, s61, 14336")
    a("s_add_u32 s79, s79, s61")

BULK = {"P0": ["T0"], "P1": ["T1"], "P2": ["T2"], "P3": ["F0", "F1", "T3"], "P4": ["F2", "F3"], "P5": ["F4", "F5"], "c4": ["U0"], "c7": ["U1"], "c10": ["U2"], "c13": ["U3"]}
HIQ = []
def hi_younger(tag):
    idx = max(i for i, t in enumerate(HIQ) if t == tag)
    return len(HIQ) - 1 - idx
def bulk(a, slot):
    ops = BULK.get(slot, [])
    if not ops: return
    for op in ops:
        if op[0] == "F":
            prefill_op(a, int(op[1:])); HIQ.append(op)
    ops = [o for o in ops if o[0] != "F"]
    if not TOUCH: ops = [o for o in ops if o[0] != "T"]
    if not ops: return
    l = newlbl("bk")
    a(f"s_cmp_lt_u32 s{S_WAVE}, 2")
    a(f"s_cbranch_scc1 {l}")
    for op in ops:
        k = int(op[1:])
        if op[0] == "T":
            if k == 3:
                l3 = newlbl("t3")
                a(f"s_cmp_eq_u32 s{S_WAVE}, 3"); a(f"s_cbranch_scc0 {l3}")
                a(f"v_readfirstlane_b32 s74, v{V_TW1}"); a(f"v_mov_b32 v{V_TW1}, s74")
                a.label(l3)
            a(f"buffer_load_dword a199, v{V_TW1}, s[{SRD_W1}:{SRD_W1+3}], 0 offen offset:{128*k}"); HIQ.append(op)
        elif op[0] == "U":
            if k == 0:
                a("s_and_b32 s74, s2, 7"); a("s_lshr_b32 s74, s74, 1"); a("s_lshl_b32 s74, s74, 10")
                a(f"s_and_b32 s75, s{S_WAVE}, 1"); a("s_lshl_b32 s75, s75, 9"); a("s_add_u32 s74, s74, s75")
                a("s_lshr_b32 s75, s2, 3"); a("s_mul_i32 s75, s75, 56")
                a(f"v_min_u32 v{V_TW2}, 55, v2"); a(f"v_add_u32 v{V_TW2}, s75, v{V_TW2}"); a(f"v_lshlrev_b32 v{V_TW2}, 12, v{V_TW2}"); a(f"v_add_u32 v{V_TW2}, s74, v{V_TW2}")
            a(f"buffer_load_dword a199, v{V_TW2}, s[{SRD_W2}:{SRD_W2+3}], 0 offen offset:{128*k}"); HIQ.append(op)
        elif op[0] == "C":
            a("v_lshlrev_b32 v255, 4, v2")
            for i in (2 * k, 2 * k + 1):
                a(f"buffer_load_dwordx4 a[{A_CP+4*i}:{A_CP+4*i+3}], v255, s[{SRD_W2}:{SRD_W2+3}], s79 offen offset:{(i%4)*1024}")
                if i % 4 == 3: a("s_add_u32 s79, s79, 4096")
                HIQ.append("C")
        else:
            if k == 0:
                a(f"s_waitcnt vmcnt({hi_younger('C')})")
                w2copy_dst(a)
            for x in w2copy_store(a, k): a(x)
            HIQ.append("S")
    a.label(l)

A_CP = 200
def w2copy_dst(a):
    a("v_lshrrev_b32 v245, 3, v2")
    a(f"s_mov_b32 s74, {W2R_TILE}")
    a("v_mul_lo_u32 v245, v245, s74")
    a(f"v_and_b32 v{V_TW2}, 7, v2")
    a(f"v_lshl_add_u32 v{V_TW2}, v{V_TW2}, 4, v245")
    a(f"s_and_b32 s69, s{S_WAVE}, 1")
    a("s_mul_i32 s68, s2, 896")

def w2copy_store(a, i):
    off = lambda m: (m % 4) * 8 * W2R_TILE + (m // 4) * 128
    return [f"s_mov_b32 s74, {off(14 + i) - off(i)}",
            f"s_mul_i32 s74, s74, s69",
            f"s_add_u32 s74, s74, s68",
            f"s_add_u32 s74, s74, {off(i)}",
            f"buffer_store_dwordx4 a[{A_CP+4*i}:{A_CP+4*i+3}], v{V_TW2}, s[{SRD_W2R}:{SRD_W2R+3}], s74 offen sc1"]

def build(path):
    a = Asm()
    hdr = open("cdna_kernels/" + NAME + ".s.ref").read().split("; Override launch geometry")[0]
    txt = hdr + f"; @launch grid=(256,1,1) block=(256,1,1) lds={LDS_TOTAL}\n" + '.amdgcn_target "amdgcn-amd-amdhsa--gfx950"\n'
    d = gen_fused(a)
    body = a.finalize()
    if ALIGN:
        import asmlib
        body, np_, nn_ = asmlib.align8(body)
        print("align8: promoted", np_, "nops", nn_)
    txt += body + d
    open(path, "w").write(txt)
    open(path + ".names", "w").write("".join(f"{k} {v}\n" for k, v in ST_NAMES.items()))

if __name__ == "__main__":
    import sys, common
    if "--stamp" in sys.argv:
        common.STAMP = True; sys.argv.remove("--stamp")
    if "--notouch" in sys.argv: TOUCH = False
    if "--remap" in sys.argv: REMAP = True
    for x in sys.argv:
        if x.startswith("--bulk="): BULK = eval(x[7:])
        if x.startswith("--thr="): DIAG_THR = int(x[6:])
        if x == "--nobgconv": NOBGCONV = True
        if x == "--nort0": RETOUCH0 = False
        if x.startswith("--ln2s="): LN2STRIDE = int(x[7:])
        if x.startswith("--tailbg="): TAILBG = int(x[9:])
        if x.startswith("--b1="): B1N, B1S = eval(x[5:])
        if x.startswith("--outmod="): OUTMOD = x[9:]
        if x == "--nocopy":
            NOCOPY = True
            BULK = {"P0": ["T0"], "P1": ["T1"], "P2": ["T2"], "P3": ["F0", "F1", "T3"], "P4": ["F2", "F3"], "P5": ["F4", "F5"], "c4": ["U0"], "c7": ["U1"], "c10": ["U2"], "c13": ["U3"]}
        if x.startswith("--d0="): D0_G1 = D0_G2 = int(x[5:])
    if "--sjrot" in sys.argv: SJROT = 2
    if "--touchrev" in sys.argv: TOUCHREV = True
    if "--noalign" in sys.argv: ALIGN = False
    if "--nocodepf" in sys.argv: CODEPF = False
    if "--dbgst" in sys.argv:
        DBGST = ["LN1 done (stores issued)", "B1 arrived", "Kgen done", "B1 passed", "conv start (U in LDS)", "conv main done", "B2 arrived", "B2 passed",
                 "LN2 done (stores issued)", "B3 passed", "G1 main done", "B4 arrived", "B4 passed", "G2 main done", "end"]
    build(sys.argv[1])
```

```python
from common import *
from k1 import cmul, wave_max, G_ROW, H_BASE, FT_BASE, FT_DUMMY
import struct

KNAME = NAME + "_kernel"
KG_CH = 27984
FT_AREA = 2 * KG_CH
KC_BASE = 0
KC_STRIDE = 4160
KCH = 4 * KC_STRIDE
U_BASE = KC_BASE + 2 * KCH
U_CH = 95 * 80
LDS_TOTAL = 163840
FT_ZERO = 2060
RED_BYTES = 49152
D_RING = 8
S_WAVE, S_Q0 = 10, 11
SRD_X, SRD_U2, SRD_YA, SRD_H, SRD_HN, SRD_G2, SRD_W1, SRD_W2, SRD_OUT = 12, 16, 20, 24, 28, 32, 36, 40, 44
SRD_W2R = 80
S_B1, S_B2 = 48, 50
S_SCALE, S_DSK = 52, 53
S_T1, S_FJ, S_T2, S_SJ = 54, 55, 56, 57
S_WOFF, S_RING = 58, 59
SM, SR = 84, 86
C_B2, C_B3, C_B4 = 0, 8, 16
KIDX = 0
S_TB = 5
VX = 224
V_KROW, V_KA, V_KB, V_KSC, V_KDST = 232, 233, 234, 235, 239
V_CA, V_CB = 248, 249
V_PW, V_PR, V_US = 252, 253, 254
V_TW1, V_TW2 = 1, 30
PL = 67744
RING_A = 76960
RED_CONV = 48640
PL1 = PL2 = 0
YB = 16384

ST_NAMES = {}
DIAG_THR = 0
DBGST = None
_st = [2]
def st(a, name, vt=60, final=False):
    if DBGST is not None:
        if name in DBGST:
            k = DBGST.index(name) + 1
            l = newlbl("ds")
            a("s_memrealtime s[96:97]")
            a(f"s_or_b32 s94, s2, s{S_WAVE}")
            a("s_cmp_lg_u32 s94, 0")
            a("s_waitcnt lgkmcnt(0)")
            a(f"s_cbranch_scc1 {l}")
            a("s_sub_u32 s96, s96, s98")
            a(f"v_mov_b32 v{vt}, {4*k}")
            a(f"v_mov_b32 v{vt+1}, s96")
            a(f"global_store_dword v{vt}, v{vt+1}, s[8:9]")
            a.label(l)
        return
    slot = 1 if final else _st[0]
    if not final: _st[0] += 1
    ST_NAMES[slot] = name
    stamp(a, KIDX, slot, 6, vt)

def evalE(a, D, v, zr, zi, t, conj=False):
    bits = struct.unpack('<I', struct.pack('<f', float(v)))[0]
    a(f"s_mov_b32 s78, {hex(bits)}")
    a(f"v_mul_f32 v{t}, s78, v{zr}")
    a(f"v_mul_f32 v{t+1}, s78, v{zi}")
    a(f"v_exp_f32 v{t}, v{t}")
    a(f"v_rndne_f32 v{t+2}, v{t+1}")
    a(f"v_sub_f32 v{t+1}, v{t+1}, v{t+2}")
    a(f"v_cos_f32 v{D}, v{t+1}")
    a(f"v_sin_f32 v{D+1}, v{t+1}")
    a(f"v_mul_f32 v{D}, v{D}, v{t}")
    if conj: a(f"v_mul_f32 v{D+1}, -v{D+1}, v{t}")
    else: a(f"v_mul_f32 v{D+1}, v{D+1}, v{t}")

def pos2chan(a, sd, sq, t):
    a(f"s_and_b32 s{sd}, s{sq}, 0x1c0")
    a(f"s_and_b32 s{t}, s{sq}, 7")
    a(f"s_lshl_b32 s{t}, s{t}, 3")
    a(f"s_or_b32 s{sd}, s{sd}, s{t}")
    a(f"s_lshr_b32 s{t}, s{sq}, 3")
    a(f"s_and_b32 s{t}, s{t}, 7")
    a(f"s_or_b32 s{sd}, s{sd}, s{t}")

_lbl = [0]
def newlbl(p):
    _lbl[0] += 1
    return f"L_{p}{_lbl[0]}"

def arrive(a, base_sgpr_pair, off_sgpr, lo_only=False):
    if lo_only:
        l0 = newlbl("ad")
        a(f"s_cmp_ge_u32 s{S_WAVE}, 2")
        a(f"s_cbranch_scc1 {l0}")
        a("s_waitcnt vmcnt(0)")
        a.label(l0)
    else:
        a("s_waitcnt vmcnt(0)")
    a("s_barrier")
    l = newlbl("arr")
    a(f"s_cmp_lg_u32 s{S_WAVE}, 0")
    a(f"s_cbranch_scc1 {l}")
    a(f"v_mov_b32 v13, s{off_sgpr}")
    a("v_mov_b32 v14, 1")
    a("s_mov_b64 s[62:63], exec")
    a("s_mov_b64 exec, 1")
    a(f"global_atomic_add v13, v14, s[{base_sgpr_pair}:{base_sgpr_pair+1}] sc1")
    a("s_mov_b64 exec, s[62:63]")
    a.label(l)

def poll(a, base_sgpr_pair, off_sgpr, n, stride_log2, target):
    l = newlbl("poll")
    a(f"v_and_b32 v13, {n-1}, v2")
    a(f"v_lshlrev_b32 v13, {stride_log2}, v13")
    a(f"v_add_u32 v13, s{off_sgpr}, v13")
    a("s_mov_b32 s61, 0")
    a.label(l)
    a(f"global_load_dword v14, v13, s[{base_sgpr_pair}:{base_sgpr_pair+1}] sc1")
    a("s_waitcnt vmcnt(0)")
    a(f"v_cmp_gt_u32 vcc, {target}, v14")
    a("s_add_u32 s61, s61, 1")
    a(f"s_cbranch_vccz {l}_done")
    a("s_cmp_lt_u32 s61, 0x40000")
    a(f"s_cbranch_scc1 {l}")
    a.label(l + "_done")

def poll_wg(a, base_sgpr_pair, off_sgpr, n, stride_log2, target):
    l = newlbl("pw")
    a(f"s_cmp_lg_u32 s{S_WAVE}, 0")
    a(f"s_cbranch_scc1 {l}")
    poll(a, base_sgpr_pair, off_sgpr, n, stride_log2, target)
    a.label(l)
    a("s_barrier")

def prologue(a):
    a("s_load_dwordx16 s[64:79], s[0:1], 0")
    a("s_load_dwordx2 s[88:89], s[0:1], 64")
    a("s_load_dwordx4 s[80:83], s[0:1], 80")
    a("s_load_dwordx4 s[84:87], s[0:1], 96")
    a("s_load_dwordx4 s[60:63], s[0:1], 112")
    a("s_load_dwordx2 s[6:7], s[0:1], 128")
    a("v_lshrrev_b32 v1, 6, v0")
    a("v_and_b32 v2, 63, v0")
    a(f"v_readfirstlane_b32 s{S_WAVE}, v1")
    a("s_and_b32 s54, s2, 7")
    a("s_lshl_b32 s54, s54, 5")
    a("s_lshr_b32 s55, s2, 3")
    a(f"s_add_u32 s{S_TB}, s54, s55")
    a(f"s_lshl_b32 s{S_Q0}, s{S_TB}, 1")
    a(f"s_lshr_b32 s55, s{S_WAVE}, 1")
    a(f"s_add_u32 s56, s{S_Q0}, s55")
    pos2chan(a, 57, 56, 58)
    a("v_lshlrev_b32 v3, 4, v2")
    a(f"s_lshl_b32 s58, s{S_TB}, 13")
    a(f"s_lshl_b32 s59, s{S_WAVE}, 11")
    a("s_add_u32 s59, s59, s58")
    a(f"s_and_b32 s54, s{S_WAVE}, 1")
    a("s_lshl_b32 s54, s54, 7")
    a("s_lshl_b32 s55, s57, 8")
    a("s_add_u32 s54, s54, s55")
    a("v_lshl_add_u32 v12, v2, 1, s54")
    a("v_xor_b32 v13, 128, v12")
    a("s_waitcnt lgkmcnt(0)")
    stamp(a, KIDX, 0, 6, 250, first=True)
    srd(a, SRD_X, 64, 65, 0, 0x200000)
    a(f"buffer_load_dwordx4 v[{VX}:{VX+3}], v3, s[{SRD_X}:{SRD_X+3}], s59 offen")
    a(f"buffer_load_dwordx4 v[{VX+4}:{VX+7}], v3, s[{SRD_X}:{SRD_X+3}], s59 offen offset:1024")
    a("global_load_ushort v200, v12, s[66:67]")
    a("global_load_ushort v201, v12, s[68:69]")
    a("global_load_ushort v202, v12, s[70:71]")
    a("global_load_ushort v203, v12, s[72:73]")
    a("global_load_ushort v204, v12, s[74:75]")
    a("global_load_ushort v205, v12, s[76:77]")
    a("global_load_ushort v206, v13, s[70:71]")
    a("global_load_ushort v207, v13, s[72:73]")
    a("global_load_ushort v208, v13, s[74:75]")
    a("global_load_ushort v209, v13, s[76:77]")
    a("s_lshl_b32 s54, s57, 1")
    a("s_and_b32 s54, s54, 0xfffffffc")
    a("s_load_dword s52, s[78:79], s54")
    a("s_load_dword s53, s[88:89], s54")
    a("s_and_b32 s91, s57, 1")
    a(f"s_mov_b32 s8, s62"); a("s_mov_b32 s9, s63")
    srd(a, SRD_OUT, 60, 61, 0, 0x200000)
    srd(a, SRD_U2, 6, 7, U2_OFF, U2_SZ)
    srd(a, SRD_YA, 6, 7, YA_OFF, YA_SZ)
    srd(a, SRD_H, 6, 7, H_OFF, H_SZ)
    srd(a, SRD_HN, 6, 7, HN_OFF, HN_SZ)
    srd(a, SRD_G2, 6, 7, G2_OFF, G2_SZ)
    srd(a, SRD_W1, 80, 81, 0, 2048 * 3584)
    srd(a, SRD_W2, 84, 85, 0, 2048 * 3584)
    a(f"s_mov_b32 s{S_B1}, s82"); a(f"s_mov_b32 s{S_B1+1}, s83")
    a(f"s_mov_b32 s{S_B2}, s86"); a(f"s_mov_b32 s{S_B2+1}, s87")
    srd(a, SRD_W2R, 6, 7, W2R_OFF, W2R_SZ)
    l = newlbl("z")
    a(f"s_or_b32 s54, s2, s{S_WAVE}")
    a("s_cmp_lg_u32 s54, 0")
    a(f"s_cbranch_scc1 {l}")
    a("v_lshlrev_b32 v14, 7, v2")
    a(f"v_add_u32 v14, {SYNC_OFF}, v14")
    a("v_mov_b32 v15, 0")
    a("global_store_dword v14, v15, s[6:7] sc1")
    a.label(l)
    if CODEPF:
        l = newlbl("cpf")
        a(f"s_cmp_lg_u32 s{S_WAVE}, 3")
        a(f"s_cbranch_scc1 {l}")
        a("s_getpc_b64 s[54:55]")
        a.label("L_pcbase")
        a("v_lshlrev_b32 v14, 7, v2")
        a("s_mov_b32 s56, L_code_end-L_pcbase")
        for k in range(5):
            a("v_min_u32 v15, s56, v14")
            a(f"global_load_dword a198, v15, s[54:55]")
            if k < 4: a("v_add_u32 v14, 8192, v14")
        a.label(l)
    touch_setup(a)
    bulk(a, "P0")
    precompute(a)
    a("s_cmp_eq_u32 s91, 1")
    a("s_cselect_b32 s60, 0, 16")
    a("s_waitcnt lgkmcnt(0)")
    a("s_lshl_b32 s52, s52, s60"); a("s_and_b32 s52, s52, 0xffff0000")
    a("s_lshl_b32 s53, s53, s60"); a("s_and_b32 s53, s53, 0xffff0000")

V_ONES = 216
def prefill_op(a, k):
    if k == 0:
        for r in range(V_ONES, V_ONES + 4): a(f"v_mov_b32 v{r}, -1")
    D = f"v[{V_ONES}:{V_ONES+3}]"
    if k < 4:
        a(f"s_lshl_b32 s74, s{S_TB}, 13")
        if k % 2: a("s_add_u32 s74, s74, 4096")
        sr = SRD_YA if k < 2 else SRD_HN
        a(f"buffer_store_dwordx4 {D}, v{V_US}, s[{sr}:{sr+3}], s74 offen sc1")
    else:
        a(f"s_lshl_b32 s74, s{S_FJ}, 16")
        a(f"s_lshl_b32 s75, s{S_WAVE}, 13")
        a("s_add_u32 s74, s74, s75")
        a(f"s_lshl_b32 s75, s{S_T1}, 10")
        a("s_add_u32 s74, s74, s75")
        if k == 5: a("s_add_u32 s74, s74, 32768")
        a("v_lshlrev_b32 v220, 4, v2")
        a(f"buffer_store_dwordx4 {D}, v220, s[{SRD_G2}:{SRD_G2+3}], s74 offen sc1")

def precompute(a):
    a("v_lshrrev_b32 v4, 3, v2")
    a("v_mul_u32_u24 v4, 72, v4")
    a("v_and_b32 v5, 7, v2")
    a("v_add_u32 v4, v4, v5")
    a(f"s_mul_i32 s54, s{S_WAVE}, 576")
    a("v_add_u32 v4, s54, v4")
    a(f"v_lshlrev_b32 v{V_PW}, 2, v4")
    a(f"v_add_u32 v{V_PW}, {PL}, v{V_PW}")
    a(f"s_mul_i32 s54, s{S_WAVE}, 72")
    a("v_add_u32 v4, s54, v2")
    a(f"v_lshlrev_b32 v{V_PR}, 2, v4")
    a(f"v_add_u32 v{V_PR}, {PL}, v{V_PR}")
    a(f"v_lshlrev_b32 v{V_US}, 4, v0")
    a(f"s_lshr_b32 s60, s{S_WAVE}, 1")
    a(f"s_mul_i32 s60, s60, {KG_CH}")
    a(f"s_and_b32 s62, s{S_WAVE}, 1")
    a("s_lshl_b32 s61, s62, 8")
    a("s_add_u32 s61, s61, s60")
    a(f"v_lshl_add_u32 v{V_KROW}, v2, 2, s61")
    a("v_and_b32 v7, 15, v2")
    a("v_lshrrev_b32 v8, 4, v2")
    a(f"v_mul_u32_u24 v9, {G_ROW}, v7")
    a("v_lshl_add_u32 v9, v8, 4, v9")
    a(f"s_mul_i32 s63, s62, {16*G_ROW}")
    a("s_add_u32 s63, s63, s60")
    a(f"v_add_u32 v{V_KA}, s63, v9")
    a(f"s_add_u32 s63, s60, {H_BASE}")
    a(f"v_add_u32 v{V_KB}, s63, v9")
    a("v_lshlrev_b32 v16, 3, v7")
    a(f"s_lshr_b32 s63, s{S_WAVE}, 1")
    a("s_mul_i32 s63, s63, 5888")
    a(f"s_add_u32 s63, s63, {FT_AREA}")
    a(f"s_movk_i32 s54, {FT_DUMMY}")
    a("v_cmp_eq_u32 s[56:57], 1, v8")
    a("v_cmp_eq_u32 s[58:59], 2, v8")
    a("v_cmp_eq_u32 vcc, 3, v8")
    for r in range(4):
        m0_q2 = 256 + 2 * r
        m0_q3 = 512 + 4 * (r & 1) + 256 * (r >> 1)
        m1_q0 = 1024 + 256 * r
        m1_q1 = 2048 if r == 0 else FT_DUMMY
        R = V_KSC + r
        a("s_cmp_eq_u32 s62, 0")
        a(f"s_cselect_b32 s55, {r}, {m1_q0}")
        a(f"v_mov_b32 v{R}, s55")
        a(f"s_cselect_b32 s55, {4+r}, {m1_q1}")
        a("v_mov_b32 v18, s55")
        a(f"v_cndmask_b32 v{R}, v{R}, v18, s[56:57]")
        a(f"s_cselect_b32 s55, {m0_q2}, s54")
        a("v_mov_b32 v18, s55")
        a(f"v_cndmask_b32 v{R}, v{R}, v18, s[58:59]")
        a(f"s_cselect_b32 s55, {m0_q3}, s54")
        a("v_mov_b32 v18, s55")
        a(f"v_cndmask_b32 v{R}, v{R}, v18, vcc")
        a(f"v_add_u32 v{R}, v{R}, v16")
        a(f"v_lshrrev_b32 v18, 4, v{R}")
        a(f"v_lshlrev_b32 v18, 2, v18")
        a(f"v_lshl_add_u32 v{R}, v{R}, 1, v18")
        a(f"v_add_u32 v{R}, s63, v{R}")
    a("s_lshl_b32 s55, s62, 6")
    a("v_add_u32 v19, s55, v2")
    a("v_lshlrev_b32 v100, 5, v19")
    a("v_sub_u32 v100, 4094, v100")
    NE = 19
    for e in range(NE):
        a(f"v_subrev_u32 v{104+e}, {2*e}, v100")
        a(f"v_cvt_f32_u32 v{104+e}, v{104+e}")
    for e in range(0, NE + 1, 2):
        e2 = min(e + 1, NE - 1)
        a(f"v_cvt_pk_bf16_f32 v{124+e//2}, v{104+e}, v{104+e2}")
    for e in range(NE):
        if e % 2 == 0: a(f"v_lshlrev_b32 v{104+e}, 16, v{124+e//2}")
        else: a(f"v_and_b32 v{104+e}, 0xffff0000, v{124+e//2}")
    for e in range(NE): a(f"v_cvt_u32_f32 v{104+e}, v{104+e}")
    for e in range(16, NE): a(f"v_min_u32 v{104+e}, {2*FT_ZERO}, v{104+e}")
    for e in range(NE):
        a(f"v_lshrrev_b32 v18, 5, v{104+e}")
        a(f"v_lshl_add_u32 v{104+e}, v18, 2, v{104+e}")
        a(f"v_add_u32 v{104+e}, s63, v{104+e}")
    a(f"s_lshr_b32 s55, s{S_WAVE}, 1")
    a(f"s_mul_i32 s55, s55, {KCH}")
    a(f"s_add_u32 s55, s55, {KC_BASE}")
    a("v_lshlrev_b32 v19, 5, v19")
    a(f"v_add_u32 v{V_KDST}, s55, v19")
    bulk(a, "P1")
    a(f"s_lshr_b32 s60, s{S_WAVE}, 1")
    a(f"s_and_b32 s61, s{S_WAVE}, 1")
    a("v_and_b32 v52, 31, v2")
    a("v_lshrrev_b32 v53, 5, v2")
    a("v_and_b32 v54, 3, v52")
    a("v_sub_u32 v54, 3, v54")
    a(f"v_mul_u32_u24 v54, {KC_STRIDE}, v54")
    a("v_lshrrev_b32 v55, 2, v52")
    a("v_lshlrev_b32 v55, 3, v55")
    a("v_sub_u32 v54, v54, v55")
    a("v_lshl_add_u32 v54, v53, 4, v54")
    a(f"s_mul_i32 s62, s60, {KCH}")
    a("s_lshl_b32 s63, s61, 6")
    a("s_sub_u32 s62, s62, s63")
    a(f"s_add_u32 s62, s62, {KC_BASE + 2*2044 - 2048 - 64*30}")
    a(f"v_add_u32 v{V_CA}, s62, v54")
    a("v_mul_u32_u24 v55, 80, v52")
    a("v_lshl_add_u32 v55, v53, 4, v55")
    a(f"s_mul_i32 s62, s60, {U_CH}")
    a("s_mul_i32 s63, s61, 80")
    a("s_sub_u32 s62, s62, s63")
    a(f"s_add_u32 s62, s62, {U_BASE + 80*(31-30)}")
    a(f"v_add_u32 v{V_CB}, s62, v55")
    tile_coords(a, 1, S_T1, S_FJ)
    tile_coords(a, 2, S_T2, S_SJ)
    dma_setup(a, 1)

def planes_out(a, D, plane_base, srd_dst, T, lo_only=False):
    for c in range(8):
        a(f"ds_write_b32 v{V_PW}, v{D+c} offset:{plane_base + 32*c}")
    a("s_waitcnt lgkmcnt(0)")
    a("s_barrier")
    a(f"s_lshl_b32 s60, s{S_TB}, 13")
    if not lo_only:
        a(f"v_add_u32 v{T+8}, 1152, v{V_PR}")
        a(f"ds_read2st64_b32 v[{T}:{T+1}], v{V_PR} offset0:0 offset1:9")
        a(f"ds_read2st64_b32 v[{T+2}:{T+3}], v{V_PR} offset0:18 offset1:27")
        a(f"ds_read2st64_b32 v[{T+4}:{T+5}], v{T+8} offset0:0 offset1:9")
        a(f"ds_read2st64_b32 v[{T+6}:{T+7}], v{T+8} offset0:18 offset1:27")
        a("s_add_u32 s61, s60, 4096")
        a("s_waitcnt lgkmcnt(2)")
        a(f"buffer_store_dwordx4 v[{T}:{T+3}], v{V_US}, s[{srd_dst}:{srd_dst+3}], s60 offen sc1")
        a("s_waitcnt lgkmcnt(0)")
        a(f"buffer_store_dwordx4 v[{T+4}:{T+7}], v{V_US}, s[{srd_dst}:{srd_dst+3}], s61 offen sc1")
    else:
        l = newlbl("po")
        a(f"s_cmp_ge_u32 s{S_WAVE}, 2")
        a(f"s_cbranch_scc1 {l}")
        for k in range(4):
            a(f"v_add_u32 v{T+16}, {576*k}, v{V_PR}")
            a(f"ds_read2st64_b32 v[{T+4*k}:{T+4*k+1}], v{T+16} offset0:0 offset1:9")
            a(f"ds_read2st64_b32 v[{T+4*k+2}:{T+4*k+3}], v{T+16} offset0:18 offset1:27")
        for k in range(4):
            a(f"s_waitcnt lgkmcnt({2*(3-k)})")
            a(f"buffer_store_dwordx4 v[{T+4*k}:{T+4*k+3}], v{V_US}, s[{srd_dst}:{srd_dst+3}], s60 offen sc1")
            if k < 3: a("s_add_u32 s60, s60, 2048")
        a.label(l)

def unit_addr(a, vd, vt):
    a(f"v_lshrrev_b32 v{vd}, 3, v2")
    a(f"v_lshlrev_b32 v{vd}, 10, v{vd}")
    a(f"v_and_b32 v{vt}, 7, v2")
    a(f"v_lshl_add_u32 v{vd}, v{vt}, 4, v{vd}")

def ln1(a):
    a(f"s_mov_b32 s90, {INV512}")
    a(f"s_mov_b32 s91, {EPS}")
    a("s_waitcnt vmcnt(10)")
    unpack_pairs(a, 16, VX, VX + 4)
    pair_sums(a, 16, 8, 32, 34, 36)
    reduce4(a, 32, 33, 34, 35)
    ln_stats(a, 32, 33, 36, 37, SM, SR)
    ln_apply(a, 16, 8, SM, SR, 40)
    unpack_packed(a, 16, 8, 40)
    for c in range(8):
        a(f"v_cvt_pk_f16_f32 v{40+c}, v{16+2*c}, v{17+2*c}")
    planes_out(a, 40, PL1, SRD_U2, 48, lo_only=True)

def kgen(a):
    a(f"s_lshr_b32 s60, s{S_WAVE}, 1")
    a(f"s_mul_i32 s60, s60, {KG_CH}")
    a(f"s_mov_b32 s66, {LOG2E}")
    a(f"s_mov_b32 s67, {LOG2E_LO}")
    a(f"s_mov_b32 s68, {LN2}")
    a(f"s_mov_b32 s69, {INV2PI}")
    a("v_mov_b32 v20, s52")
    a("v_mul_f32 v21, s66, v20")
    a("v_fma_f32 v22, v20, s66, -v21")
    a("v_fmac_f32 v22, s67, v20")
    a("v_exp_f32 v21, v21")
    a("v_mul_f32 v22, s68, v22")
    a("v_fmac_f32 v21, v21, v22")
    bf16_round(a, 21, 21)
    for i in range(10): a(f"v_lshlrev_b32 v{10+i}, 16, v{200+i}")
    a("v_mul_f32 v10, v21, v10")
    a("v_mul_f32 v11, v21, v11")
    a("v_mul_f32 v10, s66, v10")
    a("v_mul_f32 v11, s69, v11")
    for (b, c0, out) in ((12, 14, 24), (16, 18, 26)):
        a(f"v_mul_f32 v{b}, v21, v{b}")
        a(f"v_mul_f32 v{b+1}, v21, v{b+1}")
        a(f"v_mul_f32 v{out}, v{c0}, v{b}")
        a(f"v_mul_f32 v{out+1}, v{c0}, v{b+1}")
        a(f"v_fma_f32 v{out}, -v{c0+1}, v{b+1}, v{out}")
        a(f"v_fmac_f32 v{out+1}, v{c0+1}, v{b}")
    a("v_max3_f32 v28, abs(v24), abs(v25), abs(v26)")
    a("v_max_f32 v28, v28, abs(v27)")
    W1, W256, W512, W1024, W8, W128 = 32, 34, 36, 38, 80, 50
    evalE(a, W1, 1, 10, 11, 40)
    wave_max(a, 28, 29)
    evalE(a, W256, 256, 10, 11, 44)
    a("v_frexp_exp_i32_f32 v29, v28")
    a("v_sub_u32 v30, 0, v29")
    a("v_ldexp_f32 v48, v24, v30")
    a("v_ldexp_f32 v49, v25, v30")
    a("v_mov_b32 v31, 1.0")
    a("v_ldexp_f32 v31, v31, v29")
    evalE(a, W8, 8, 10, 11, 40, conj=True)
    a(f"v_readfirstlane_b32 s{S_SCALE}, v31")
    evalE(a, 84, 128, 10, 11, 44, conj=True)
    cmul(a, W512, W256, W256)
    cmul(a, W1024, W512, W512)
    st(a, "kg: setup done", 250)
    bulk(a, "P3")
    g = lambda i: 48 + 2 * i
    cnt = [0]
    def emit(off, reg):
        t = 96 + (cnt[0] % 8); cnt[0] += 1
        a(f"v_cvt_pk_f16_f32 v{t}, v{reg}, v{reg+1}")
        a(f"ds_write_b32 v{V_KROW}, v{t} offset:{off}")
    grow = lambda r, reg: emit(r * G_ROW, reg)
    hrow = lambda r, reg: emit(H_BASE + r * G_ROW, reg)
    a("v_mov_b32 v82, 1.0"); a("v_mov_b32 v83, 0")
    HA, HB = [82, 86], [84, 88]
    G = lambda r: r * G_ROW
    Hh = lambda r: H_BASE + r * G_ROW
    gops = [("e", G(0), g(0)),
            ("c", 64, g(0), W1024), ("c", 66, g(0), W512), ("c", g(1), g(0), W1), ("e", G(16), 64), ("e", G(12), 66),
            ("c", 68, 64, W256), ("c", 70, 66, W256), ("e", G(1), g(1)), ("c", g(2), g(1), W1), ("c", 72, g(0), W256), ("e", G(17), 68), ("e", G(14), 70),
            ("c", 64, 68, W256), ("e", G(2), g(2)), ("c", g(3), g(2), W1), ("c", 74, g(2), W256), ("e", G(8), 72), ("e", G(18), 64),
            ("c", 68, 64, W256), ("e", G(3), g(3)), ("c", g(4), g(3), W1), ("e", G(9), 74), ("e", G(19), 68),
            ("c", 64, 68, W256), ("e", G(4), g(4)), ("c", g(5), g(4), W1), ("c", 66, g(4), W512), ("c", 72, g(4), W256), ("e", G(20), 64),
            ("e", G(5), g(5)), ("c", g(6), g(5), W1), ("e", G(13), 66), ("c", 70, 66, W256), ("e", G(10), 72),
            ("e", G(6), g(6)), ("c", g(7), g(6), W1), ("c", 74, g(6), W256), ("e", G(15), 70), ("e", G(7), g(7)), ("e", G(11), 74)]
    hops = []
    for i in range(16):
        ca, na = HA[i % 2], HA[(i + 1) % 2]
        cb, nb = HB[i % 2], HB[(i + 1) % 2]
        if i < 15: hops += [("c", na, ca, W8), ("e", Hh(i), ca), ("c", nb, cb, W8), ("e", Hh(16 + i), cb)]
        else: hops += [("e", Hh(i), ca), ("e", Hh(16 + i), cb)]
    seq = []
    gi = hi = 0
    last = "e"
    while gi < len(gops) or hi < len(hops):
        want = "c" if last == "e" else "e"
        cand = []
        if hi < len(hops) and hops[hi][0] == want: cand.append("h")
        if gi < len(gops) and gops[gi][0] == want: cand.append("g")
        if not cand:
            cand = (["h"] if hi < len(hops) else []) + (["g"] if gi < len(gops) else [])
        if len(cand) == 2: pick = "g" if gi / len(gops) <= hi / len(hops) else "h"
        else: pick = cand[0]
        op = gops[gi] if pick == "g" else hops[hi]
        if pick == "g": gi += 1
        else: hi += 1
        seq.append(op); last = op[0]
    for n_, op in enumerate(seq):
        if n_ == len(seq) // 3: bulk(a, "P4")
        if op[0] == "c": cmul(a, op[1], op[2], op[3])
        else: emit(op[1], op[2])
    NE = 19
    a(f"s_lshr_b32 s63, s{S_WAVE}, 1")
    a("s_mul_i32 s63, s63, 5888")
    a(f"s_add_u32 s63, s63, {FT_AREA}")
    st(a, "kg: chains done", 250)
    lp0 = newlbl("pb0")
    a(f"s_cmp_lg_u32 s{S_WAVE}, 0")
    a(f"s_cbranch_scc1 {lp0}")
    a(f"v_and_b32 v98, {B1N-1}, v2")
    a(f"v_lshlrev_b32 v98, {B1S}, v98")
    a("global_load_dword v99, v98, s[8:9] sc1")
    a.label(lp0)
    bulk(a, "P5")
    a("v_mov_b32 v18, 0")
    a(f"v_mov_b32 v101, s63")
    a(f"ds_write_b16 v101, v18 offset:{2*FT_ZERO + 4*(FT_ZERO >> 4)}")
    a("s_waitcnt lgkmcnt(0)")
    a("s_barrier")
    for ks in range(8):
        a(f"ds_read_b128 v[{128+12*ks}:{131+12*ks}], v{V_KA} offset:{ks*64}")
        a(f"ds_read_b128 v[{132+12*ks}:{135+12*ks}], v{V_KB} offset:{ks*64}")
        a(f"ds_read_b128 v[{136+12*ks}:{139+12*ks}], v{V_KB} offset:{ks*64 + 16*G_ROW}")
        if ks >= 3:
            k = ks - 3
            a("s_waitcnt lgkmcnt(9)")
            cc0 = "0" if k == 0 else "v[20:23]"; cc1 = "0" if k == 0 else "v[24:27]"
            a(f"v_mfma_f32_16x16x32_f16 v[20:23], v[{128+12*k}:{131+12*k}], v[{132+12*k}:{135+12*k}], {cc0}")
            a(f"v_mfma_f32_16x16x32_f16 v[24:27], v[{128+12*k}:{131+12*k}], v[{136+12*k}:{139+12*k}], {cc1}")
    for k in range(5, 8):
        a(f"s_waitcnt lgkmcnt({3*(7-k)})")
        a(f"v_mfma_f32_16x16x32_f16 v[20:23], v[{128+12*k}:{131+12*k}], v[{132+12*k}:{135+12*k}], v[20:23]")
        a(f"v_mfma_f32_16x16x32_f16 v[24:27], v[{128+12*k}:{131+12*k}], v[{136+12*k}:{139+12*k}], v[24:27]")
    for nt in range(2):
        A = 20 + 4 * nt
        a(f"v_cvt_pk_f16_f32 v{28+2*nt}, v{A}, v{A+1}")
        a(f"v_cvt_pk_f16_f32 v{29+2*nt}, v{A+2}, v{A+3}")
        a(f"ds_write_b16 v{V_KSC}, v{28+2*nt} offset:{288*nt}")
        a(f"ds_write_b16_d16_hi v{V_KSC+1}, v{28+2*nt} offset:{288*nt}")
        a(f"ds_write_b16 v{V_KSC+2}, v{29+2*nt} offset:{288*nt}")
        a(f"ds_write_b16_d16_hi v{V_KSC+3}, v{29+2*nt} offset:{288*nt}")
    st(a, "kg: mfma done", 250)
    lp = newlbl("pb1")
    a(f"s_cmp_lg_u32 s{S_WAVE}, 0")
    a(f"s_cbranch_scc1 {lp}")
    a("s_waitcnt vmcnt(2)")
    a(f"v_cmp_gt_u32 vcc, {256//B1N}, v99")
    a(f"s_cbranch_vccz {lp}_ok")
    a("s_mov_b32 s62, 0")
    poll(a, 8, 62, B1N, B1S, 256 // B1N)
    a.label(lp + "_ok")
    conv_u_loads(a)
    a.label(lp)
    st(a, "B1 passed (wave 0)", 250)
    a("s_waitcnt lgkmcnt(0)")
    a("s_barrier")
    st(a, "kg: scatter+barrier done", 250)
    bulk(a, "P6")
    a("; KGBG")
    for e in range(NE): a(f"ds_read_u16 v{128+e}, v{104+e}")
    for r in range(40, 44): a(f"v_mov_b32 v{r}, 0")
    a("v_lshlrev_b32 v5, 4, v0")
    a("v_cmp_gt_u32 vcc, 155, v0")
    a("s_and_saveexec_b64 s[62:63], vcc")
    a(f"v_add_u32 v44, {U_BASE}, v5")
    a(f"ds_write_b128 v44, v[40:43]")
    a(f"ds_write_b128 v44, v[40:43] offset:{U_CH}")
    a("s_mov_b64 exec, s[62:63]")
    a("v_lshrrev_b32 v44, 2, v0")
    a(f"v_mul_u32_u24 v44, {KC_STRIDE}, v44")
    a("v_and_b32 v45, 3, v0")
    a("v_lshl_add_u32 v44, v45, 4, v44")
    a(f"v_add_u32 v44, {KC_BASE + 4096}, v44")
    a("v_cmp_gt_u32 vcc, 32, v0")
    a("s_and_saveexec_b64 s[62:63], vcc")
    a("ds_write_b128 v44, v[40:43]")
    a("s_mov_b64 exec, s[62:63]")

    a("s_waitcnt lgkmcnt(0)")
    for i in range(9):
        a(f"v_lshl_or_b32 v{161+i}, v{129+2*i}, 16, v{128+2*i}")
    for i in range(8):
        a(f"v_mov_b32 v{152+i}, v{161+i}")
    for i in range(9):
        a(f"v_lshl_or_b32 v{181+i}, v{130+2*i}, 16, v{129+2*i}")
    for i in range(8):
        a(f"v_mov_b32 v{172+i}, v{181+i}")
    for (sig, R) in ((0, 152), (1, 172), (2, 162), (3, 182)):
        a(f"ds_write_b128 v{V_KDST}, v[{R}:{R+3}] offset:{sig*KC_STRIDE}")
        a(f"ds_write_b128 v{V_KDST}, v[{R+4}:{R+7}] offset:{sig*KC_STRIDE+16}")

def conv_u_loads(a):
    a("v_lshlrev_b32 v4, 13, v2")
    a(f"s_lshl_b32 s61, s{S_Q0}, 4")
    for r in range(4):
        a(f"buffer_load_dwordx4 a[{8*r}:{8*r+3}], v4, s[{SRD_U2}:{SRD_U2+3}], s61 offen sc1")
        a(f"buffer_load_dwordx4 a[{8*r+4}:{8*r+7}], v4, s[{SRD_U2}:{SRD_U2+3}], s61 offen offset:16 sc1")
        if r < 3: a(f"s_add_u32 s61, s61, {64*8192}")

def conv_u_writes(a, ny=0):
    l, l1 = newlbl("cw"), newlbl("cw")
    a(f"s_cmp_lg_u32 s{S_WAVE}, 0")
    a(f"s_cbranch_scc1 {l1}")
    a("v_lshrrev_b32 v5, 2, v2")
    a("v_mul_u32_u24 v5, 80, v5")
    a("v_and_b32 v6, 3, v2")
    a("v_lshl_add_u32 v5, v6, 4, v5")
    a(f"v_add_u32 v5, {U_BASE + 31*80}, v5")
    for r in range(4):
        a(f"s_waitcnt vmcnt({2*(3-r) + ny})")
        a(f"ds_write_b128 v5, a[{8*r}:{8*r+3}] offset:{r*16*80}")
        a(f"ds_write_b128 v5, a[{8*r+4}:{8*r+7}] offset:{U_CH + r*16*80}")
    a(f"s_branch {l}")
    a.label(l1)
    a(f"s_cmp_lg_u32 s{S_WAVE}, 1")
    a(f"s_cbranch_scc1 {l}")
    a("s_waitcnt vmcnt(0)")
    a.label(l)

def conv_main(a):
    a(f"s_lshr_b32 s60, s{S_WAVE}, 1")
    a(f"s_and_b32 s61, s{S_WAVE}, 1")
    a("v_and_b32 v52, 31, v2")
    a("v_lshrrev_b32 v53, 5, v2")
    a(f"v_mov_b32 v54, v{V_CA}")
    a(f"v_mov_b32 v55, v{V_CB}")
    lh = newlbl("ph")
    a(f"s_cmp_lt_u32 s{S_WAVE}, 2")
    a(f"s_cbranch_scc1 {lh}")
    a(f"s_waitcnt vmcnt({hi_younger('F5')})")
    a.label(lh)
    a("s_waitcnt lgkmcnt(0)")
    a("s_barrier")
    lpa = newlbl("pa")
    a(f"s_cmp_lg_u32 s{S_WAVE}, 0")
    a(f"s_cbranch_scc1 {lpa}")
    a("s_and_b32 s62, s2, 7")
    a("s_lshl_b32 s62, s62, 7")
    a(f"s_add_u32 s62, s62, {SYNC_OFF + 8*128}")
    a("v_mov_b32 v13, s62")
    a("v_mov_b32 v14, 1")
    a("s_mov_b64 s[62:63], exec")
    a("s_mov_b64 exec, 1")
    a(f"global_atomic_add v13, v14, s[6:7] sc1")
    a("s_mov_b64 exec, s[62:63]")
    a.label(lpa)
    st(a, "conv start (U in LDS)")
    X, Y = 96, 128
    def load_list(step, R):
        kk = 30 - 2 * step
        oa = 64 * kk; ob = 80 * kk
        return [
            f"ds_read_b64 v[{R+0}:{R+1}], v54 offset:{oa+2048}",
            f"ds_read_b64 v[{R+2}:{R+3}], v54 offset:{oa+2048+8}",
            f"ds_read_b128 v[{R+16}:{R+19}], v55 offset:{ob}",
            f"ds_read_b128 v[{R+24}:{R+27}], v55 offset:{ob+2560}",
            f"ds_read_b64 v[{R+4}:{R+5}], v54 offset:{oa+2048+32}",
            f"ds_read_b64 v[{R+6}:{R+7}], v54 offset:{oa+2048+40}",
            f"ds_read_b128 v[{R+20}:{R+23}], v55 offset:{ob+32}",
            f"ds_read_b128 v[{R+28}:{R+31}], v55 offset:{ob+2560+32}",
            f"ds_read_b64 v[{R+8}:{R+9}], v54 offset:{oa}",
            f"ds_read_b64 v[{R+10}:{R+11}], v54 offset:{oa+8}",
            f"ds_read_b64 v[{R+12}:{R+13}], v54 offset:{oa+32}",
            f"ds_read_b64 v[{R+14}:{R+15}], v54 offset:{oa+40}"]
    def mfma_list(R, first):
        c0 = "0" if first else "v[64:79]"; c1 = "0" if first else "v[80:95]"
        return [
            f"v_mfma_f32_32x32x16_f16 v[64:79], v[{R+0}:{R+3}], v[{R+16}:{R+19}], {c0}",
            f"v_mfma_f32_32x32x16_f16 v[80:95], v[{R+0}:{R+3}], v[{R+24}:{R+27}], {c1}",
            f"v_mfma_f32_32x32x16_f16 v[64:79], v[{R+4}:{R+7}], v[{R+20}:{R+23}], v[64:79]",
            f"v_mfma_f32_32x32x16_f16 v[80:95], v[{R+4}:{R+7}], v[{R+28}:{R+31}], v[80:95]",
            f"v_mfma_f32_32x32x16_f16 v[80:95], v[{R+8}:{R+11}], v[{R+16}:{R+19}], v[80:95]",
            f"v_mfma_f32_32x32x16_f16 v[80:95], v[{R+12}:{R+15}], v[{R+20}:{R+23}], v[80:95]"]
    a("s_lshl_b32 s62, s61, 5")
    a("v_add_u32 v59, s62, v52")
    a("v_mul_u32_u24 v60, 80, v59")
    a("v_lshl_add_u32 v60, v53, 3, v60")
    a(f"s_mul_i32 s62, s60, {U_CH}")
    a(f"s_add_u32 s62, s62, {U_BASE + 31*80}")
    a("v_add_u32 v60, s62, v60")
    for g in range(4): a(f"ds_read_b64 v[{160+2*g}:{161+2*g}], v60 offset:{g*16}")
    sh = []
    for g in range(4):
        sh += [f"v_cvt_f32_f16 v{168+4*g}, v{160+2*g}", f"v_cvt_f32_f16_sdwa v{169+4*g}, v{160+2*g} dst_sel:DWORD dst_unused:UNUSED_PAD src0_sel:WORD_1",
               f"v_cvt_f32_f16 v{170+4*g}, v{161+2*g}", f"v_cvt_f32_f16_sdwa v{171+4*g}, v{161+2*g} dst_sel:DWORD dst_unused:UNUSED_PAD src0_sel:WORD_1"]
    sh += [f"v_mul_f32 v{168+r}, s{S_DSK}, v{168+r}" for r in range(16)]
    sh += [f"v_cvt_pk_bf16_f32 v{184+r//2}, v{168+r}, v{169+r}" for r in range(0, 16, 2)]
    for r in range(0, 16, 2):
        sh += [f"v_lshlrev_b32 v{168+r}, 16, v{184+r//2}", f"v_and_b32 v{169+r}, 0xffff0000, v{184+r//2}"]
    bg = dma_groups(1, 10, 0)
    bg_late = []
    if NOBGCONV: bg_late, bg = bg, []
    for l in load_list(0, X): a(l)
    for step in range(16):
        R = X if step % 2 == 0 else Y
        N = Y if step % 2 == 0 else X
        M = mfma_list(R, step == 0)
        Ls = load_list(step + 1, N) if step < 15 else []
        need_upto = [3, 4, 7, 8, 10, 12]
        issued_next = 0
        for i in range(6):
            a(f"s_waitcnt lgkmcnt({min((12 - need_upto[i]) + issued_next, 15)})")
            a(M[i])
            for l in Ls[2*i:2*i+2]: a(l); issued_next += 1
            if step >= 1 and sh: a(sh.pop(0))
            if i == 3: bulk(a, f"c{step}")
            if bg and (i == 1 or (i == 4 and step % 4 == 1)):
                for l in bg.pop(0): a(l)
                HIQ.append("D")
    for grp in bg:
        for l in grp: a(l)
        HIQ.append("D")
    st(a, "conv main done")
    for grp in bg_late:
        for l in grp: a(l)
    lpf = newlbl("pf")
    a(f"s_cmp_lg_u32 s{S_WAVE}, 0")
    a(f"s_cbranch_scc1 {lpf}")
    a("v_and_b32 v50, 7, v2")
    a("v_lshlrev_b32 v50, 7, v50")
    a(f"v_add_u32 v50, {SYNC_OFF + 8*128}, v50")
    a("global_load_dword v51, v50, s[6:7] sc1")
    a.label(lpf)
    a("v_lshlrev_b32 v56, 4, v2")
    a(f"v_add_u32 v56, {RED_CONV}, v56")
    a(f"s_lshl_b32 s62, s{S_WAVE}, 12")
    a("v_add_u32 v57, s62, v56")
    a(f"s_xor_b32 s63, s{S_WAVE}, 1")
    a("s_lshl_b32 s63, s63, 12")
    a("v_add_u32 v58, s63, v56")
    l1, l2 = newlbl("cp"), newlbl("cr")
    a("s_cmp_eq_u32 s61, 0")
    a(f"s_cbranch_scc0 {l1}")
    a("s_nop 7"); a("s_nop 7")
    for g in range(4): a(f"ds_write_b128 v57, v[{80+4*g}:{83+4*g}] offset:{g*1024}")
    a(f"s_branch {l2}")
    a.label(l1)
    a("s_nop 7"); a("s_nop 7")
    for g in range(4): a(f"ds_write_b128 v57, v[{64+4*g}:{67+4*g}] offset:{g*1024}")
    for r in range(16): a(f"v_mov_b32 v{64+r}, v{80+r}")
    a.label(l2)
    a("s_waitcnt lgkmcnt(0)")
    a("s_barrier")
    for g in range(4): a(f"ds_read_b128 v[{96+4*g}:{99+4*g}], v58 offset:{g*1024}")
    a("s_waitcnt lgkmcnt(0)")
    for r in range(0, 16, 2): a(f"v_pk_add_f32 v[{64+r}:{65+r}], v[{64+r}:{65+r}], v[{96+r}:{97+r}]")
    for r in range(0, 16, 2): a(f"v_pk_mul_f32 v[{64+r}:{65+r}], v[{64+r}:{65+r}], s[{S_SCALE}:{S_SCALE+1}] op_sel_hi:[1,0]")
    for r in range(0, 16, 2): a(f"v_cvt_pk_bf16_f32 v{136+r//2}, v{64+r}, v{65+r}")
    for r in range(0, 16, 2):
        a(f"v_lshlrev_b32 v{64+r}, 16, v{136+r//2}")
        a(f"v_and_b32 v{65+r}, 0xffff0000, v{136+r//2}")
    for r in range(0, 16, 2): a(f"v_pk_add_f32 v[{64+r}:{65+r}], v[{64+r}:{65+r}], v[{168+r}:{169+r}]")
    for r in range(0, 16, 2): a(f"v_cvt_pk_bf16_f32 v{136+r//2}, v{64+r}, v{65+r}")
    for g in (0, 2):
        A0, A1, B0, B1 = 136 + 2 * g, 137 + 2 * g, 138 + 2 * g, 139 + 2 * g
        a(f"v_permlane32_swap_b32 v{A0}, v{B0}")
        a(f"v_permlane32_swap_b32 v{A1}, v{B1}")
    a("v_mul_u32_u24 v61, 144, v59")
    a("v_lshl_add_u32 v61, v53, 5, v61")
    a("s_lshl_b32 s62, s60, 4")
    a(f"s_add_u32 s62, s62, {YB}")
    a("v_add_u32 v61, s62, v61")
    a("ds_write_b128 v61, v[136:139]")
    a("ds_write_b128 v61, v[140:143] offset:64")
    a("v_lshrrev_b32 v62, 3, v0")
    a("v_mul_u32_u24 v62, 144, v62")
    a("v_and_b32 v63, 7, v0")
    a("v_lshl_add_u32 v62, v63, 4, v62")
    a("s_waitcnt lgkmcnt(0)")
    a("s_barrier")
    ly = newlbl("yo")
    a(f"s_cmp_ge_u32 s{S_WAVE}, 2")
    a(f"s_cbranch_scc1 {ly}")
    for k in range(4):
        a(f"ds_read_b128 v[{96+4*k}:{99+4*k}], v62 offset:{YB + 16*144*k}")
    a(f"s_lshl_b32 s62, s{S_TB}, 13")
    for k in range(4):
        a(f"s_waitcnt lgkmcnt({3-k})")
        a(f"buffer_store_dwordx4 v[{96+4*k}:{99+4*k}], v{V_US}, s[{SRD_YA}:{SRD_YA+3}], s62 offen sc1")
        if k < 3: a("s_add_u32 s62, s62, 2048")
    a.label(ly)

def ln2_addr(a):
    a("v_lshrrev_b32 v4, 1, v0")
    a("v_lshlrev_b32 v4, 13, v4")
    a("v_and_b32 v5, 1, v0")
    a("v_lshl_add_u32 v4, v5, 4, v4")
    a(f"s_lshl_b32 s72, s{S_TB}, 5")
    a("s_add_u32 s73, s72, 0x100000")

def ln2_issue(a):
    a(f"buffer_load_dwordx4 v[40:43], v4, s[{SRD_YA}:{SRD_YA+3}], s72 offen sc1")
    a(f"buffer_load_dwordx4 v[44:47], v4, s[{SRD_YA}:{SRD_YA+3}], s73 offen sc1")

def ln2_loads(a, first_wait):
    l = newlbl("ys")
    a("s_mov_b32 s61, 0")
    a(f"s_waitcnt vmcnt({first_wait})")
    a(f"s_branch {l}_c")
    a.label(l)
    ln2_issue(a)
    a("s_add_u32 s61, s61, 1")
    a("s_waitcnt vmcnt(0)")
    a.label(l + "_c")
    for x in check8(40, 12): a(x)
    a(f"s_cbranch_vccz {l}_ok")
    a(f"s_cmp_lt_u32 s61, {SPIN_MAX}")
    a(f"s_cbranch_scc1 {l}")
    a.label(l + "_ok")
    a("s_waitcnt vmcnt(0)")

def ln2_planes_in(a):
    a(f"v_mov_b32 v48, v{V_PR}")
    a(f"v_add_u32 v49, 1152, v{V_PR}")
    a("ds_write2st64_b32 v48, v40, v41 offset0:0 offset1:9")
    a("ds_write2st64_b32 v48, v42, v43 offset0:18 offset1:27")
    a("ds_write2st64_b32 v49, v44, v45 offset0:0 offset1:9")
    a("ds_write2st64_b32 v49, v46, v47 offset0:18 offset1:27")

def ln2_compute(a):
    for c in range(8):
        a(f"ds_read_b32 v{40+c}, v{V_PW} offset:{32*c}")
    a(f"s_mov_b32 s90, {INV512}")
    a(f"s_mov_b32 s91, {EPS}")
    a("s_mov_b32 s92, 0x05040100")
    a("s_mov_b32 s93, 0x07060302")
    unpack_pairs(a, 16, VX, VX + 4)
    a("v_lshlrev_b32 v3, 4, v2")
    a(f"s_lshl_b32 s64, s{S_TB}, 13")
    a(f"s_lshl_b32 s65, s{S_WAVE}, 11")
    a("s_add_u32 s64, s64, s65")
    a("s_waitcnt lgkmcnt(0)")
    for c in range(8):
        a(f"v_lshlrev_b32 v{48+2*c}, 16, v{40+c}")
        a(f"v_and_b32 v{49+2*c}, 0xffff0000, v{40+c}")
    for c in range(8):
        a(f"v_pk_add_f32 v[{16+2*c}:{17+2*c}], v[{16+2*c}:{17+2*c}], v[{48+2*c}:{49+2*c}]")
    for c in range(8):
        a(f"v_cvt_pk_bf16_f32 v{40+c}, v{16+2*c}, v{17+2*c}")
    unpack_packed(a, 16, 8, 40)
    for i in range(4):
        a(f"v_perm_b32 v{4+i}, v{41+2*i}, v{40+2*i}, s92")
        a(f"v_perm_b32 v{8+i}, v{41+2*i}, v{40+2*i}, s93")
    a(f"buffer_store_dwordx4 v[4:7], v3, s[{SRD_H}:{SRD_H+3}], s64 offen sc1")
    a(f"buffer_store_dwordx4 v[8:11], v3, s[{SRD_H}:{SRD_H+3}], s64 offen offset:1024 sc1")
    pair_sums(a, 16, 8, 32, 34, 36)
    reduce4(a, 32, 33, 34, 35)
    ln_stats(a, 32, 33, 36, 37, SM, SR)
    ln_apply(a, 16, 8, SM, SR, 40)
    unpack_packed(a, 16, 8, 40)
    pair_sums(a, 16, 8, 32, 34, 36)
    reduce4(a, 32, 33, 34, 35)
    ln_stats(a, 32, 33, 36, 37, SM, SR)
    ln_apply(a, 16, 8, SM, SR, 40)
    a("; BGSTOP")
    a("s_waitcnt vmcnt(0)")
    a("s_barrier")
    planes_out(a, 40, PL2, SRD_HN, 48)

def tile_coords(a, which, sT, sC):
    a("s_and_b32 s60, s2, 7")
    a("s_lshr_b32 s61, s2, 3")
    a(f"s_and_b32 s{sT}, s60, 1")
    a(f"s_lshl_b32 s{sT}, s{sT}, 2")
    a("s_and_b32 s62, s61, 3")
    a(f"s_add_u32 s{sT}, s{sT}, s62")
    a(f"s_lshr_b32 s{sC}, s60, 1")
    a(f"s_mul_i32 s{sC}, s{sC}, {7 if which == 1 else 8}")
    a("s_lshr_b32 s62, s61, 2")
    if which == 2 and SJROT:
        a(f"s_add_u32 s62, s62, {SJROT}"); a("s_and_b32 s62, s62, 7")
    a(f"s_add_u32 s{sC}, s{sC}, s62")

VD, VTA, VTB = 240, 241, 242
def dma_setup(a, which):
    WROW = 3584 if which == 1 else (4096 if NOCOPY else 128)
    a(f"v_lshrrev_b32 v{VD}, 3, v2")
    a(f"v_mul_u32_u24 v{VD}, {WROW}, v{VD}")
    a("v_and_b32 v243, 7, v2")
    a("v_lshrrev_b32 v244, 2, v2")
    a("v_and_b32 v244, 4, v244")
    a("v_xor_b32 v243, v243, v244")
    a(f"v_lshl_add_u32 v{VD}, v243, 4, v{VD}")
    a("v_bfe_u32 v243, v2, 2, 2")
    a("v_and_b32 v244, 3, v2")
    a(f"v_bfe_u32 v{VTA}, v2, 4, 1")
    a(f"v_lshlrev_b32 v{VTA}, 1, v{VTA}")
    a("v_lshrrev_b32 v245, 1, v244")
    a(f"v_add_u32 v{VTA}, v{VTA}, v245")
    a("v_lshrrev_b32 v245, 1, v243")
    a("v_lshlrev_b32 v245, 2, v245")
    a(f"v_xor_b32 v{VTA}, v{VTA}, v245")
    a(f"v_lshlrev_b32 v{VTA}, 4, v{VTA}")
    a("v_and_b32 v245, 1, v244")
    a(f"v_lshl_add_u32 v{VTA}, v245, 3, v{VTA}")
    a("v_lshrrev_b32 v245, 5, v2")
    a(f"v_lshlrev_b32 v245, {3 if which == 1 else 2}, v245")
    a("v_add_u32 v245, v245, v243")
    a(f"v_lshl_add_u32 v{VTA}, v245, 7, v{VTA}")
    a(f"v_xor_b32 v{VTB}, 64, v{VTA}")

def ring_base_sel(a, lo_base, per_wave, split, hi_base):
    a(f"s_mul_i32 s{S_RING}, s{S_WAVE}, {per_wave}")
    a(f"s_cmp_lt_u32 s{S_WAVE}, {split}")
    a(f"s_mov_b32 s60, {lo_base}")
    a(f"s_cselect_b32 s60, s60, {hi_base - split*per_wave}")
    a(f"s_add_u32 s{S_RING}, s{S_RING}, s60")
    a(f"s_lshr_b32 s60, s{S_WAVE}, 1")
    a("s_lshl_b32 s60, s60, 6")
    a(f"v_xor_b32 v246, s60, v{VTA}")
    a(f"v_xor_b32 v247, 64, v246")
    a(f"v_add_u32 v246, s{S_RING}, v246")
    a(f"v_add_u32 v247, s{S_RING}, v247")

def ring_base(a, per_wave, base):
    a(f"s_mul_i32 s{S_RING}, s{S_WAVE}, {per_wave}")
    if base: a(f"s_add_u32 s{S_RING}, s{S_RING}, {base}")
    a(f"s_lshr_b32 s60, s{S_WAVE}, 1")
    a("s_lshl_b32 s60, s60, 6")
    a(f"v_xor_b32 v246, s60, v{VTA}")
    a(f"v_xor_b32 v247, 64, v246")
    a(f"v_add_u32 v246, s{S_RING}, v246")
    a(f"v_add_u32 v247, s{S_RING}, v247")

S_WA, S_WB = 76, 77
def dma_groups(which, n, slot0):
    WROW = 3584 if which == 1 else (4096 if NOCOPY else 128)
    srdw = SRD_W1 if which == 1 else (SRD_W2 if NOCOPY else SRD_W2R)
    sc = "" if (which == 1 or NOCOPY) else " sc1"
    g = []
    for i in range(n):
        g.append([f"s_add_u32 m0, s{S_RING}, {(slot0+i)*2048}",
                  f"buffer_load_dwordx4 v{VD}, s[{srdw}:{srdw+3}], s{S_WA} offen{sc} lds",
                  f"s_add_u32 s{S_WA}, s{S_WA}, {16*WROW}"])
        g.append([f"s_add_u32 m0, s{S_RING}, {(slot0+i)*2048+1024}",
                  f"buffer_load_dwordx4 v{VD}, s[{srdw}:{srdw+3}], s{S_WB} offen{sc} lds",
                  f"s_add_u32 s{S_WB}, s{S_WB}, {16*WROW}"])
    return g

def dma_issue(a, which, n, slot0):
    for grp in dma_groups(which, n, slot0):
        for l in grp: a(l)

SCC_READ = ('s_cbranch_scc', 's_cselect', 's_addc', 's_subb', 's_cmov')
SCC_WRITE = ('s_cmp', 's_add_', 's_sub_', 's_and_', 's_or_', 's_xor_', 's_lshl', 's_lshr', 's_bitcmp', 's_min', 's_max', 's_ashr', 's_not', 's_bfe')
def scc_safe(lines, i):
    for l in lines[i:]:
        op = l.split()[0]
        if op.startswith(SCC_READ): return False
        if op.startswith(SCC_WRITE) or op.endswith(':') or op in ('s_branch', 's_endpgm', 's_barrier'): return True
    return True

def with_bg(a, fg, groups, skip=0, stride=20, after=None, before=None):
    i0 = len(a.lines)
    fg()
    body = a.lines[i0:]
    del a.lines[i0:]
    start = skip
    if after is not None:
        start = next(k for k, l in enumerate(body) if after in l) + 1 + skip
    out = []; gi = 0; nxt = start
    stop = False
    cond_until = None
    masked = False
    labels_in = {x[:-1] for x in body if x.endswith(':')}
    for k, l in enumerate(body):
        if cond_until is not None and l == cond_until + ':': cond_until = None
        in_cond = cond_until is not None or masked
        cond_until_next = None
        if cond_until is None and l.startswith(('s_cbranch', 's_branch')) and l.split()[1] in labels_in and (l.split()[1] + ':') in body[k:]:
            cond_until_next = l.split()[1]
        if before is not None and not stop and before in l:
            stop = True
            while gi < len(groups):
                out += groups[gi]; gi += 1
        if not stop and not in_cond and gi < len(groups) and k >= nxt and scc_safe(body, k) and not l.endswith(':') and not l.startswith('s_and_saveexec'):
            out += groups[gi]; gi += 1; nxt = k + stride
        out.append(l)
        if cond_until_next is not None: cond_until = cond_until_next
        if l.startswith('s_and_saveexec'): masked = True
        if l.startswith('s_mov_b64 exec'): masked = False
    while gi < len(groups):
        out += groups[gi]; gi += 1
    a.lines += out

def tr_to_acc(a, which, steps, slot0):
    RHO = 512 if which == 1 else 1024
    for i, s in enumerate(steps):
        o = (slot0 + i) * 2048
        a(f"ds_read_b64_tr_b16 a[{8*s}:{8*s+1}], v246 offset:{o}")
        a(f"ds_read_b64_tr_b16 a[{8*s+2}:{8*s+3}], v246 offset:{o+RHO}")
        a(f"ds_read_b64_tr_b16 a[{8*s+4}:{8*s+5}], v247 offset:{o}")
        a(f"ds_read_b64_tr_b16 a[{8*s+6}:{8*s+7}], v247 offset:{o+RHO}")
        if i % 3 == 2: a("s_waitcnt lgkmcnt(4)")

def woff_init(a, which, sC):
    WROW = 3584 if which == 1 else (4096 if NOCOPY else 128)
    if which == 1:
        a(f"s_mul_i32 s{S_WA}, s{S_WAVE}, {32*16*3584}")
        a(f"s_lshl_b32 s60, s{sC}, 7")
    elif NOCOPY:
        a(f"s_mul_i32 s{S_WA}, s{S_WAVE}, {28*16*4096}")
        a(f"s_lshl_b32 s60, s{sC}, 7")
    else:
        a(f"s_mul_i32 s{S_WA}, s{S_WAVE}, {28*16*128}")
        a(f"s_mul_i32 s60, s{sC}, {W2R_TILE}")
    a(f"s_add_u32 s{S_WA}, s{S_WA}, s60")
    a(f"s_add_u32 s{S_WB}, s{S_WA}, {8*WROW}")

def gemm_lane_consts(a):
    a("v_lshrrev_b32 v6, 5, v2")
    a("v_and_b32 v7, 31, v2")
    a("v_lshlrev_b32 v10, 13, v6")
    a("v_lshl_add_u32 v10, v7, 4, v10")
    a(f"s_and_b32 s60, s{S_WAVE}, 1")
    a("s_lshl_b32 s60, s60, 9")
    a("v_xor_b32 v8, s60, v10")
    a("v_xor_b32 v9, 512, v8")

def main_loop(a, which, srda, soff, D0):
    NK = 32 if which == 1 else 28
    DR = 14
    ab = lambda s: 128 + 8 * (s % DR)
    issued = [0]
    def issue():
        s = issued[0]
        if s >= NK: return []
        R = ab(s); issued[0] += 1
        return [f"buffer_load_dwordx4 v[{R}:{R+3}], v8, s[{srda}:{srda+3}], s{soff} offen sc1",
                f"buffer_load_dwordx4 v[{R+4}:{R+7}], v9, s[{srda}:{srda+3}], s{soff} offen sc1\ns_add_u32 s{soff}, s{soff}, 16384"]
    for s in range(D0):
        for l in issue(): a(l)
    for s in range(NK):
        a(f"s_waitcnt vmcnt({2*(issued[0] - 1 - s)})")
        nxt = issue() if (issued[0] - s) < DR else []
        R = ab(s); k = 0
        for wt in range(2):
            for at in range(2):
                acc = 64 + 32 * wt + 16 * at
                wq = f"a[{8*s+4*wt}:{8*s+4*wt+3}]"; aq = f"v[{R+4*at}:{R+4*at+3}]"
                cc = "0" if s == 0 else f"v[{acc}:{acc+15}]"
                if which == 1: a(f"v_mfma_f32_32x32x16_bf16 v[{acc}:{acc+15}], {wq}, {aq}, {cc}")
                else: a(f"v_mfma_f32_32x32x16_bf16 v[{acc}:{acc+15}], {aq}, {wq}, {cc}")
                if k == 0 and nxt: a(nxt[0])
                if k == 2 and nxt: a(nxt[1])
                k += 1

def check8(R, T):
    return [f"v_max3_u32 v{T}, v{R}, v{R+1}, v{R+2}", f"v_max3_u32 v{T}, v{T}, v{R+3}, v{R+4}", f"v_max3_u32 v{T}, v{T}, v{R+5}, v{R+6}",
            f"v_max_u32 v{T}, v{T}, v{R+7}", f"v_cmp_eq_u32 vcc, -1, v{T}"]

SPIN_MAX = 0x20000
def probe_spin(a, srd_, vaddr, soff_sgpr, first_wait=None):
    l = newlbl("pr")
    a("s_mov_b32 s61, 0")
    if first_wait is not None:
        a(f"s_waitcnt vmcnt({first_wait})")
        a("v_cmp_eq_u32 vcc, -1, v14")
        a(f"s_cbranch_vccz {l}_ok")
    a.label(l)
    a(f"buffer_load_dword v14, v{vaddr}, s[{srd_}:{srd_+3}], s{soff_sgpr} offen sc1")
    a("s_add_u32 s61, s61, 1")
    a("s_waitcnt vmcnt(0)")
    a("v_cmp_eq_u32 vcc, -1, v14")
    a(f"s_cbranch_vccz {l}_ok")
    a(f"s_cmp_lt_u32 s61, {SPIN_MAX}")
    a(f"s_cbranch_scc1 {l}")
    a.label(l + "_ok")

RETRY = []
def main_loop2(a, which, srda, sbase, D0, shadow=()):
    NK = 32 if which == 1 else 28
    DR = 14
    ab = lambda s: 128 + 8 * (s % DR)
    a(f"s_mov_b32 s73, s{sbase}")
    issued = [0]
    def issue():
        s = issued[0]
        if s >= NK: return []
        R = ab(s); issued[0] += 1
        return [f"buffer_load_dwordx4 v[{R}:{R+3}], v8, s[{srda}:{srda+3}], s73 offen sc1",
                f"buffer_load_dwordx4 v[{R+4}:{R+7}], v9, s[{srda}:{srda+3}], s73 offen sc1\ns_add_u32 s73, s73, 16384"]
    def retry(t):
        lr, lb = newlbl("rt"), newlbl("rb")
        R = ab(t)
        blk = [lr + ":", "s_mov_b32 s61, 0", f"s_add_u32 s62, s{sbase}, {t*16384}", lr + "_l:",
               f"buffer_load_dwordx4 v[{R}:{R+3}], v8, s[{srda}:{srda+3}], s62 offen sc1",
               f"buffer_load_dwordx4 v[{R+4}:{R+7}], v9, s[{srda}:{srda+3}], s62 offen sc1",
               "s_add_u32 s61, s61, 1", "s_waitcnt vmcnt(0)"] + check8(R, 12) + \
              [f"s_cbranch_vccz {lb}", f"s_cmp_lt_u32 s61, {SPIN_MAX}", f"s_cbranch_scc1 {lr}_l", f"s_branch {lb}"]
        RETRY.extend(blk)
        return lr, lb
    for s in range(D0):
        for l in issue(): a(l)
    a(f"s_waitcnt vmcnt({2*(issued[0] - 1)})")
    for l in check8(ab(0), 12): a(l)
    lr, lb = retry(0)
    a(f"s_cbranch_vccnz {lr}")
    a.label(lb)
    for s in range(NK):
        nxt = issue() if (issued[0] - s) < DR and (issued[0] - s) <= D0 else []
        R = ab(s); k = 0
        for wt in range(2):
            for at in range(2):
                acc = 64 + 32 * wt + 16 * at
                wq = f"a[{8*s+4*wt}:{8*s+4*wt+3}]"; aq = f"v[{R+4*at}:{R+4*at+3}]"
                cc = "0" if s == 0 else f"v[{acc}:{acc+15}]"
                if which == 1: a(f"v_mfma_f32_32x32x16_bf16 v[{acc}:{acc+15}], {wq}, {aq}, {cc}")
                else: a(f"v_mfma_f32_32x32x16_bf16 v[{acc}:{acc+15}], {aq}, {wq}, {cc}")
                if k == 0 and nxt: a(nxt[0])
                if k == 1:
                    if nxt: a(nxt[1])
                    if s + 1 < NK:
                        a(f"s_waitcnt vmcnt({2*(issued[0] - 1 - (s + 1))})")
                        for l in check8(ab(s + 1), 12): a(l)
                k += 1
        if s >= 2 and shadow:
            for l in shadow[:4]: a(l)
            shadow = shadow[4:]
        if s + 1 < NK:
            lr, lb = retry(s + 1)
            a("s_nop 2")
            a(f"s_cbranch_vccnz {lr}")
            a.label(lb)

def reduce_write(a):
    a("v_lshlrev_b32 v13, 4, v2")
    for j in (1, 2, 3):
        wt, at = j >> 1, j & 1
        acc = 64 + 32 * wt + 16 * at
        a(f"s_xor_b32 s60, s{S_WAVE}, {j}")
        a(f"s_mul_i32 s60, s60, {3*4096}")
        a(f"s_add_u32 s60, s60, {(j-1)*4096}")
        a(f"v_add_u32 v14, s60, v13")
        for g in range(4):
            a(f"ds_write_b128 v14, v[{acc+4*g}:{acc+4*g+3}] offset:{g*1024}")

def reduce_read(a):
    a(f"s_mul_i32 s60, s{S_WAVE}, {3*4096}")
    a("v_add_u32 v14, s60, v13")
    for j in range(3):
        for g in range(4):
            a(f"ds_read_b128 v[{128+16*j+4*g}:{131+16*j+4*g}], v14 offset:{j*4096+g*1024}")
    P = lambda b, r: f"v[{b+r}:{b+r+1}]"
    a("s_waitcnt lgkmcnt(8)")
    for r in range(0, 16, 2): a(f"v_pk_add_f32 {P(64,r)}, {P(64,r)}, {P(128,r)}")
    a("s_waitcnt lgkmcnt(0)")
    for r in range(0, 16, 2): a(f"v_pk_add_f32 {P(144,r)}, {P(144,r)}, {P(160,r)}")
    for r in range(0, 16, 2): a(f"v_pk_add_f32 {P(128,r)}, {P(64,r)}, {P(144,r)}")

def gelu16(a, X, T):
    a("s_mov_b32 s66, 0x3d372713")
    a("s_mov_b32 s67, 0x3d372713")
    kk = -2.0 * 1.4426950408889634 * 0.7978845608028654
    kb = hex(struct.unpack('<I', struct.pack('<f', kk))[0])
    a(f"s_mov_b32 s68, {kb}"); a(f"s_mov_b32 s69, {kb}")
    P = lambda b, r: f"v[{b+r}:{b+r+1}]"
    for r in range(0, 16, 2): a(f"v_pk_mul_f32 {P(T,r)}, {P(X,r)}, {P(X,r)}")
    for r in range(0, 16, 2): a(f"v_pk_mul_f32 {P(T,r)}, {P(T,r)}, s[66:67]")
    for r in range(0, 16, 2): a(f"v_pk_fma_f32 {P(T,r)}, {P(T,r)}, {P(X,r)}, {P(X,r)}")
    for r in range(0, 16, 2): a(f"v_pk_mul_f32 {P(T,r)}, {P(T,r)}, s[68:69]")
    for r in range(16): a(f"v_exp_f32 v{T+r}, v{T+r}")
    for r in range(16): a(f"v_add_f32 v{T+r}, 1.0, v{T+r}")
    for r in range(16): a(f"v_rcp_f32 v{T+r}, v{T+r}")
    for r in range(0, 16, 2): a(f"v_pk_mul_f32 {P(X,r)}, {P(X,r)}, {P(T,r)}")

def epi1_loads(a):
    a(f"s_lshr_b32 s61, s{S_WAVE}, 1")
    a(f"s_lshl_b32 s72, s{S_FJ}, 6")
    a("s_lshl_b32 s64, s61, 5")
    a("s_add_u32 s72, s72, s64")
    a("s_lshl_b32 s64, s72, 1")
    a("v_lshlrev_b32 v15, 3, v6")
    a("v_add_u32 v15, s64, v15")
    for g in range(4):
        a(f"global_load_dwordx2 v[{20+2*g}:{21+2*g}], v15, s[{S_B1}:{S_B1+1}] offset:{16*g}")

def epi1_shadow():
    l = []
    for g in range(4):
        l += [f"v_lshlrev_b32 v{28+4*g}, 16, v{20+2*g}", f"v_and_b32 v{29+4*g}, 0xffff0000, v{20+2*g}",
              f"v_lshlrev_b32 v{30+4*g}, 16, v{21+2*g}", f"v_and_b32 v{31+4*g}, 0xffff0000, v{21+2*g}"]
    return l

def epi1(a):
    P = lambda b, r: f"v[{b+r}:{b+r+1}]"
    a("s_lshr_b32 s64, s72, 4")
    a("s_lshl_b32 s64, s64, 14")
    a(f"s_lshl_b32 s65, s{S_T1}, 10")
    a("s_add_u32 s64, s64, s65")
    a(f"s_and_b32 s62, s{S_WAVE}, 1")
    a("s_lshl_b32 s65, s62, 9")
    a("s_add_u32 s64, s64, s65")
    a("s_add_u32 s65, s64, 16384")
    reduce_read(a)
    for r in range(0, 16, 2): a(f"v_cvt_pk_bf16_f32 v{144+r//2}, v{128+r}, v{129+r}")
    for r in range(0, 16, 2):
        a(f"v_lshlrev_b32 v{128+r}, 16, v{144+r//2}")
        a(f"v_and_b32 v{129+r}, 0xffff0000, v{144+r//2}")
    for r in range(0, 16, 2): a(f"v_pk_add_f32 {P(128,r)}, {P(128,r)}, {P(28,r)}")
    for r in range(0, 16, 2): a(f"v_cvt_pk_bf16_f32 v{144+r//2}, v{128+r}, v{129+r}")
    for r in range(0, 16, 2):
        a(f"v_lshlrev_b32 v{128+r}, 16, v{144+r//2}")
        a(f"v_and_b32 v{129+r}, 0xffff0000, v{144+r//2}")
    gelu16(a, 128, 160)
    for r in range(0, 16, 2): a(f"v_cvt_pk_bf16_f32 v{144+r//2}, v{128+r}, v{129+r}")
    a("; GSTORE")
    a(f"buffer_store_dwordx4 v[144:147], v10, s[{SRD_G2}:{SRD_G2+3}], s64 offen sc1")
    a(f"buffer_store_dwordx4 v[148:151], v10, s[{SRD_G2}:{SRD_G2+3}], s65 offen sc1")

OT = 131072
def epi2_loads(a):
    a(f"s_lshr_b32 s61, s{S_WAVE}, 1")
    a(f"s_lshl_b32 s63, s{S_SJ}, 6")
    a("s_lshl_b32 s64, s61, 5")
    a("s_add_u32 s64, s64, s63")
    a("v_add_u32 v15, s64, v7")
    a("v_lshlrev_b32 v17, 1, v15")
    a(f"global_load_ushort v18, v17, s[{S_B2}:{S_B2+1}]")
    a("v_lshrrev_b32 v15, 3, v0")
    a("v_add_u32 v15, s63, v15")
    a("v_lshlrev_b32 v16, 10, v15")
    a("v_and_b32 v15, 7, v0")
    a("v_lshl_add_u32 v16, v15, 4, v16")
    a(f"s_lshl_b32 s70, s{S_T2}, 7")
    a("s_add_u32 s74, s70, 32768")
    a(f"buffer_load_dwordx4 v[20:23], v16, s[{SRD_H}:{SRD_H+3}], s70 offen sc1")
    a(f"buffer_load_dwordx4 v[24:27], v16, s[{SRD_H}:{SRD_H+3}], s74 offen sc1")

def epi2_shadow():
    l = ["v_lshlrev_b32 v18, 16, v18", "v_mov_b32 v19, v18"]
    for i in range(8):
        l += [f"v_lshlrev_b32 v{28+2*i}, 16, v{20+i}", f"v_and_b32 v{29+2*i}, 0xffff0000, v{20+i}"]
    l += [f"s_lshr_b32 s75, s{S_WAVE}, 1", "s_lshl_b32 s75, s75, 5", "v_add_u32 v44, s75, v7", "v_mul_u32_u24 v44, 144, v44", "v_lshl_add_u32 v44, v6, 6, v44",
          f"s_and_b32 s75, s{S_WAVE}, 1", "s_lshl_b32 s75, s75, 3", f"s_add_u32 s75, s75, {OT}", "v_add_u32 v44, s75, v44",
          "v_lshrrev_b32 v45, 3, v0", "v_mul_u32_u24 v45, 144, v45", "v_and_b32 v46, 7, v0", "v_lshl_add_u32 v45, v46, 4, v45", f"v_add_u32 v45, {OT}, v45"]
    return l

def epi2(a):
    P = lambda b, r: f"v[{b+r}:{b+r+1}]"
    reduce_read(a)
    for r in range(4):
        a(f"v_cvt_pk_bf16_f32 v{144+2*r}, v{128+r}, v{132+r}")
        a(f"v_cvt_pk_bf16_f32 v{145+2*r}, v{136+r}, v{140+r}")
    for i in range(8):
        a(f"v_lshlrev_b32 v{160+2*i}, 16, v{144+i}")
        a(f"v_and_b32 v{161+2*i}, 0xffff0000, v{144+i}")
    for r in range(0, 16, 2): a(f"v_pk_add_f32 {P(160,r)}, {P(160,r)}, v[18:19]")
    for i in range(8): a(f"v_cvt_pk_bf16_f32 v{144+i}, v{160+2*i}, v{161+2*i}")
    for r in range(4): a(f"ds_write_b64 v44, v[{144+2*r}:{145+2*r}] offset:{16*r}")
    a("s_waitcnt lgkmcnt(0)")
    a("s_barrier")
    a("ds_read_b128 v[144:147], v45")
    a(f"ds_read_b128 v[148:151], v45 offset:{32*144}")
    a("s_waitcnt lgkmcnt(0)")
    for i in range(8):
        a(f"v_lshlrev_b32 v{160+2*i}, 16, v{144+i}")
        a(f"v_and_b32 v{161+2*i}, 0xffff0000, v{144+i}")
    for r in range(0, 16, 2): a(f"v_pk_add_f32 {P(160,r)}, {P(160,r)}, {P(28,r)}")
    for i in range(8): a(f"v_cvt_pk_bf16_f32 v{144+i}, v{160+2*i}, v{161+2*i}")
    a(f"buffer_store_dwordx4 v[144:147], v16, s[{SRD_OUT}:{SRD_OUT+3}], s70 offen {OUTMOD}")
    a(f"buffer_store_dwordx4 v[148:151], v16, s[{SRD_OUT}:{SRD_OUT+3}], s74 offen {OUTMOD}")

D0_G1, D0_G2 = 5, 5
NPRE = 14
NOCOPY = True
RETOUCH = True
RETOUCH0 = True
LN2STRIDE = 8
TAILBG = 14
B1N, B1S = 4, 6
OUTMOD = 'sc1'
NOBGCONV = False
TOUCH = True
SJROT = 0
TOUCHREV = False
REMAP = False
ALIGN = True
CODEPF = True
def gen_fused(a):
    kernel_header(a, KNAME)
    stamp_begin(a)
    if DBGST is not None or DIAG_THR: a("s_memrealtime s[98:99]")
    a("s_cmp_ge_u32 s2, 256")
    a("s_cbranch_scc1 L_exit")
    if REMAP:
        a("s_and_b32 s4, s2, 7"); a("s_lshl_b32 s4, s4, 5"); a("s_lshr_b32 s2, s2, 3"); a("s_or_b32 s2, s2, s4")
    prologue(a)
    ln1(a)
    st(a, "LN1 done (stores issued)", 250)
    a(f"s_and_b32 s60, s2, {B1N-1}")
    a(f"s_lshl_b32 s60, s60, {B1S}")
    arrive(a, 8, 60, lo_only=True)
    st(a, "B1 arrived", 250)
    a(f"s_waitcnt vmcnt({min(len(HIQ), 2) if False else len(HIQ)})")
    bulk(a, "P2")
    kgen(a)
    st(a, "Kgen done", 250)
    ring_base(a, 20480, RING_A)
    woff_init(a, 1, S_FJ)
    conv_u_writes(a, 0)
    conv_main(a)
    st(a, "conv epilogue done (stores issued)")
    lw, lw2 = newlbl("ws"), newlbl("ws")
    a(f"s_cmp_lt_u32 s{S_WAVE}, 2")
    a(f"s_cbranch_scc1 {lw}")
    a("s_waitcnt vmcnt(0)")
    a(f"s_branch {lw2}")
    a.label(lw)
    a("s_waitcnt vmcnt(4)")
    lq = newlbl("pq")
    a(f"s_cmp_lg_u32 s{S_WAVE}, 0")
    a(f"s_cbranch_scc1 {lw2}")
    a("v_cmp_gt_u32 vcc, 32, v51")
    a(f"s_cbranch_vccz {lw2}")
    a(f"s_mov_b32 s60, {SYNC_OFF + 8*128}")
    poll(a, 6, 60, 8, 7, 32)
    a.label(lw2)
    tr_to_acc(a, 1, range(0, 10), 0)
    a("s_waitcnt lgkmcnt(0)")
    a("s_barrier")
    ring_base(a, 28672, 25600)
    ln2_addr(a)
    dma_issue(a, 1, 8, 0)
    ln2_issue(a)
    dma_issue(a, 1, 6, 8)
    st(a, "w1 DMA B issued")
    ln2_loads(a, 12)
    st(a, "YA ready")
    if NOCOPY and RETOUCH0:
        a(f"s_mul_i32 s60, s{S_WAVE}, 448")
        a(f"s_and_b32 s61, s{S_T2}, 3")
        a("s_mul_i32 s61, s61, 56")
        a("s_add_u32 s60, s60, s61")
        a("v_min_u32 v13, 55, v2")
        a("v_add_u32 v13, s60, v13")
        a("v_lshlrev_b32 v13, 12, v13")
        a(f"s_lshl_b32 s60, s{S_SJ}, 7")
        a(f"buffer_load_dword a199, v13, s[{SRD_W2}:{SRD_W2+3}], s60 offen")
    a(f"v_subrev_u32 v{V_PW}, {PL}, v{V_PW}")
    a(f"v_subrev_u32 v{V_PR}, {PL}, v{V_PR}")
    ln2_planes_in(a)
    a("s_waitcnt lgkmcnt(0)")
    a("s_barrier")
    def trgrp(sidx, slot, va=246, vb=247, rho=512):
        o = slot * 2048
        return [f"ds_read_b64_tr_b16 a[{8*sidx}:{8*sidx+1}], v{va} offset:{o}", f"ds_read_b64_tr_b16 a[{8*sidx+2}:{8*sidx+3}], v{va} offset:{o+rho}",
                f"ds_read_b64_tr_b16 a[{8*sidx+4}:{8*sidx+5}], v{vb} offset:{o}", f"ds_read_b64_tr_b16 a[{8*sidx+6}:{8*sidx+7}], v{vb} offset:{o+rho}"]
    grp = [trgrp(10 + i, i) for i in range(8)]
    d2 = dma_groups(1, 8, 0)
    d2[0] = ["s_waitcnt lgkmcnt(0)"] + d2[0]
    grp2 = [trgrp(18 + i, 8 + i) for i in range(6)]
    mix = list(grp)
    k2 = 0
    for i, g_ in enumerate(d2):
        mix.append(g_)
        if i % 2 == 1 and k2 < len(grp2): mix.append(grp2[k2]); k2 += 1
    mix += grp2[k2:]
    with_bg(a, lambda: ln2_compute(a), mix, skip=14, stride=LN2STRIDE, before="BGSTOP")
    st(a, "LN2 done (stores issued)")
    for i in range(24, 32):
        for l in trgrp(i, i - 24): a(l)
        if i % 3 == 2: a("s_waitcnt lgkmcnt(4)")
    a(f"s_mul_i32 s71, s{S_WAVE}, {32*16384}")
    a(f"s_lshl_b32 s60, s{S_T1}, 10")
    a("s_add_u32 s71, s71, s60")
    a("v_lshlrev_b32 v15, 13, v2")
    a("v_add_u32 v15, 1020, v15")
    gemm_lane_consts(a)
    dma_setup(a, 2)
    a("s_waitcnt lgkmcnt(0)")
    a("s_barrier")
    ring_base(a, 28672, RED_BYTES)
    woff_init(a, 2, S_SJ)
    dma_issue(a, 2, NPRE - 5, 0)
    a(f"buffer_load_dword v14, v15, s[{SRD_HN}:{SRD_HN+3}], s71 offen sc1")
    dma_issue(a, 2, 5, NPRE - 5)
    if NOCOPY and RETOUCH:
        a(f"s_mul_i32 s60, s{S_WAVE}, 448")
        a(f"s_and_b32 s61, s{S_T2}, 3")
        a("s_mul_i32 s61, s61, 56")
        a("s_add_u32 s60, s60, s61")
        a("s_add_u32 s60, s60, 224")
        a("v_min_u32 v13, 55, v2")
        a("v_add_u32 v13, s60, v13")
        a("v_lshlrev_b32 v13, 12, v13")
        a(f"s_lshl_b32 s60, s{S_SJ}, 7")
        a(f"buffer_load_dword v11, v13, s[{SRD_W2}:{SRD_W2+3}], s60 offen")
    st(a, "w2 DMA A issued")
    a("s_cmp_ge_u32 s2, 224")
    a("s_cbranch_scc1 L_skipG1")
    probe_spin(a, SRD_HN, 15, 71, first_wait=(11 if (NOCOPY and RETOUCH) else 10))
    st(a, "HN probe ok")
    epi1_loads(a)
    a("s_waitcnt lgkmcnt(0)")
    a("s_barrier")
    main_loop2(a, 1, SRD_HN, 71, D0_G1, shadow=epi1_shadow())
    st(a, "G1 main done")
    reduce_write(a)
    tr_to_acc(a, 2, range(NPRE), 0)
    a("s_waitcnt lgkmcnt(0)")
    a("s_barrier")
    g = dma_groups(2, 14, 0)
    with_bg(a, lambda: epi1(a), g[:TAILBG], skip=30, stride=max(4, 112 // max(TAILBG, 1)), before="GSTORE")
    for grp in g[TAILBG:]:
        for l in grp: a(l)
    st(a, "epi1 done (stores issued)")
    dma_issue(a, 2, 28 - NPRE - 14, 14) if 28 - NPRE - 14 > 0 else None
    a("s_branch L_stage2")
    a.label("L_skipG1")
    a("s_waitcnt vmcnt(0) lgkmcnt(0)")
    tr_to_acc(a, 2, range(NPRE), 0)
    a("s_waitcnt lgkmcnt(0)")
    dma_issue(a, 2, 28 - NPRE, 0)
    a.label("L_stage2")
    a(f"s_mul_i32 s71, s{S_WAVE}, {28*16384}")
    a(f"s_lshl_b32 s60, s{S_T2}, 10")
    a("s_add_u32 s71, s71, s60")
    a("v_min_u32 v15, 55, v2")
    a("v_lshlrev_b32 v15, 13, v15")
    a("v_add_u32 v15, 1020, v15")
    a("s_waitcnt vmcnt(0)")
    a(f"buffer_load_dword v14, v15, s[{SRD_G2}:{SRD_G2+3}], s71 offen sc1")
    tr_to_acc(a, 2, range(NPRE, 28), 0)
    st(a, "w2 staged")
    probe_spin(a, SRD_G2, 15, 71, first_wait=0)
    st(a, "G probe ok")
    epi2_loads(a)
    a("s_waitcnt lgkmcnt(0)")
    a("s_barrier")
    main_loop2(a, 2, SRD_G2, 71, D0_G2, shadow=epi2_shadow())
    st(a, "G2 main done")
    reduce_write(a)
    a("s_waitcnt lgkmcnt(0)")
    a("s_barrier")
    epi2(a)
    a("s_waitcnt vmcnt(0)") if STAMPON() else None
    st(a, "end", final=True)
    if DIAG_THR:
        a("s_cmp_lg_u32 s2, 0")
        a("s_cbranch_scc1 L_exit")
        a("s_waitcnt vmcnt(0)")
        a("s_memrealtime s[96:97]")
        a("s_waitcnt lgkmcnt(0)")
        a("s_sub_u32 s94, s96, s98")
        a(f"s_cmp_lt_u32 s94, {DIAG_THR}")
        a("s_cbranch_scc1 L_exit")
        a("s_add_u32 s95, s96, 6000")
        a.label("L_diag")
        a("s_memrealtime s[96:97]")
        a("s_waitcnt lgkmcnt(0)")
        a("s_sub_u32 s94, s95, s96")
        a("s_cmp_gt_i32 s94, 0")
        a("s_cbranch_scc1 L_diag")
    a.label("L_exit")
    a("s_endpgm")
    for l in RETRY: a.lines.append(l)
    a.label("L_code_end")
    a("s_endpgm")
    return kernel_desc(KNAME, 512, 100, accum=256)

def touch_setup(a):
    a("s_and_b32 s60, s2, 7")
    a("s_lshr_b32 s60, s60, 1")
    a("s_lshr_b32 s61, s2, 3")
    a(f"s_and_b32 s62, s{S_WAVE}, 1")
    a("s_lshl_b32 s62, s62, 9")
    a("s_lshl_b32 s63, s61, 6")
    a(f"v_add_u32 v{V_TW1}, s63, v2")
    a(f"v_mul_u32_u24 v{V_TW1}, 3584, v{V_TW1}")
    a("s_mul_i32 s63, s60, 896")
    a("s_add_u32 s63, s63, s62")
    a(f"v_add_u32 v{V_TW1}, s63, v{V_TW1}")
    a("s_mul_i32 s79, s2, 28672")
    a(f"s_and_b32 s61, s{S_WAVE}, 1")
    a("s_mul_i32 s61, s61, 14336")
    a("s_add_u32 s79, s79, s61")

BULK = {"P0": ["T0"], "P1": ["T1"], "P2": ["T2"], "P3": ["F0", "F1", "T3"], "P4": ["F2", "F3"], "P5": ["F4", "F5"], "c4": ["U0"], "c7": ["U1"], "c10": ["U2"], "c13": ["U3"]}
HIQ = []
def hi_younger(tag):
    idx = max(i for i, t in enumerate(HIQ) if t == tag)
    return len(HIQ) - 1 - idx
def bulk(a, slot):
    ops = BULK.get(slot, [])
    if not ops: return
    for op in ops:
        if op[0] == "F":
            prefill_op(a, int(op[1:])); HIQ.append(op)
    ops = [o for o in ops if o[0] != "F"]
    if not TOUCH: ops = [o for o in ops if o[0] != "T"]
    if not ops: return
    l = newlbl("bk")
    a(f"s_cmp_lt_u32 s{S_WAVE}, 2")
    a(f"s_cbranch_scc1 {l}")
    for op in ops:
        k = int(op[1:])
        if op[0] == "T":
            if k == 3:
                l3 = newlbl("t3")
                a(f"s_cmp_eq_u32 s{S_WAVE}, 3"); a(f"s_cbranch_scc0 {l3}")
                a(f"v_readfirstlane_b32 s74, v{V_TW1}"); a(f"v_mov_b32 v{V_TW1}, s74")
                a.label(l3)
            a(f"buffer_load_dword a199, v{V_TW1}, s[{SRD_W1}:{SRD_W1+3}], 0 offen offset:{128*k}"); HIQ.append(op)
        elif op[0] == "U":
            if k == 0:
                a("s_and_b32 s74, s2, 7"); a("s_lshr_b32 s74, s74, 1"); a("s_lshl_b32 s74, s74, 10")
                a(f"s_and_b32 s75, s{S_WAVE}, 1"); a("s_lshl_b32 s75, s75, 9"); a("s_add_u32 s74, s74, s75")
                a("s_lshr_b32 s75, s2, 3"); a("s_mul_i32 s75, s75, 56")
                a(f"v_min_u32 v{V_TW2}, 55, v2"); a(f"v_add_u32 v{V_TW2}, s75, v{V_TW2}"); a(f"v_lshlrev_b32 v{V_TW2}, 12, v{V_TW2}"); a(f"v_add_u32 v{V_TW2}, s74, v{V_TW2}")
            a(f"buffer_load_dword a199, v{V_TW2}, s[{SRD_W2}:{SRD_W2+3}], 0 offen offset:{128*k}"); HIQ.append(op)
        elif op[0] == "C":
            a("v_lshlrev_b32 v255, 4, v2")
            for i in (2 * k, 2 * k + 1):
                a(f"buffer_load_dwordx4 a[{A_CP+4*i}:{A_CP+4*i+3}], v255, s[{SRD_W2}:{SRD_W2+3}], s79 offen offset:{(i%4)*1024}")
                if i % 4 == 3: a("s_add_u32 s79, s79, 4096")
                HIQ.append("C")
        else:
            if k == 0:
                a(f"s_waitcnt vmcnt({hi_younger('C')})")
                w2copy_dst(a)
            for x in w2copy_store(a, k): a(x)
            HIQ.append("S")
    a.label(l)

A_CP = 200
def w2copy_dst(a):
    a("v_lshrrev_b32 v245, 3, v2")
    a(f"s_mov_b32 s74, {W2R_TILE}")
    a("v_mul_lo_u32 v245, v245, s74")
    a(f"v_and_b32 v{V_TW2}, 7, v2")
    a(f"v_lshl_add_u32 v{V_TW2}, v{V_TW2}, 4, v245")
    a(f"s_and_b32 s69, s{S_WAVE}, 1")
    a("s_mul_i32 s68, s2, 896")

def w2copy_store(a, i):
    off = lambda m: (m % 4) * 8 * W2R_TILE + (m // 4) * 128
    return [f"s_mov_b32 s74, {off(14 + i) - off(i)}",
            f"s_mul_i32 s74, s74, s69",
            f"s_add_u32 s74, s74, s68",
            f"s_add_u32 s74, s74, {off(i)}",
            f"buffer_store_dwordx4 a[{A_CP+4*i}:{A_CP+4*i+3}], v{V_TW2}, s[{SRD_W2R}:{SRD_W2R+3}], s74 offen sc1"]

def build(path):
    a = Asm()
    hdr = open("cdna_kernels/" + NAME + ".s.ref").read().split("; Override launch geometry")[0]
    txt = hdr + f"; @launch grid=(256,1,1) block=(256,1,1) lds={LDS_TOTAL}\n" + '.amdgcn_target "amdgcn-amd-amdhsa--gfx950"\n'
    d = gen_fused(a)
    body = a.finalize()
    if ALIGN:
        import asmlib
        body, np_, nn_ = asmlib.align8(body)
        print("align8: promoted", np_, "nops", nn_)
    txt += body + d
    open(path, "w").write(txt)
    open(path + ".names", "w").write("".join(f"{k} {v}\n" for k, v in ST_NAMES.items()))

if __name__ == "__main__":
    import sys, common
    if "--stamp" in sys.argv:
        common.STAMP = True; sys.argv.remove("--stamp")
    if "--notouch" in sys.argv: TOUCH = False
    if "--remap" in sys.argv: REMAP = True
    for x in sys.argv:
        if x.startswith("--bulk="): BULK = eval(x[7:])
        if x.startswith("--thr="): DIAG_THR = int(x[6:])
        if x == "--nobgconv": NOBGCONV = True
        if x == "--nort0": RETOUCH0 = False
        if x.startswith("--ln2s="): LN2STRIDE = int(x[7:])
        if x.startswith("--tailbg="): TAILBG = int(x[9:])
        if x.startswith("--b1="): B1N, B1S = eval(x[5:])
        if x.startswith("--outmod="): OUTMOD = x[9:]
        if x == "--nocopy":
            NOCOPY = True
            BULK = {"P0": ["T0"], "P1": ["T1"], "P2": ["T2"], "P3": ["F0", "F1", "T3"], "P4": ["F2", "F3"], "P5": ["F4", "F5"], "c4": ["U0"], "c7": ["U1"], "c10": ["U2"], "c13": ["U3"]}
        if x.startswith("--d0="): D0_G1 = D0_G2 = int(x[5:])
    if "--sjrot" in sys.argv: SJROT = 2
    if "--touchrev" in sys.argv: TOUCHREV = True
    if "--noalign" in sys.argv: ALIGN = False
    if "--nocodepf" in sys.argv: CODEPF = False
    if "--dbgst" in sys.argv:
        DBGST = ["LN1 done (stores issued)", "B1 arrived", "Kgen done", "B1 passed", "conv start (U in LDS)", "conv main done", "B2 arrived", "B2 passed",
                 "LN2 done (stores issued)", "B3 passed", "G1 main done", "B4 arrived", "B4 passed", "G2 main done", "end"]
    build(sys.argv[1])
```

```python
from common import *
from k1 import cmul, wave_max, G_ROW, H_BASE, FT_BASE, FT_DUMMY
import struct

KNAME = NAME + "_kernel"
KG_CH = 27984
FT_AREA = 2 * KG_CH
KC_BASE = 0
KC_STRIDE = 4160
KCH = 4 * KC_STRIDE
U_BASE = KC_BASE + 2 * KCH
U_CH = 95 * 80
LDS_TOTAL = 163840
FT_ZERO = 2060
RED_BYTES = 49152
D_RING = 8
S_WAVE, S_Q0 = 10, 11
SRD_X, SRD_U2, SRD_YA, SRD_H, SRD_HN, SRD_G2, SRD_W1, SRD_W2, SRD_OUT = 12, 16, 20, 24, 28, 32, 36, 40, 44
SRD_W2R = 80
S_B1, S_B2 = 48, 50
S_SCALE, S_DSK = 52, 53
S_T1, S_FJ, S_T2, S_SJ = 54, 55, 56, 57
S_WOFF, S_RING = 58, 59
SM, SR = 84, 86
C_B2, C_B3, C_B4 = 0, 8, 16
KIDX = 0
S_TB = 5
VX = 224
V_KROW, V_KA, V_KB, V_KSC, V_KDST = 232, 233, 234, 235, 239
V_CA, V_CB = 248, 249
V_PW, V_PR, V_US = 252, 253, 254
V_TW1, V_TW2 = 1, 30
PL = 67744
RING_A = 76960
RED_CONV = 48640
PL1 = PL2 = 0
YB = 16384

ST_NAMES = {}
DIAG_THR = 0
DBGST = None
_st = [2]
def st(a, name, vt=60, final=False):
    if DBGST is not None:
        if name in DBGST:
            k = DBGST.index(name) + 1
            l = newlbl("ds")
            a("s_memrealtime s[96:97]")
            a(f"s_or_b32 s94, s2, s{S_WAVE}")
            a("s_cmp_lg_u32 s94, 0")
            a("s_waitcnt lgkmcnt(0)")
            a(f"s_cbranch_scc1 {l}")
            a("s_sub_u32 s96, s96, s98")
            a(f"v_mov_b32 v{vt}, {4*k}")
            a(f"v_mov_b32 v{vt+1}, s96")
            a(f"global_store_dword v{vt}, v{vt+1}, s[8:9]")
            a.label(l)
        return
    slot = 1 if final else _st[0]
    if not final: _st[0] += 1
    ST_NAMES[slot] = name
    stamp(a, KIDX, slot, 6, vt)

def evalE(a, D, v, zr, zi, t, conj=False):
    bits = struct.unpack('<I', struct.pack('<f', float(v)))[0]
    a(f"s_mov_b32 s78, {hex(bits)}")
    a(f"v_mul_f32 v{t}, s78, v{zr}")
    a(f"v_mul_f32 v{t+1}, s78, v{zi}")
    a(f"v_exp_f32 v{t}, v{t}")
    a(f"v_rndne_f32 v{t+2}, v{t+1}")
    a(f"v_sub_f32 v{t+1}, v{t+1}, v{t+2}")
    a(f"v_cos_f32 v{D}, v{t+1}")
    a(f"v_sin_f32 v{D+1}, v{t+1}")
    a(f"v_mul_f32 v{D}, v{D}, v{t}")
    if conj: a(f"v_mul_f32 v{D+1}, -v{D+1}, v{t}")
    else: a(f"v_mul_f32 v{D+1}, v{D+1}, v{t}")

def pos2chan(a, sd, sq, t):
    a(f"s_and_b32 s{sd}, s{sq}, 0x1c0")
    a(f"s_and_b32 s{t}, s{sq}, 7")
    a(f"s_lshl_b32 s{t}, s{t}, 3")
    a(f"s_or_b32 s{sd}, s{sd}, s{t}")
    a(f"s_lshr_b32 s{t}, s{sq}, 3")
    a(f"s_and_b32 s{t}, s{t}, 7")
    a(f"s_or_b32 s{sd}, s{sd}, s{t}")

_lbl = [0]
def newlbl(p):
    _lbl[0] += 1
    return f"L_{p}{_lbl[0]}"

def arrive(a, base_sgpr_pair, off_sgpr, lo_only=False):
    if lo_only:
        l0 = newlbl("ad")
        a(f"s_cmp_ge_u32 s{S_WAVE}, 2")
        a(f"s_cbranch_scc1 {l0}")
        a("s_waitcnt vmcnt(0)")
        a.label(l0)
    else:
        a("s_waitcnt vmcnt(0)")
    a("s_barrier")
    l = newlbl("arr")
    a(f"s_cmp_lg_u32 s{S_WAVE}, 0")
    a(f"s_cbranch_scc1 {l}")
    a(f"v_mov_b32 v13, s{off_sgpr}")
    a("v_mov_b32 v14, 1")
    a("s_mov_b64 s[62:63], exec")
    a("s_mov_b64 exec, 1")
    a(f"global_atomic_add v13, v14, s[{base_sgpr_pair}:{base_sgpr_pair+1}] sc1")
    a("s_mov_b64 exec, s[62:63]")
    a.label(l)

def poll(a, base_sgpr_pair, off_sgpr, n, stride_log2, target):
    l = newlbl("poll")
    a(f"v_and_b32 v13, {n-1}, v2")
    a(f"v_lshlrev_b32 v13, {stride_log2}, v13")
    a(f"v_add_u32 v13, s{off_sgpr}, v13")
    a("s_mov_b32 s61, 0")
    a.label(l)
    a(f"global_load_dword v14, v13, s[{base_sgpr_pair}:{base_sgpr_pair+1}] sc1")
    a("s_waitcnt vmcnt(0)")
    a(f"v_cmp_gt_u32 vcc, {target}, v14")
    a("s_add_u32 s61, s61, 1")
    a(f"s_cbranch_vccz {l}_done")
    a("s_cmp_lt_u32 s61, 0x40000")
    a(f"s_cbranch_scc1 {l}")
    a.label(l + "_done")

def poll_wg(a, base_sgpr_pair, off_sgpr, n, stride_log2, target):
    l = newlbl("pw")
    a(f"s_cmp_lg_u32 s{S_WAVE}, 0")
    a(f"s_cbranch_scc1 {l}")
    poll(a, base_sgpr_pair, off_sgpr, n, stride_log2, target)
    a.label(l)
    a("s_barrier")

def prologue(a):
    a("s_load_dwordx16 s[64:79], s[0:1], 0")
    a("s_load_dwordx2 s[88:89], s[0:1], 64")
    a("s_load_dwordx4 s[80:83], s[0:1], 80")
    a("s_load_dwordx4 s[84:87], s[0:1], 96")
    a("s_load_dwordx4 s[60:63], s[0:1], 112")
    a("s_load_dwordx2 s[6:7], s[0:1], 128")
    a("v_lshrrev_b32 v1, 6, v0")
    a("v_and_b32 v2, 63, v0")
    a(f"v_readfirstlane_b32 s{S_WAVE}, v1")
    a("s_and_b32 s54, s2, 7")
    a("s_lshl_b32 s54, s54, 5")
    a("s_lshr_b32 s55, s2, 3")
    a(f"s_add_u32 s{S_TB}, s54, s55")
    a(f"s_lshl_b32 s{S_Q0}, s{S_TB}, 1")
    a(f"s_lshr_b32 s55, s{S_WAVE}, 1")
    a(f"s_add_u32 s56, s{S_Q0}, s55")
    pos2chan(a, 57, 56, 58)
    a("v_lshlrev_b32 v3, 4, v2")
    a(f"s_lshl_b32 s58, s{S_TB}, 13")
    a(f"s_lshl_b32 s59, s{S_WAVE}, 11")
    a("s_add_u32 s59, s59, s58")
    a(f"s_and_b32 s54, s{S_WAVE}, 1")
    a("s_lshl_b32 s54, s54, 7")
    a("s_lshl_b32 s55, s57, 8")
    a("s_add_u32 s54, s54, s55")
    a("v_lshl_add_u32 v12, v2, 1, s54")
    a("v_xor_b32 v13, 128, v12")
    a("s_waitcnt lgkmcnt(0)")
    stamp(a, KIDX, 0, 6, 250, first=True)
    srd(a, SRD_X, 64, 65, 0, 0x200000)
    a(f"buffer_load_dwordx4 v[{VX}:{VX+3}], v3, s[{SRD_X}:{SRD_X+3}], s59 offen")
    a(f"buffer_load_dwordx4 v[{VX+4}:{VX+7}], v3, s[{SRD_X}:{SRD_X+3}], s59 offen offset:1024")
    a("global_load_ushort v200, v12, s[66:67]")
    a("global_load_ushort v201, v12, s[68:69]")
    a("global_load_ushort v202, v12, s[70:71]")
    a("global_load_ushort v203, v12, s[72:73]")
    a("global_load_ushort v204, v12, s[74:75]")
    a("global_load_ushort v205, v12, s[76:77]")
    a("global_load_ushort v206, v13, s[70:71]")
    a("global_load_ushort v207, v13, s[72:73]")
    a("global_load_ushort v208, v13, s[74:75]")
    a("global_load_ushort v209, v13, s[76:77]")
    a("s_lshl_b32 s54, s57, 1")
    a("s_and_b32 s54, s54, 0xfffffffc")
    a("s_load_dword s52, s[78:79], s54")
    a("s_load_dword s53, s[88:89], s54")
    a("s_and_b32 s91, s57, 1")
    a(f"s_mov_b32 s8, s62"); a("s_mov_b32 s9, s63")
    srd(a, SRD_OUT, 60, 61, 0, 0x200000)
    srd(a, SRD_U2, 6, 7, U2_OFF, U2_SZ)
    srd(a, SRD_YA, 6, 7, YA_OFF, YA_SZ)
    srd(a, SRD_H, 6, 7, H_OFF, H_SZ)
    srd(a, SRD_HN, 6, 7, HN_OFF, HN_SZ)
    srd(a, SRD_G2, 6, 7, G2_OFF, G2_SZ)
    srd(a, SRD_W1, 80, 81, 0, 2048 * 3584)
    srd(a, SRD_W2, 84, 85, 0, 2048 * 3584)
    a(f"s_mov_b32 s{S_B1}, s82"); a(f"s_mov_b32 s{S_B1+1}, s83")
    a(f"s_mov_b32 s{S_B2}, s86"); a(f"s_mov_b32 s{S_B2+1}, s87")
    srd(a, SRD_W2R, 6, 7, W2R_OFF, W2R_SZ)
    l = newlbl("z")
    a(f"s_or_b32 s54, s2, s{S_WAVE}")
    a("s_cmp_lg_u32 s54, 0")
    a(f"s_cbranch_scc1 {l}")
    a("v_lshlrev_b32 v14, 7, v2")
    a(f"v_add_u32 v14, {SYNC_OFF}, v14")
    a("v_mov_b32 v15, 0")
    a("global_store_dword v14, v15, s[6:7] sc1")
    a.label(l)
    if CODEPF:
        l = newlbl("cpf")
        a(f"s_cmp_lg_u32 s{S_WAVE}, 3")
        a(f"s_cbranch_scc1 {l}")
        a("s_getpc_b64 s[54:55]")
        a.label("L_pcbase")
        a("v_lshlrev_b32 v14, 7, v2")
        a("s_mov_b32 s56, L_code_end-L_pcbase")
        for k in range(5):
            a("v_min_u32 v15, s56, v14")
            a(f"global_load_dword a198, v15, s[54:55]")
            if k < 4: a("v_add_u32 v14, 8192, v14")
        a.label(l)
    touch_setup(a)
    bulk(a, "P0")
    precompute(a)
    a("s_cmp_eq_u32 s91, 1")
    a("s_cselect_b32 s60, 0, 16")
    a("s_waitcnt lgkmcnt(0)")
    a("s_lshl_b32 s52, s52, s60"); a("s_and_b32 s52, s52, 0xffff0000")
    a("s_lshl_b32 s53, s53, s60"); a("s_and_b32 s53, s53, 0xffff0000")

V_ONES = 216
def prefill_op(a, k):
    if k == 0:
        for r in range(V_ONES, V_ONES + 4): a(f"v_mov_b32 v{r}, -1")
    D = f"v[{V_ONES}:{V_ONES+3}]"
    if k < 4:
        a(f"s_lshl_b32 s74, s{S_TB}, 13")
        if k % 2: a("s_add_u32 s74, s74, 4096")
        sr = SRD_YA if k < 2 else SRD_HN
        a(f"buffer_store_dwordx4 {D}, v{V_US}, s[{sr}:{sr+3}], s74 offen sc1")
    else:
        a(f"s_lshl_b32 s74, s{S_FJ}, 16")
        a(f"s_lshl_b32 s75, s{S_WAVE}, 13")
        a("s_add_u32 s74, s74, s75")
        a(f"s_lshl_b32 s75, s{S_T1}, 10")
        a("s_add_u32 s74, s74, s75")
        if k == 5: a("s_add_u32 s74, s74, 32768")
        a("v_lshlrev_b32 v220, 4, v2")
        a(f"buffer_store_dwordx4 {D}, v220, s[{SRD_G2}:{SRD_G2+3}], s74 offen sc1")

def precompute(a):
    a("v_lshrrev_b32 v4, 3, v2")
    a("v_mul_u32_u24 v4, 72, v4")
    a("v_and_b32 v5, 7, v2")
    a("v_add_u32 v4, v4, v5")
    a(f"s_mul_i32 s54, s{S_WAVE}, 576")
    a("v_add_u32 v4, s54, v4")
    a(f"v_lshlrev_b32 v{V_PW}, 2, v4")
    a(f"v_add_u32 v{V_PW}, {PL}, v{V_PW}")
    a(f"s_mul_i32 s54, s{S_WAVE}, 72")
    a("v_add_u32 v4, s54, v2")
    a(f"v_lshlrev_b32 v{V_PR}, 2, v4")
    a(f"v_add_u32 v{V_PR}, {PL}, v{V_PR}")
    a(f"v_lshlrev_b32 v{V_US}, 4, v0")
    a(f"s_lshr_b32 s60, s{S_WAVE}, 1")
    a(f"s_mul_i32 s60, s60, {KG_CH}")
    a(f"s_and_b32 s62, s{S_WAVE}, 1")
    a("s_lshl_b32 s61, s62, 8")
    a("s_add_u32 s61, s61, s60")
    a(f"v_lshl_add_u32 v{V_KROW}, v2, 2, s61")
    a("v_and_b32 v7, 15, v2")
    a("v_lshrrev_b32 v8, 4, v2")
    a(f"v_mul_u32_u24 v9, {G_ROW}, v7")
    a("v_lshl_add_u32 v9, v8, 4, v9")
    a(f"s_mul_i32 s63, s62, {16*G_ROW}")
    a("s_add_u32 s63, s63, s60")
    a(f"v_add_u32 v{V_KA}, s63, v9")
    a(f"s_add_u32 s63, s60, {H_BASE}")
    a(f"v_add_u32 v{V_KB}, s63, v9")
    a("v_lshlrev_b32 v16, 3, v7")
    a(f"s_lshr_b32 s63, s{S_WAVE}, 1")
    a("s_mul_i32 s63, s63, 5888")
    a(f"s_add_u32 s63, s63, {FT_AREA}")
    a(f"s_movk_i32 s54, {FT_DUMMY}")
    a("v_cmp_eq_u32 s[56:57], 1, v8")
    a("v_cmp_eq_u32 s[58:59], 2, v8")
    a("v_cmp_eq_u32 vcc, 3, v8")
    for r in range(4):
        m0_q2 = 256 + 2 * r
        m0_q3 = 512 + 4 * (r & 1) + 256 * (r >> 1)
        m1_q0 = 1024 + 256 * r
        m1_q1 = 2048 if r == 0 else FT_DUMMY
        R = V_KSC + r
        a("s_cmp_eq_u32 s62, 0")
        a(f"s_cselect_b32 s55, {r}, {m1_q0}")
        a(f"v_mov_b32 v{R}, s55")
        a(f"s_cselect_b32 s55, {4+r}, {m1_q1}")
        a("v_mov_b32 v18, s55")
        a(f"v_cndmask_b32 v{R}, v{R}, v18, s[56:57]")
        a(f"s_cselect_b32 s55, {m0_q2}, s54")
        a("v_mov_b32 v18, s55")
        a(f"v_cndmask_b32 v{R}, v{R}, v18, s[58:59]")
        a(f"s_cselect_b32 s55, {m0_q3}, s54")
        a("v_mov_b32 v18, s55")
        a(f"v_cndmask_b32 v{R}, v{R}, v18, vcc")
        a(f"v_add_u32 v{R}, v{R}, v16")
        a(f"v_lshrrev_b32 v18, 4, v{R}")
        a(f"v_lshlrev_b32 v18, 2, v18")
        a(f"v_lshl_add_u32 v{R}, v{R}, 1, v18")
        a(f"v_add_u32 v{R}, s63, v{R}")
    a("s_lshl_b32 s55, s62, 6")
    a("v_add_u32 v19, s55, v2")
    a("v_lshlrev_b32 v100, 5, v19")
    a("v_sub_u32 v100, 4094, v100")
    NE = 19
    for e in range(NE):
        a(f"v_subrev_u32 v{104+e}, {2*e}, v100")
        a(f"v_cvt_f32_u32 v{104+e}, v{104+e}")
    for e in range(0, NE + 1, 2):
        e2 = min(e + 1, NE - 1)
        a(f"v_cvt_pk_bf16_f32 v{124+e//2}, v{104+e}, v{104+e2}")
    for e in range(NE):
        if e % 2 == 0: a(f"v_lshlrev_b32 v{104+e}, 16, v{124+e//2}")
        else: a(f"v_and_b32 v{104+e}, 0xffff0000, v{124+e//2}")
    for e in range(NE): a(f"v_cvt_u32_f32 v{104+e}, v{104+e}")
    for e in range(16, NE): a(f"v_min_u32 v{104+e}, {2*FT_ZERO}, v{104+e}")
    for e in range(NE):
        a(f"v_lshrrev_b32 v18, 5, v{104+e}")
        a(f"v_lshl_add_u32 v{104+e}, v18, 2, v{104+e}")
        a(f"v_add_u32 v{104+e}, s63, v{104+e}")
    a(f"s_lshr_b32 s55, s{S_WAVE}, 1")
    a(f"s_mul_i32 s55, s55, {KCH}")
    a(f"s_add_u32 s55, s55, {KC_BASE}")
    a("v_lshlrev_b32 v19, 5, v19")
    a(f"v_add_u32 v{V_KDST}, s55, v19")
    bulk(a, "P1")
    a(f"s_lshr_b32 s60, s{S_WAVE}, 1")
    a(f"s_and_b32 s61, s{S_WAVE}, 1")
    a("v_and_b32 v52, 31, v2")
    a("v_lshrrev_b32 v53, 5, v2")
    a("v_and_b32 v54, 3, v52")
    a("v_sub_u32 v54, 3, v54")
    a(f"v_mul_u32_u24 v54, {KC_STRIDE}, v54")
    a("v_lshrrev_b32 v55, 2, v52")
    a("v_lshlrev_b32 v55, 3, v55")
    a("v_sub_u32 v54, v54, v55")
    a("v_lshl_add_u32 v54, v53, 4, v54")
    a(f"s_mul_i32 s62, s60, {KCH}")
    a("s_lshl_b32 s63, s61, 6")
    a("s_sub_u32 s62, s62, s63")
    a(f"s_add_u32 s62, s62, {KC_BASE + 2*2044 - 2048 - 64*30}")
    a(f"v_add_u32 v{V_CA}, s62, v54")
    a("v_mul_u32_u24 v55, 80, v52")
    a("v_lshl_add_u32 v55, v53, 4, v55")
    a(f"s_mul_i32 s62, s60, {U_CH}")
    a("s_mul_i32 s63, s61, 80")
    a("s_sub_u32 s62, s62, s63")
    a(f"s_add_u32 s62, s62, {U_BASE + 80*(31-30)}")
    a(f"v_add_u32 v{V_CB}, s62, v55")
    tile_coords(a, 1, S_T1, S_FJ)
    tile_coords(a, 2, S_T2, S_SJ)
    dma_setup(a, 1)

def planes_out(a, D, plane_base, srd_dst, T, lo_only=False):
    for c in range(8):
        a(f"ds_write_b32 v{V_PW}, v{D+c} offset:{plane_base + 32*c}")
    a("s_waitcnt lgkmcnt(0)")
    a("s_barrier")
    a(f"s_lshl_b32 s60, s{S_TB}, 13")
    if not lo_only:
        a(f"v_add_u32 v{T+8}, 1152, v{V_PR}")
        a(f"ds_read2st64_b32 v[{T}:{T+1}], v{V_PR} offset0:0 offset1:9")
        a(f"ds_read2st64_b32 v[{T+2}:{T+3}], v{V_PR} offset0:18 offset1:27")
        a(f"ds_read2st64_b32 v[{T+4}:{T+5}], v{T+8} offset0:0 offset1:9")
        a(f"ds_read2st64_b32 v[{T+6}:{T+7}], v{T+8} offset0:18 offset1:27")
        a("s_add_u32 s61, s60, 4096")
        a("s_waitcnt lgkmcnt(2)")
        a(f"buffer_store_dwordx4 v[{T}:{T+3}], v{V_US}, s[{srd_dst}:{srd_dst+3}], s60 offen sc1")
        a("s_waitcnt lgkmcnt(0)")
        a(f"buffer_store_dwordx4 v[{T+4}:{T+7}], v{V_US}, s[{srd_dst}:{srd_dst+3}], s61 offen sc1")
    else:
        l = newlbl("po")
        a(f"s_cmp_ge_u32 s{S_WAVE}, 2")
        a(f"s_cbranch_scc1 {l}")
        for k in range(4):
            a(f"v_add_u32 v{T+16}, {576*k}, v{V_PR}")
            a(f"ds_read2st64_b32 v[{T+4*k}:{T+4*k+1}], v{T+16} offset0:0 offset1:9")
            a(f"ds_read2st64_b32 v[{T+4*k+2}:{T+4*k+3}], v{T+16} offset0:18 offset1:27")
        for k in range(4):
            a(f"s_waitcnt lgkmcnt({2*(3-k)})")
            a(f"buffer_store_dwordx4 v[{T+4*k}:{T+4*k+3}], v{V_US}, s[{srd_dst}:{srd_dst+3}], s60 offen sc1")
            if k < 3: a("s_add_u32 s60, s60, 2048")
        a.label(l)

def unit_addr(a, vd, vt):
    a(f"v_lshrrev_b32 v{vd}, 3, v2")
    a(f"v_lshlrev_b32 v{vd}, 10, v{vd}")
    a(f"v_and_b32 v{vt}, 7, v2")
    a(f"v_lshl_add_u32 v{vd}, v{vt}, 4, v{vd}")

def ln1(a):
    a(f"s_mov_b32 s90, {INV512}")
    a(f"s_mov_b32 s91, {EPS}")
    a("s_waitcnt vmcnt(10)")
    unpack_pairs(a, 16, VX, VX + 4)
    pair_sums(a, 16, 8, 32, 34, 36)
    reduce4(a, 32, 33, 34, 35)
    ln_stats(a, 32, 33, 36, 37, SM, SR)
    ln_apply(a, 16, 8, SM, SR, 40)
    unpack_packed(a, 16, 8, 40)
    for c in range(8):
        a(f"v_cvt_pk_f16_f32 v{40+c}, v{16+2*c}, v{17+2*c}")
    planes_out(a, 40, PL1, SRD_U2, 48, lo_only=True)

def kgen(a):
    a(f"s_lshr_b32 s60, s{S_WAVE}, 1")
    a(f"s_mul_i32 s60, s60, {KG_CH}")
    a(f"s_mov_b32 s66, {LOG2E}")
    a(f"s_mov_b32 s67, {LOG2E_LO}")
    a(f"s_mov_b32 s68, {LN2}")
    a(f"s_mov_b32 s69, {INV2PI}")
    a("v_mov_b32 v20, s52")
    a("v_mul_f32 v21, s66, v20")
    a("v_fma_f32 v22, v20, s66, -v21")
    a("v_fmac_f32 v22, s67, v20")
    a("v_exp_f32 v21, v21")
    a("v_mul_f32 v22, s68, v22")
    a("v_fmac_f32 v21, v21, v22")
    bf16_round(a, 21, 21)
    for i in range(10): a(f"v_lshlrev_b32 v{10+i}, 16, v{200+i}")
    a("v_mul_f32 v10, v21, v10")
    a("v_mul_f32 v11, v21, v11")
    a("v_mul_f32 v10, s66, v10")
    a("v_mul_f32 v11, s69, v11")
    for (b, c0, out) in ((12, 14, 24), (16, 18, 26)):
        a(f"v_mul_f32 v{b}, v21, v{b}")
        a(f"v_mul_f32 v{b+1}, v21, v{b+1}")
        a(f"v_mul_f32 v{out}, v{c0}, v{b}")
        a(f"v_mul_f32 v{out+1}, v{c0}, v{b+1}")
        a(f"v_fma_f32 v{out}, -v{c0+1}, v{b+1}, v{out}")
        a(f"v_fmac_f32 v{out+1}, v{c0+1}, v{b}")
    a("v_max3_f32 v28, abs(v24), abs(v25), abs(v26)")
    a("v_max_f32 v28, v28, abs(v27)")
    W1, W256, W512, W1024, W8, W128 = 32, 34, 36, 38, 80, 50
    evalE(a, W1, 1, 10, 11, 40)
    wave_max(a, 28, 29)
    evalE(a, W256, 256, 10, 11, 44)
    a("v_frexp_exp_i32_f32 v29, v28")
    a("v_sub_u32 v30, 0, v29")
    a("v_ldexp_f32 v48, v24, v30")
    a("v_ldexp_f32 v49, v25, v30")
    a("v_mov_b32 v31, 1.0")
    a("v_ldexp_f32 v31, v31, v29")
    evalE(a, W8, 8, 10, 11, 40, conj=True)
    a(f"v_readfirstlane_b32 s{S_SCALE}, v31")
    evalE(a, 84, 128, 10, 11, 44, conj=True)
    cmul(a, W512, W256, W256)
    cmul(a, W1024, W512, W512)
    st(a, "kg: setup done", 250)
    bulk(a, "P3")
    g = lambda i: 48 + 2 * i
    cnt = [0]
    def emit(off, reg):
        t = 96 + (cnt[0] % 8); cnt[0] += 1
        a(f"v_cvt_pk_f16_f32 v{t}, v{reg}, v{reg+1}")
        a(f"ds_write_b32 v{V_KROW}, v{t} offset:{off}")
    grow = lambda r, reg: emit(r * G_ROW, reg)
    hrow = lambda r, reg: emit(H_BASE + r * G_ROW, reg)
    a("v_mov_b32 v82, 1.0"); a("v_mov_b32 v83, 0")
    HA, HB = [82, 86], [84, 88]
    G = lambda r: r * G_ROW
    Hh = lambda r: H_BASE + r * G_ROW
    gops = [("e", G(0), g(0)),
            ("c", 64, g(0), W1024), ("c", 66, g(0), W512), ("c", g(1), g(0), W1), ("e", G(16), 64), ("e", G(12), 66),
            ("c", 68, 64, W256), ("c", 70, 66, W256), ("e", G(1), g(1)), ("c", g(2), g(1), W1), ("c", 72, g(0), W256), ("e", G(17), 68), ("e", G(14), 70),
            ("c", 64, 68, W256), ("e", G(2), g(2)), ("c", g(3), g(2), W1), ("c", 74, g(2), W256), ("e", G(8), 72), ("e", G(18), 64),
            ("c", 68, 64, W256), ("e", G(3), g(3)), ("c", g(4), g(3), W1), ("e", G(9), 74), ("e", G(19), 68),
            ("c", 64, 68, W256), ("e", G(4), g(4)), ("c", g(5), g(4), W1), ("c", 66, g(4), W512), ("c", 72, g(4), W256), ("e", G(20), 64),
            ("e", G(5), g(5)), ("c", g(6), g(5), W1), ("e", G(13), 66), ("c", 70, 66, W256), ("e", G(10), 72),
            ("e", G(6), g(6)), ("c", g(7), g(6), W1), ("c", 74, g(6), W256), ("e", G(15), 70), ("e", G(7), g(7)), ("e", G(11), 74)]
    hops = []
    for i in range(16):
        ca, na = HA[i % 2], HA[(i + 1) % 2]
        cb, nb = HB[i % 2], HB[(i + 1) % 2]
        if i < 15: hops += [("c", na, ca, W8), ("e", Hh(i), ca), ("c", nb, cb, W8), ("e", Hh(16 + i), cb)]
        else: hops += [("e", Hh(i), ca), ("e", Hh(16 + i), cb)]
    seq = []
    gi = hi = 0
    last = "e"
    while gi < len(gops) or hi < len(hops):
        want = "c" if last == "e" else "e"
        cand = []
        if hi < len(hops) and hops[hi][0] == want: cand.append("h")
        if gi < len(gops) and gops[gi][0] == want: cand.append("g")
        if not cand:
            cand = (["h"] if hi < len(hops) else []) + (["g"] if gi < len(gops) else [])
        if len(cand) == 2: pick = "g" if gi / len(gops) <= hi / len(hops) else "h"
        else: pick = cand[0]
        op = gops[gi] if pick == "g" else hops[hi]
        if pick == "g": gi += 1
        else: hi += 1
        seq.append(op); last = op[0]
    for n_, op in enumerate(seq):
        if n_ == len(seq) // 3: bulk(a, "P4")
        if op[0] == "c": cmul(a, op[1], op[2], op[3])
        else: emit(op[1], op[2])
    NE = 19
    a(f"s_lshr_b32 s63, s{S_WAVE}, 1")
    a("s_mul_i32 s63, s63, 5888")
    a(f"s_add_u32 s63, s63, {FT_AREA}")
    st(a, "kg: chains done", 250)
    lp0 = newlbl("pb0")
    a(f"s_cmp_lg_u32 s{S_WAVE}, 0")
    a(f"s_cbranch_scc1 {lp0}")
    a(f"v_and_b32 v98, {B1N-1}, v2")
    a(f"v_lshlrev_b32 v98, {B1S}, v98")
    a("global_load_dword v99, v98, s[8:9] sc1")
    a.label(lp0)
    bulk(a, "P5")
    a("v_mov_b32 v18, 0")
    a(f"v_mov_b32 v101, s63")
    a(f"ds_write_b16 v101, v18 offset:{2*FT_ZERO + 4*(FT_ZERO >> 4)}")
    a("s_waitcnt lgkmcnt(0)")
    a("s_barrier")
    for ks in range(8):
        a(f"ds_read_b128 v[{128+12*ks}:{131+12*ks}], v{V_KA} offset:{ks*64}")
        a(f"ds_read_b128 v[{132+12*ks}:{135+12*ks}], v{V_KB} offset:{ks*64}")
        a(f"ds_read_b128 v[{136+12*ks}:{139+12*ks}], v{V_KB} offset:{ks*64 + 16*G_ROW}")
        if ks >= 3:
            k = ks - 3
            a("s_waitcnt lgkmcnt(9)")
            cc0 = "0" if k == 0 else "v[20:23]"; cc1 = "0" if k == 0 else "v[24:27]"
            a(f"v_mfma_f32_16x16x32_f16 v[20:23], v[{128+12*k}:{131+12*k}], v[{132+12*k}:{135+12*k}], {cc0}")
            a(f"v_mfma_f32_16x16x32_f16 v[24:27], v[{128+12*k}:{131+12*k}], v[{136+12*k}:{139+12*k}], {cc1}")
    for k in range(5, 8):
        a(f"s_waitcnt lgkmcnt({3*(7-k)})")
        a(f"v_mfma_f32_16x16x32_f16 v[20:23], v[{128+12*k}:{131+12*k}], v[{132+12*k}:{135+12*k}], v[20:23]")
        a(f"v_mfma_f32_16x16x32_f16 v[24:27], v[{128+12*k}:{131+12*k}], v[{136+12*k}:{139+12*k}], v[24:27]")
    for nt in range(2):
        A = 20 + 4 * nt
        a(f"v_cvt_pk_f16_f32 v{28+2*nt}, v{A}, v{A+1}")
        a(f"v_cvt_pk_f16_f32 v{29+2*nt}, v{A+2}, v{A+3}")
        a(f"ds_write_b16 v{V_KSC}, v{28+2*nt} offset:{288*nt}")
        a(f"ds_write_b16_d16_hi v{V_KSC+1}, v{28+2*nt} offset:{288*nt}")
        a(f"ds_write_b16 v{V_KSC+2}, v{29+2*nt} offset:{288*nt}")
        a(f"ds_write_b16_d16_hi v{V_KSC+3}, v{29+2*nt} offset:{288*nt}")
    st(a, "kg: mfma done", 250)
    lp = newlbl("pb1")
    a(f"s_cmp_lg_u32 s{S_WAVE}, 0")
    a(f"s_cbranch_scc1 {lp}")
    a("s_waitcnt vmcnt(2)")
    a(f"v_cmp_gt_u32 vcc, {256//B1N}, v99")
    a(f"s_cbranch_vccz {lp}_ok")
    a("s_mov_b32 s62, 0")
    poll(a, 8, 62, B1N, B1S, 256 // B1N)
    a.label(lp + "_ok")
    conv_u_loads(a)
    a.label(lp)
    st(a, "B1 passed (wave 0)", 250)
    a("s_waitcnt lgkmcnt(0)")
    a("s_barrier")
    st(a, "kg: scatter+barrier done", 250)
    bulk(a, "P6")
    a("; KGBG")
    for e in range(NE): a(f"ds_read_u16 v{128+e}, v{104+e}")
    for r in range(40, 44): a(f"v_mov_b32 v{r}, 0")
    a("v_lshlrev_b32 v5, 4, v0")
    a("v_cmp_gt_u32 vcc, 155, v0")
    a("s_and_saveexec_b64 s[62:63], vcc")
    a(f"v_add_u32 v44, {U_BASE}, v5")
    a(f"ds_write_b128 v44, v[40:43]")
    a(f"ds_write_b128 v44, v[40:43] offset:{U_CH}")
    a("s_mov_b64 exec, s[62:63]")
    a("v_lshrrev_b32 v44, 2, v0")
    a(f"v_mul_u32_u24 v44, {KC_STRIDE}, v44")
    a("v_and_b32 v45, 3, v0")
    a("v_lshl_add_u32 v44, v45, 4, v44")
    a(f"v_add_u32 v44, {KC_BASE + 4096}, v44")
    a("v_cmp_gt_u32 vcc, 32, v0")
    a("s_and_saveexec_b64 s[62:63], vcc")
    a("ds_write_b128 v44, v[40:43]")
    a("s_mov_b64 exec, s[62:63]")

    a("s_waitcnt lgkmcnt(0)")
    for i in range(9):
        a(f"v_lshl_or_b32 v{161+i}, v{129+2*i}, 16, v{128+2*i}")
    for i in range(8):
        a(f"v_mov_b32 v{152+i}, v{161+i}")
    for i in range(9):
        a(f"v_lshl_or_b32 v{181+i}, v{130+2*i}, 16, v{129+2*i}")
    for i in range(8):
        a(f"v_mov_b32 v{172+i}, v{181+i}")
    for (sig, R) in ((0, 152), (1, 172), (2, 162), (3, 182)):
        a(f"ds_write_b128 v{V_KDST}, v[{R}:{R+3}] offset:{sig*KC_STRIDE}")
        a(f"ds_write_b128 v{V_KDST}, v[{R+4}:{R+7}] offset:{sig*KC_STRIDE+16}")

def conv_u_loads(a):
    a("v_lshrrev_b32 v4, 1, v2")
    a("v_lshlrev_b32 v4, 13, v4")
    a("v_and_b32 v5, 1, v2")
    a("v_lshl_add_u32 v4, v5, 4, v4")
    a(f"s_lshl_b32 s61, s{S_Q0}, 4")
    for r in range(8):
        a(f"buffer_load_dwordx4 a[{4*r}:{4*r+3}], v4, s[{SRD_U2}:{SRD_U2+3}], s61 offen sc1")
        if r < 7: a(f"s_add_u32 s61, s61, {32*8192}")

def conv_u_writes(a, ny=0):
    l, l1 = newlbl("cw"), newlbl("cw")
    a(f"s_cmp_lg_u32 s{S_WAVE}, 0")
    a(f"s_cbranch_scc1 {l1}")
    a("v_lshrrev_b32 v5, 3, v2")
    a("v_mul_u32_u24 v5, 80, v5")
    a("v_bfe_u32 v6, v2, 1, 2")
    a("v_lshl_add_u32 v5, v6, 4, v5")
    a("v_and_b32 v6, 1, v2")
    a(f"v_mul_u32_u24 v6, {U_CH}, v6")
    a("v_add_u32 v5, v5, v6")
    a(f"v_add_u32 v5, {U_BASE + 31*80}, v5")
    for r in range(8):
        a(f"s_waitcnt vmcnt({(7-r) + ny})")
        a(f"ds_write_b128 v5, a[{4*r}:{4*r+3}] offset:{r*640}")
    a(f"s_branch {l}")
    a.label(l1)
    a(f"s_cmp_lg_u32 s{S_WAVE}, 1")
    a(f"s_cbranch_scc1 {l}")
    a("s_waitcnt vmcnt(0)")
    a.label(l)

def conv_main(a):
    a(f"s_lshr_b32 s60, s{S_WAVE}, 1")
    a(f"s_and_b32 s61, s{S_WAVE}, 1")
    a("v_and_b32 v52, 31, v2")
    a("v_lshrrev_b32 v53, 5, v2")
    a(f"v_mov_b32 v54, v{V_CA}")
    a(f"v_mov_b32 v55, v{V_CB}")
    lh = newlbl("ph")
    a(f"s_cmp_lt_u32 s{S_WAVE}, 2")
    a(f"s_cbranch_scc1 {lh}")
    a(f"s_waitcnt vmcnt({hi_younger('F5')})")
    a.label(lh)
    a("s_waitcnt lgkmcnt(0)")
    a("s_barrier")
    lpa = newlbl("pa")
    a(f"s_cmp_lg_u32 s{S_WAVE}, 0")
    a(f"s_cbranch_scc1 {lpa}")
    a("s_and_b32 s62, s2, 7")
    a("s_lshl_b32 s62, s62, 7")
    a(f"s_add_u32 s62, s62, {SYNC_OFF + 8*128}")
    a("v_mov_b32 v13, s62")
    a("v_mov_b32 v14, 1")
    a("s_mov_b64 s[62:63], exec")
    a("s_mov_b64 exec, 1")
    a(f"global_atomic_add v13, v14, s[6:7] sc1")
    a("s_mov_b64 exec, s[62:63]")
    a.label(lpa)
    st(a, "conv start (U in LDS)")
    X, Y = 96, 128
    def load_list(step, R):
        kk = 30 - 2 * step
        oa = 64 * kk; ob = 80 * kk
        return [
            f"ds_read_b64 v[{R+0}:{R+1}], v54 offset:{oa+2048}",
            f"ds_read_b64 v[{R+2}:{R+3}], v54 offset:{oa+2048+8}",
            f"ds_read_b128 v[{R+16}:{R+19}], v55 offset:{ob}",
            f"ds_read_b128 v[{R+24}:{R+27}], v55 offset:{ob+2560}",
            f"ds_read_b64 v[{R+4}:{R+5}], v54 offset:{oa+2048+32}",
            f"ds_read_b64 v[{R+6}:{R+7}], v54 offset:{oa+2048+40}",
            f"ds_read_b128 v[{R+20}:{R+23}], v55 offset:{ob+32}",
            f"ds_read_b128 v[{R+28}:{R+31}], v55 offset:{ob+2560+32}",
            f"ds_read_b64 v[{R+8}:{R+9}], v54 offset:{oa}",
            f"ds_read_b64 v[{R+10}:{R+11}], v54 offset:{oa+8}",
            f"ds_read_b64 v[{R+12}:{R+13}], v54 offset:{oa+32}",
            f"ds_read_b64 v[{R+14}:{R+15}], v54 offset:{oa+40}"]
    def mfma_list(R, first):
        c0 = "0" if first else "v[64:79]"; c1 = "0" if first else "v[80:95]"
        return [
            f"v_mfma_f32_32x32x16_f16 v[64:79], v[{R+0}:{R+3}], v[{R+16}:{R+19}], {c0}",
            f"v_mfma_f32_32x32x16_f16 v[80:95], v[{R+0}:{R+3}], v[{R+24}:{R+27}], {c1}",
            f"v_mfma_f32_32x32x16_f16 v[64:79], v[{R+4}:{R+7}], v[{R+20}:{R+23}], v[64:79]",
            f"v_mfma_f32_32x32x16_f16 v[80:95], v[{R+4}:{R+7}], v[{R+28}:{R+31}], v[80:95]",
            f"v_mfma_f32_32x32x16_f16 v[80:95], v[{R+8}:{R+11}], v[{R+16}:{R+19}], v[80:95]",
            f"v_mfma_f32_32x32x16_f16 v[80:95], v[{R+12}:{R+15}], v[{R+20}:{R+23}], v[80:95]"]
    a("s_lshl_b32 s62, s61, 5")
    a("v_add_u32 v59, s62, v52")
    a("v_mul_u32_u24 v60, 80, v59")
    a("v_lshl_add_u32 v60, v53, 3, v60")
    a(f"s_mul_i32 s62, s60, {U_CH}")
    a(f"s_add_u32 s62, s62, {U_BASE + 31*80}")
    a("v_add_u32 v60, s62, v60")
    for g in range(4): a(f"ds_read_b64 v[{160+2*g}:{161+2*g}], v60 offset:{g*16}")
    sh = []
    for g in range(4):
        sh += [f"v_cvt_f32_f16 v{168+4*g}, v{160+2*g}", f"v_cvt_f32_f16_sdwa v{169+4*g}, v{160+2*g} dst_sel:DWORD dst_unused:UNUSED_PAD src0_sel:WORD_1",
               f"v_cvt_f32_f16 v{170+4*g}, v{161+2*g}", f"v_cvt_f32_f16_sdwa v{171+4*g}, v{161+2*g} dst_sel:DWORD dst_unused:UNUSED_PAD src0_sel:WORD_1"]
    sh += [f"v_mul_f32 v{168+r}, s{S_DSK}, v{168+r}" for r in range(16)]
    sh += [f"v_cvt_pk_bf16_f32 v{184+r//2}, v{168+r}, v{169+r}" for r in range(0, 16, 2)]
    for r in range(0, 16, 2):
        sh += [f"v_lshlrev_b32 v{168+r}, 16, v{184+r//2}", f"v_and_b32 v{169+r}, 0xffff0000, v{184+r//2}"]
    bg = dma_groups(1, 10, 0)
    bg_late = []
    if NOBGCONV: bg_late, bg = bg, []
    for l in load_list(0, X): a(l)
    for step in range(16):
        R = X if step % 2 == 0 else Y
        N = Y if step % 2 == 0 else X
        M = mfma_list(R, step == 0)
        Ls = load_list(step + 1, N) if step < 15 else []
        need_upto = [3, 4, 7, 8, 10, 12]
        issued_next = 0
        for i in range(6):
            a(f"s_waitcnt lgkmcnt({min((12 - need_upto[i]) + issued_next, 15)})")
            a(M[i])
            for l in Ls[2*i:2*i+2]: a(l); issued_next += 1
            if step >= 1 and sh: a(sh.pop(0))
            if i == 3: bulk(a, f"c{step}")
            if bg and (i == 1 or (i == 4 and step % 4 == 1)):
                for l in bg.pop(0): a(l)
                HIQ.append("D")
    for grp in bg:
        for l in grp: a(l)
        HIQ.append("D")
    st(a, "conv main done")
    for grp in bg_late:
        for l in grp: a(l)
    lpf = newlbl("pf")
    a(f"s_cmp_lg_u32 s{S_WAVE}, 0")
    a(f"s_cbranch_scc1 {lpf}")
    a("v_and_b32 v50, 7, v2")
    a("v_lshlrev_b32 v50, 7, v50")
    a(f"v_add_u32 v50, {SYNC_OFF + 8*128}, v50")
    a("global_load_dword v51, v50, s[6:7] sc1")
    a.label(lpf)
    a("v_lshlrev_b32 v56, 4, v2")
    a(f"v_add_u32 v56, {RED_CONV}, v56")
    a(f"s_lshl_b32 s62, s{S_WAVE}, 12")
    a("v_add_u32 v57, s62, v56")
    a(f"s_xor_b32 s63, s{S_WAVE}, 1")
    a("s_lshl_b32 s63, s63, 12")
    a("v_add_u32 v58, s63, v56")
    l1, l2 = newlbl("cp"), newlbl("cr")
    a("s_cmp_eq_u32 s61, 0")
    a(f"s_cbranch_scc0 {l1}")
    a("s_nop 7"); a("s_nop 7")
    for g in range(4): a(f"ds_write_b128 v57, v[{80+4*g}:{83+4*g}] offset:{g*1024}")
    a(f"s_branch {l2}")
    a.label(l1)
    a("s_nop 7"); a("s_nop 7")
    for g in range(4): a(f"ds_write_b128 v57, v[{64+4*g}:{67+4*g}] offset:{g*1024}")
    for r in range(16): a(f"v_mov_b32 v{64+r}, v{80+r}")
    a.label(l2)
    a("s_waitcnt lgkmcnt(0)")
    a("s_barrier")
    for g in range(4): a(f"ds_read_b128 v[{96+4*g}:{99+4*g}], v58 offset:{g*1024}")
    a("s_waitcnt lgkmcnt(0)")
    for r in range(0, 16, 2): a(f"v_pk_add_f32 v[{64+r}:{65+r}], v[{64+r}:{65+r}], v[{96+r}:{97+r}]")
    for r in range(0, 16, 2): a(f"v_pk_mul_f32 v[{64+r}:{65+r}], v[{64+r}:{65+r}], s[{S_SCALE}:{S_SCALE+1}] op_sel_hi:[1,0]")
    for r in range(0, 16, 2): a(f"v_cvt_pk_bf16_f32 v{136+r//2}, v{64+r}, v{65+r}")
    for r in range(0, 16, 2):
        a(f"v_lshlrev_b32 v{64+r}, 16, v{136+r//2}")
        a(f"v_and_b32 v{65+r}, 0xffff0000, v{136+r//2}")
    for r in range(0, 16, 2): a(f"v_pk_add_f32 v[{64+r}:{65+r}], v[{64+r}:{65+r}], v[{168+r}:{169+r}]")
    for r in range(0, 16, 2): a(f"v_cvt_pk_bf16_f32 v{136+r//2}, v{64+r}, v{65+r}")
    for g in (0, 2):
        A0, A1, B0, B1 = 136 + 2 * g, 137 + 2 * g, 138 + 2 * g, 139 + 2 * g
        a(f"v_permlane32_swap_b32 v{A0}, v{B0}")
        a(f"v_permlane32_swap_b32 v{A1}, v{B1}")
    a("v_mul_u32_u24 v61, 144, v59")
    a("v_lshl_add_u32 v61, v53, 5, v61")
    a("s_lshl_b32 s62, s60, 4")
    a(f"s_add_u32 s62, s62, {YB}")
    a("v_add_u32 v61, s62, v61")
    a("ds_write_b128 v61, v[136:139]")
    a("ds_write_b128 v61, v[140:143] offset:64")
    a("v_lshrrev_b32 v62, 3, v0")
    a("v_mul_u32_u24 v62, 144, v62")
    a("v_and_b32 v63, 7, v0")
    a("v_lshl_add_u32 v62, v63, 4, v62")
    a("s_waitcnt lgkmcnt(0)")
    a("s_barrier")
    ly = newlbl("yo")
    a(f"s_cmp_ge_u32 s{S_WAVE}, 2")
    a(f"s_cbranch_scc1 {ly}")
    for k in range(4):
        a(f"ds_read_b128 v[{96+4*k}:{99+4*k}], v62 offset:{YB + 16*144*k}")
    a(f"s_lshl_b32 s62, s{S_TB}, 13")
    for k in range(4):
        a(f"s_waitcnt lgkmcnt({3-k})")
        a(f"buffer_store_dwordx4 v[{96+4*k}:{99+4*k}], v{V_US}, s[{SRD_YA}:{SRD_YA+3}], s62 offen sc1")
        if k < 3: a("s_add_u32 s62, s62, 2048")
    a.label(ly)

def ln2_addr(a):
    a("v_lshrrev_b32 v4, 1, v0")
    a("v_lshlrev_b32 v4, 13, v4")
    a("v_and_b32 v5, 1, v0")
    a("v_lshl_add_u32 v4, v5, 4, v4")
    a(f"s_lshl_b32 s72, s{S_TB}, 5")
    a("s_add_u32 s73, s72, 0x100000")

def ln2_issue(a):
    a(f"buffer_load_dwordx4 v[40:43], v4, s[{SRD_YA}:{SRD_YA+3}], s72 offen sc1")
    a(f"buffer_load_dwordx4 v[44:47], v4, s[{SRD_YA}:{SRD_YA+3}], s73 offen sc1")

def ln2_loads(a, first_wait):
    l = newlbl("ys")
    a("s_mov_b32 s61, 0")
    a(f"s_waitcnt vmcnt({first_wait})")
    a(f"s_branch {l}_c")
    a.label(l)
    ln2_issue(a)
    a("s_add_u32 s61, s61, 1")
    a("s_waitcnt vmcnt(0)")
    a.label(l + "_c")
    for x in check8(40, 12): a(x)
    a(f"s_cbranch_vccz {l}_ok")
    a(f"s_cmp_lt_u32 s61, {SPIN_MAX}")
    a(f"s_cbranch_scc1 {l}")
    a.label(l + "_ok")
    a("s_waitcnt vmcnt(0)")

def ln2_planes_in(a):
    a(f"v_mov_b32 v48, v{V_PR}")
    a(f"v_add_u32 v49, 1152, v{V_PR}")
    a("ds_write2st64_b32 v48, v40, v41 offset0:0 offset1:9")
    a("ds_write2st64_b32 v48, v42, v43 offset0:18 offset1:27")
    a("ds_write2st64_b32 v49, v44, v45 offset0:0 offset1:9")
    a("ds_write2st64_b32 v49, v46, v47 offset0:18 offset1:27")

def ln2_compute(a):
    for c in range(8):
        a(f"ds_read_b32 v{40+c}, v{V_PW} offset:{32*c}")
    a(f"s_mov_b32 s90, {INV512}")
    a(f"s_mov_b32 s91, {EPS}")
    a("s_mov_b32 s92, 0x05040100")
    a("s_mov_b32 s93, 0x07060302")
    unpack_pairs(a, 16, VX, VX + 4)
    a("v_lshlrev_b32 v3, 4, v2")
    a(f"s_lshl_b32 s64, s{S_TB}, 13")
    a(f"s_lshl_b32 s65, s{S_WAVE}, 11")
    a("s_add_u32 s64, s64, s65")
    a("s_waitcnt lgkmcnt(0)")
    for c in range(8):
        a(f"v_lshlrev_b32 v{48+2*c}, 16, v{40+c}")
        a(f"v_and_b32 v{49+2*c}, 0xffff0000, v{40+c}")
    for c in range(8):
        a(f"v_pk_add_f32 v[{16+2*c}:{17+2*c}], v[{16+2*c}:{17+2*c}], v[{48+2*c}:{49+2*c}]")
    for c in range(8):
        a(f"v_cvt_pk_bf16_f32 v{40+c}, v{16+2*c}, v{17+2*c}")
    unpack_packed(a, 16, 8, 40)
    for i in range(4):
        a(f"v_perm_b32 v{4+i}, v{41+2*i}, v{40+2*i}, s92")
        a(f"v_perm_b32 v{8+i}, v{41+2*i}, v{40+2*i}, s93")
    a(f"buffer_store_dwordx4 v[4:7], v3, s[{SRD_H}:{SRD_H+3}], s64 offen sc1")
    a(f"buffer_store_dwordx4 v[8:11], v3, s[{SRD_H}:{SRD_H+3}], s64 offen offset:1024 sc1")
    pair_sums(a, 16, 8, 32, 34, 36)
    reduce4(a, 32, 33, 34, 35)
    ln_stats(a, 32, 33, 36, 37, SM, SR)
    ln_apply(a, 16, 8, SM, SR, 40)
    unpack_packed(a, 16, 8, 40)
    pair_sums(a, 16, 8, 32, 34, 36)
    reduce4(a, 32, 33, 34, 35)
    ln_stats(a, 32, 33, 36, 37, SM, SR)
    ln_apply(a, 16, 8, SM, SR, 40)
    a("; BGSTOP")
    a("s_waitcnt vmcnt(0)")
    a("s_barrier")
    planes_out(a, 40, PL2, SRD_HN, 48)

def tile_coords(a, which, sT, sC):
    a("s_and_b32 s60, s2, 7")
    a("s_lshr_b32 s61, s2, 3")
    a(f"s_and_b32 s{sT}, s60, 1")
    a(f"s_lshl_b32 s{sT}, s{sT}, 2")
    a("s_and_b32 s62, s61, 3")
    a(f"s_add_u32 s{sT}, s{sT}, s62")
    a(f"s_lshr_b32 s{sC}, s60, 1")
    a(f"s_mul_i32 s{sC}, s{sC}, {7 if which == 1 else 8}")
    a("s_lshr_b32 s62, s61, 2")
    if which == 2 and SJROT:
        a(f"s_add_u32 s62, s62, {SJROT}"); a("s_and_b32 s62, s62, 7")
    a(f"s_add_u32 s{sC}, s{sC}, s62")

VD, VTA, VTB = 240, 241, 242
def dma_setup(a, which):
    WROW = 3584 if which == 1 else (4096 if NOCOPY else 128)
    a(f"v_lshrrev_b32 v{VD}, 3, v2")
    a(f"v_mul_u32_u24 v{VD}, {WROW}, v{VD}")
    a("v_and_b32 v243, 7, v2")
    a("v_lshrrev_b32 v244, 2, v2")
    a("v_and_b32 v244, 4, v244")
    a("v_xor_b32 v243, v243, v244")
    a(f"v_lshl_add_u32 v{VD}, v243, 4, v{VD}")
    a("v_bfe_u32 v243, v2, 2, 2")
    a("v_and_b32 v244, 3, v2")
    a(f"v_bfe_u32 v{VTA}, v2, 4, 1")
    a(f"v_lshlrev_b32 v{VTA}, 1, v{VTA}")
    a("v_lshrrev_b32 v245, 1, v244")
    a(f"v_add_u32 v{VTA}, v{VTA}, v245")
    a("v_lshrrev_b32 v245, 1, v243")
    a("v_lshlrev_b32 v245, 2, v245")
    a(f"v_xor_b32 v{VTA}, v{VTA}, v245")
    a(f"v_lshlrev_b32 v{VTA}, 4, v{VTA}")
    a("v_and_b32 v245, 1, v244")
    a(f"v_lshl_add_u32 v{VTA}, v245, 3, v{VTA}")
    a("v_lshrrev_b32 v245, 5, v2")
    a(f"v_lshlrev_b32 v245, {3 if which == 1 else 2}, v245")
    a("v_add_u32 v245, v245, v243")
    a(f"v_lshl_add_u32 v{VTA}, v245, 7, v{VTA}")
    a(f"v_xor_b32 v{VTB}, 64, v{VTA}")

def ring_base_sel(a, lo_base, per_wave, split, hi_base):
    a(f"s_mul_i32 s{S_RING}, s{S_WAVE}, {per_wave}")
    a(f"s_cmp_lt_u32 s{S_WAVE}, {split}")
    a(f"s_mov_b32 s60, {lo_base}")
    a(f"s_cselect_b32 s60, s60, {hi_base - split*per_wave}")
    a(f"s_add_u32 s{S_RING}, s{S_RING}, s60")
    a(f"s_lshr_b32 s60, s{S_WAVE}, 1")
    a("s_lshl_b32 s60, s60, 6")
    a(f"v_xor_b32 v246, s60, v{VTA}")
    a(f"v_xor_b32 v247, 64, v246")
    a(f"v_add_u32 v246, s{S_RING}, v246")
    a(f"v_add_u32 v247, s{S_RING}, v247")

def ring_base(a, per_wave, base):
    a(f"s_mul_i32 s{S_RING}, s{S_WAVE}, {per_wave}")
    if base: a(f"s_add_u32 s{S_RING}, s{S_RING}, {base}")
    a(f"s_lshr_b32 s60, s{S_WAVE}, 1")
    a("s_lshl_b32 s60, s60, 6")
    a(f"v_xor_b32 v246, s60, v{VTA}")
    a(f"v_xor_b32 v247, 64, v246")
    a(f"v_add_u32 v246, s{S_RING}, v246")
    a(f"v_add_u32 v247, s{S_RING}, v247")

S_WA, S_WB = 76, 77
def dma_groups(which, n, slot0):
    WROW = 3584 if which == 1 else (4096 if NOCOPY else 128)
    srdw = SRD_W1 if which == 1 else (SRD_W2 if NOCOPY else SRD_W2R)
    sc = "" if (which == 1 or NOCOPY) else " sc1"
    g = []
    for i in range(n):
        g.append([f"s_add_u32 m0, s{S_RING}, {(slot0+i)*2048}",
                  f"buffer_load_dwordx4 v{VD}, s[{srdw}:{srdw+3}], s{S_WA} offen{sc} lds",
                  f"s_add_u32 s{S_WA}, s{S_WA}, {16*WROW}"])
        g.append([f"s_add_u32 m0, s{S_RING}, {(slot0+i)*2048+1024}",
                  f"buffer_load_dwordx4 v{VD}, s[{srdw}:{srdw+3}], s{S_WB} offen{sc} lds",
                  f"s_add_u32 s{S_WB}, s{S_WB}, {16*WROW}"])
    return g

def dma_issue(a, which, n, slot0):
    for grp in dma_groups(which, n, slot0):
        for l in grp: a(l)

SCC_READ = ('s_cbranch_scc', 's_cselect', 's_addc', 's_subb', 's_cmov')
SCC_WRITE = ('s_cmp', 's_add_', 's_sub_', 's_and_', 's_or_', 's_xor_', 's_lshl', 's_lshr', 's_bitcmp', 's_min', 's_max', 's_ashr', 's_not', 's_bfe')
def scc_safe(lines, i):
    for l in lines[i:]:
        op = l.split()[0]
        if op.startswith(SCC_READ): return False
        if op.startswith(SCC_WRITE) or op.endswith(':') or op in ('s_branch', 's_endpgm', 's_barrier'): return True
    return True

def with_bg(a, fg, groups, skip=0, stride=20, after=None, before=None):
    i0 = len(a.lines)
    fg()
    body = a.lines[i0:]
    del a.lines[i0:]
    start = skip
    if after is not None:
        start = next(k for k, l in enumerate(body) if after in l) + 1 + skip
    out = []; gi = 0; nxt = start
    stop = False
    cond_until = None
    masked = False
    labels_in = {x[:-1] for x in body if x.endswith(':')}
    for k, l in enumerate(body):
        if cond_until is not None and l == cond_until + ':': cond_until = None
        in_cond = cond_until is not None or masked
        cond_until_next = None
        if cond_until is None and l.startswith(('s_cbranch', 's_branch')) and l.split()[1] in labels_in and (l.split()[1] + ':') in body[k:]:
            cond_until_next = l.split()[1]
        if before is not None and not stop and before in l:
            stop = True
            while gi < len(groups):
                out += groups[gi]; gi += 1
        if not stop and not in_cond and gi < len(groups) and k >= nxt and scc_safe(body, k) and not l.endswith(':') and not l.startswith('s_and_saveexec'):
            out += groups[gi]; gi += 1; nxt = k + stride
        out.append(l)
        if cond_until_next is not None: cond_until = cond_until_next
        if l.startswith('s_and_saveexec'): masked = True
        if l.startswith('s_mov_b64 exec'): masked = False
    while gi < len(groups):
        out += groups[gi]; gi += 1
    a.lines += out

def tr_to_acc(a, which, steps, slot0):
    RHO = 512 if which == 1 else 1024
    for i, s in enumerate(steps):
        o = (slot0 + i) * 2048
        a(f"ds_read_b64_tr_b16 a[{8*s}:{8*s+1}], v246 offset:{o}")
        a(f"ds_read_b64_tr_b16 a[{8*s+2}:{8*s+3}], v246 offset:{o+RHO}")
        a(f"ds_read_b64_tr_b16 a[{8*s+4}:{8*s+5}], v247 offset:{o}")
        a(f"ds_read_b64_tr_b16 a[{8*s+6}:{8*s+7}], v247 offset:{o+RHO}")
        if i % 3 == 2: a("s_waitcnt lgkmcnt(4)")

def woff_init(a, which, sC):
    WROW = 3584 if which == 1 else (4096 if NOCOPY else 128)
    if which == 1:
        a(f"s_mul_i32 s{S_WA}, s{S_WAVE}, {32*16*3584}")
        a(f"s_lshl_b32 s60, s{sC}, 7")
    elif NOCOPY:
        a(f"s_mul_i32 s{S_WA}, s{S_WAVE}, {28*16*4096}")
        a(f"s_lshl_b32 s60, s{sC}, 7")
    else:
        a(f"s_mul_i32 s{S_WA}, s{S_WAVE}, {28*16*128}")
        a(f"s_mul_i32 s60, s{sC}, {W2R_TILE}")
    a(f"s_add_u32 s{S_WA}, s{S_WA}, s60")
    a(f"s_add_u32 s{S_WB}, s{S_WA}, {8*WROW}")

def gemm_lane_consts(a):
    a("v_lshrrev_b32 v6, 5, v2")
    a("v_and_b32 v7, 31, v2")
    a("v_lshlrev_b32 v10, 13, v6")
    a("v_lshl_add_u32 v10, v7, 4, v10")
    a(f"s_and_b32 s60, s{S_WAVE}, 1")
    a("s_lshl_b32 s60, s60, 9")
    a("v_xor_b32 v8, s60, v10")
    a("v_xor_b32 v9, 512, v8")

def main_loop(a, which, srda, soff, D0):
    NK = 32 if which == 1 else 28
    DR = 14
    ab = lambda s: 128 + 8 * (s % DR)
    issued = [0]
    def issue():
        s = issued[0]
        if s >= NK: return []
        R = ab(s); issued[0] += 1
        return [f"buffer_load_dwordx4 v[{R}:{R+3}], v8, s[{srda}:{srda+3}], s{soff} offen sc1",
                f"buffer_load_dwordx4 v[{R+4}:{R+7}], v9, s[{srda}:{srda+3}], s{soff} offen sc1\ns_add_u32 s{soff}, s{soff}, 16384"]
    for s in range(D0):
        for l in issue(): a(l)
    for s in range(NK):
        a(f"s_waitcnt vmcnt({2*(issued[0] - 1 - s)})")
        nxt = issue() if (issued[0] - s) < DR else []
        R = ab(s); k = 0
        for wt in range(2):
            for at in range(2):
                acc = 64 + 32 * wt + 16 * at
                wq = f"a[{8*s+4*wt}:{8*s+4*wt+3}]"; aq = f"v[{R+4*at}:{R+4*at+3}]"
                cc = "0" if s == 0 else f"v[{acc}:{acc+15}]"
                if which == 1: a(f"v_mfma_f32_32x32x16_bf16 v[{acc}:{acc+15}], {wq}, {aq}, {cc}")
                else: a(f"v_mfma_f32_32x32x16_bf16 v[{acc}:{acc+15}], {aq}, {wq}, {cc}")
                if k == 0 and nxt: a(nxt[0])
                if k == 2 and nxt: a(nxt[1])
                k += 1

def check8(R, T):
    return [f"v_max3_u32 v{T}, v{R}, v{R+1}, v{R+2}", f"v_max3_u32 v{T}, v{T}, v{R+3}, v{R+4}", f"v_max3_u32 v{T}, v{T}, v{R+5}, v{R+6}",
            f"v_max_u32 v{T}, v{T}, v{R+7}", f"v_cmp_eq_u32 vcc, -1, v{T}"]

SPIN_MAX = 0x20000
def probe_spin(a, srd_, vaddr, soff_sgpr, first_wait=None):
    l = newlbl("pr")
    a("s_mov_b32 s61, 0")
    if first_wait is not None:
        a(f"s_waitcnt vmcnt({first_wait})")
        a("v_cmp_eq_u32 vcc, -1, v14")
        a(f"s_cbranch_vccz {l}_ok")
    a.label(l)
    a(f"buffer_load_dword v14, v{vaddr}, s[{srd_}:{srd_+3}], s{soff_sgpr} offen sc1")
    a("s_add_u32 s61, s61, 1")
    a("s_waitcnt vmcnt(0)")
    a("v_cmp_eq_u32 vcc, -1, v14")
    a(f"s_cbranch_vccz {l}_ok")
    a(f"s_cmp_lt_u32 s61, {SPIN_MAX}")
    a(f"s_cbranch_scc1 {l}")
    a.label(l + "_ok")

RETRY = []
def main_loop2(a, which, srda, sbase, D0, shadow=()):
    NK = 32 if which == 1 else 28
    DR = 14
    ab = lambda s: 128 + 8 * (s % DR)
    a(f"s_mov_b32 s73, s{sbase}")
    issued = [0]
    def issue():
        s = issued[0]
        if s >= NK: return []
        R = ab(s); issued[0] += 1
        return [f"buffer_load_dwordx4 v[{R}:{R+3}], v8, s[{srda}:{srda+3}], s73 offen sc1",
                f"buffer_load_dwordx4 v[{R+4}:{R+7}], v9, s[{srda}:{srda+3}], s73 offen sc1\ns_add_u32 s73, s73, 16384"]
    def retry(t):
        lr, lb = newlbl("rt"), newlbl("rb")
        R = ab(t)
        blk = [lr + ":", "s_mov_b32 s61, 0", f"s_add_u32 s62, s{sbase}, {t*16384}", lr + "_l:",
               f"buffer_load_dwordx4 v[{R}:{R+3}], v8, s[{srda}:{srda+3}], s62 offen sc1",
               f"buffer_load_dwordx4 v[{R+4}:{R+7}], v9, s[{srda}:{srda+3}], s62 offen sc1",
               "s_add_u32 s61, s61, 1", "s_waitcnt vmcnt(0)"] + check8(R, 12) + \
              [f"s_cbranch_vccz {lb}", f"s_cmp_lt_u32 s61, {SPIN_MAX}", f"s_cbranch_scc1 {lr}_l", f"s_branch {lb}"]
        RETRY.extend(blk)
        return lr, lb
    for s in range(D0):
        for l in issue(): a(l)
    a(f"s_waitcnt vmcnt({2*(issued[0] - 1)})")
    for l in check8(ab(0), 12): a(l)
    lr, lb = retry(0)
    a(f"s_cbranch_vccnz {lr}")
    a.label(lb)
    for s in range(NK):
        nxt = issue() if (issued[0] - s) < DR and (issued[0] - s) <= D0 else []
        R = ab(s); k = 0
        for wt in range(2):
            for at in range(2):
                acc = 64 + 32 * wt + 16 * at
                wq = f"a[{8*s+4*wt}:{8*s+4*wt+3}]"; aq = f"v[{R+4*at}:{R+4*at+3}]"
                cc = "0" if s == 0 else f"v[{acc}:{acc+15}]"
                if which == 1: a(f"v_mfma_f32_32x32x16_bf16 v[{acc}:{acc+15}], {wq}, {aq}, {cc}")
                else: a(f"v_mfma_f32_32x32x16_bf16 v[{acc}:{acc+15}], {aq}, {wq}, {cc}")
                if k == 0 and nxt: a(nxt[0])
                if k == 1:
                    if nxt: a(nxt[1])
                    if s + 1 < NK:
                        a(f"s_waitcnt vmcnt({2*(issued[0] - 1 - (s + 1))})")
                        for l in check8(ab(s + 1), 12): a(l)
                k += 1
        if s >= 2 and shadow:
            for l in shadow[:4]: a(l)
            shadow = shadow[4:]
        if s + 1 < NK:
            lr, lb = retry(s + 1)
            a("s_nop 2")
            a(f"s_cbranch_vccnz {lr}")
            a.label(lb)

def reduce_write(a):
    a("v_lshlrev_b32 v13, 4, v2")
    for j in (1, 2, 3):
        wt, at = j >> 1, j & 1
        acc = 64 + 32 * wt + 16 * at
        a(f"s_xor_b32 s60, s{S_WAVE}, {j}")
        a(f"s_mul_i32 s60, s60, {3*4096}")
        a(f"s_add_u32 s60, s60, {(j-1)*4096}")
        a(f"v_add_u32 v14, s60, v13")
        for g in range(4):
            a(f"ds_write_b128 v14, v[{acc+4*g}:{acc+4*g+3}] offset:{g*1024}")

def reduce_read(a):
    a(f"s_mul_i32 s60, s{S_WAVE}, {3*4096}")
    a("v_add_u32 v14, s60, v13")
    for j in range(3):
        for g in range(4):
            a(f"ds_read_b128 v[{128+16*j+4*g}:{131+16*j+4*g}], v14 offset:{j*4096+g*1024}")
    P = lambda b, r: f"v[{b+r}:{b+r+1}]"
    a("s_waitcnt lgkmcnt(8)")
    for r in range(0, 16, 2): a(f"v_pk_add_f32 {P(64,r)}, {P(64,r)}, {P(128,r)}")
    a("s_waitcnt lgkmcnt(0)")
    for r in range(0, 16, 2): a(f"v_pk_add_f32 {P(144,r)}, {P(144,r)}, {P(160,r)}")
    for r in range(0, 16, 2): a(f"v_pk_add_f32 {P(128,r)}, {P(64,r)}, {P(144,r)}")

def gelu16(a, X, T):
    a("s_mov_b32 s66, 0x3d372713")
    a("s_mov_b32 s67, 0x3d372713")
    kk = -2.0 * 1.4426950408889634 * 0.7978845608028654
    kb = hex(struct.unpack('<I', struct.pack('<f', kk))[0])
    a(f"s_mov_b32 s68, {kb}"); a(f"s_mov_b32 s69, {kb}")
    P = lambda b, r: f"v[{b+r}:{b+r+1}]"
    for r in range(0, 16, 2): a(f"v_pk_mul_f32 {P(T,r)}, {P(X,r)}, {P(X,r)}")
    for r in range(0, 16, 2): a(f"v_pk_mul_f32 {P(T,r)}, {P(T,r)}, s[66:67]")
    for r in range(0, 16, 2): a(f"v_pk_fma_f32 {P(T,r)}, {P(T,r)}, {P(X,r)}, {P(X,r)}")
    for r in range(0, 16, 2): a(f"v_pk_mul_f32 {P(T,r)}, {P(T,r)}, s[68:69]")
    for r in range(16): a(f"v_exp_f32 v{T+r}, v{T+r}")
    for r in range(16): a(f"v_add_f32 v{T+r}, 1.0, v{T+r}")
    for r in range(16): a(f"v_rcp_f32 v{T+r}, v{T+r}")
    for r in range(0, 16, 2): a(f"v_pk_mul_f32 {P(X,r)}, {P(X,r)}, {P(T,r)}")

def epi1_loads(a):
    a(f"s_lshr_b32 s61, s{S_WAVE}, 1")
    a(f"s_lshl_b32 s72, s{S_FJ}, 6")
    a("s_lshl_b32 s64, s61, 5")
    a("s_add_u32 s72, s72, s64")
    a("s_lshl_b32 s64, s72, 1")
    a("v_lshlrev_b32 v15, 3, v6")
    a("v_add_u32 v15, s64, v15")
    for g in range(4):
        a(f"global_load_dwordx2 v[{20+2*g}:{21+2*g}], v15, s[{S_B1}:{S_B1+1}] offset:{16*g}")

def epi1_shadow():
    l = []
    for g in range(4):
        l += [f"v_lshlrev_b32 v{28+4*g}, 16, v{20+2*g}", f"v_and_b32 v{29+4*g}, 0xffff0000, v{20+2*g}",
              f"v_lshlrev_b32 v{30+4*g}, 16, v{21+2*g}", f"v_and_b32 v{31+4*g}, 0xffff0000, v{21+2*g}"]
    return l

def epi1(a):
    P = lambda b, r: f"v[{b+r}:{b+r+1}]"
    a("s_lshr_b32 s64, s72, 4")
    a("s_lshl_b32 s64, s64, 14")
    a(f"s_lshl_b32 s65, s{S_T1}, 10")
    a("s_add_u32 s64, s64, s65")
    a(f"s_and_b32 s62, s{S_WAVE}, 1")
    a("s_lshl_b32 s65, s62, 9")
    a("s_add_u32 s64, s64, s65")
    a("s_add_u32 s65, s64, 16384")
    reduce_read(a)
    for r in range(0, 16, 2): a(f"v_cvt_pk_bf16_f32 v{144+r//2}, v{128+r}, v{129+r}")
    for r in range(0, 16, 2):
        a(f"v_lshlrev_b32 v{128+r}, 16, v{144+r//2}")
        a(f"v_and_b32 v{129+r}, 0xffff0000, v{144+r//2}")
    for r in range(0, 16, 2): a(f"v_pk_add_f32 {P(128,r)}, {P(128,r)}, {P(28,r)}")
    for r in range(0, 16, 2): a(f"v_cvt_pk_bf16_f32 v{144+r//2}, v{128+r}, v{129+r}")
    for r in range(0, 16, 2):
        a(f"v_lshlrev_b32 v{128+r}, 16, v{144+r//2}")
        a(f"v_and_b32 v{129+r}, 0xffff0000, v{144+r//2}")
    gelu16(a, 128, 160)
    for r in range(0, 16, 2): a(f"v_cvt_pk_bf16_f32 v{144+r//2}, v{128+r}, v{129+r}")
    a("; GSTORE")
    a(f"buffer_store_dwordx4 v[144:147], v10, s[{SRD_G2}:{SRD_G2+3}], s64 offen sc1")
    a(f"buffer_store_dwordx4 v[148:151], v10, s[{SRD_G2}:{SRD_G2+3}], s65 offen sc1")

OT = 131072
def epi2_loads(a):
    a(f"s_lshr_b32 s61, s{S_WAVE}, 1")
    a(f"s_lshl_b32 s63, s{S_SJ}, 6")
    a("s_lshl_b32 s64, s61, 5")
    a("s_add_u32 s64, s64, s63")
    a("v_add_u32 v15, s64, v7")
    a("v_lshlrev_b32 v17, 1, v15")
    a(f"global_load_ushort v18, v17, s[{S_B2}:{S_B2+1}]")
    a("v_lshrrev_b32 v15, 3, v0")
    a("v_add_u32 v15, s63, v15")
    a("v_lshlrev_b32 v16, 10, v15")
    a("v_and_b32 v15, 7, v0")
    a("v_lshl_add_u32 v16, v15, 4, v16")
    a(f"s_lshl_b32 s70, s{S_T2}, 7")
    a("s_add_u32 s74, s70, 32768")
    a(f"buffer_load_dwordx4 v[20:23], v16, s[{SRD_H}:{SRD_H+3}], s70 offen sc1")
    a(f"buffer_load_dwordx4 v[24:27], v16, s[{SRD_H}:{SRD_H+3}], s74 offen sc1")

def epi2_shadow():
    l = ["v_lshlrev_b32 v18, 16, v18", "v_mov_b32 v19, v18"]
    for i in range(8):
        l += [f"v_lshlrev_b32 v{28+2*i}, 16, v{20+i}", f"v_and_b32 v{29+2*i}, 0xffff0000, v{20+i}"]
    l += [f"s_lshr_b32 s75, s{S_WAVE}, 1", "s_lshl_b32 s75, s75, 5", "v_add_u32 v44, s75, v7", "v_mul_u32_u24 v44, 144, v44", "v_lshl_add_u32 v44, v6, 6, v44",
          f"s_and_b32 s75, s{S_WAVE}, 1", "s_lshl_b32 s75, s75, 3", f"s_add_u32 s75, s75, {OT}", "v_add_u32 v44, s75, v44",
          "v_lshrrev_b32 v45, 3, v0", "v_mul_u32_u24 v45, 144, v45", "v_and_b32 v46, 7, v0", "v_lshl_add_u32 v45, v46, 4, v45", f"v_add_u32 v45, {OT}, v45"]
    return l

def epi2(a):
    P = lambda b, r: f"v[{b+r}:{b+r+1}]"
    reduce_read(a)
    for r in range(4):
        a(f"v_cvt_pk_bf16_f32 v{144+2*r}, v{128+r}, v{132+r}")
        a(f"v_cvt_pk_bf16_f32 v{145+2*r}, v{136+r}, v{140+r}")
    for i in range(8):
        a(f"v_lshlrev_b32 v{160+2*i}, 16, v{144+i}")
        a(f"v_and_b32 v{161+2*i}, 0xffff0000, v{144+i}")
    for r in range(0, 16, 2): a(f"v_pk_add_f32 {P(160,r)}, {P(160,r)}, v[18:19]")
    for i in range(8): a(f"v_cvt_pk_bf16_f32 v{144+i}, v{160+2*i}, v{161+2*i}")
    for r in range(4): a(f"ds_write_b64 v44, v[{144+2*r}:{145+2*r}] offset:{16*r}")
    a("s_waitcnt lgkmcnt(0)")
    a("s_barrier")
    a("ds_read_b128 v[144:147], v45")
    a(f"ds_read_b128 v[148:151], v45 offset:{32*144}")
    a("s_waitcnt lgkmcnt(0)")
    for i in range(8):
        a(f"v_lshlrev_b32 v{160+2*i}, 16, v{144+i}")
        a(f"v_and_b32 v{161+2*i}, 0xffff0000, v{144+i}")
    for r in range(0, 16, 2): a(f"v_pk_add_f32 {P(160,r)}, {P(160,r)}, {P(28,r)}")
    for i in range(8): a(f"v_cvt_pk_bf16_f32 v{144+i}, v{160+2*i}, v{161+2*i}")
    a(f"buffer_store_dwordx4 v[144:147], v16, s[{SRD_OUT}:{SRD_OUT+3}], s70 offen {OUTMOD}")
    a(f"buffer_store_dwordx4 v[148:151], v16, s[{SRD_OUT}:{SRD_OUT+3}], s74 offen {OUTMOD}")

D0_G1, D0_G2 = 5, 5
NPRE = 14
NOCOPY = True
RETOUCH = True
RETOUCH0 = True
LN2STRIDE = 8
TAILBG = 14
B1N, B1S = 4, 6
OUTMOD = 'sc1'
NOBGCONV = False
TOUCH = True
SJROT = 0
TOUCHREV = False
REMAP = False
ALIGN = True
CODEPF = True
def gen_fused(a):
    kernel_header(a, KNAME)
    stamp_begin(a)
    if DBGST is not None or DIAG_THR: a("s_memrealtime s[98:99]")
    a("s_cmp_ge_u32 s2, 256")
    a("s_cbranch_scc1 L_exit")
    if REMAP:
        a("s_and_b32 s4, s2, 7"); a("s_lshl_b32 s4, s4, 5"); a("s_lshr_b32 s2, s2, 3"); a("s_or_b32 s2, s2, s4")
    prologue(a)
    ln1(a)
    st(a, "LN1 done (stores issued)", 250)
    a(f"s_and_b32 s60, s2, {B1N-1}")
    a(f"s_lshl_b32 s60, s60, {B1S}")
    arrive(a, 8, 60, lo_only=True)
    st(a, "B1 arrived", 250)
    a(f"s_waitcnt vmcnt({min(len(HIQ), 2) if False else len(HIQ)})")
    bulk(a, "P2")
    kgen(a)
    st(a, "Kgen done", 250)
    ring_base(a, 20480, RING_A)
    woff_init(a, 1, S_FJ)
    conv_u_writes(a, 0)
    conv_main(a)
    st(a, "conv epilogue done (stores issued)")
    lw, lw2 = newlbl("ws"), newlbl("ws")
    a(f"s_cmp_lt_u32 s{S_WAVE}, 2")
    a(f"s_cbranch_scc1 {lw}")
    a("s_waitcnt vmcnt(0)")
    a(f"s_branch {lw2}")
    a.label(lw)
    a("s_waitcnt vmcnt(4)")
    lq = newlbl("pq")
    a(f"s_cmp_lg_u32 s{S_WAVE}, 0")
    a(f"s_cbranch_scc1 {lw2}")
    a("v_cmp_gt_u32 vcc, 32, v51")
    a(f"s_cbranch_vccz {lw2}")
    a(f"s_mov_b32 s60, {SYNC_OFF + 8*128}")
    poll(a, 6, 60, 8, 7, 32)
    a.label(lw2)
    tr_to_acc(a, 1, range(0, 10), 0)
    a("s_waitcnt lgkmcnt(0)")
    a("s_barrier")
    ring_base(a, 28672, 25600)
    ln2_addr(a)
    dma_issue(a, 1, 8, 0)
    ln2_issue(a)
    dma_issue(a, 1, 6, 8)
    st(a, "w1 DMA B issued")
    ln2_loads(a, 12)
    st(a, "YA ready")
    if NOCOPY and RETOUCH0:
        a(f"s_mul_i32 s60, s{S_WAVE}, 448")
        a(f"s_and_b32 s61, s{S_T2}, 3")
        a("s_mul_i32 s61, s61, 56")
        a("s_add_u32 s60, s60, s61")
        a("v_min_u32 v13, 55, v2")
        a("v_add_u32 v13, s60, v13")
        a("v_lshlrev_b32 v13, 12, v13")
        a(f"s_lshl_b32 s60, s{S_SJ}, 7")
        a(f"buffer_load_dword a199, v13, s[{SRD_W2}:{SRD_W2+3}], s60 offen")
    a(f"v_subrev_u32 v{V_PW}, {PL}, v{V_PW}")
    a(f"v_subrev_u32 v{V_PR}, {PL}, v{V_PR}")
    ln2_planes_in(a)
    a("s_waitcnt lgkmcnt(0)")
    a("s_barrier")
    def trgrp(sidx, slot, va=246, vb=247, rho=512):
        o = slot * 2048
        return [f"ds_read_b64_tr_b16 a[{8*sidx}:{8*sidx+1}], v{va} offset:{o}", f"ds_read_b64_tr_b16 a[{8*sidx+2}:{8*sidx+3}], v{va} offset:{o+rho}",
                f"ds_read_b64_tr_b16 a[{8*sidx+4}:{8*sidx+5}], v{vb} offset:{o}", f"ds_read_b64_tr_b16 a[{8*sidx+6}:{8*sidx+7}], v{vb} offset:{o+rho}"]
    grp = [trgrp(10 + i, i) for i in range(8)]
    d2 = dma_groups(1, 8, 0)
    d2[0] = ["s_waitcnt lgkmcnt(0)"] + d2[0]
    grp2 = [trgrp(18 + i, 8 + i) for i in range(6)]
    mix = list(grp)
    k2 = 0
    for i, g_ in enumerate(d2):
        mix.append(g_)
        if i % 2 == 1 and k2 < len(grp2): mix.append(grp2[k2]); k2 += 1
    mix += grp2[k2:]
    with_bg(a, lambda: ln2_compute(a), mix, skip=14, stride=LN2STRIDE, before="BGSTOP")
    st(a, "LN2 done (stores issued)")
    for i in range(24, 32):
        for l in trgrp(i, i - 24): a(l)
        if i % 3 == 2: a("s_waitcnt lgkmcnt(4)")
    a(f"s_mul_i32 s71, s{S_WAVE}, {32*16384}")
    a(f"s_lshl_b32 s60, s{S_T1}, 10")
    a("s_add_u32 s71, s71, s60")
    a("v_lshlrev_b32 v15, 13, v2")
    a("v_add_u32 v15, 1020, v15")
    gemm_lane_consts(a)
    dma_setup(a, 2)
    a("s_waitcnt lgkmcnt(0)")
    a("s_barrier")
    ring_base(a, 28672, RED_BYTES)
    woff_init(a, 2, S_SJ)
    dma_issue(a, 2, NPRE - 5, 0)
    a(f"buffer_load_dword v14, v15, s[{SRD_HN}:{SRD_HN+3}], s71 offen sc1")
    dma_issue(a, 2, 5, NPRE - 5)
    if NOCOPY and RETOUCH:
        a(f"s_mul_i32 s60, s{S_WAVE}, 448")
        a(f"s_and_b32 s61, s{S_T2}, 3")
        a("s_mul_i32 s61, s61, 56")
        a("s_add_u32 s60, s60, s61")
        a("s_add_u32 s60, s60, 224")
        a("v_min_u32 v13, 55, v2")
        a("v_add_u32 v13, s60, v13")
        a("v_lshlrev_b32 v13, 12, v13")
        a(f"s_lshl_b32 s60, s{S_SJ}, 7")
        a(f"buffer_load_dword v11, v13, s[{SRD_W2}:{SRD_W2+3}], s60 offen")
    st(a, "w2 DMA A issued")
    a("s_cmp_ge_u32 s2, 224")
    a("s_cbranch_scc1 L_skipG1")
    probe_spin(a, SRD_HN, 15, 71, first_wait=(11 if (NOCOPY and RETOUCH) else 10))
    st(a, "HN probe ok")
    epi1_loads(a)
    a("s_waitcnt lgkmcnt(0)")
    a("s_barrier")
    main_loop2(a, 1, SRD_HN, 71, D0_G1, shadow=epi1_shadow())
    st(a, "G1 main done")
    reduce_write(a)
    tr_to_acc(a, 2, range(NPRE), 0)
    a("s_waitcnt lgkmcnt(0)")
    a("s_barrier")
    g = dma_groups(2, 14, 0)
    with_bg(a, lambda: epi1(a), g[:TAILBG], skip=30, stride=max(4, 112 // max(TAILBG, 1)), before="GSTORE")
    for grp in g[TAILBG:]:
        for l in grp: a(l)
    st(a, "epi1 done (stores issued)")
    dma_issue(a, 2, 28 - NPRE - 14, 14) if 28 - NPRE - 14 > 0 else None
    a("s_branch L_stage2")
    a.label("L_skipG1")
    a("s_waitcnt vmcnt(0) lgkmcnt(0)")
    tr_to_acc(a, 2, range(NPRE), 0)
    a("s_waitcnt lgkmcnt(0)")
    dma_issue(a, 2, 28 - NPRE, 0)
    a.label("L_stage2")
    a(f"s_mul_i32 s71, s{S_WAVE}, {28*16384}")
    a(f"s_lshl_b32 s60, s{S_T2}, 10")
    a("s_add_u32 s71, s71, s60")
    a("v_min_u32 v15, 55, v2")
    a("v_lshlrev_b32 v15, 13, v15")
    a("v_add_u32 v15, 1020, v15")
    a("s_waitcnt vmcnt(0)")
    a(f"buffer_load_dword v14, v15, s[{SRD_G2}:{SRD_G2+3}], s71 offen sc1")
    tr_to_acc(a, 2, range(NPRE, 28), 0)
    st(a, "w2 staged")
    probe_spin(a, SRD_G2, 15, 71, first_wait=0)
    st(a, "G probe ok")
    epi2_loads(a)
    a("s_waitcnt lgkmcnt(0)")
    a("s_barrier")
    main_loop2(a, 2, SRD_G2, 71, D0_G2, shadow=epi2_shadow())
    st(a, "G2 main done")
    reduce_write(a)
    a("s_waitcnt lgkmcnt(0)")
    a("s_barrier")
    epi2(a)
    a("s_waitcnt vmcnt(0)") if STAMPON() else None
    st(a, "end", final=True)
    if DIAG_THR:
        a("s_cmp_lg_u32 s2, 0")
        a("s_cbranch_scc1 L_exit")
        a("s_waitcnt vmcnt(0)")
        a("s_memrealtime s[96:97]")
        a("s_waitcnt lgkmcnt(0)")
        a("s_sub_u32 s94, s96, s98")
        a(f"s_cmp_lt_u32 s94, {DIAG_THR}")
        a("s_cbranch_scc1 L_exit")
        a("s_add_u32 s95, s96, 6000")
        a.label("L_diag")
        a("s_memrealtime s[96:97]")
        a("s_waitcnt lgkmcnt(0)")
        a("s_sub_u32 s94, s95, s96")
        a("s_cmp_gt_i32 s94, 0")
        a("s_cbranch_scc1 L_diag")
    a.label("L_exit")
    a("s_endpgm")
    for l in RETRY: a.lines.append(l)
    a.label("L_code_end")
    a("s_endpgm")
    return kernel_desc(KNAME, 512, 100, accum=256)

def touch_setup(a):
    a("s_and_b32 s60, s2, 7")
    a("s_lshr_b32 s60, s60, 1")
    a("s_lshr_b32 s61, s2, 3")
    a(f"s_and_b32 s62, s{S_WAVE}, 1")
    a("s_lshl_b32 s62, s62, 9")
    a("s_lshl_b32 s63, s61, 6")
    a(f"v_add_u32 v{V_TW1}, s63, v2")
    a(f"v_mul_u32_u24 v{V_TW1}, 3584, v{V_TW1}")
    a("s_mul_i32 s63, s60, 896")
    a("s_add_u32 s63, s63, s62")
    a(f"v_add_u32 v{V_TW1}, s63, v{V_TW1}")
    a("s_mul_i32 s79, s2, 28672")
    a(f"s_and_b32 s61, s{S_WAVE}, 1")
    a("s_mul_i32 s61, s61, 14336")
    a("s_add_u32 s79, s79, s61")

BULK = {"P0": ["T0"], "P1": ["T1"], "P2": ["T2"], "P3": ["F0", "F1", "T3"], "P4": ["F2", "F3"], "P5": ["F4", "F5"], "c4": ["U0"], "c7": ["U1"], "c10": ["U2"], "c13": ["U3"]}
HIQ = []
def hi_younger(tag):
    idx = max(i for i, t in enumerate(HIQ) if t == tag)
    return len(HIQ) - 1 - idx
def bulk(a, slot):
    ops = BULK.get(slot, [])
    if not ops: return
    for op in ops:
        if op[0] == "F":
            prefill_op(a, int(op[1:])); HIQ.append(op)
    ops = [o for o in ops if o[0] != "F"]
    if not TOUCH: ops = [o for o in ops if o[0] != "T"]
    if not ops: return
    l = newlbl("bk")
    a(f"s_cmp_lt_u32 s{S_WAVE}, 2")
    a(f"s_cbranch_scc1 {l}")
    for op in ops:
        k = int(op[1:])
        if op[0] == "T":
            if k == 3:
                l3 = newlbl("t3")
                a(f"s_cmp_eq_u32 s{S_WAVE}, 3"); a(f"s_cbranch_scc0 {l3}")
                a(f"v_readfirstlane_b32 s74, v{V_TW1}"); a(f"v_mov_b32 v{V_TW1}, s74")
                a.label(l3)
            a(f"buffer_load_dword a199, v{V_TW1}, s[{SRD_W1}:{SRD_W1+3}], 0 offen offset:{128*k}"); HIQ.append(op)
        elif op[0] == "U":
            if k == 0:
                a("s_and_b32 s74, s2, 7"); a("s_lshr_b32 s74, s74, 1"); a("s_lshl_b32 s74, s74, 10")
                a(f"s_and_b32 s75, s{S_WAVE}, 1"); a("s_lshl_b32 s75, s75, 9"); a("s_add_u32 s74, s74, s75")
                a("s_lshr_b32 s75, s2, 3"); a("s_mul_i32 s75, s75, 56")
                a(f"v_min_u32 v{V_TW2}, 55, v2"); a(f"v_add_u32 v{V_TW2}, s75, v{V_TW2}"); a(f"v_lshlrev_b32 v{V_TW2}, 12, v{V_TW2}"); a(f"v_add_u32 v{V_TW2}, s74, v{V_TW2}")
            a(f"buffer_load_dword a199, v{V_TW2}, s[{SRD_W2}:{SRD_W2+3}], 0 offen offset:{128*k}"); HIQ.append(op)
        elif op[0] == "C":
            a("v_lshlrev_b32 v255, 4, v2")
            for i in (2 * k, 2 * k + 1):
                a(f"buffer_load_dwordx4 a[{A_CP+4*i}:{A_CP+4*i+3}], v255, s[{SRD_W2}:{SRD_W2+3}], s79 offen offset:{(i%4)*1024}")
                if i % 4 == 3: a("s_add_u32 s79, s79, 4096")
                HIQ.append("C")
        else:
            if k == 0:
                a(f"s_waitcnt vmcnt({hi_younger('C')})")
                w2copy_dst(a)
            for x in w2copy_store(a, k): a(x)
            HIQ.append("S")
    a.label(l)

A_CP = 200
def w2copy_dst(a):
    a("v_lshrrev_b32 v245, 3, v2")
    a(f"s_mov_b32 s74, {W2R_TILE}")
    a("v_mul_lo_u32 v245, v245, s74")
    a(f"v_and_b32 v{V_TW2}, 7, v2")
    a(f"v_lshl_add_u32 v{V_TW2}, v{V_TW2}, 4, v245")
    a(f"s_and_b32 s69, s{S_WAVE}, 1")
    a("s_mul_i32 s68, s2, 896")

def w2copy_store(a, i):
    off = lambda m: (m % 4) * 8 * W2R_TILE + (m // 4) * 128
    return [f"s_mov_b32 s74, {off(14 + i) - off(i)}",
            f"s_mul_i32 s74, s74, s69",
            f"s_add_u32 s74, s74, s68",
            f"s_add_u32 s74, s74, {off(i)}",
            f"buffer_store_dwordx4 a[{A_CP+4*i}:{A_CP+4*i+3}], v{V_TW2}, s[{SRD_W2R}:{SRD_W2R+3}], s74 offen sc1"]

def build(path):
    a = Asm()
    hdr = open("cdna_kernels/" + NAME + ".s.ref").read().split("; Override launch geometry")[0]
    txt = hdr + f"; @launch grid=(256,1,1) block=(256,1,1) lds={LDS_TOTAL}\n" + '.amdgcn_target "amdgcn-amd-amdhsa--gfx950"\n'
    d = gen_fused(a)
    body = a.finalize()
    if ALIGN:
        import asmlib
        body, np_, nn_ = asmlib.align8(body)
        print("align8: promoted", np_, "nops", nn_)
    txt += body + d
    open(path, "w").write(txt)
    open(path + ".names", "w").write("".join(f"{k} {v}\n" for k, v in ST_NAMES.items()))

if __name__ == "__main__":
    import sys, common
    if "--stamp" in sys.argv:
        common.STAMP = True; sys.argv.remove("--stamp")
    if "--notouch" in sys.argv: TOUCH = False
    if "--remap" in sys.argv: REMAP = True
    for x in sys.argv:
        if x.startswith("--bulk="): BULK = eval(x[7:])
        if x.startswith("--thr="): DIAG_THR = int(x[6:])
        if x == "--nobgconv": NOBGCONV = True
        if x == "--nort0": RETOUCH0 = False
        if x.startswith("--ln2s="): LN2STRIDE = int(x[7:])
        if x.startswith("--tailbg="): TAILBG = int(x[9:])
        if x.startswith("--b1="): B1N, B1S = eval(x[5:])
        if x.startswith("--outmod="): OUTMOD = x[9:]
        if x == "--nocopy":
            NOCOPY = True
            BULK = {"P0": ["T0"], "P1": ["T1"], "P2": ["T2"], "P3": ["F0", "F1", "T3"], "P4": ["F2", "F3"], "P5": ["F4", "F5"], "c4": ["U0"], "c7": ["U1"], "c10": ["U2"], "c13": ["U3"]}
        if x.startswith("--d0="): D0_G1 = D0_G2 = int(x[5:])
    if "--sjrot" in sys.argv: SJROT = 2
    if "--touchrev" in sys.argv: TOUCHREV = True
    if "--noalign" in sys.argv: ALIGN = False
    if "--nocodepf" in sys.argv: CODEPF = False
    if "--dbgst" in sys.argv:
        DBGST = ["LN1 done (stores issued)", "B1 arrived", "Kgen done", "B1 passed", "conv start (U in LDS)", "conv main done", "B2 arrived", "B2 passed",
                 "LN2 done (stores issued)", "B3 passed", "G1 main done", "B4 arrived", "B4 passed", "G2 main done", "end"]
    build(sys.argv[1])
```
